```python
import torch

def _softmax(x, axis=-1):
    return torch.softmax(x, dim=axis)
def _gelu(x):
    return torch.nn.functional.gelu(x, approximate="tanh")
def _silu(x):
    return torch.nn.functional.silu(x)
def _sigmoid(x):
    return torch.sigmoid(x)
def _layernorm(x, axis=-1, eps=1e-5):
    m = x.mean(dim=axis, keepdim=True)
    v = x.var(dim=axis, keepdim=True, unbiased=False)
    return (x - m) / torch.sqrt(v + eps)
def _scatter_add(tgt, idx, src, axis=0):
    return tgt.clone().index_add_(axis, idx, src)
def _segment_sum(src, seg, n):
    out = torch.zeros((n,) + src.shape[1:], dtype=src.dtype)
    return out.index_add_(0, seg, src)
def _pad(x, pw):
    flat = tuple(v for pair in reversed(pw) for v in pair)
    return torch.nn.functional.pad(x, flat)

kernel_name = 'sequential_preLN__mha_block_cached__dense_activation_silu__decode'

def setup_inputs():

    _w = (lambda a: (lambda t: t.to(torch.bfloat16) if t.is_floating_point() else t)(torch.as_tensor(a)))
    def _A_setup():
        B, Sq, D = 4, 1, 448
        H, Sk, Dh = 16, 8192, 256
        return {
            "x": _w((lambda *s: torch.randn(*s, dtype=torch.bfloat16) * 0.05)(B, Sq, D)),
            "k_cache": _w((lambda *s: torch.randn(*s, dtype=torch.bfloat16) * 3.2)(B, H, Sk, Dh)),
            "v_cache": _w((lambda *s: torch.randn(*s, dtype=torch.bfloat16) * 0.8)(B, H, Sk, Dh)),
            "wq": _w((lambda *s: torch.randn(*s, dtype=torch.bfloat16) * 3.2)(D, H * Dh) * (D ** -0.5)),
            "wo": _w((lambda *s: torch.randn(*s, dtype=torch.bfloat16) * 0.8)(H * Dh, D) * ((H * Dh) ** -0.5)),
        }
    _A_in = _A_setup()

    def _B_setup():
        B, S, D, F = 4, 1, 448, 1792
        return {
            "x": _w((lambda *s: torch.randn(*s, dtype=torch.bfloat16) * 0.05)(B, S, D)),
            "w1": _w((lambda *s: torch.randn(*s, dtype=torch.bfloat16) * 3.2)(D, F) * (D ** -0.5)),
            "w2": _w((lambda *s: torch.randn(*s, dtype=torch.bfloat16) * 0.8)(F, D) * (F ** -0.5)),
        }
    _B_in = _B_setup()

    return {
        "A_x": _A_in["x"],
        "A_k_cache": _A_in["k_cache"],
        "A_v_cache": _A_in["v_cache"],
        "A_wq": _A_in["wq"],
        "A_wo": _A_in["wo"],
        "B_x": _B_in["x"],
        "B_w1": _B_in["w1"],
        "B_w2": _B_in["w2"],
    }

def reference(A_x, A_k_cache, A_v_cache, A_wq, A_wo, B_x, B_w1, B_w2):
    def _A_ref(x, k_cache, v_cache, wq, wo):
        B, Sq, D = x.shape
        H, Dh = 16, 256
        q = (lambda x, *d: x.permute(*d))((x @ wq).reshape(B, Sq, H, Dh), 0, 2, 1, 3)
        scores = torch.einsum("bhqd,bhkd->bhqk", q, k_cache) * (Dh ** -0.5)
        p = _softmax(scores, axis=-1)
        o = torch.einsum("bhqk,bhkd->bhqd", p, v_cache)
        return (lambda x, *d: x.permute(*d))(o, 0, 2, 1, 3).reshape(B, Sq, H * Dh) @ wo

    def _B_ref(x, w1, w2):
        h = torch.einsum("bsd,df->bsf", x, w1)
        h = _silu(h)
        out = torch.einsum("bsf,fd->bsd", h, w2)
        return out

    x = A_x
    h = x + _A_ref(_layernorm(x, axis=-1), A_k_cache, A_v_cache, A_wq, A_wo)
    h2 = h + _B_ref(_layernorm(h, axis=-1), B_w1, B_w2)
    return h2
```

```python
import re


class R:
    def __init__(self, kind, idx, n=1):
        self.kind, self.idx, self.n = kind, idx, n

    def __str__(self):
        if self.n == 1:
            return f'{self.kind}{self.idx}'
        return f'{self.kind}[{self.idx}:{self.idx + self.n - 1}]'

    __repr__ = __str__

    def __getitem__(self, i):
        if isinstance(i, slice):
            a = i.start or 0
            b = i.stop if i.stop is not None else self.n
            assert 0 <= a < b <= self.n
            return R(self.kind, self.idx + a, b - a)
        assert 0 <= i < self.n, (i, self.n)
        return R(self.kind, self.idx + i)

    def regs(self):
        return {(self.kind, self.idx + k) for k in range(self.n)}


def V(i, n=1):
    return R('v', i, n)


def S(i, n=1):
    return R('s', i, n)


VCC = 'vcc'
EXEC = 'exec'
M0 = 'm0'

TRANS = {'v_exp_f32', 'v_log_f32', 'v_rcp_f32', 'v_rsq_f32', 'v_sqrt_f32', 'v_sin_f32', 'v_cos_f32'}


def regset(ops):
    out = set()
    for o in ops:
        if isinstance(o, R):
            out |= o.regs()
        elif isinstance(o, str):
            t = o.lstrip('-')
            if t == 'vcc':
                out |= {('s', 'vcc')}
            elif t == 'exec':
                out |= {('s', 'exec')}
            elif t == 'm0':
                out |= {('s', 'm0')}
        elif isinstance(o, Neg):
            out |= o.r.regs()
    return out


class Neg:
    def __init__(self, r):
        self.r = r

    def __str__(self):
        return f'-{self.r}'


def fmt(o):
    if isinstance(o, float):
        import struct
        inl = {0.0: '0', 0.5: '0.5', -0.5: '-0.5', 1.0: '1.0', -1.0: '-1.0', 2.0: '2.0', -2.0: '-2.0', 4.0: '4.0', -4.0: '-4.0'}
        if o in inl:
            return inl[o]
        return hex(struct.unpack('<I', struct.pack('<f', o))[0])
    if isinstance(o, int):
        if -16 <= o <= 64:
            return str(o)
        return hex(o & 0xffffffff)
    return str(o)


class Ins:
    __slots__ = ('kind', 'rd', 'wr', 'text', 'srcc', 'ab', 'wide_store_data', 'dpp', 'states')

    def __init__(self, kind, rd, wr, text):
        self.kind, self.rd, self.wr, self.text = kind, rd, wr, text
        self.srcc = set()
        self.ab = set()
        self.wide_store_data = set()
        self.dpp = False
        self.states = 1


VALU_KINDS = ('valu', 'trans', 'readlane', 'permlane')


class Asm:
    def __init__(self):
        self.lines = []
        self.hist = []
        self.vm_issued = 0
        self.uid = 0

    def raw(self, t):
        self.lines.append(t)

    def comment(self, t):
        self.lines.append(f'  ; {t}')

    def label(self, name):
        self.flush()
        self.lines.append(f'{name}:')

    def newlabel(self, base):
        self.uid += 1
        return f'L_{base}_{self.uid}'

    def flush(self):
        need = 0
        dist = 0
        for p in reversed(self.hist):
            m = 0
            if p.kind == 'mfma':
                m = 8
            elif p.kind in VALU_KINDS:
                m = 5 if any(k == 's' for k, _ in p.wr) else 2
            elif p.wide_store_data:
                m = 2
            elif p.kind == 'salu' and ('s', 'm0') in p.wr:
                m = 1
            need = max(need, m - dist)
            dist += p.states
            if dist > 12:
                break
        if need > 0:
            self.nop(need)
        self.hist = []

    def nop(self, n):
        while n > 0:
            k = min(n, 16)
            self.lines.append(f'  s_nop {k - 1}')
            i = Ins('nop', set(), set(), '')
            i.states = k
            self.hist.append(i)
            n -= k

    def _required(self, c):
        need = 0
        dist = 0
        for p in reversed(self.hist):
            req = 0
            pv = {r for r in p.wr if r[0] == 'v'}
            ps = {r for r in p.wr if r[0] == 's'}
            if p.kind in VALU_KINDS:
                if pv & c.rd:
                    if c.dpp:
                        req = max(req, 2)
                    if c.kind == 'mfma':
                        req = max(req, 2)
                    if c.kind == 'readlane':
                        req = max(req, 1)
                    if c.kind == 'permlane':
                        req = max(req, 2)
                    if p.kind == 'trans' and c.kind != 'trans':
                        req = max(req, 1)
                if ps & c.rd:
                    if c.kind in VALU_KINDS or c.kind == 'mfma':
                        req = max(req, 4 if c.kind == 'readlane' else 2)
                    if c.kind in ('vmem',):
                        req = max(req, 5)
                    if c.kind == 'salu':
                        req = max(req, 1)
            if p.kind == 'mfma':
                if c.kind == 'mfma':
                    if pv & c.ab:
                        req = max(req, 8)
                    if pv & c.srcc and pv != c.srcc:
                        req = max(req, 6)
                    if pv & c.wr and pv != c.srcc:
                        req = max(req, 8)
                else:
                    if pv & (c.rd | c.wr):
                        req = max(req, 8)
                    if c.kind in VALU_KINDS and (p.srcc & c.wr):
                        req = max(req, 3)
            if p.wide_store_data & c.wr:
                req = max(req, 2)
            if p.kind == 'salu' and ('s', 'm0') in p.wr and ('s', 'm0') in c.rd:
                req = max(req, 1)
            need = max(need, req - dist)
            dist += p.states
            if dist > 12:
                break
        return need

    def emit(self, ins):
        n = self._required(ins)
        if n > 0:
            self.nop(n)
        self.lines.append('  ' + ins.text)
        self.hist.append(ins)
        if len(self.hist) > 40:
            self.hist = self.hist[-24:]
        return ins

    def valu(self, op, dst, *srcs, mods='', rmw=False):
        dsts = dst if isinstance(dst, tuple) else (dst,)
        kind = 'trans' if op in TRANS else 'valu'
        if op in ('v_readlane_b32', 'v_readfirstlane_b32'):
            kind = 'readlane'
        rd = regset(srcs)
        wr = regset(dsts)
        if rmw or op.startswith('v_fmac') or op.startswith('v_dot2c'):
            rd |= wr
        if op.startswith('v_permlane'):
            kind = 'permlane'
            rd |= wr
            wr |= regset(srcs)
        txt = f'{op} ' + ', '.join(fmt(o) for o in list(dsts) + list(srcs))
        if mods:
            txt += ' ' + mods
        i = Ins(kind, rd, wr, txt)
        if '_dpp' in op:
            i.dpp = True
            if 'row_mask:0xf' not in mods:
                i.rd |= wr
        return self.emit(i)

    def dpp(self, op, dst, *srcs, ctrl, row_mask=0xf):
        return self.valu(op + '_dpp', dst, *srcs, mods=f'{ctrl} row_mask:{hex(row_mask)} bank_mask:0xf')

    def salu(self, op, dst, *srcs):
        dsts = [] if dst is None else [dst]
        rd = regset(srcs)
        wr = regset(dsts)
        txt = f'{op} ' + ', '.join(fmt(o) for o in dsts + list(srcs))
        return self.emit(Ins('salu', rd, wr, txt))

    def mfma(self, d, a, b, c):
        rd = regset([a, b, c])
        i = Ins('mfma', rd, regset([d]), f'v_mfma_f32_16x16x32_bf16 {d}, {a}, {b}, {fmt(c)}')
        i.ab = regset([a, b])
        i.srcc = regset([c])
        return self.emit(i)

    def vload(self, op, dst, voff, srd, soff=0, offset=0, flags=''):
        assert 0 <= offset < 4096
        rd = regset([voff, srd, soff])
        txt = f'{op} {dst}, {voff}, {srd}, {fmt(soff)} offen'
        if offset:
            txt += f' offset:{offset}'
        if flags:
            txt += ' ' + flags
        self.emit(Ins('vmem', rd, regset([dst]), txt))
        self.vm_issued += 1
        return self.vm_issued

    def vload_lds(self, voff, srd, soff=0, offset=0, flags=''):
        rd = regset([voff, srd, soff, 'm0'])
        txt = f'buffer_load_dwordx4 {voff}, {srd}, {fmt(soff)} offen'
        if offset:
            txt += f' offset:{offset}'
        if flags:
            txt += ' ' + flags
        txt += ' lds'
        self.emit(Ins('vmem', rd, set(), txt))
        self.vm_issued += 1
        return self.vm_issued

    def vstore(self, op, data, voff, srd, soff=0, offset=0, flags='', returns=False):
        assert 0 <= offset < 4096
        rd = regset([data, voff, srd, soff])
        txt = f'{op} {data}, {voff}, {srd}, {fmt(soff)} offen'
        if offset:
            txt += f' offset:{offset}'
        if flags:
            txt += ' ' + flags
        i = Ins('vmem', rd, regset([data]) if returns else set(), txt)
        if data.n >= 3:
            i.wide_store_data = data.regs()
        self.emit(i)
        self.vm_issued += 1
        return self.vm_issued

    def wait_vm(self, seq):
        n = self.vm_issued - seq
        assert n >= 0
        if n > 63:
            n = 63
            raise AssertionError('vmcnt overflow')
        self.emit(Ins('wait', set(), set(), f's_waitcnt vmcnt({n})'))

    def wait_vm0(self):
        self.emit(Ins('wait', set(), set(), 's_waitcnt vmcnt(0)'))

    def wait_lgkm(self, n=0):
        self.emit(Ins('wait', set(), set(), f's_waitcnt lgkmcnt({n})'))

    def ds(self, op, *ops, offset=0):
        assert 0 <= offset < 65536
        if op.startswith('ds_read'):
            rd, wr = regset(ops[1:]), regset(ops[:1])
        else:
            rd, wr = regset(ops), set()
        txt = f'{op} ' + ', '.join(fmt(o) for o in ops)
        if offset:
            txt += f' offset:{offset}'
        return self.emit(Ins('ds', rd, wr, txt))

    def barrier(self):
        self.emit(Ins('misc', set(), set(), 's_barrier'))

    def misc(self, txt):
        self.emit(Ins('misc', set(), set(), txt))

    def branch(self, op, label):
        self.flush()
        self.emit(Ins('misc', set(), set(), f'{op} {label}'))

    def text(self):
        return '\n'.join(self.lines) + '\n'
```

```python
import math
import os
import sys

sys.path.insert(0, os.path.dirname(os.path.abspath(__file__)))
from asmlib import Asm, V, S, R, Neg

NAME = 'sequential_preLN__mha_block_cached__dense_activation_silu__decode'
KNAME = NAME + '_kernel'

NWG = 256
NF = 28
LOG2E = 1.4426950408889634
CS = LOG2E / 16.0

WS_ACC = 0
WS_MAIL = 8192
WS_INBOX = 32768
WS_BYTES = 1 << 20
WS_DBG = 1 << 20
DB_INITF = 40


def DB_CNT(b):
    return 64 * b + 32


L_XN = 0
L_QP = 4096
L_QBF = 12288
L_OACC = 13312
L_YACC = 14336
L_XN2 = 16384
L_HB = 20480
L_GB = 24576
L_W1 = 32768
L_W2 = L_W1 + 57344
LDS_BYTES = L_W2 + 57344

SPIN_BOUND = 200000


def build(debug=False, ring=3):
    a = Asm()
    A = a.raw
    hdr = open(os.path.join(os.path.dirname(os.path.abspath(__file__)), '..', 'cdna_kernels', NAME + '.s.ref')).read().split('\n')
    for ln in hdr:
        if ln.startswith(';') and '@launch' not in ln:
            A(ln)
        elif '@launch' in ln:
            A(f'; @launch grid=({NWG},1,1) block=(512,1,1) lds={LDS_BYTES}')
        else:
            break
    A('.amdgcn_target "amdgcn-amd-amdhsa--gfx950"')
    A('.text')
    A(f'.globl {KNAME}')
    A('.p2align 8')
    A(f'.type {KNAME},@function')
    A(f'{KNAME}:')

    sID = S(2)
    sW, sB, sH, sSP = S(4), S(5), S(6), S(7)
    sT0, sT1, sT2, sT3, sT4, sT5 = S(8), S(9), S(10), S(11), S(12), S(13)
    sTile = S(14)
    sOff = S(15)
    P = lambda i: S(16 + 2 * i, 2)
    pOUT, pDBG, pWS = S(32, 2), S(34, 2), S(36, 2)
    sM = S(38)
    sL = S(39)
    rK, rV, rWQ, rWO, rX, rW1, rW2, rOUT, rDBG, rWS, rWSF = [S(40 + 4 * i, 4) for i in range(11)]
    mT = [S(84 + 2 * t, 2) for t in range(4)]
    mJ8 = S(92, 2)
    m56 = S(94, 2)
    mG2 = S(96, 2)
    sX0, sX1 = S(98), S(99)
    sXP = S(100, 2)

    vTid = V(0)
    vLane = V(1)
    vJ = V(2)
    vG = V(3)
    vKoff, vKoff2, vVoff, vVoff2 = V(4), V(5), V(6), V(7)
    vMask = V(8, 4)
    vWoOff, vWoRem = V(12), V(13)
    vF = V(14)
    vL16 = V(15)
    vT = V(16, 8)
    RB = V(24, 24)
    RING = V(48, 96)
    W = V(144, 96)
    SC = V(240, 16)
    WQ = V(144, 112)

    dbg_slot = [0]

    def dump(reg, slot):
        if not debug:
            return
        a.salu('s_lshl_b32', sX0, sID, 3)
        a.salu('s_add_u32', sX0, sX0, sW)
        a.salu('s_lshl_b32', sX0, sX0, 14)
        a.salu('s_add_u32', sX0, sX0, WS_DBG + slot * 256)
        a.valu('v_lshlrev_b32', V(23), 2, vLane)
        a.vstore('buffer_store_dword', reg, V(23), rWSD, sX0)

    def srd(r, ptr, nbytes, off=None):
        if off is None:
            a.salu('s_mov_b32', r[0], ptr[0])
            a.salu('s_mov_b32', r[1], ptr[1])
        else:
            a.salu('s_add_u32', r[0], ptr[0], off)
            a.salu('s_addc_u32', r[1], ptr[1], 0)
        a.salu('s_mov_b32', r[2], nbytes)
        a.salu('s_mov_b32', r[3], 0x00020000)

    def wave_red(op, v, sdst, quads_equal=False):
        if quads_equal:
            a.dpp(op, v, v, v, ctrl='row_ror:4')
            a.dpp(op, v, v, v, ctrl='row_ror:8')
        else:
            a.dpp(op, v, v, v, ctrl='quad_perm:[1,0,3,2]')
            a.dpp(op, v, v, v, ctrl='quad_perm:[2,3,0,1]')
            a.dpp(op, v, v, v, ctrl='row_half_mirror')
            a.dpp(op, v, v, v, ctrl='row_mirror')
        a.dpp(op, v, v, v, ctrl='row_bcast:15', row_mask=0xa)
        a.dpp(op, v, v, v, ctrl='row_bcast:31', row_mask=0xc)
        a.valu('v_readlane_b32', sdst, v, 63)

    def rbf(dst, src):
        a.valu('v_cvt_pk_bf16_f32', dst, src, src)
        a.valu('v_and_b32', dst, 0xffff0000, dst)

    def unpack8(xf, raw):
        for i in range(4):
            a.valu('v_lshlrev_b32', xf[2 * i], 16, raw[i])
            a.valu('v_and_b32', xf[2 * i + 1], 0xffff0000, raw[i])

    def layernorm(xf, t):
        a.valu('v_add_f32', t[0], xf[0], xf[1])
        a.valu('v_add_f32', t[1], xf[2], xf[3])
        a.valu('v_add_f32', t[2], xf[4], xf[5])
        a.valu('v_add_f32', t[3], xf[6], xf[7])
        a.valu('v_add_f32', t[0], t[0], t[1])
        a.valu('v_add_f32', t[2], t[2], t[3])
        a.valu('v_add_f32', t[0], t[0], t[2])
        wave_red('v_add_f32', t[0], sX0)
        a.valu('v_mov_b32', t[0], sX0)
        a.valu('v_mul_f32', t[0], 1.0 / 448.0, t[0])
        a.valu('v_sub_f32', t[1], xf[0], t[0])
        a.valu('v_mul_f32', t[2], t[1], t[1])
        for i in range(1, 8):
            a.valu('v_sub_f32', t[1], xf[i], t[0])
            a.valu('v_fmac_f32', t[2], t[1], t[1])
        a.valu('v_cndmask_b32', t[2], 0, t[2], m56)
        wave_red('v_add_f32', t[2], sX1)
        rbf(t[0], t[0])
        a.valu('v_mov_b32', t[2], sX1)
        a.valu('v_mul_f32', t[2], 1.0 / 448.0, t[2])
        rbf(t[2], t[2])
        a.valu('v_add_f32', t[2], 1e-5, t[2])
        rbf(t[2], t[2])
        a.valu('v_sqrt_f32', t[2], t[2])
        rbf(t[2], t[2])
        a.valu('v_rcp_f32', t[2], t[2])
        for i in range(0, 8, 2):
            a.valu('v_sub_f32', xf[i], xf[i], t[0])
            a.valu('v_sub_f32', xf[i + 1], xf[i + 1], t[0])
            a.valu('v_cvt_pk_bf16_f32', t[1], xf[i], xf[i + 1])
            a.valu('v_lshlrev_b32', xf[i], 16, t[1])
            a.valu('v_and_b32', xf[i + 1], 0xffff0000, t[1])
            a.valu('v_mul_f32', xf[i], xf[i], t[2])
            a.valu('v_mul_f32', xf[i + 1], xf[i + 1], t[2])

    def spin_until(load_fn, cond_fn, first_check=True):
        done = a.newlabel('done')
        loop = a.newlabel('spin')
        if first_check:
            cond_fn()
            a.branch('s_cbranch_scc1', done)
        save = a.vm_issued
        a.salu('s_mov_b32', sT5, SPIN_BOUND)
        a.label(loop)
        load_fn()
        a.wait_vm0()
        cond_fn()
        a.branch('s_cbranch_scc1', done)
        a.misc('s_sleep 1')
        a.salu('s_sub_u32', sT5, sT5, 1)
        a.salu('s_cmp_lg_u32', None, sT5, 0)
        a.branch('s_cbranch_scc1', loop)
        a.label(done)
        a.vm_issued = save

    a.salu('s_cmp_ge_u32', None, sID, NWG)
    a.branch('s_cbranch_scc1', 'L_end')
    a.misc('s_load_dwordx16 s[16:31], s[0:1], 0')
    a.misc('s_load_dwordx4 s[32:35], s[0:1], 64')
    a.misc('s_load_dwordx2 s[36:37], s[0:1], 80')
    a.valu('v_lshrrev_b32', vT[0], 6, vTid)
    a.valu('v_and_b32', vLane, 63, vTid)
    a.valu('v_readfirstlane_b32', sW, vT[0])
    a.valu('v_and_b32', vJ, 15, vTid)
    a.valu('v_lshrrev_b32', vG, 4, vLane)
    a.valu('v_bfe_u32', vT[1], vLane, 2, 2)
    a.valu('v_and_b32', vT[2], 3, vLane)
    a.valu('v_lshlrev_b32', vT[1], 9, vT[1])
    a.valu('v_lshlrev_b32', vT[2], 4, vT[2])
    a.valu('v_lshl_add_u32', vKoff, vG, 6, vT[1])
    a.valu('v_add_u32', vKoff, vKoff, vT[2])
    a.valu('v_add_u32', vKoff2, 4096, vKoff)
    a.valu('v_lshlrev_b32', vL16, 4, vLane)
    a.salu('s_lshr_b32', sSP, sID, 3)
    a.salu('s_and_b32', sSP, sSP, 3)
    a.salu('s_and_b32', sH, sID, 7)
    a.salu('s_lshr_b32', sT0, sID, 2)
    a.salu('s_and_b32', sT0, sT0, 8)
    a.salu('s_or_b32', sH, sH, sT0)
    a.salu('s_lshr_b32', sB, sID, 6)
    a.salu('s_lshl_b32', sT0, sB, 4)
    a.salu('s_add_u32', sT0, sT0, sH)
    a.salu('s_lshl_b32', sT1, sT0, 2)
    a.salu('s_add_u32', sT1, sT1, sSP)
    a.salu('s_lshl_b32', sT1, sT1, 20)
    a.salu('s_mul_i32', sT2, sB, 896)
    a.salu('s_lshl_b32', sTile, sW, 13)
    a.wait_lgkm(0)
    srd(rX, P(0), 896, sT2)
    srd(rK, P(1), 1 << 20, sT1)
    xraw = RB[0:4]
    q_x = a.vload('buffer_load_dwordx4', xraw, vL16, rX)

    tile_seq = [('k', n) for n in range(16)] + [('v', n) for n in range(16)]
    tile_last = {}

    def issue_tile(idx):
        kind, n = tile_seq[idx]
        slot = RING[(idx % ring) * 32:(idx % ring) * 32 + 32]
        a.salu('s_add_u32', sOff, sTile, n * 65536)
        for i in range(8):
            o = (i // 2) * 2048 + (i % 2) * 256
            if kind == 'k':
                vo, r = (vKoff if o < 4096 else vKoff2), rK
            else:
                vo, r = (vVoff if o < 4096 else vVoff2), rV
            q = a.vload('buffer_load_dwordx4', slot[4 * i:4 * i + 4], vo, r, sOff, o % 4096, 'nt')
        tile_last[idx] = q

    issue_tile(0)
    srd(rWQ, P(3), 448 * 8192)
    srd(rWS, pWS, WS_BYTES)
    a.valu('v_lshlrev_b32', vT[1], 13, vG)
    a.valu('v_lshl_add_u32', vT[1], vJ, 4, vT[1])
    a.salu('s_mul_i32', sT2, sW, 56 * 8192)
    a.salu('s_lshl_b32', sT3, sH, 9)
    a.salu('s_add_u32', sT2, sT2, sT3)
    for G in range(14):
        if G:
            a.salu('s_add_u32', sT2, sT2, 4 * 8192)
        for hf in range(2):
            q_wq = a.vload('buffer_load_dwordx4', WQ[(G * 2 + hf) * 4:(G * 2 + hf) * 4 + 4], vT[1], rWQ, sT2, hf * 256)
    a.salu('s_lshl_b32', sT3, sT0, 8)
    a.salu('s_lshl_b32', sT4, sSP, 6)
    a.salu('s_add_u32', sT3, sT3, sT4)
    a.salu('s_lshl_b32', sT4, sW, 3)
    a.salu('s_add_u32', sT3, sT3, sT4)
    a.salu('s_add_u32', S(3), sT3, WS_MAIL)
    sSlot = S(3)
    a.valu('v_mov_b32', vT[2], -1)
    a.valu('v_mov_b32', vT[3], -1)
    a.valu('v_lshlrev_b32', vT[4], 24, vLane)
    a.vstore('buffer_store_dwordx2', vT[2:4], vT[4], rWS, sSlot, 0, 'sc1')
    a.salu('s_cmp_lt_u32', None, sID, NF)
    a.salu('s_cselect_b32', sT4, WS_BYTES, 0)
    srd(rWSF, pWS, 0)
    a.salu('s_mov_b32', rWSF[2], sT4)
    a.salu('s_cmp_lt_u32', None, sW, 7)
    a.salu('s_cselect_b32', sT3, -1, 0)
    for i in range(4):
        a.valu('v_mov_b32', RB[4 + i], sT3)
    a.salu('s_mul_i32', sT3, sID, 7168)
    a.salu('s_lshl_b32', sT4, sW, 10)
    a.salu('s_add_u32', sT3, sT3, sT4)
    a.salu('s_add_u32', sT3, sT3, WS_INBOX)
    a.salu('s_lshl_b32', sT4, sID, 8)
    a.salu('s_add_u32', sT4, sT4, WS_ACC)
    a.salu('s_cmp_lt_u32', None, sW, 7)
    a.salu('s_cselect_b32', sT3, sT3, sT4)
    a.salu('s_cselect_b32', sT4, 0, 24)
    a.valu('v_lshrrev_b32', vT[5], 4, vLane)
    a.valu('v_lshlrev_b32', vT[5], sT4, vT[5])
    a.valu('v_and_b32', vT[5], 0xff000000, vT[5])
    a.valu('v_add_u32', vT[5], vT[5], vL16)
    q_init = a.vstore('buffer_store_dwordx4', RB[4:8], vT[5], rWSF, sT3, 0, 'sc1')
    srd(rV, P(2), 1 << 20, sT1)
    a.valu('v_lshlrev_b32', vVoff, 9, vG)
    a.valu('v_lshl_add_u32', vVoff, vJ, 4, vVoff)
    a.valu('v_add_u32', vVoff2, 4096, vVoff)
    for idx in range(1, ring):
        issue_tile(idx)
    srd(rWO, P(4), 4096 * 896)
    srd(rOUT, pOUT, 4 * 896)
    srd(rDBG, pDBG, 256)
    a.salu('s_cmp_lt_u32', None, sID, NF)
    a.salu('s_cselect_b32', sT4, 448 * 3584, 0)
    srd(rW1, P(6), 0)
    a.salu('s_mov_b32', rW1[2], sT4)
    srd(rW2, P(7), 0)
    a.salu('s_mov_b32', rW2[2], sT4)
    if debug:
        rWSD = S(16, 4)
        a.salu('s_mov_b32', sXP[0], P(0)[0])
        a.salu('s_mov_b32', sXP[1], P(0)[1])
        srd(rWSD, pWS, (1 << 20) + (64 << 20))
    else:
        a.salu('s_mov_b32', sXP[0], P(0)[0])
        a.salu('s_mov_b32', sXP[1], P(0)[1])
    a.valu('v_lshrrev_b32', vT[2], 2, vJ)
    for t in range(4):
        a.valu('v_cmp_eq_u32_e64', mT[t], t, vT[2])
    a.valu('v_cmp_gt_u32_e64', mJ8, 8, vJ)
    a.valu('v_cmp_gt_u32_e64', m56, 56, vLane)
    a.valu('v_cmp_gt_u32_e64', mG2, 2, vG)
    a.valu('v_and_b32', vT[2], 1, vJ)
    a.valu('v_lshlrev_b32', vT[2], 4, vT[2])
    a.valu('v_mov_b32', vT[3], 0xffff)
    a.valu('v_lshlrev_b32', vT[3], vT[2], vT[3])
    a.valu('v_bfe_u32', vT[2], vJ, 1, 2)
    for r in range(4):
        a.valu('v_cmp_eq_u32', 'vcc', r, vT[2])
        a.valu('v_cndmask_b32', vMask[r], 0, vT[3], 'vcc')
    a.valu('v_mul_u32_u24', vWoOff, 896, vG)
    a.valu('v_lshl_add_u32', vWoOff, vJ, 4, vWoOff)
    a.valu('v_and_b32', vT[2], 7, vJ)
    a.valu('v_lshlrev_b32', vT[2], 4, vT[2])
    a.valu('v_lshrrev_b32', vT[3], 3, vJ)
    a.valu('v_mul_u32_u24', vT[3], 8 * 896, vT[3])
    a.valu('v_mul_u32_u24', vWoRem, 896, vG)
    a.valu('v_add3_u32', vWoRem, vWoRem, vT[2], vT[3])
    a.valu('v_add_u32', vWoRem, 768, vWoRem)
    a.valu('v_mov_b32', RB[8], 0)
    a.valu('v_mov_b32', RB[9], 0)
    a.valu('v_mov_b32', RB[10], 0)
    a.valu('v_mov_b32', RB[11], 0)
    a.valu('v_min_u32', vT[2], 191, vTid)
    a.valu('v_lshlrev_b32', vT[2], 4, vT[2])
    a.ds('ds_write_b128', vT[2], RB[8:12], offset=L_OACC)

    xf = RB[8:16]
    a.wait_vm(q_x)
    unpack8(xf, xraw)
    layernorm(xf, vT[0:4])
    a.valu('v_mul_u32_u24', vT[0], 37, vLane)
    a.valu('v_lshrrev_b32', vT[0], 8, vT[0])
    a.valu('v_mul_u32_u24', vT[1], 7, vT[0])
    a.valu('v_sub_u32', vT[1], vLane, vT[1])
    a.valu('v_lshlrev_b32', vT[0], 8, vT[0])
    a.valu('v_lshl_add_u32', vT[0], vT[1], 3, vT[0])
    for e in range(4):
        a.valu('v_cvt_pk_bf16_f32', RB[2 * (e % 2)], xf[e], xf[e])
        a.valu('v_cvt_pk_bf16_f32', RB[2 * (e % 2) + 1], xf[e + 4], xf[e + 4])
        a.ds('ds_write_b64', vT[0], RB[2 * (e % 2):2 * (e % 2) + 2], offset=L_XN + e * 64)
    a.salu('s_lshl_b32', sT2, sW, 8)
    a.valu('v_lshlrev_b32', vT[0], 6, vG)
    a.valu('v_add_u32', vT[0], sT2, vT[0])
    xd = [RB[16:20], RB[20:24]]
    QD0, QD1 = RB[0:4], RB[4:8]
    BT = [RB[8:12], RB[12:16]]
    a.wait_lgkm(0)
    a.ds('ds_read_b128', xd[0], vT[0], offset=L_XN)
    a.ds('ds_read_b128', xd[1], vT[0], offset=L_XN + 16)
    a.wait_vm(max(q_wq, q_init))
    for G in range(14):
        if G % 4 == 0:
            a.wait_lgkm(1 if G < 12 else 0)
        src = xd[(G // 4) % 2][G % 4]
        bt = BT[G % 2]
        for r in range(4):
            a.valu('v_and_b32', bt[r], src, vMask[r])
        if G % 4 == 3 and G + 5 < 16:
            a.ds('ds_read_b128', xd[(G // 4) % 2], vT[0], offset=L_XN + (G // 4 + 2) * 16)
        a.mfma(QD0, WQ[(G * 2) * 4:(G * 2) * 4 + 4], bt, 0 if G == 0 else QD0)
        a.mfma(QD1, WQ[(G * 2 + 1) * 4:(G * 2 + 1) * 4 + 4], bt, 0 if G == 0 else QD1)
    a.valu('v_lshrrev_b32', vT[1], 3, vJ)
    a.valu('v_lshlrev_b32', vT[1], 9, vT[1])
    a.valu('v_lshl_add_u32', vT[1], vG, 7, vT[1])
    a.valu('v_and_b32', vT[2], 7, vJ)
    a.valu('v_lshl_add_u32', vT[1], vT[2], 2, vT[1])
    a.salu('s_lshl_b32', sT2, sW, 10)
    a.valu('v_add_u32', vT[1], sT2, vT[1])
    for r in range(4):
        a.valu('v_cndmask_b32', RB[8 + r], QD1[r], QD0[r], mJ8)
    for r in range(4):
        a.ds('ds_write_b32', vT[1], RB[8 + r], offset=L_QP + r * 32)
    a.wait_lgkm(0)
    a.barrier()
    def init_addr(dst, idreg):
        a.salu('s_sub_u32', sT2, sSlot, WS_MAIL)
        a.salu('s_lshr_b32', sT2, sT2, 8)
        a.salu('s_lshr_b32', sT3, sT2, 3)
        a.salu('s_lshl_b32', sT3, sT3, 2)
        a.salu('s_and_b32', sT2, sT2, 7)
        a.salu('s_lshl_b32', sT2, sT2, 2)
        a.valu('v_lshlrev_b32', dst, 8, idreg)
        a.valu('v_mov_b32', vT[4], sT3)
        a.valu('v_cmp_eq_u32', 'vcc', 0, idreg)
        a.valu('v_cndmask_b32', dst, dst, vT[4], 'vcc')
        a.valu('v_mov_b32', vT[4], DB_INITF)
        a.valu('v_cmp_eq_u32', 'vcc', 1, idreg)
        a.valu('v_cndmask_b32', dst, dst, vT[4], 'vcc')

    init_addr(vT[3], vTid)
    a.salu('s_lshl_b32', sT2, 1, sT2)
    a.salu('s_cmp_lt_u32', None, sID, NF)
    a.salu('s_cselect_b32', sT3, 1, 0)
    a.valu('v_mov_b32', vT[2], sT2)
    a.valu('v_mov_b32', vT[4], sT3)
    a.valu('v_cndmask_b32', vT[2], vT[2], vT[4], 'vcc')
    a.vstore('buffer_atomic_add', vT[2], vT[3], rDBG, 0, 0, 'sc1')
    a.valu('v_and_b32', vT[1], 255, vTid)
    a.valu('v_lshlrev_b32', vT[4], 2, vT[1])
    for wv in range(8):
        a.ds('ds_read_b32', RB[wv], vT[4], offset=L_QP + wv * 1024)
    a.wait_lgkm(0)
    for wv in range(1, 8):
        a.valu('v_add_f32', RB[0], RB[0], RB[wv])
    a.valu('v_cvt_pk_bf16_f32', RB[0], RB[0], RB[0])
    a.valu('v_lshlrev_b32', vT[4], 1, vT[1])
    a.ds('ds_write_b16', vT[4], RB[0], offset=L_QBF)
    dump(RB[0], 0)
    a.wait_lgkm(0)
    a.barrier()
    a.valu('v_and_b32', vT[1], 3, vJ)
    a.valu('v_lshl_add_u32', vT[1], vG, 2, vT[1])
    a.valu('v_lshlrev_b32', vT[1], 4, vT[1])
    a.ds('ds_read_b128', RB[0:4], vT[1], offset=L_QBF)
    a.ds('ds_read_b128', RB[4:8], vT[1], offset=L_QBF + 256)
    a.wait_lgkm(0)
    QB = W[0:32]
    for t in range(4):
        for hf in range(2):
            for r in range(4):
                a.valu('v_cndmask_b32', QB[(t * 2 + hf) * 4 + r], 0, RB[hf * 4 + r], mT[t])

    wo_regs = {}
    part1 = [(G, s) for G in range(8) for s in range(3)][:16]
    part2 = [(G, s) for G in range(8) for s in range(3)][16:24]
    for i, k in enumerate(part1):
        wo_regs[k] = W[32 + 4 * i:36 + 4 * i]
    for i, k in enumerate(part2):
        wo_regs[k] = W[4 * i:4 * i + 4]
    free_slot = (29 % ring)
    for Rr in range(4):
        wo_regs[('rem', Rr)] = RING[free_slot * 32 + 4 * Rr:free_slot * 32 + 4 * Rr + 4]
    sWoBase = sX1
    wo_q = [0]

    def issue_wo(keys):
        a.salu('s_lshl_b32', sT2, sH, 8)
        a.salu('s_lshl_b32', sT3, sW, 5)
        a.salu('s_add_u32', sT2, sT2, sT3)
        a.salu('s_mul_i32', sT2, sT2, 896)
        for k in keys:
            if k[0] == 'rem':
                G = 2 * k[1]
                a.salu('s_add_u32', sT3, sT2, (8 * (G % 4) + 4 * (G // 4)) * 896)
                wo_q[0] = a.vload('buffer_load_dwordx4', wo_regs[k], vWoRem, rWO, sT3, 0)
            else:
                G, s = k
                a.salu('s_add_u32', sT3, sT2, (8 * (G % 4) + 4 * (G // 4)) * 896)
                wo_q[0] = a.vload('buffer_load_dwordx4', wo_regs[k], vWoOff, rWO, sT3, s * 256)

    dma_q = [0]

    def issue_dma(i):
        a.salu('s_mul_i32', sT2, sW, 7)
        a.salu('s_add_u32', sT2, sT2, i % 7)
        a.salu('s_lshl_b32', sT3, sT2, 10)
        if i < 7:
            a.salu('s_add_u32', sT3, sT3, L_W1)
            a.salu('s_mov_b32', 'm0', sT3)
            a.salu('s_mul_i32', sT3, sT2, 8 * 3584)
            a.salu('s_lshl_b32', sT4, sID, 7)
            a.salu('s_add_u32', sT3, sT3, sT4)
            a.valu('v_lshrrev_b32', vT[6], 3, vLane)
            a.valu('v_mul_u32_u24', vT[6], 3584, vT[6])
            a.valu('v_and_b32', vT[7], 7, vLane)
            a.valu('v_lshl_add_u32', vT[6], vT[7], 4, vT[6])
            dma_q[0] = a.vload_lds(vT[6], rW1, sT3)
        else:
            a.salu('s_add_u32', sT4, sT3, L_W2)
            a.salu('s_mov_b32', 'm0', sT4)
            a.salu('s_mul_i32', sT4, sID, 57344)
            a.salu('s_add_u32', sT3, sT3, sT4)
            dma_q[0] = a.vload_lds(vL16, rW2, sT3)

    KD = RB[0:4]
    for n in range(16):
        idx = n
        slot = RING[(idx % ring) * 32:(idx % ring) * 32 + 32]
        a.wait_vm(tile_last[idx])
        for i in range(8):
            a.mfma(KD, slot[4 * i:4 * i + 4], QB[4 * i:4 * i + 4], 0 if i == 0 else KD)
        issue_tile(idx + ring)
        if 2 <= n < 6:
            issue_wo(part1[(n - 2) * 4:(n - 2) * 4 + 4])
        if 6 <= n < 13:
            issue_dma(2 * (n - 6))
            issue_dma(2 * (n - 6) + 1)
        a.dpp('v_mov_b32', vT[0], KD[0], ctrl='quad_perm:[0,0,0,0]')
        a.dpp('v_add_f32', vT[0], KD[1], vT[0], ctrl='quad_perm:[1,1,1,1]')
        a.dpp('v_add_f32', vT[0], KD[2], vT[0], ctrl='quad_perm:[2,2,2,2]')
        a.dpp('v_add_f32', vT[0], KD[3], vT[0], ctrl='quad_perm:[3,3,3,3]')
        rbf(SC[n], vT[0])
    a.valu('v_max3_f32', vT[0], SC[0], SC[1], SC[2])
    for n in range(3, 15, 2):
        a.valu('v_max3_f32', vT[0], vT[0], SC[n], SC[n + 1])
    a.valu('v_max_f32', vT[0], vT[0], SC[15])
    wave_red('v_max_f32', vT[0], sM, quads_equal=True)
    if debug:
        for n in range(16):
            dump(SC[n], 1 + n)
    a.salu('s_mov_b32', sT2, CS)
    for n in range(16):
        a.valu('v_subrev_f32', SC[n], sM, SC[n])
        a.valu('v_mul_f32', SC[n], sT2, SC[n])
        a.valu('v_exp_f32', SC[n], SC[n])
    a.valu('v_add_f32', vT[0], SC[0], SC[1])
    for n in range(2, 16):
        a.valu('v_add_f32', vT[0], vT[0], SC[n])
    wave_red('v_add_f32', vT[0], sL, quads_equal=True)
    for n in range(16):
        a.valu('v_cvt_pk_bf16_f32', SC[n], SC[n], SC[n])
    a.valu('v_mov_b32', vT[2], sM)
    a.valu('v_mov_b32', vT[3], sL)
    a.valu('v_min_u32', vT[2], -2, vT[2])
    a.valu('v_min_u32', vT[3], -2, vT[3])
    a.valu('v_lshlrev_b32', vT[4], 24, vLane)
    a.vstore('buffer_store_dwordx2', vT[2:4], vT[4], rWS, sSlot, 0, 'sc1')

    OD0, OD1 = RB[0:4], RB[4:8]
    PB = RB[8:24]
    vChk = vT[5]
    vMail = vT[6:8]
    for n in range(16):
        idx = 16 + n
        slot = RING[(idx % ring) * 32:(idx % ring) * 32 + 32]
        for T in range(4):
            for r in range(4):
                a.dpp('v_and_b32', PB[4 * T + r], SC[n], vMask[r], ctrl=f'row_newbcast:{4 * T}')
        a.wait_vm(tile_last[idx])
        for T in range(4):
            first = (n == 0 and T == 0)
            a.mfma(OD0, slot[8 * T:8 * T + 4], PB[4 * T:4 * T + 4], 0 if first else OD0)
            a.mfma(OD1, slot[8 * T + 4:8 * T + 8], PB[4 * T:4 * T + 4], 0 if first else OD1)
        if idx + ring < 32:
            issue_tile(idx + ring)
        if n < 2:
            issue_wo(part2[n * 4:n * 4 + 4])
        if n == 2:
            def ld():
                init_addr(vT[3], vLane)
                return a.vload('buffer_load_dword', vChk, vT[3], rDBG, 0, 0, 'sc1')

            q_chk = ld()
        if n == 4:
            a.wait_vm(q_chk)

            def cond():
                a.salu('s_lshr_b32', sT2, sSlot, 6)
                a.salu('s_and_b32', sT2, sT2, 28)
                a.valu('v_readlane_b32', sT3, vChk, 0)
                a.valu('v_readlane_b32', sT4, vChk, 1)
                a.salu('s_lshr_b32', sT3, sT3, sT2)
                a.salu('s_and_b32', sT3, sT3, 15)
                a.salu('s_mul_i32', sT3, sT3, 7)
                a.salu('s_min_u32', sT3, sT3, sT4)
                a.salu('s_cmp_ge_u32', None, sT3, NF)

            spin_until(ld, cond)
        if n == 7:
            def ldm():
                a.salu('s_and_b32', sT2, sSlot, 0xffffff00)
                a.valu('v_and_b32', vT[4], 31, vLane)
                a.valu('v_lshlrev_b32', vT[4], 3, vT[4])
                return a.vload('buffer_load_dwordx2', vMail, vT[4], rWS, sT2, 0, 'sc1')

            q_mail = ldm()
        if n == 9:
            a.wait_vm(q_mail)

            def condm():
                a.valu('v_max_u32', vT[4], vMail[0], vMail[1])
                a.valu('v_cmp_eq_u32_e64', S(10, 2), -1, vT[4])
                a.salu('s_cmp_eq_u64', None, S(10, 2), 0)

            spin_until(ldm, condm)
            a.valu('v_mov_b32', vT[0], vMail[0])
            wave_red('v_max_f32', vT[0], sX0)
            a.salu('s_mov_b32', sT2, CS)
            a.valu('v_subrev_f32', vT[0], sX0, vMail[0])
            a.valu('v_mul_f32', vT[0], sT2, vT[0])
            a.valu('v_exp_f32', vT[0], vT[0])
            a.valu('v_mul_f32', vT[0], vT[0], vMail[1])
            wave_red('v_add_f32', vT[0], sX1)
            a.valu('v_mov_b32', vT[0], sM)
            a.valu('v_subrev_f32', vT[0], sX0, vT[0])
            a.valu('v_mul_f32', vT[0], sT2, vT[0])
            a.valu('v_exp_f32', vT[0], vT[0])
            a.valu('v_mov_b32', vT[1], sX1)
            a.valu('v_mul_f32', vT[1], 0.5, vT[1])
            a.valu('v_rcp_f32', vT[1], vT[1])
            a.valu('v_mul_f32', vF, vT[0], vT[1])
            dump(vF, 17)
        if n == 13:
            issue_wo([('rem', k) for k in range(4)])
        if n == 14:
            a.valu('v_lshrrev_b32', vT[0], 3, vJ)
            a.valu('v_lshl_add_u32', vT[0], vT[0], 2, vG)
            a.valu('v_lshlrev_b32', vT[0], 7, vT[0])
            a.valu('v_and_b32', vT[1], 3, vJ)
            a.valu('v_lshl_add_u32', vT[0], vT[1], 5, vT[0])
            a.valu('v_bfe_u32', vT[1], vJ, 2, 1)
            a.valu('v_lshl_add_u32', vT[0], vT[1], 4, vT[0])
            a.salu('s_lshl_b32', sT2, sW, 7)
            a.valu('v_lshlrev_b32', vT[1], 5, vG)
            a.valu('v_add_u32', vT[1], sT2, vT[1])
            a.valu('v_lshrrev_b32', vT[2], 3, vJ)
            a.valu('v_lshlrev_b32', vT[2], 9, vT[2])
            a.valu('v_lshl_add_u32', vT[2], vG, 7, vT[2])
            a.valu('v_and_b32', vT[3], 7, vJ)
            a.valu('v_lshl_add_u32', vT[2], vT[3], 2, vT[2])
            a.valu('v_and_b32', vT[4], 1, vG)
            a.valu('v_lshlrev_b32', vT[4], 7, vT[4])
            a.valu('v_add_u32', vT[4], 1536, vT[4])
            a.valu('v_lshlrev_b32', vT[5], 7, vG)
            a.valu('v_add_u32', vT[5], 1024, vT[5])
            a.valu('v_cndmask_b32', vT[4], vT[4], vT[5], mJ8)
            a.valu('v_lshl_add_u32', vT[3], vT[3], 2, vT[4])
    vOadd, vOrd, vYa, vYb = vT[0], vT[1], vT[2], vT[3]

    for r in range(4):
        a.valu('v_cndmask_b32', PB[r], OD1[r], OD0[r], mJ8)
    for r in range(4):
        a.valu('v_mul_f32', PB[r], PB[r], vF)
    for r in range(4):
        a.ds('ds_add_f32', vOadd, PB[r], offset=L_OACC + 4 * r)
    a.wait_lgkm(0)
    a.barrier()
    ov = SC[0:8]
    a.ds('ds_read_b128', ov[0:4], vOrd, offset=L_OACC)
    a.ds('ds_read_b128', ov[4:8], vOrd, offset=L_OACC + 16)
    a.wait_vm(wo_q[0])
    a.wait_lgkm(0)
    if debug:
        for G in range(8):
            dump(ov[G], 18 + G)
    Y = [RB[0:4], RB[4:8], RB[8:12], RB[12:16], RB[16:20]]
    BT = [SC[8:12], SC[12:16]]
    for G in range(8):
        a.valu('v_cvt_pk_bf16_f32', ov[G], ov[G], ov[G])
    for G in range(8):
        bt = BT[G % 2]
        for r in range(4):
            a.valu('v_and_b32', bt[r], ov[G], vMask[r])
        for s in range(3):
            a.mfma(Y[s], wo_regs[(G, s)], bt, 0 if G == 0 else Y[s])
        a.mfma(Y[3 + G % 2], wo_regs[('rem', G // 2)], bt, 0 if G < 2 else Y[3 + G % 2])
    for r in range(4):
        a.valu('v_cndmask_b32', Y[0][r], Y[1][r], Y[0][r], mJ8)
        a.ds('ds_add_f32', vYa, Y[0][r], offset=L_YACC + 32 * r)
    for r in range(4):
        a.valu('v_cndmask_b32', Y[3][r], Y[4][r], Y[3][r], mG2)
        a.valu('v_cndmask_b32', Y[2][r], Y[3][r], Y[2][r], mJ8)
        a.ds('ds_add_f32', vYb, Y[2][r], offset=L_YACC + 32 * r)
    a.wait_lgkm(0)
    a.barrier()
    L_notw0 = a.newlabel('notw0')
    a.salu('s_cmp_lg_u32', None, sW, 0)
    a.branch('s_cbranch_scc1', L_notw0)
    a.valu('v_lshlrev_b32', vT[4], 2, vLane)
    for i in range(7):
        a.ds('ds_read_b32', RB[i], vT[4], offset=L_YACC + 256 * i)
    a.salu('s_mul_i32', sT2, sB, 1792)
    a.salu('s_add_u32', sT2, sT2, WS_ACC)
    for i in range(7):
        a.wait_lgkm(6 - i)
        a.vstore('buffer_atomic_add_f32', RB[i], vT[4], rWS, sT2, 256 * i, 'sc1')
    if debug:
        for i in range(7):
            dump(RB[i], 26 + i)
    a.valu('v_mov_b32', vT[5], 1)
    a.valu('v_lshlrev_b32', vT[6], 8, vLane)
    a.salu('s_lshl_b32', sT2, sB, 6)
    a.wait_vm0()
    a.vstore('buffer_atomic_add', vT[5], vT[6], rDBG, sT2, 32, 'sc1')
    a.label(L_notw0)
    a.salu('s_cmp_ge_u32', None, sID, NF)
    a.branch('s_cbranch_scc1', 'L_end')

    a.wait_vm0()
    F2B = RING[0:32]
    F1B = W[0:56]
    FA = RING[32:88]
    a.valu('v_bfe_u32', vT[4], vLane, 2, 2)
    a.valu('v_lshl_add_u32', vT[4], vG, 3, vT[4])
    a.valu('v_and_b32', vT[5], 3, vLane)
    a.valu('v_lshlrev_b32', vT[5], 3, vT[5])
    a.valu('v_mul_u32_u24', vT[6], 896, vT[4])
    a.valu('v_add_u32', vT[6], vT[6], vT[5])
    a.salu('s_min_u32', sT2, sW, 6)
    a.salu('s_lshl_b32', sT2, sT2, 7)
    a.salu('s_add_u32', sT2, sT2, L_W2)
    a.valu('v_add_u32', vT[6], sT2, vT[6])
    for tt in range(4):
        for ks in range(2):
            for qq in range(2):
                d = F2B[(tt * 2 + ks) * 4 + 2 * qq:(tt * 2 + ks) * 4 + 2 * qq + 2]
                a.ds('ds_read_b64_tr_b16', d, vT[6], offset=(32 * ks + 4 * qq) * 896 + tt * 32)
    L_ln = a.newlabel('ln')
    L_b5 = a.newlabel('b5')
    a.salu('s_cmp_ge_u32', None, sW, 4)
    a.branch('s_cbranch_scc1', L_ln)
    a.valu('v_lshlrev_b32', vT[6], 7, vT[4])
    a.valu('v_add_u32', vT[6], vT[6], vT[5])
    a.salu('s_lshl_b32', sT2, sW, 5)
    a.salu('s_add_u32', sT2, sT2, L_W1)
    a.valu('v_add_u32', vT[6], sT2, vT[6])
    for ks in range(14):
        for qq in range(2):
            a.ds('ds_read_b64_tr_b16', F1B[ks * 4 + 2 * qq:ks * 4 + 2 * qq + 2], vT[6], offset=(32 * ks + 4 * qq) * 128)
            if (ks * 2 + qq) % 8 == 7:
                a.wait_lgkm(4)
    a.branch('s_branch', L_b5)
    a.label(L_ln)
    a.salu('s_sub_u32', sT3, sW, 4)
    a.salu('s_mul_i32', sT2, sT3, 896)
    srd(rX, sXP, 896, sT2)
    xraw = RB[0:4]
    a.vload('buffer_load_dwordx4', xraw, vL16, rX)
    a.salu('s_lshl_b32', sT4, sT3, 6)
    a.valu('v_mov_b32', vT[7], 0)

    def ldc():
        a.vload('buffer_load_dword', vT[6], vT[7], rDBG, sT4, 32, 'sc1')

    def condc():
        a.valu('v_readfirstlane_b32', sT2, vT[6])
        a.salu('s_cmp_ge_u32', None, sT2, 64)

    spin_until(ldc, condc, first_check=False)
    av = RB[8:16]
    a.salu('s_mul_i32', sT2, sT3, 1792)
    a.salu('s_add_u32', sT2, sT2, WS_ACC)
    a.valu('v_lshlrev_b32', vT[6], 5, vLane)
    a.valu('v_mov_b32', vT[5], 0x1000000)
    a.valu('v_cndmask_b32', vT[6], vT[5], vT[6], m56)
    a.vload('buffer_load_dwordx4', av[0:4], vT[6], rWS, sT2, 0, 'sc1')
    a.vload('buffer_load_dwordx4', av[4:8], vT[6], rWS, sT2, 16, 'sc1')
    xf = RB[16:24]
    unpack8(xf, xraw)
    a.wait_vm0()
    hp = RB[4:8]
    for i in range(4):
        a.valu('v_cvt_pk_bf16_f32', vT[0], av[2 * i], av[2 * i + 1])
        a.valu('v_lshlrev_b32', av[2 * i], 16, vT[0])
        a.valu('v_and_b32', av[2 * i + 1], 0xffff0000, vT[0])
        a.valu('v_add_f32', xf[2 * i], xf[2 * i], av[2 * i])
        a.valu('v_add_f32', xf[2 * i + 1], xf[2 * i + 1], av[2 * i + 1])
        a.valu('v_cvt_pk_bf16_f32', hp[i], xf[2 * i], xf[2 * i + 1])
    unpack8(xf, hp)
    a.salu('s_mul_i32', sT2, sT3, 896)
    a.valu('v_lshlrev_b32', vT[6], 4, vLane)
    a.valu('v_add_u32', vT[6], sT2, vT[6])
    a.salu('s_mov_b64', 'exec', m56)
    a.ds('ds_write_b128', vT[6], hp, offset=L_HB)
    a.salu('s_mov_b64', 'exec', -1)
    layernorm(xf, vT[0:4])
    for i in range(4):
        a.valu('v_cvt_pk_bf16_f32', RB[i], xf[2 * i], xf[2 * i + 1])
    a.salu('s_mov_b64', 'exec', m56)
    a.ds('ds_write_b128', vT[6], RB[0:4], offset=L_XN2)
    a.salu('s_mov_b64', 'exec', -1)
    if debug:
        for i in range(4):
            dump(hp[i], 33 + i)
            dump(RB[i], 37 + i)
    a.label(L_b5)
    a.wait_lgkm(0)
    a.barrier()
    L_b6 = a.newlabel('b6')
    a.salu('s_cmp_ge_u32', None, sW, 4)
    a.branch('s_cbranch_scc1', L_b6)
    a.valu('v_and_b32', vT[6], 3, vLane)
    a.valu('v_mul_u32_u24', vT[6], 896, vT[6])
    a.valu('v_lshl_add_u32', vT[6], vG, 4, vT[6])
    for ks in range(14):
        a.ds('ds_read_b128', FA[4 * ks:4 * ks + 4], vT[6], offset=L_XN2 + 64 * ks)
    Z = RB[0:4]
    for ks in range(14):
        a.wait_lgkm(min(13 - ks, 15))
        a.mfma(Z, FA[4 * ks:4 * ks + 4], F1B[4 * ks:4 * ks + 4], 0 if ks == 0 else Z)
    a.salu('s_lshl_b32', sT2, sW, 5)
    a.valu('v_lshlrev_b32', vT[6], 1, vJ)
    a.valu('v_add_u32', vT[6], sT2, vT[6])
    a.salu('s_mov_b32', sT3, -LOG2E)
    for r in range(4):
        rbf(Z[r], Z[r])
    for r in range(4):
        a.valu('v_mul_f32', RB[4 + r], sT3, Z[r])
    for r in range(4):
        a.valu('v_exp_f32', RB[4 + r], RB[4 + r])
    for r in range(4):
        a.valu('v_add_f32', RB[4 + r], 1.0, RB[4 + r])
    for r in range(4):
        a.valu('v_rcp_f32', RB[4 + r], RB[4 + r])
    for r in range(4):
        a.valu('v_mul_f32', Z[r], Z[r], RB[4 + r])
    for r in range(4):
        a.valu('v_cvt_pk_bf16_f32', Z[r], Z[r], Z[r])
        a.ds('ds_write_b16', vT[6], Z[r], offset=L_GB + 128 * r)
    if debug:
        for r in range(4):
            dump(Z[r], 41 + r)
    a.label(L_b6)
    a.wait_lgkm(0)
    a.barrier()
    L_fin = a.newlabel('fin')
    a.salu('s_cmp_ge_u32', None, sW, 7)
    a.branch('s_cbranch_scc1', L_fin)
    a.valu('v_and_b32', vT[6], 3, vLane)
    a.valu('v_lshlrev_b32', vT[6], 7, vT[6])
    a.valu('v_lshl_add_u32', vT[6], vG, 4, vT[6])
    a.ds('ds_read_b128', FA[0:4], vT[6], offset=L_GB)
    a.ds('ds_read_b128', FA[4:8], vT[6], offset=L_GB + 64)
    a.salu('s_mul_i32', sT2, sW, 4 * 7168)
    a.salu('s_lshl_b32', sT3, sID, 8)
    a.salu('s_add_u32', sT2, sT2, sT3)
    a.salu('s_add_u32', sT2, sT2, WS_INBOX)
    a.wait_lgkm(0)
    O2 = [RB[4 * tt:4 * tt + 4] for tt in range(4)]
    for tt in range(4):
        a.mfma(O2[tt], FA[0:4], F2B[(tt * 2) * 4:(tt * 2) * 4 + 4], 0)
    for tt in range(4):
        a.mfma(O2[tt], FA[4:8], F2B[(tt * 2 + 1) * 4:(tt * 2 + 1) * 4 + 4], O2[tt])
    a.salu('s_mov_b64', 'exec', 0xffff)
    for tt in range(4):
        for r in range(4):
            a.valu('v_min_u32', O2[tt][r], -2, O2[tt][r])
        a.vstore('buffer_store_dwordx4', O2[tt], vL16, rWS, sT2, 0, 'sc1')
        if tt < 3:
            a.salu('s_add_u32', sT2, sT2, 7168)
    a.branch('s_branch', 'L_end')
    a.label(L_fin)
    a.valu('v_mul_u32_u24', vT[6], 896, vG)
    a.valu('v_lshl_add_u32', vT[6], vJ, 1, vT[6])
    a.salu('s_lshl_b32', sT2, sID, 5)
    a.valu('v_add_u32', vT[6], sT2, vT[6])
    a.ds('ds_read_u16', vT[7], vT[6], offset=L_HB)
    a.salu('s_mul_i32', sT3, sID, 7168)
    a.salu('s_add_u32', sT3, sT3, WS_INBOX)
    a.salu('s_add_u32', sT4, sT3, 4096)
    IB = RING[32:60]

    def ldi():
        for i in range(7):
            a.vload('buffer_load_dwordx4', IB[4 * i:4 * i + 4], vL16, rWS, sT3 if i < 4 else sT4, (i % 4) * 1024, 'sc1')

    def condi():
        a.valu('v_max3_u32', vT[0], IB[0], IB[1], IB[2])
        for i in range(3, 27, 2):
            a.valu('v_max3_u32', vT[0], vT[0], IB[i], IB[i + 1])
        a.valu('v_max_u32', vT[0], vT[0], IB[27])
        a.valu('v_cmp_eq_u32_e64', S(100, 2), -1, vT[0])
        a.salu('s_cmp_eq_u64', None, S(100, 2), 0)

    spin_until(ldi, condi, first_check=False)
    for i in range(1, 7):
        for r in range(4):
            a.valu('v_add_f32', IB[r], IB[r], IB[4 * i + r])
    for r in range(4):
        a.valu('v_mov_b32', IB[4 + r], IB[r])
    for r in range(4):
        a.valu('v_permlane16_swap_b32', IB[r], IB[4 + r])
    for r in range(4):
        a.valu('v_add_f32', IB[r], IB[r], IB[4 + r])
    for r in range(4):
        a.valu('v_mov_b32', IB[4 + r], IB[r])
    for r in range(4):
        a.valu('v_permlane32_swap_b32', IB[r], IB[4 + r])
    for r in range(4):
        a.valu('v_add_f32', IB[r], IB[r], IB[4 + r])
    for r in range(1, 4):
        a.valu('v_cmp_eq_u32', 'vcc', r, vG)
        a.valu('v_cndmask_b32', IB[0], IB[0], IB[r], 'vcc')
    rbf(IB[0], IB[0])
    a.wait_lgkm(0)
    a.valu('v_lshlrev_b32', vT[7], 16, vT[7])
    a.valu('v_add_f32', IB[0], IB[0], vT[7])
    a.valu('v_cvt_pk_bf16_f32', IB[0], IB[0], IB[0])
    a.vstore('buffer_store_short', IB[0], vT[6], rOUT, 0, 0)
    a.label('L_end')
    A('  s_endpgm')
    A('.section .rodata,"a"')
    A('.p2align 6')
    A(f'.amdhsa_kernel {KNAME}')
    A('  .amdhsa_next_free_vgpr 256')
    A('  .amdhsa_next_free_sgpr 102')
    A('  .amdhsa_accum_offset 256')
    A('  .amdhsa_group_segment_fixed_size 0')
    A('  .amdhsa_kernarg_size 88')
    A('  .amdhsa_user_sgpr_count 2')
    A('  .amdhsa_user_sgpr_kernarg_segment_ptr 1')
    A('  .amdhsa_system_sgpr_workgroup_id_x 1')
    A('  .amdhsa_float_denorm_mode_32 3')
    A('.end_amdhsa_kernel')
    return a.text()


if __name__ == '__main__':
    debug = '--debug' in sys.argv
    out = [x for x in sys.argv[1:] if not x.startswith('--')]
    path = out[0] if out else os.path.join(os.path.dirname(os.path.abspath(__file__)), '..', 'cdna_kernels', NAME + '.s')
    open(path, 'w').write(build(debug=debug))
    print('wrote', path)
```

```python
import os
import sys

sys.path.insert(0, os.path.dirname(os.path.abspath(__file__)))
from asmlib import Asm, V, S

NAME = 'sequential_preLN__mha_block_cached__dense_activation_silu__decode'
KNAME = NAME + '_kernel'

NWG = 256
NF = 28
LOG2E = 1.4426950408889634
CS = LOG2E / 16.0

WS_ACC = 0
WS_EPOCH = 24576
WS_INBOX = 32768
WS_Q = 0x40000
WS_POOL = 0x60000
WS_FLAG = 0x70000
WS_MAIL = 0x80000
WS_BYTES = 1 << 20
WS_DBG = 1 << 20
DB_INITF = 40

L_XN2 = 0
L_HB = 4096
L_GB = 8192
L_QBF = 8704
L_ML = 9216
L_CNT = 9344
L_FLAG = 9348
L_SVC = 9352
L_ARR = 9356
L_OP = 9472
L_YP = 17920
L_WQS = L_YP
L_W1 = 34816
L_W2 = L_W1 + 57344
LDS_BYTES = L_W2 + 57344

SPIN_BOUND = 200000
BIGOFF = 0x1000000


def build(debug=False, prof=False, npriv=112, xmap=1, gsleep=2, ldf=0, stf=0, use_c=1, skipq=0, nocomp=0, nowo=0, notail=0, prio=2, smalllds=0, nodma=0, nowq=0, wnt=1, psleep=1):
    WF = 'nt' if wnt else ''
    LDF = ['sc1', 'sc0 sc1'][ldf]
    STF = ['sc1', 'sc0 sc1'][stf]
    a = Asm()
    A = a.raw
    hdr = open(os.path.join(os.path.dirname(os.path.abspath(__file__)), '..', 'cdna_kernels', NAME + '.s.ref')).read().split('\n')
    for ln in hdr:
        if ln.startswith(';') and '@launch' not in ln:
            A(ln)
        elif '@launch' in ln:
            A(f'; @launch grid=({NWG},1,1) block=(512,1,1) lds={LDS_BYTES if not smalllds else 16384}')
        else:
            break
    A('.amdgcn_target "amdgcn-amd-amdhsa--gfx950"')
    A('.text')
    A(f'.globl {KNAME}')
    A('.p2align 8')
    A(f'.type {KNAME},@function')
    A(f'{KNAME}:')

    sID = S(2)
    sF = S(0)
    sGrp = S(3)
    sW, sB, sH, sSP = S(4), S(5), S(6), S(7)
    sT0, sT1, sT2, sT3, sT4, sT5 = S(8), S(9), S(10), S(11), S(12), S(13)
    sNext = S(14)
    sIdx = S(15)
    P = lambda i: S(16 + 2 * i, 2)
    pOUT, pDBG, pWS = S(32, 2), S(34, 2), S(36, 2)
    sM = S(38)
    sMn = S(39)
    rK, rV, rWQ, rWO, rX, rW1, rW2, rOUT, rDBG, rWS = [S(40 + 4 * i, 4) for i in range(10)]
    sPool = S(80, 2)
    sExh = S(82)
    sCS = S(83)
    mT = [S(84 + 2 * t, 2) for t in range(4)]
    mJ8 = S(92, 2)
    m56 = S(94, 2)
    mG2 = S(96, 2)
    sX0, sX1 = S(98), S(99)
    sXP = S(100, 2)
    sEp = S(32)
    rWSD = rWQ
    LNS = [S(16), S(17), S(18), S(19), S(20), S(21), S(0), S(1)]
    sCnt = S(33)

    vTid = V(0)
    vLane, vJ, vG = V(1), V(2), V(3)
    vKoff, vKoff2, vVoff, vVoff2 = V(4), V(5), V(6), V(7)
    vMask = V(8, 4)
    vWoOff, vWoRem = V(12), V(13)
    vL = V(14)
    vL16 = V(15)
    vT = V(16, 8)
    OD0, OD1 = V(24, 4), V(28, 4)
    KD = V(32, 4)
    PB = V(36, 16)
    QB = V(52, 32)
    KB, VB, KB2, VB2 = V(84, 32), V(116, 32), V(148, 32), V(180, 32)
    XT = V(212, 44)
    WO = V(148, 56)
    vIdx, vOne, vCntA, vChk = XT[0], XT[1], XT[2], XT[3]
    vOw, vOr, vMr, vYw, vAt = XT[4], XT[5], XT[6], XT[7], XT[8]
    vPubOff, vGatOff, vGatML = XT[9], XT[10], XT[11]

    def dump(reg, slot):
        if not debug:
            return
        a.salu('s_lshl_b32', sX0, sID, 3)
        a.salu('s_add_u32', sX0, sX0, sW)
        a.salu('s_lshl_b32', sX0, sX0, 14)
        a.salu('s_add_u32', sX0, sX0, WS_DBG + slot * 256)
        a.valu('v_lshlrev_b32', XT[43], 2, vLane)
        a.vstore('buffer_store_dword', reg, XT[43], rWSD, sX0)

    stamp_names = []
    early = []

    def stamp(name, late=True):
        if not prof:
            return
        k = len(stamp_names)
        stamp_names.append(name)
        a.misc('s_memrealtime s[22:23]')
        a.wait_lgkm(0)
        if late:
            a.valu('v_writelane_b32', V(0), S(22), k, rmw=True)
        else:
            a.salu('s_mov_b32', S(24 + len(early)), S(22))
            early.append(k)

    def stamp_val(name, sreg):
        if not prof:
            return
        k = len(stamp_names)
        stamp_names.append(name)
        a.valu('v_writelane_b32', V(0), sreg, k, rmw=True)

    def stamp_flush_early():
        if not prof:
            return
        for i, k in enumerate(early):
            a.valu('v_writelane_b32', V(0), S(24 + i), k, rmw=True)

    def stamp_store():
        if not prof:
            return
        a.salu('s_mov_b64', 'exec', -1)
        a.salu('s_lshl_b32', sX0, sID, 3)
        a.salu('s_add_u32', sX0, sX0, sW)
        a.salu('s_lshl_b32', sX0, sX0, 8)
        a.salu('s_add_u32', sX0, sX0, WS_DBG)
        a.valu('v_lshlrev_b32', V(23), 2, vLane)
        a.vstore('buffer_store_dword', V(0), V(23), rWSD, sX0)

    def srd(r, ptr, nbytes, off=None):
        if off is None:
            a.salu('s_mov_b32', r[0], ptr[0])
            a.salu('s_mov_b32', r[1], ptr[1])
        else:
            a.salu('s_add_u32', r[0], ptr[0], off)
            a.salu('s_addc_u32', r[1], ptr[1], 0)
        a.salu('s_mov_b32', r[2], nbytes)
        a.salu('s_mov_b32', r[3], 0x00020000)

    def wave_red_multi(op, vs, sdsts, quads_equal=False):
        ctrls = ['row_ror:4', 'row_ror:8'] if quads_equal else ['quad_perm:[1,0,3,2]', 'quad_perm:[2,3,0,1]', 'row_half_mirror', 'row_mirror']
        for c in ctrls:
            for v in vs:
                a.dpp(op, v, v, v, ctrl=c)
        for v in vs:
            a.dpp(op, v, v, v, ctrl='row_bcast:15', row_mask=0xa)
        for v in vs:
            a.dpp(op, v, v, v, ctrl='row_bcast:31', row_mask=0xc)
        for v, s_ in zip(vs, sdsts):
            a.valu('v_readlane_b32', s_, v, 63)

    def wave_red(op, v, sdst, quads_equal=False):
        wave_red_multi(op, [v], [sdst], quads_equal)

    def rbf(dst, src):
        a.valu('v_cvt_pk_bf16_f32', dst, src, src)
        a.valu('v_and_b32', dst, 0xffff0000, dst)

    def unpack8(xf, raw):
        for i in range(4):
            a.valu('v_lshlrev_b32', xf[2 * i], 16, raw[i])
            a.valu('v_and_b32', xf[2 * i + 1], 0xffff0000, raw[i])

    def layernorm(rows):
        def each(f):
            for r_ in rows:
                f(*r_)
        each(lambda xf, t, s0, s1: a.valu('v_add_f32', t[0], xf[0], xf[1]))
        each(lambda xf, t, s0, s1: a.valu('v_add_f32', t[1], xf[2], xf[3]))
        each(lambda xf, t, s0, s1: a.valu('v_add_f32', t[2], xf[4], xf[5]))
        each(lambda xf, t, s0, s1: a.valu('v_add_f32', t[3], xf[6], xf[7]))
        each(lambda xf, t, s0, s1: a.valu('v_add_f32', t[0], t[0], t[1]))
        each(lambda xf, t, s0, s1: a.valu('v_add_f32', t[2], t[2], t[3]))
        each(lambda xf, t, s0, s1: a.valu('v_add_f32', t[0], t[0], t[2]))
        wave_red_multi('v_add_f32', [r_[1][0] for r_ in rows], [r_[2] for r_ in rows])
        each(lambda xf, t, s0, s1: a.valu('v_mov_b32', t[0], s0))
        each(lambda xf, t, s0, s1: a.valu('v_mul_f32', t[0], 1.0 / 448.0, t[0]))
        each(lambda xf, t, s0, s1: a.valu('v_sub_f32', t[1], xf[0], t[0]))
        each(lambda xf, t, s0, s1: a.valu('v_mul_f32', t[2], t[1], t[1]))
        for i in range(1, 8):
            each(lambda xf, t, s0, s1: a.valu('v_sub_f32', t[1], xf[i], t[0]))
            each(lambda xf, t, s0, s1: a.valu('v_fmac_f32', t[2], t[1], t[1]))
        each(lambda xf, t, s0, s1: a.valu('v_cndmask_b32', t[2], 0, t[2], m56))
        wave_red_multi('v_add_f32', [r_[1][2] for r_ in rows], [r_[3] for r_ in rows])
        each(lambda xf, t, s0, s1: rbf(t[0], t[0]))
        each(lambda xf, t, s0, s1: a.valu('v_mov_b32', t[2], s1))
        each(lambda xf, t, s0, s1: a.valu('v_mul_f32', t[2], 1.0 / 448.0, t[2]))
        each(lambda xf, t, s0, s1: rbf(t[2], t[2]))
        each(lambda xf, t, s0, s1: a.valu('v_add_f32', t[2], 1e-5, t[2]))
        each(lambda xf, t, s0, s1: rbf(t[2], t[2]))
        each(lambda xf, t, s0, s1: a.valu('v_sqrt_f32', t[2], t[2]))
        each(lambda xf, t, s0, s1: rbf(t[2], t[2]))
        each(lambda xf, t, s0, s1: a.valu('v_rcp_f32', t[2], t[2]))
        for i in range(0, 8, 2):
            each(lambda xf, t, s0, s1: a.valu('v_sub_f32', xf[i], xf[i], t[0]))
            each(lambda xf, t, s0, s1: a.valu('v_sub_f32', xf[i + 1], xf[i + 1], t[0]))
            each(lambda xf, t, s0, s1: a.valu('v_cvt_pk_bf16_f32', t[1], xf[i], xf[i + 1]))
            each(lambda xf, t, s0, s1: a.valu('v_lshlrev_b32', xf[i], 16, t[1]))
            each(lambda xf, t, s0, s1: a.valu('v_and_b32', xf[i + 1], 0xffff0000, t[1]))
            each(lambda xf, t, s0, s1: a.valu('v_mul_f32', xf[i], xf[i], t[2]))
            each(lambda xf, t, s0, s1: a.valu('v_mul_f32', xf[i + 1], xf[i + 1], t[2]))

    def spin_until(load_fn, cond_fn, first_check=True, sleep=1):
        done = a.newlabel('done')
        loop = a.newlabel('spin')
        if first_check:
            cond_fn()
            a.branch('s_cbranch_scc1', done)
        a.salu('s_mov_b32', sT5, SPIN_BOUND)
        a.label(loop)
        load_fn()
        a.wait_vm0()
        cond_fn()
        a.branch('s_cbranch_scc1', done)
        if sleep:
            a.misc(f's_sleep {sleep}')
        a.salu('s_sub_u32', sT5, sT5, 1)
        a.salu('s_cmp_lg_u32', None, sT5, 0)
        a.branch('s_cbranch_scc1', loop)
        a.label(done)

    def issue_k(buf, soff):
        for i in range(8):
            o = (i // 2) * 2048 + (i % 2) * 256
            a.vload('buffer_load_dwordx4', buf[4 * i:4 * i + 4], vKoff if o < 4096 else vKoff2, rK, soff, o % 4096, 'nt')

    def issue_v(buf, soff):
        for i in range(8):
            o = (i // 2) * 2048 + (i % 2) * 256
            a.vload('buffer_load_dwordx4', buf[4 * i:4 * i + 4], vVoff if o < 4096 else vVoff2, rV, soff, o % 4096, 'nt')

    def koff(i):
        o = (i // 2) * 2048 + (i % 2) * 256
        return (vKoff if o < 4096 else vKoff2), o % 4096

    def voff(i):
        o = (i // 2) * 2048 + (i % 2) * 256
        return (vVoff if o < 4096 else vVoff2), o % 4096

    def issue_static_units():
        a.salu('s_mul_i32', sT2, sSP, npriv)
        a.salu('s_add_u32', sT2, sT2, sW)
        a.salu('s_sub_u32', sT2, sT2, 4)
        a.salu('s_lshl_b32', sT2, sT2, 13)
        a.salu('s_add_u32', sT3, sT2, 4 * 8192)
        issue_k(KB, sT2)
        issue_v(VB, sT2)
        issue_k(KB2, sT3)
        issue_v(VB2, sT3)
        if not use_c:
            return
        L_cf = a.newlabel('cf')
        L_cd = a.newlabel('cd')
        a.salu('s_cmp_lt_u32', None, sF, NF)
        a.branch('s_cbranch_scc1', L_cf)
        a.salu('s_add_u32', sT3, sT2, 8 * 8192)
        a.salu('s_sub_u32', sT4, sW, 4)
        a.salu('s_lshl_b32', sT4, sT4, 14)
        a.salu('s_add_u32', sT4, sT4, L_W1)
        for i in range(16):
            vo, o = koff(i) if i < 8 else voff(i - 8)
            a.salu('s_add_u32', sT0, sT4, i * 1024 - o)
            a.salu('s_mov_b32', 'm0', sT0)
            a.vload_lds(vo, rK if i < 8 else rV, sT3, o, 'nt')
        a.branch('s_branch', L_cd)
        a.label(L_cf)
        a.valu('v_mov_b32', vT[0], BIGOFF)
        for i in range(16):
            a.vload('buffer_load_dword', XT[20], vT[0], rK, 0, 0)
        a.label(L_cd)

    a.salu('s_cmp_ge_u32', None, sID, NWG)
    a.branch('s_cbranch_scc1', 'L_end')
    if prof:
        a.misc('s_memrealtime s[84:85]')
    a.misc('s_load_dwordx16 s[16:31], s[0:1], 0')
    a.misc('s_load_dwordx4 s[32:35], s[0:1], 64')
    a.misc('s_load_dwordx2 s[36:37], s[0:1], 80')
    a.valu('v_lshrrev_b32', vT[0], 6, vTid)
    a.valu('v_and_b32', vLane, 63, vTid)
    a.valu('v_readfirstlane_b32', sW, vT[0])
    a.valu('v_and_b32', vJ, 15, vTid)
    a.valu('v_lshrrev_b32', vG, 4, vLane)
    a.valu('v_bfe_u32', vT[1], vLane, 2, 2)
    a.valu('v_and_b32', vT[2], 3, vLane)
    a.valu('v_lshlrev_b32', vT[1], 9, vT[1])
    a.valu('v_lshlrev_b32', vT[2], 4, vT[2])
    a.valu('v_lshl_add_u32', vKoff, vG, 6, vT[1])
    a.valu('v_add_u32', vKoff, vKoff, vT[2])
    a.valu('v_add_u32', vKoff2, 4096, vKoff)
    a.valu('v_lshlrev_b32', vL16, 4, vLane)
    a.valu('v_lshlrev_b32', vVoff, 9, vG)
    a.valu('v_lshl_add_u32', vVoff, vJ, 4, vVoff)
    a.valu('v_add_u32', vVoff2, 4096, vVoff)
    if xmap == 1:
        a.salu('s_lshr_b32', sT0, sID, 3)
        a.salu('s_and_b32', sT2, sT0, 7)
        a.salu('s_mul_i32', sT1, sT2, 11)
        a.salu('s_lshr_b32', sT1, sT1, 5)
        a.salu('s_mul_i32', sT1, sT1, 3)
        a.salu('s_sub_u32', sT1, sT2, sT1)
        a.salu('s_add_u32', sT1, sT1, 1)
        a.salu('s_bfe_u32', sSP, sID, (2 << 16) | 1)
        a.salu('s_and_b32', sT3, sSP, sT1)
        a.salu('s_bcnt1_i32_b32', sT3, sT3)
        a.salu('s_xor_b32', sT3, sT3, sID)
        a.salu('s_and_b32', sT3, sT3, 1)
        a.salu('s_lshl_b32', sGrp, sT0, 1)
        a.salu('s_add_u32', sGrp, sGrp, sT3)
    else:
        a.salu('s_lshr_b32', sGrp, sID, 2)
        a.salu('s_and_b32', sSP, sID, 3)
    a.salu('s_lshr_b32', sB, sGrp, 4)
    a.salu('s_and_b32', sH, sGrp, 15)
    a.salu('s_lshl_b32', sT1, sGrp, 22)
    a.salu('s_lshr_b32', sT5, sID, 3)
    a.salu('s_xor_b32', sT4, sT5, sID)
    a.salu('s_and_b32', sT4, sT4, 7)
    a.salu('s_cmp_eq_u32', None, sT4, 0)
    a.salu('s_cselect_b32', sT5, sT5, 255)
    a.salu('s_cmp_lt_u32', None, sT5, NF)
    a.salu('s_cselect_b32', sT2, 8, 12 if use_c else 8)
    a.valu('v_mov_b32', vT[2], sT2)
    a.valu('v_mov_b32', vT[3], 0)
    a.valu('v_mov_b32', vCntA, L_CNT)
    a.valu('v_mov_b32', vT[4], 0)
    a.valu('v_mov_b32', vT[5], 0)
    a.ds('ds_write_b128', vCntA, vT[2:6])
    a.wait_lgkm(0)
    a.salu('s_mov_b32', sF, sT5)
    a.barrier()
    if prof:
        stamp_names.append('entry')
        a.valu('v_writelane_b32', V(0), S(84), 0, rmw=True)

    def common_setup():
        srd(rWS, pWS, WS_BYTES)
        srd(rOUT, pOUT, 4 * 896)
        srd(rDBG, pDBG, 256)
        a.salu('s_mov_b32', sXP[0], P(0)[0])
        a.salu('s_mov_b32', sXP[1], P(0)[1])
        if prof:
            a.salu('s_mov_b32', sCnt, 0)
        a.valu('v_cmp_gt_u32_e64', mJ8, 8, vJ)
        a.valu('v_cmp_gt_u32_e64', m56, 56, vLane)
        a.valu('v_cmp_gt_u32_e64', mG2, 2, vG)
        a.valu('v_and_b32', vT[2], 1, vJ)
        a.valu('v_lshlrev_b32', vT[2], 4, vT[2])
        a.valu('v_mov_b32', vT[3], 0xffff)
        a.valu('v_lshlrev_b32', vT[3], vT[2], vT[3])
        a.valu('v_bfe_u32', vT[2], vJ, 1, 2)
        for r in range(4):
            a.valu('v_cmp_eq_u32', 'vcc', r, vT[2])
            a.valu('v_cndmask_b32', vMask[r], 0, vT[3], 'vcc')
        a.valu('v_mov_b32', vOne, 1)
        a.salu('s_mov_b32', sCS, CS)
        a.salu('s_min_u32', sT2, sW, 6)
        a.salu('s_lshl_b32', sT2, sT2, 8)
        a.valu('v_lshrrev_b32', vAt, 5, vLane)
        a.valu('v_lshlrev_b32', vAt, 7, vAt)
        a.valu('v_and_b32', vT[6], 3, vJ)
        a.valu('v_lshl_add_u32', vAt, vT[6], 5, vAt)
        a.valu('v_bfe_u32', vT[7], vLane, 2, 3)
        a.valu('v_lshl_add_u32', vAt, vT[7], 2, vAt)
        a.valu('v_add_u32', vAt, sT2, vAt)

    L_stream = 'L_stream'
    L_b3 = 'L_b3'
    a.salu('s_cmp_ge_u32', None, sW, 4)
    a.branch('s_cbranch_scc1', L_stream)

    L_svc = a.newlabel('svc')
    L_svc2 = a.newlabel('svc2')
    if notail == 1:
        a.branch('s_branch', 'L_end')
    a.misc('s_setprio 3')
    a.salu('s_mul_i32', sT2, sW, 896)
    srd(rX, P(0), 896, sT2)
    srd(rWQ, P(3), 448 * 8192 if not nowq else 0)
    XR = KB[0:4]
    vEp = XT[12]
    a.vload('buffer_load_dwordx4', XR, vL16, rX)
    a.valu('v_lshrrev_b32', vT[1], 1, vLane)
    a.valu('v_lshlrev_b32', vT[1], 13, vT[1])
    a.valu('v_and_b32', vT[2], 1, vLane)
    a.valu('v_lshl_add_u32', vT[1], vT[2], 4, vT[1])
    a.salu('s_lshl_b32', sT2, sSP, 2)
    a.salu('s_add_u32', sT2, sT2, sB)
    a.salu('s_lshl_b32', sT2, sT2, 5)
    a.salu('s_lshl_b32', sT3, sH, 9)
    a.salu('s_add_u32', sT2, sT2, sT3)
    a.salu('s_lshl_b32', sT3, sW, 18)
    a.salu('s_add_u32', sT2, sT2, sT3)
    a.salu('s_lshl_b32', sT3, sW, 10)
    a.salu('s_add_u32', sT3, sT3, L_WQS)
    for i in range(4):
        a.salu('s_mov_b32', 'm0', sT3)
        a.vload_lds(vT[1], rWQ, sT2, 0, WF)
        if i < 3:
            a.salu('s_add_u32', sT2, sT2, 4 * 32 * 8192)
            a.salu('s_add_u32', sT3, sT3, 4096)
    srd(rWS, pWS, WS_BYTES)
    a.valu('v_mov_b32', vT[2], 0)
    a.salu('s_mov_b32', sT2, WS_EPOCH)
    a.vload('buffer_load_dword', vEp, vT[2], rWS, sT2, 0, LDF)
    MK = VB[0:4]
    ZR = VB[4:8]
    for i in range(4):
        a.valu('v_mov_b32', MK[i], -1)
        a.valu('v_mov_b32', ZR[i], 0)
    a.salu('s_lshl_b32', sT2, sGrp, 2)
    a.salu('s_add_u32', sT2, sT2, sSP)
    a.salu('s_lshl_b32', sT2, sT2, 2)
    a.salu('s_add_u32', sT2, sT2, sW)
    a.salu('s_lshl_b32', sT2, sT2, 9)
    a.salu('s_add_u32', sT2, sT2, WS_MAIL)
    a.valu('v_lshrrev_b32', vT[1], 5, vLane)
    a.valu('v_lshl_add_u32', vT[1], vT[1], 24, vL16)
    a.vstore('buffer_store_dwordx4', MK, vT[1], rWS, sT2, 0, STF)
    a.salu('s_lshl_b32', sT2, sGrp, 8)
    a.salu('s_add_u32', sT2, sT2, WS_POOL)
    a.salu('s_xor_b32', sT3, sW, 1)
    a.salu('s_add_u32', sT3, sT3, sSP)
    a.valu('v_add_u32', vT[1], sT3, vLane)
    a.valu('v_lshlrev_b32', vT[1], 24, vT[1])
    a.vstore('buffer_store_dword', ZR[0], vT[1], rWS, sT2, 0, STF)
    n_after_x = 7
    L_noinit = a.newlabel('noinit')
    a.salu('s_cmp_ge_u32', None, sF, NF)
    a.branch('s_cbranch_scc1', L_noinit)
    a.salu('s_mul_i32', sT2, sF, 7168)
    a.salu('s_add_u32', sT2, sT2, WS_INBOX)
    a.salu('s_lshl_b32', sT3, sW, 10)
    a.salu('s_add_u32', sT2, sT2, sT3)
    a.vstore('buffer_store_dwordx4', MK, vL16, rWS, sT2, 0, STF)
    a.salu('s_add_u32', sT2, sT2, 4096)
    L_i3 = a.newlabel('i3')
    a.salu('s_cmp_eq_u32', None, sW, 3)
    a.branch('s_cbranch_scc1', L_i3)
    a.vstore('buffer_store_dwordx4', MK, vL16, rWS, sT2, 0, STF)
    a.branch('s_branch', L_noinit)
    a.label(L_i3)
    a.salu('s_lshl_b32', sT2, sF, 8)
    a.valu('v_lshlrev_b32', vT[1], 24, vG)
    a.valu('v_add_u32', vT[1], vT[1], vL16)
    a.vstore('buffer_store_dwordx4', ZR, vT[1], rWS, sT2, WS_ACC, STF)
    a.salu('s_lshl_b32', sT2, sF, 10)
    a.salu('s_add_u32', sT2, sT2, WS_FLAG)
    a.vstore('buffer_store_dwordx4', ZR, vL16, rWS, sT2, 0, STF)
    a.label(L_noinit)
    srd(rWO, P(4), 4096 * 896 if not nowo else 0)
    srd(rW1, P(6), 448 * 3584 if not nodma else 0)
    srd(rW2, P(7), 448 * 3584 if not nodma else 0)
    common_setup()
    stamp('v_issued')
    XF = KB2[0:8]
    a.misc(f's_waitcnt vmcnt({n_after_x})')
    stamp('v_x')
    unpack8(XF, XR)
    layernorm([(XF, vT[0:4], sX0, sX1)])
    for i in range(4):
        a.valu('v_cvt_pk_bf16_f32', XR[i], XF[2 * i], XF[2 * i + 1])
    a.salu('s_mul_i32', sT2, sW, 896)
    a.valu('v_add_u32', vT[0], sT2, vL16)
    a.salu('s_mov_b64', 'exec', m56)
    a.ds('ds_write_b128', vT[0], XR, offset=L_XN2)
    a.salu('s_mov_b64', 'exec', 1)
    a.misc('s_waitcnt vmcnt(0) lgkmcnt(0)')
    a.misc(f'ds_add_u32 {vCntA}, {vOne} offset:8')
    a.salu('s_mov_b64', 'exec', -1)
    stamp('v_ln')
    a.salu('s_cmp_lg_u32', None, sW, 0)
    a.branch('s_cbranch_scc1', L_svc)
    QA = V(148, 56)
    QF = V(84, 56)
    a.valu('v_and_b32', vT[6], 3, vLane)
    a.valu('v_mul_u32_u24', vT[6], 896, vT[6])
    a.valu('v_lshl_add_u32', vT[6], vG, 4, vT[6])
    a.valu('v_bfe_u32', vT[4], vLane, 2, 2)
    a.valu('v_lshl_add_u32', vT[4], vG, 3, vT[4])
    a.valu('v_lshlrev_b32', vT[4], 5, vT[4])
    a.valu('v_and_b32', vT[5], 3, vLane)
    a.valu('v_lshl_add_u32', vT[4], vT[5], 3, vT[4])
    L_sw = a.newlabel('sw')
    L_sok = a.newlabel('sok')
    a.salu('s_mov_b32', sT5, SPIN_BOUND * 8)
    a.label(L_sw)
    a.ds('ds_read_b32', vT[0], vCntA, offset=8)
    a.wait_lgkm(0)
    a.valu('v_readfirstlane_b32', sT2, vT[0])
    a.salu('s_cmp_ge_u32', None, sT2, 4)
    a.branch('s_cbranch_scc1', L_sok)
    a.salu('s_sub_u32', sT5, sT5, 1)
    a.salu('s_cmp_lg_u32', None, sT5, 0)
    a.branch('s_cbranch_scc1', L_sw)
    a.label(L_sok)
    stamp('q_wq')
    for ks in range(14):
        a.ds('ds_read_b128', QA[4 * ks:4 * ks + 4], vT[6], offset=L_XN2 + 64 * ks)
    for ks in range(14):
        for qq in range(2):
            a.ds('ds_read_b64_tr_b16', QF[ks * 4 + 2 * qq:ks * 4 + 2 * qq + 2], vT[4], offset=L_WQS + (32 * ks + 4 * qq) * 32)
    a.valu('v_add_u32', vEp, 1, vEp)
    for ks in range(14):
        a.wait_lgkm(min(2 * (13 - ks), 15))
        a.mfma(KD, QA[4 * ks:4 * ks + 4], QF[4 * ks:4 * ks + 4], 0 if ks == 0 else KD)
    a.valu('v_lshlrev_b32', vT[4], 10, vG)
    a.valu('v_lshl_add_u32', vT[4], vJ, 2, vT[4])
    a.valu('v_and_b32', vT[5], 1, vJ)
    a.valu('v_lshl_add_u32', vT[4], vT[5], 24, vT[4])
    a.salu('s_lshl_b32', sT2, sSP, 2)
    a.salu('s_add_u32', sT2, sT2, sB)
    a.salu('s_lshl_b32', sT2, sT2, 6)
    a.salu('s_lshl_b32', sT3, sH, 12)
    a.salu('s_add_u32', sT2, sT2, sT3)
    a.salu('s_add_u32', sT2, sT2, WS_Q)
    for r in range(1, 4):
        a.valu('v_cmp_eq_u32', 'vcc', r, vG)
        a.valu('v_cndmask_b32', KD[0], KD[0], KD[r], 'vcc')
    a.dpp('v_mov_b32', KD[1], KD[0], ctrl='quad_perm:[1,0,3,2]')
    a.valu('v_cvt_pk_bf16_f32', PB[0], KD[0], KD[1])
    a.valu('v_mov_b32', PB[1], vEp)
    a.vstore('buffer_store_dwordx2', PB[0:2], vT[4], rWS, sT2, 0, STF)
    a.salu('s_lshl_b32', sT4, sB, 10)
    a.salu('s_add_u32', sT4, sT4, sT3)
    a.salu('s_add_u32', sT4, sT4, WS_Q)
    a.valu('v_readfirstlane_b32', sEp, vEp)
    L_nosig = a.newlabel('nosig')
    a.salu('s_cmp_ge_u32', None, sF, NF)
    a.branch('s_cbranch_scc1', L_nosig)
    a.salu('s_mov_b32', sT0, 1)
    a.misc(f's_atomic_add {sT0}, {pDBG}, {DB_INITF}')
    a.label(L_nosig)
    QG = PB[4:8]

    def ldq():
        a.vload('buffer_load_dwordx4', QG, vL16, rWS, sT4, 0, LDF)

    def condq():
        a.valu('v_cmp_ne_u32_e64', S(10, 2), sEp, QG[1])
        a.valu('v_cmp_ne_u32', 'vcc', sEp, QG[3])
        a.salu('s_or_b64', S(10, 2), S(10, 2), 'vcc')
        a.salu('s_cmp_eq_u64', None, S(10, 2), 0)

    spin_until(ldq, condq, first_check=False, sleep=0)
    a.valu('v_mov_b32', QG[1], QG[2])
    a.valu('v_lshlrev_b32', vT[4], 3, vLane)
    a.ds('ds_write_b64', vT[4], QG[0:2], offset=L_QBF)
    a.wait_lgkm(0)
    a.ds('ds_write_b32', vCntA, vOne, offset=4)
    stamp('q_got')
    a.branch('s_branch', L_svc2)
    a.label(L_svc)
    L_nodma = a.newlabel('nodma')
    a.salu('s_cmp_ge_u32', None, sF, NF)
    a.branch('s_cbranch_scc1', L_nodma)
    a.valu('v_lshrrev_b32', vT[6], 3, vLane)
    a.valu('v_mul_u32_u24', vT[6], 3584, vT[6])
    a.valu('v_and_b32', vT[7], 7, vLane)
    a.valu('v_lshl_add_u32', vT[6], vT[7], 4, vT[6])
    a.salu('s_sub_u32', sT2, sW, 1)
    L_dma = a.newlabel('dma')
    a.label(L_dma)
    a.salu('s_lshl_b32', sT3, sT2, 10)
    a.salu('s_mul_i32', sT4, sT2, 8 * 3584)
    a.salu('s_lshl_b32', sT5, sF, 7)
    a.salu('s_add_u32', sT4, sT4, sT5)
    a.salu('s_mul_i32', sT5, sF, 57344)
    a.salu('s_add_u32', sT5, sT5, sT3)
    a.salu('s_add_u32', sT0, sT3, L_W1)
    a.salu('s_mov_b32', 'm0', sT0)
    a.vload_lds(vT[6], rW1, sT4, 0, WF)
    a.salu('s_add_u32', sT0, sT3, L_W2)
    a.salu('s_mov_b32', 'm0', sT0)
    a.vload_lds(vL16, rW2, sT5, 0, WF)
    a.salu('s_add_u32', sT2, sT2, 3)
    a.salu('s_cmp_lt_u32', None, sT2, 56)
    a.branch('s_cbranch_scc1', L_dma)
    a.label(L_nodma)
    a.label(L_svc2)
    if debug or prof:
        srd(rWSD, pWS, (1 << 20) + (64 << 20))
    a.valu('v_mul_u32_u24', vWoOff, 896, vG)
    a.valu('v_lshl_add_u32', vWoOff, vJ, 4, vWoOff)
    a.valu('v_and_b32', vT[2], 7, vJ)
    a.valu('v_lshlrev_b32', vT[3], 4, vT[2])
    a.valu('v_lshrrev_b32', vT[4], 3, vJ)
    a.valu('v_mul_u32_u24', vT[5], 4 * 896, vT[4])
    a.valu('v_mul_u32_u24', vWoRem, 896, vG)
    a.valu('v_add3_u32', vWoRem, vWoRem, vT[3], vT[5])
    a.valu('v_add_u32', vWoRem, 768, vWoRem)
    a.salu('s_lshl_b32', sT2, sH, 8)
    a.salu('s_lshl_b32', sT3, sSP, 6)
    a.salu('s_add_u32', sT2, sT2, sT3)
    a.salu('s_lshl_b32', sT3, sW, 4)
    a.salu('s_add_u32', sT2, sT2, sT3)
    a.salu('s_mul_i32', sT2, sT2, 896)
    for Gp in range(4):
        for s_ in range(3):
            a.vload('buffer_load_dwordx4', WO[(Gp * 3 + s_) * 4:(Gp * 3 + s_) * 4 + 4], vWoOff, rWO, sT2, 256 * s_, WF)
        if Gp % 2 == 0:
            a.vload('buffer_load_dwordx4', WO[48 + 2 * Gp:52 + 2 * Gp], vWoRem, rWO, sT2, 0, WF)
        if Gp < 3:
            a.salu('s_add_u32', sT2, sT2, 4 * 896)
    a.valu('v_lshl_add_u32', vT[5], vT[4], 2, vG)
    a.valu('v_lshlrev_b32', vT[5], 7, vT[5])
    a.valu('v_lshl_add_u32', vYw, vT[2], 4, vT[5])
    a.salu('s_lshl_b32', sT2, sW, 11)
    a.valu('v_add_u32', vYw, sT2, vYw)
    a.valu('v_and_b32', vT[6], 3, vJ)
    a.valu('v_lshrrev_b32', vT[7], 2, vJ)
    a.valu('v_mul_u32_u24', vOr, 1040, vT[6])
    a.valu('v_lshl_add_u32', vOr, vG, 6, vOr)
    a.valu('v_lshl_add_u32', vOr, vT[7], 4, vOr)
    a.salu('s_lshl_b32', sT2, sW, 8)
    a.valu('v_add_u32', vOr, sT2, vOr)
    a.valu('v_lshlrev_b32', vMr, 3, vT[6])
    a.valu('v_lshrrev_b32', vT[2], 1, vG)
    a.valu('v_lshlrev_b32', vPubOff, 5, vT[2])
    a.valu('v_lshl_add_u32', vPubOff, vT[6], 3, vPubOff)
    a.valu('v_and_b32', vT[2], 1, vT[7])
    a.valu('v_lshl_add_u32', vPubOff, vT[2], 2, vPubOff)
    a.valu('v_and_b32', vT[2], 1, vG)
    a.valu('v_lshl_add_u32', vPubOff, vT[2], 1, vPubOff)
    a.valu('v_lshrrev_b32', vT[2], 1, vT[7])
    a.valu('v_add_u32', vPubOff, vPubOff, vT[2])
    a.valu('v_lshlrev_b32', vPubOff, 2, vPubOff)
    a.salu('s_lshl_b32', sT2, sSP, 9)
    a.valu('v_lshlrev_b32', vGatML, 11, vT[6])
    a.valu('v_add_u32', vGatML, sT2, vGatML)
    a.salu('s_lshl_b32', sT3, sW, 6)
    a.valu('v_lshl_add_u32', vT[2], vT[7], 2, vG)
    a.valu('v_lshl_add_u32', vGatOff, vT[2], 2, vGatML)
    a.valu('v_add_u32', vGatOff, sT3, vGatOff)
    a.valu('v_lshlrev_b32', vOw, 24, vLane)

    def ldfi():
        a.valu('v_mov_b32', vT[7], 0)
        a.vload('buffer_load_dword', vChk, vT[7], rDBG, 0, DB_INITF, LDF)

    def condf():
        a.valu('v_readfirstlane_b32', sT2, vChk)
        a.salu('s_cmp_ge_u32', None, sT2, NF)

    spin_until(ldfi, condf, first_check=False, sleep=32)
    a.salu('s_lshl_b32', sT4, sGrp, 13)
    a.salu('s_add_u32', sT4, sT4, WS_MAIL)
    a.salu('s_lshl_b32', sT2, sSP, 2)
    a.salu('s_add_u32', sT2, sT2, sW)
    a.salu('s_lshl_b32', sT2, sT2, 9)
    a.salu('s_add_u32', sT3, sT4, sT2)
    stamp('v_ready')
    if notail == 2:
        a.branch('s_branch', 'L_end')
    a.barrier()
    stamp('v_B3')
    ov = PB[0:4]
    ml = PB[4:6]
    a.ds('ds_read_b64', ml, vMr, offset=L_ML)
    a.ds('ds_read_b128', ov, vOr, offset=L_OP)
    a.valu('v_and_b32', vT[5], 3, vJ)
    a.wait_lgkm(1)
    red4 = ('quad_perm:[1,0,3,2]', 'quad_perm:[2,3,0,1]')
    a.valu('v_mov_b32', vT[0], ml[0])
    for c in red4:
        a.dpp('v_max_f32', vT[0], vT[0], vT[0], ctrl=c)
    a.valu('v_sub_f32', vT[2], ml[0], vT[0])
    a.valu('v_mul_f32', vT[2], sCS, vT[2])
    a.valu('v_exp_f32', vT[2], vT[2])
    a.wait_lgkm(0)
    a.valu('v_mul_f32', vT[1], ml[1], vT[2])
    for r in range(4):
        a.valu('v_mul_f32', ov[r], ov[r], vT[2])
    for c in red4:
        for r in range(4):
            a.dpp('v_add_f32', ov[r], ov[r], ov[r], ctrl=c)
        a.dpp('v_add_f32', vT[1], vT[1], vT[1], ctrl=c)
    for r in range(1, 4):
        a.valu('v_cmp_eq_u32', 'vcc', r, vT[5])
        a.valu('v_cndmask_b32', ov[0], ov[0], ov[r], 'vcc')
    a.valu('v_min_u32', ov[0], -2, ov[0])
    a.vstore('buffer_store_dword', ov[0], vPubOff, rWS, sT3, 0, STF)
    a.valu('v_min_u32', vT[0], -2, vT[0])
    a.valu('v_min_u32', vT[1], -2, vT[1])
    a.vstore('buffer_store_dwordx2', vT[0:2], vOw, rWS, sT3, 256, STF)
    gv = PB[8]
    gml = PB[10:12]

    def ldg():
        a.vload('buffer_load_dword', gv, vGatOff, rWS, sT4, 0, LDF)
        a.vload('buffer_load_dwordx2', gml, vGatML, rWS, sT4, 256, LDF)

    def condg():
        a.valu('v_max3_u32', vT[2], gv, gml[0], gml[1])
        a.valu('v_cmp_eq_u32_e64', S(10, 2), -1, vT[2])
        a.salu('s_cmp_eq_u64', None, S(10, 2), 0)

    spin_until(ldg, condg, first_check=False, sleep=gsleep)
    stamp('v_gath')
    a.valu('v_mov_b32', vT[0], gml[0])
    for c in red4:
        a.dpp('v_max_f32', vT[0], vT[0], vT[0], ctrl=c)
    a.valu('v_sub_f32', vT[1], gml[0], vT[0])
    a.valu('v_mul_f32', vT[1], sCS, vT[1])
    a.valu('v_exp_f32', vT[1], vT[1])
    a.valu('v_mul_f32', gv, gv, vT[1])
    a.valu('v_mul_f32', gml[1], gml[1], vT[1])
    for c in red4:
        a.dpp('v_add_f32', gv, gv, gv, ctrl=c)
        a.dpp('v_add_f32', gml[1], gml[1], gml[1], ctrl=c)
    a.valu('v_rcp_f32', gml[1], gml[1])
    a.valu('v_mul_f32', gv, gv, gml[1])
    a.valu('v_cvt_pk_bf16_f32', gv, gv, gv)
    dump(gv, 18)
    Y = [KB[0:4], KB[4:8], KB[8:12], KB[12:16], KB[16:20]]
    BT = [QB[4 * Gp:4 * Gp + 4] for Gp in range(4)]
    for Gp in range(4):
        for r in range(4):
            a.dpp('v_and_b32', BT[Gp][r], gv, vMask[r], ctrl=f'row_newbcast:{4 * Gp}')
        for s_ in range(3):
            a.mfma(Y[s_], WO[(Gp * 3 + s_) * 4:(Gp * 3 + s_) * 4 + 4], BT[Gp], 0 if Gp == 0 else Y[s_])
        a.mfma(Y[3 + Gp % 2], WO[48 + 4 * (Gp // 2):52 + 4 * (Gp // 2)], BT[Gp], 0 if Gp < 2 else Y[3 + Gp % 2])
    for r in range(4):
        a.valu('v_cndmask_b32', Y[0][r], Y[1][r], Y[0][r], mJ8)
    a.ds('ds_write_b128', vYw, Y[0], offset=L_YP)
    for r in range(4):
        a.valu('v_cndmask_b32', Y[3][r], Y[4][r], Y[3][r], mG2)
        a.valu('v_cndmask_b32', Y[2][r], Y[3][r], Y[2][r], mJ8)
    a.ds('ds_write_b128', vYw, Y[2], offset=L_YP + 1024)
    a.branch('s_branch', 'L_b4')

    a.label(L_stream)
    a.misc(f's_setprio {prio}')
    srd(rK, P(1), 4 << 20, sT1)
    srd(rV, P(2), 4 << 20, sT1)
    issue_static_units()
    common_setup()
    if debug or prof:
        srd(rWSD, pWS, (1 << 20) + (64 << 20))
    a.salu('s_lshl_b32', sT2, sGrp, 8)
    a.salu('s_add_u32', sT2, sT2, WS_POOL)
    a.salu('s_add_u32', sPool[0], pWS[0], sT2)
    a.salu('s_addc_u32', sPool[1], pWS[1], 0)
    a.valu('v_lshrrev_b32', vT[2], 2, vJ)
    for t in range(4):
        a.valu('v_cmp_eq_u32_e64', mT[t], t, vT[2])
    for r in range(4):
        a.valu('v_mov_b32', OD0[r], 0)
        a.valu('v_mov_b32', OD1[r], 0)
    a.valu('v_mov_b32', vL, 0)
    a.salu('s_mov_b32', sM, -3.0e38)
    a.salu('s_mov_b32', sExh, 0)
    a.valu('v_lshrrev_b32', vT[4], 3, vJ)
    a.valu('v_lshl_add_u32', vT[5], vT[4], 2, vG)
    a.valu('v_lshlrev_b32', vT[5], 7, vT[5])
    a.valu('v_and_b32', vT[6], 3, vJ)
    a.valu('v_lshl_add_u32', vOw, vT[6], 5, vT[5])
    a.valu('v_bfe_u32', vT[7], vJ, 2, 1)
    a.valu('v_lshl_add_u32', vOw, vT[7], 4, vOw)
    a.salu('s_sub_u32', sT2, sW, 4)
    a.salu('s_mul_i32', sT3, sT2, 1040)
    a.valu('v_add_u32', vOw, sT3, vOw)
    a.salu('s_lshl_b32', sT2, sT2, 3)
    a.valu('v_mov_b32', vMr, sT2)
    a.valu('v_lshl_add_u32', vT[1], vG, 2, vT[6])
    a.valu('v_lshlrev_b32', vT[1], 4, vT[1])
    stamp('s_issued')
    L_qw = a.newlabel('qw')
    L_qok = a.newlabel('qok')
    a.salu('s_mov_b32', sT5, SPIN_BOUND * 8)
    a.label(L_qw)
    a.ds('ds_read_b32', vT[0], vCntA, offset=4)
    a.wait_lgkm(0)
    a.valu('v_readfirstlane_b32', sT2, vT[0])
    a.salu('s_cmp_lg_u32', None, sT2, 0 if not skipq else 77)
    a.branch('s_cbranch_scc1', L_qok)
    a.misc('s_sleep 2')
    a.salu('s_sub_u32', sT5, sT5, 1)
    a.salu('s_cmp_lg_u32', None, sT5, 0)
    a.branch('s_cbranch_scc1', L_qw)
    a.label(L_qok)
    stamp('s_q')
    a.ds('ds_read_b128', PB[0:4], vT[1], offset=L_QBF)
    a.ds('ds_read_b128', PB[4:8], vT[1], offset=L_QBF + 256)
    a.wait_lgkm(0)
    for t in range(4):
        for hf in range(2):
            for r in range(4):
                a.valu('v_cndmask_b32', QB[(t * 2 + hf) * 4 + r], 0, PB[hf * 4 + r], mT[t])

    def qk(kb):
        for i in range(8):
            a.mfma(KD, kb[4 * i:4 * i + 4], QB[4 * i:4 * i + 4], 0 if i == 0 else KD)

    def softmax_step():
        s_, t_ = vT[0], vT[1]
        a.dpp('v_mov_b32', s_, KD[0], ctrl='quad_perm:[0,0,0,0]')
        a.dpp('v_add_f32', s_, KD[1], s_, ctrl='quad_perm:[1,1,1,1]')
        a.dpp('v_add_f32', s_, KD[2], s_, ctrl='quad_perm:[2,2,2,2]')
        a.dpp('v_add_f32', s_, KD[3], s_, ctrl='quad_perm:[3,3,3,3]')
        rbf(s_, s_)
        a.valu('v_max_f32', t_, sM, s_)
        wave_red('v_max_f32', t_, sMn, quads_equal=True)
        a.valu('v_mov_b32', t_, sM)
        a.valu('v_subrev_f32', s_, sMn, s_)
        a.valu('v_subrev_f32', t_, sMn, t_)
        a.valu('v_mul_f32', s_, sCS, s_)
        a.valu('v_mul_f32', t_, sCS, t_)
        a.valu('v_exp_f32', s_, s_)
        a.valu('v_exp_f32', t_, t_)
        a.salu('s_mov_b32', sM, sMn)
        a.valu('v_fma_f32', vL, vL, t_, s_)
        a.valu('v_cvt_pk_bf16_f32', s_, s_, s_)
        for r in range(4):
            a.valu('v_mul_f32', OD0[r], OD0[r], t_)
            a.valu('v_mul_f32', OD1[r], OD1[r], t_)
        for T in range(4):
            for r in range(4):
                a.dpp('v_and_b32', PB[4 * T + r], s_, vMask[r], ctrl=f'row_newbcast:{4 * T}')

    def pv(vb):
        for T in range(4):
            a.mfma(OD0, vb[8 * T:8 * T + 4], PB[4 * T:4 * T + 4], OD0)
            a.mfma(OD1, vb[8 * T + 4:8 * T + 8], PB[4 * T:4 * T + 4], OD1)

    def fetch_issue():
        L_f1 = a.newlabel('f1')
        L_f2 = a.newlabel('f2')
        a.salu('s_cmp_lg_u32', None, sExh, 0)
        a.branch('s_cbranch_scc1', L_f1)
        a.salu('s_mov_b64', 'exec', 1)
        a.misc(f'ds_add_rtn_u32 {vIdx}, {vCntA}, {vOne}')
        a.salu('s_mov_b64', 'exec', -1)
        a.branch('s_branch', L_f2)
        a.label(L_f1)
        a.salu('s_mov_b32', sIdx, 1)
        a.misc(f's_atomic_add {sIdx}, {sPool}, 0 glc')
        a.label(L_f2)

    def fetch_complete():
        a.wait_lgkm(0)
        L_g1 = a.newlabel('g1')
        L_g2 = a.newlabel('g2')
        a.salu('s_cmp_lg_u32', None, sExh, 0)
        a.branch('s_cbranch_scc1', L_g1)
        a.valu('v_readfirstlane_b32', sT2, vIdx)
        a.salu('s_mul_i32', sNext, sSP, npriv)
        a.salu('s_add_u32', sNext, sNext, sT2)
        a.salu('s_cmp_lt_u32', None, sT2, npriv)
        a.branch('s_cbranch_scc1', L_g2)
        a.salu('s_mov_b32', sExh, 1)
        a.salu('s_mov_b32', sIdx, 1)
        a.misc(f's_atomic_add {sIdx}, {sPool}, 0 glc')
        a.wait_lgkm(0)
        a.label(L_g1)
        a.salu('s_add_u32', sNext, sIdx, 4 * npriv)
        a.label(L_g2)

    def unit_rolling(cnt):
        for i in range(8):
            a.misc(f's_waitcnt vmcnt({cnt})')
            if not nocomp:
                a.mfma(KD, KB[4 * i:4 * i + 4], QB[4 * i:4 * i + 4], 0 if i == 0 else KD)
            vo, o = koff(i)
            a.vload('buffer_load_dwordx4', KB[4 * i:4 * i + 4], vo, rK, sNext, o, 'nt')
        fetch_issue()
        if not nocomp:
            softmax_step()
        for i in range(8):
            od = OD0 if i % 2 == 0 else OD1
            a.misc(f's_waitcnt vmcnt({cnt})')
            if not nocomp:
                a.mfma(od, VB[4 * i:4 * i + 4], PB[4 * (i // 2):4 * (i // 2) + 4], od)
            vo, o = voff(i)
            a.vload('buffer_load_dwordx4', VB[4 * i:4 * i + 4], vo, rV, sNext, o, 'nt')

    extra = 32 if use_c else 16
    fetch_issue()
    fetch_complete()
    a.salu('s_lshl_b32', sNext, sNext, 13)
    unit_rolling(15 + extra)
    a.misc(f's_waitcnt vmcnt({extra + 8})')
    qk(KB2)
    softmax_step()
    a.misc(f's_waitcnt vmcnt({extra})')
    pv(VB2)
    L_loop = 'L_loop'
    if use_c:
        a.salu('s_cmp_lt_u32', None, sF, NF)
        a.branch('s_cbranch_scc1', L_loop)
        a.salu('s_sub_u32', sT4, sW, 4)
        a.salu('s_lshl_b32', sT4, sT4, 14)
        a.salu('s_add_u32', sT4, sT4, L_W1)
        a.valu('v_add_u32', vT[2], sT4, vL16)
        a.misc('s_waitcnt vmcnt(16)')
        for i in range(8):
            a.ds('ds_read_b128', KB2[4 * i:4 * i + 4], vT[2], offset=1024 * i)
        for i in range(8):
            a.ds('ds_read_b128', VB2[4 * i:4 * i + 4], vT[2], offset=8192 + 1024 * i)
        a.wait_lgkm(8)
        qk(KB2)
        softmax_step()
        a.wait_lgkm(0)
        pv(VB2)

    a.label(L_loop)
    if prof:
        a.salu('s_add_u32', sCnt, sCnt, 1)
    fetch_complete()
    L_last = a.newlabel('last')
    a.salu('s_cmp_ge_u32', None, sNext, 512)
    a.branch('s_cbranch_scc1', L_last)
    a.salu('s_lshl_b32', sNext, sNext, 13)
    unit_rolling(15)
    a.branch('s_branch', L_loop)
    a.label(L_last)
    a.misc('s_waitcnt vmcnt(8)')
    qk(KB)
    softmax_step()
    wave_red('v_add_f32', vL, sMn, quads_equal=True)
    a.valu('v_mov_b32', vT[2], sM)
    a.valu('v_mov_b32', vT[3], sMn)
    a.ds('ds_write_b64', vMr, vT[2:4], offset=L_ML)
    for i in range(8):
        od = OD0 if i % 2 == 0 else OD1
        a.misc(f's_waitcnt vmcnt({7 - i})')
        a.mfma(od, VB[4 * i:4 * i + 4], PB[4 * (i // 2):4 * (i // 2) + 4], od)
    stamp('s_Vlast')
    if notail:
        a.branch('s_branch', 'L_end')
    for r in range(4):
        a.valu('v_cndmask_b32', PB[r], OD1[r], OD0[r], mJ8)
    a.ds('ds_write_b128', vOw, PB[0:4], offset=L_OP)
    a.wait_lgkm(0)
    a.barrier()
    a.misc('s_setprio 0')
    stamp_val('s_units', sCnt)

    a.label('L_b4')
    a.salu('s_lshl_b32', sT2, sW, 8)
    a.valu('v_lshlrev_b32', vT[4], 2, vLane)
    a.valu('v_add_u32', vT[4], sT2, vT[4])
    a.salu('s_mul_i32', sT0, sB, 1792)
    a.salu('s_add_u32', sT0, sT0, WS_ACC)
    a.salu('s_lshl_b32', sT1, sGrp, 2)
    a.salu('s_add_u32', sT1, sT1, sSP)
    a.salu('s_lshl_b32', sT1, sT1, 2)
    a.salu('s_add_u32', sT1, sT1, WS_FLAG)
    a.valu('v_lshlrev_b32', vT[6], 10, vLane)
    a.wait_lgkm(0)
    a.barrier()
    stamp('B4')
    YS = VB[0:4]
    for i in range(4):
        a.ds('ds_read_b32', YS[i], vT[4], offset=L_YP + 2048 * i)
    a.wait_lgkm(0)
    a.valu('v_add_f32', YS[0], YS[0], YS[1])
    a.valu('v_add_f32', YS[2], YS[2], YS[3])
    a.valu('v_add_f32', YS[0], YS[0], YS[2])
    a.vstore('buffer_atomic_add_f32', YS[0], vAt, rWS, sT0, 0, 'sc1')
    a.salu('s_mov_b64', 'exec', 1)
    a.wait_vm0()
    a.misc(f'ds_add_rtn_u32 {vIdx}, {vCntA}, {vOne} offset:12')
    a.wait_lgkm(0)
    a.valu('v_readfirstlane_b32', sT2, vIdx)
    L_nc = a.newlabel('nc')
    a.salu('s_cmp_lg_u32', None, sT2, 7)
    a.branch('s_cbranch_scc1', L_nc)
    a.salu('s_mov_b64', 'exec', (1 << NF) - 1)
    a.vstore('buffer_store_dword', vOne, vT[6], rWS, sT1, 0, STF)
    a.label(L_nc)
    a.salu('s_mov_b64', 'exec', -1)
    stamp('atom')
    a.salu('s_cmp_ge_u32', None, sF, NF)
    a.branch('s_cbranch_scc1', 'L_endp')

    F2B = V(84, 32)
    FA = V(116, 56)
    F1B = V(172, 56)
    RB = V(24, 28)
    a.valu('v_bfe_u32', vT[4], vLane, 2, 2)
    a.valu('v_lshl_add_u32', vT[4], vG, 3, vT[4])
    a.valu('v_and_b32', vT[5], 3, vLane)
    a.valu('v_lshlrev_b32', vT[5], 3, vT[5])
    a.valu('v_mul_u32_u24', vT[6], 896, vT[4])
    a.valu('v_add_u32', vT[6], vT[6], vT[5])
    a.salu('s_min_u32', sT2, sW, 6)
    a.salu('s_lshl_b32', sT2, sT2, 7)
    a.salu('s_add_u32', sT2, sT2, L_W2)
    a.valu('v_add_u32', vT[6], sT2, vT[6])
    for tt in range(4):
        for ks in range(2):
            for qq in range(2):
                d = F2B[(tt * 2 + ks) * 4 + 2 * qq:(tt * 2 + ks) * 4 + 2 * qq + 2]
                a.ds('ds_read_b64_tr_b16', d, vT[6], offset=(32 * ks + 4 * qq) * 896 + tt * 32)
    L_ln = a.newlabel('ln')
    L_b5 = a.newlabel('b5')
    a.salu('s_cmp_ge_u32', None, sW, 4)
    a.branch('s_cbranch_scc1', L_ln)
    a.valu('v_lshlrev_b32', vT[6], 7, vT[4])
    a.valu('v_add_u32', vT[6], vT[6], vT[5])
    a.salu('s_lshl_b32', sT2, sW, 5)
    a.salu('s_add_u32', sT2, sT2, L_W1)
    a.valu('v_add_u32', vT[6], sT2, vT[6])
    for ks in range(14):
        for qq in range(2):
            a.ds('ds_read_b64_tr_b16', F1B[ks * 4 + 2 * qq:ks * 4 + 2 * qq + 2], vT[6], offset=(32 * ks + 4 * qq) * 128)
            if (ks * 2 + qq) % 8 == 7:
                a.wait_lgkm(4)
    a.branch('s_branch', L_b5)
    a.label(L_ln)
    a.salu('s_sub_u32', sT3, sW, 4)
    a.salu('s_mul_i32', sT2, sT3, 896)
    srd(rX, sXP, 896, sT2)
    xraw = RB[0:4]
    a.vload('buffer_load_dwordx4', xraw, vL16, rX)
    a.salu('s_lshl_b32', sT4, sF, 2)
    a.salu('s_add_u32', sT4, sT4, sT3)
    a.salu('s_lshl_b32', sT4, sT4, 8)
    a.salu('s_add_u32', sT4, sT4, WS_FLAG)
    a.valu('v_lshlrev_b32', vT[7], 2, vLane)
    a.salu('s_mul_i32', sT1, sT3, 1792)
    a.salu('s_add_u32', sT1, sT1, WS_ACC)
    a.valu('v_lshlrev_b32', vT[0], 5, vLane)
    a.valu('v_mov_b32', vT[5], BIGOFF)
    a.valu('v_cndmask_b32', vT[0], vT[5], vT[0], m56)

    def ldc():
        a.vload('buffer_load_dword', vT[6], vT[7], rWS, sT4, 0, LDF)

    def condc():
        a.valu('v_cmp_eq_u32', 'vcc', 0, vT[6])
        a.salu('s_cmp_eq_u64', None, 'vcc', 0)

    spin_until(ldc, condc, first_check=False, sleep=psleep)
    stamp('poll')
    av = RB[8:16]
    a.vload('buffer_load_dwordx4', av[0:4], vT[0], rWS, sT1, 0, LDF)
    a.vload('buffer_load_dwordx4', av[4:8], vT[0], rWS, sT1, 16, LDF)
    xf = RB[16:24]
    unpack8(xf, xraw)
    a.salu('s_mul_i32', sT2, sT3, 896)
    a.valu('v_add_u32', vT[6], sT2, vL16)
    a.wait_vm0()
    hp = RB[4:8]
    for i in range(4):
        a.valu('v_cvt_pk_bf16_f32', RB[24 + i], av[2 * i], av[2 * i + 1])
    for i in range(4):
        a.valu('v_lshlrev_b32', av[2 * i], 16, RB[24 + i])
        a.valu('v_and_b32', av[2 * i + 1], 0xffff0000, RB[24 + i])
    for i in range(8):
        a.valu('v_add_f32', xf[i], xf[i], av[i])
    for i in range(4):
        a.valu('v_cvt_pk_bf16_f32', hp[i], xf[2 * i], xf[2 * i + 1])
    unpack8(xf, hp)
    a.salu('s_mov_b64', 'exec', m56)
    a.ds('ds_write_b128', vT[6], hp, offset=L_HB)
    a.salu('s_mov_b64', 'exec', -1)
    layernorm([(xf, vT[0:4], sX0, sX1)])
    for i in range(4):
        a.valu('v_cvt_pk_bf16_f32', RB[i], xf[2 * i], xf[2 * i + 1])
    a.salu('s_mov_b64', 'exec', m56)
    a.ds('ds_write_b128', vT[6], RB[0:4], offset=L_XN2)
    a.salu('s_mov_b64', 'exec', -1)
    if debug:
        for i in range(4):
            dump(hp[i], 33 + i)
            dump(RB[i], 37 + i)
    a.label(L_b5)
    a.wait_lgkm(0)
    a.barrier()
    stamp('B5')
    L_b6 = a.newlabel('b6')
    a.salu('s_cmp_ge_u32', None, sW, 4)
    a.branch('s_cbranch_scc1', L_b6)
    a.valu('v_and_b32', vT[6], 3, vLane)
    a.valu('v_mul_u32_u24', vT[6], 896, vT[6])
    a.valu('v_lshl_add_u32', vT[6], vG, 4, vT[6])
    for ks in range(14):
        a.ds('ds_read_b128', FA[4 * ks:4 * ks + 4], vT[6], offset=L_XN2 + 64 * ks)
    Z = RB[0:4]
    for ks in range(14):
        a.wait_lgkm(min(13 - ks, 15))
        a.mfma(Z, FA[4 * ks:4 * ks + 4], F1B[4 * ks:4 * ks + 4], 0 if ks == 0 else Z)
    a.salu('s_lshl_b32', sT2, sW, 5)
    a.valu('v_lshlrev_b32', vT[6], 1, vJ)
    a.valu('v_add_u32', vT[6], sT2, vT[6])
    a.salu('s_mov_b32', sT3, -LOG2E)
    for r in range(4):
        rbf(Z[r], Z[r])
    for r in range(4):
        a.valu('v_mul_f32', RB[4 + r], sT3, Z[r])
    for r in range(4):
        a.valu('v_exp_f32', RB[4 + r], RB[4 + r])
    for r in range(4):
        a.valu('v_add_f32', RB[4 + r], 1.0, RB[4 + r])
    for r in range(4):
        a.valu('v_rcp_f32', RB[4 + r], RB[4 + r])
    for r in range(4):
        a.valu('v_mul_f32', Z[r], Z[r], RB[4 + r])
    for r in range(4):
        a.valu('v_cvt_pk_bf16_f32', Z[r], Z[r], Z[r])
        a.ds('ds_write_b16', vT[6], Z[r], offset=L_GB + 128 * r)
    if debug:
        for r in range(4):
            dump(Z[r], 41 + r)
    a.label(L_b6)
    a.wait_lgkm(0)
    a.barrier()
    stamp('B6')
    L_fin = a.newlabel('fin')
    a.salu('s_cmp_ge_u32', None, sW, 7)
    a.branch('s_cbranch_scc1', L_fin)
    a.valu('v_and_b32', vT[6], 3, vLane)
    a.valu('v_lshlrev_b32', vT[6], 7, vT[6])
    a.valu('v_lshl_add_u32', vT[6], vG, 4, vT[6])
    a.ds('ds_read_b128', FA[0:4], vT[6], offset=L_GB)
    a.ds('ds_read_b128', FA[4:8], vT[6], offset=L_GB + 64)
    a.salu('s_mul_i32', sT2, sW, 4 * 7168)
    a.salu('s_lshl_b32', sT3, sF, 8)
    a.salu('s_add_u32', sT2, sT2, sT3)
    a.salu('s_add_u32', sT2, sT2, WS_INBOX)
    a.wait_lgkm(0)
    O2 = [RB[4 * tt:4 * tt + 4] for tt in range(4)]
    for tt in range(4):
        a.mfma(O2[tt], FA[0:4], F2B[(tt * 2) * 4:(tt * 2) * 4 + 4], 0)
    for tt in range(4):
        a.mfma(O2[tt], FA[4:8], F2B[(tt * 2 + 1) * 4:(tt * 2 + 1) * 4 + 4], O2[tt])
    a.salu('s_mov_b64', 'exec', 0xffff)
    for tt in range(4):
        for r in range(4):
            a.valu('v_min_u32', O2[tt][r], -2, O2[tt][r])
        a.vstore('buffer_store_dwordx4', O2[tt], vL16, rWS, sT2, 0, STF)
        if tt < 3:
            a.salu('s_add_u32', sT2, sT2, 7168)
    a.salu('s_or_b32', sT2, sF, sW)
    a.salu('s_cmp_lg_u32', None, sT2, 0)
    a.branch('s_cbranch_scc1', 'L_endp')
    a.salu('s_mov_b64', 'exec', 1)
    a.valu('v_mov_b32', vT[4], sEp)
    a.valu('v_mov_b32', vT[5], 0)
    a.salu('s_mov_b32', sT2, WS_EPOCH)
    a.vstore('buffer_store_dword', vT[4], vT[5], rWS, sT2, 0, STF)
    a.branch('s_branch', 'L_endp')
    a.label(L_fin)
    a.valu('v_mul_u32_u24', vT[6], 896, vG)
    a.valu('v_lshl_add_u32', vT[6], vJ, 1, vT[6])
    a.salu('s_lshl_b32', sT2, sF, 5)
    a.valu('v_add_u32', vT[6], sT2, vT[6])
    a.ds('ds_read_u16', vT[7], vT[6], offset=L_HB)
    a.salu('s_mul_i32', sT3, sF, 7168)
    a.salu('s_add_u32', sT3, sT3, WS_INBOX)
    a.salu('s_add_u32', sT4, sT3, 4096)
    IB = V(116, 28)

    def ldi():
        for i in range(7):
            a.vload('buffer_load_dwordx4', IB[4 * i:4 * i + 4], vL16, rWS, sT3 if i < 4 else sT4, (i % 4) * 1024, LDF)

    def condi():
        a.valu('v_max3_u32', vT[0], IB[0], IB[1], IB[2])
        for i in range(3, 27, 2):
            a.valu('v_max3_u32', vT[0], vT[0], IB[i], IB[i + 1])
        a.valu('v_max_u32', vT[0], vT[0], IB[27])
        a.valu('v_cmp_eq_u32_e64', S(100, 2), -1, vT[0])
        a.salu('s_cmp_eq_u64', None, S(100, 2), 0)

    spin_until(ldi, condi, first_check=False, sleep=0)
    stamp('inbox')
    for i in range(1, 7):
        for r in range(4):
            a.valu('v_add_f32', IB[r], IB[r], IB[4 * i + r])
    for r in range(4):
        a.valu('v_mov_b32', IB[4 + r], IB[r])
    for r in range(4):
        a.valu('v_permlane16_swap_b32', IB[r], IB[4 + r])
    for r in range(4):
        a.valu('v_add_f32', IB[r], IB[r], IB[4 + r])
    for r in range(4):
        a.valu('v_mov_b32', IB[4 + r], IB[r])
    for r in range(4):
        a.valu('v_permlane32_swap_b32', IB[r], IB[4 + r])
    for r in range(4):
        a.valu('v_add_f32', IB[r], IB[r], IB[4 + r])
    for r in range(1, 4):
        a.valu('v_cmp_eq_u32', 'vcc', r, vG)
        a.valu('v_cndmask_b32', IB[0], IB[0], IB[r], 'vcc')
    rbf(IB[0], IB[0])
    a.wait_lgkm(0)
    a.valu('v_lshlrev_b32', vT[7], 16, vT[7])
    a.valu('v_add_f32', IB[0], IB[0], vT[7])
    a.valu('v_cvt_pk_bf16_f32', IB[0], IB[0], IB[0])
    a.vstore('buffer_store_short', IB[0], vT[6], rOUT, 0, 0)
    a.label('L_endp')
    stamp('end')
    stamp_store()
    a.label('L_end')
    A('  s_endpgm')
    A('.section .rodata,"a"')
    A('.p2align 6')
    A(f'.amdhsa_kernel {KNAME}')
    A('  .amdhsa_next_free_vgpr 256')
    A('  .amdhsa_next_free_sgpr 102')
    A('  .amdhsa_accum_offset 256')
    A('  .amdhsa_group_segment_fixed_size 0')
    A('  .amdhsa_kernarg_size 88')
    A('  .amdhsa_user_sgpr_count 2')
    A('  .amdhsa_user_sgpr_kernarg_segment_ptr 1')
    A('  .amdhsa_system_sgpr_workgroup_id_x 1')
    A('  .amdhsa_float_denorm_mode_32 3')
    A('.end_amdhsa_kernel')
    if prof:
        A('; STAMPS ' + ' '.join(stamp_names))
    return a.text()


if __name__ == '__main__':
    out = [x for x in sys.argv[1:] if not x.startswith('--')]
    path = out[0] if out else os.path.join(os.path.dirname(os.path.abspath(__file__)), '..', 'cdna_kernels', NAME + '.s')
    kw = {}
    for x in sys.argv[1:]:
        if x.startswith('--') and '=' in x:
            k_, v_ = x[2:].split('=')
            kw[k_] = int(v_)
    open(path, 'w').write(build(debug='--debug' in sys.argv, prof='--prof' in sys.argv, **kw))
    print('wrote', path)
```

```python
import os
import sys

sys.path.insert(0, os.path.dirname(os.path.abspath(__file__)))
from asmlib import Asm, V, S

NAME = 'sequential_preLN__mha_block_cached__dense_activation_silu__decode'
KNAME = NAME + '_kernel'

NWG = 256
NF = 28
LOG2E = 1.4426950408889634
CS = LOG2E / 16.0

WS_ACC = 0
WS_EPOCH = 24576
WS_INBOX = 32768
WS_Q = 0x40000
WS_POOL = 0x60000
WS_FLAG = 0x70000
WS_MAIL = 0x80000
WS_BYTES = 1 << 20
WS_DBG = 1 << 20
DB_INITF = 40

L_XN2 = 0
L_HB = 4096
L_GB = 8192
L_QBF = 8704
L_ML = 9216
L_CNT = 9344
L_FLAG = 9348
L_SVC = 9352
L_ARR = 9356
L_OP = 9472
L_YP = 17920
L_WQS = L_YP
L_W1 = 34816
L_W2 = L_W1 + 57344
LDS_BYTES = L_W2 + 57344

SPIN_BOUND = 200000
BIGOFF = 0x1000000


def build(debug=False, prof=False, npriv=112, xmap=1, gsleep=0, ldf=0, stf=0, use_c=1, skipq=0, nocomp=0, nowo=0, notail=0, prio=2, smalllds=0, nodma=0, nowq=0, wnt=1, psleep=0, kpol=0, vpol=0):
    POL = ['nt', '', 'nt sc0', 'nt sc1', 'sc1']
    KP, VP = POL[kpol], POL[vpol]
    WF = 'nt' if wnt else ''
    LDF = ['sc1', 'sc0 sc1'][ldf]
    STF = ['sc1', 'sc0 sc1'][stf]
    a = Asm()
    A = a.raw
    hdr = open(os.path.join(os.path.dirname(os.path.abspath(__file__)), '..', 'cdna_kernels', NAME + '.s.ref')).read().split('\n')
    for ln in hdr:
        if ln.startswith(';') and '@launch' not in ln:
            A(ln)
        elif '@launch' in ln:
            A(f'; @launch grid=({NWG},1,1) block=(512,1,1) lds={LDS_BYTES if not smalllds else 16384}')
        else:
            break
    A('.amdgcn_target "amdgcn-amd-amdhsa--gfx950"')
    A('.text')
    A(f'.globl {KNAME}')
    A('.p2align 8')
    A(f'.type {KNAME},@function')
    A(f'{KNAME}:')

    sID = S(2)
    sF = S(0)
    sGrp = S(3)
    sW, sB, sH, sSP = S(4), S(5), S(6), S(7)
    sT0, sT1, sT2, sT3, sT4, sT5 = S(8), S(9), S(10), S(11), S(12), S(13)
    sNext = S(14)
    sIdx = S(15)
    P = lambda i: S(16 + 2 * i, 2)
    pOUT, pDBG, pWS = S(32, 2), S(34, 2), S(36, 2)
    sM = S(38)
    sMn = S(39)
    rK, rV, rWQ, rWO, rX, rW1, rW2, rOUT, rDBG, rWS = [S(40 + 4 * i, 4) for i in range(10)]
    sPool = S(80, 2)
    sExh = S(82)
    sCS = S(83)
    mT = [S(84 + 2 * t, 2) for t in range(4)]
    mJ8 = S(92, 2)
    m56 = S(94, 2)
    mG2 = S(96, 2)
    sX0, sX1 = S(98), S(99)
    sXP = S(100, 2)
    sEp = S(32)
    rWSD = rWQ
    LNS = [S(16), S(17), S(18), S(19), S(20), S(21), S(0), S(1)]
    sCnt = S(33)

    vTid = V(0)
    vLane, vJ, vG = V(1), V(2), V(3)
    vKoff, vKoff2, vVoff, vVoff2 = V(4), V(5), V(6), V(7)
    vMask = V(8, 4)
    vWoOff, vWoRem = V(12), V(13)
    vL = V(14)
    vL16 = V(15)
    vT = V(16, 8)
    OD0, OD1 = V(24, 4), V(28, 4)
    KD = V(32, 4)
    PB = V(36, 16)
    QB = V(52, 32)
    KB, VB, KB2, VB2 = V(84, 32), V(116, 32), V(148, 32), V(180, 32)
    XT = V(212, 44)
    WO = V(148, 56)
    vIdx, vOne, vCntA, vChk = XT[0], XT[1], XT[2], XT[3]
    vOw, vOr, vMr, vYw, vAt = XT[4], XT[5], XT[6], XT[7], XT[8]
    vPubOff, vGatOff, vGatML = XT[9], XT[10], XT[11]

    def dump(reg, slot):
        if not debug:
            return
        a.salu('s_lshl_b32', sX0, sID, 3)
        a.salu('s_add_u32', sX0, sX0, sW)
        a.salu('s_lshl_b32', sX0, sX0, 14)
        a.salu('s_add_u32', sX0, sX0, WS_DBG + slot * 256)
        a.valu('v_lshlrev_b32', XT[43], 2, vLane)
        a.vstore('buffer_store_dword', reg, XT[43], rWSD, sX0)

    stamp_names = []
    early = []

    def stamp(name, late=True):
        if not prof:
            return
        k = len(stamp_names)
        stamp_names.append(name)
        a.misc('s_memrealtime s[22:23]')
        a.wait_lgkm(0)
        if late:
            a.valu('v_writelane_b32', V(0), S(22), k, rmw=True)
        else:
            a.salu('s_mov_b32', S(24 + len(early)), S(22))
            early.append(k)

    def stamp_val(name, sreg):
        if not prof:
            return
        k = len(stamp_names)
        stamp_names.append(name)
        a.valu('v_writelane_b32', V(0), sreg, k, rmw=True)

    def stamp_flush_early():
        if not prof:
            return
        for i, k in enumerate(early):
            a.valu('v_writelane_b32', V(0), S(24 + i), k, rmw=True)

    def stamp_store():
        if not prof:
            return
        a.salu('s_mov_b64', 'exec', -1)
        a.salu('s_lshl_b32', sX0, sID, 3)
        a.salu('s_add_u32', sX0, sX0, sW)
        a.salu('s_lshl_b32', sX0, sX0, 8)
        a.salu('s_add_u32', sX0, sX0, WS_DBG)
        a.valu('v_lshlrev_b32', V(23), 2, vLane)
        a.vstore('buffer_store_dword', V(0), V(23), rWSD, sX0)

    def srd(r, ptr, nbytes, off=None):
        if off is None:
            a.salu('s_mov_b32', r[0], ptr[0])
            a.salu('s_mov_b32', r[1], ptr[1])
        else:
            a.salu('s_add_u32', r[0], ptr[0], off)
            a.salu('s_addc_u32', r[1], ptr[1], 0)
        a.salu('s_mov_b32', r[2], nbytes)
        a.salu('s_mov_b32', r[3], 0x00020000)

    def wave_red_multi(op, vs, sdsts, quads_equal=False):
        ctrls = ['row_ror:4', 'row_ror:8'] if quads_equal else ['quad_perm:[1,0,3,2]', 'quad_perm:[2,3,0,1]', 'row_half_mirror', 'row_mirror']
        for c in ctrls:
            for v in vs:
                a.dpp(op, v, v, v, ctrl=c)
        for v in vs:
            a.dpp(op, v, v, v, ctrl='row_bcast:15', row_mask=0xa)
        for v in vs:
            a.dpp(op, v, v, v, ctrl='row_bcast:31', row_mask=0xc)
        for v, s_ in zip(vs, sdsts):
            a.valu('v_readlane_b32', s_, v, 63)

    def wave_red(op, v, sdst, quads_equal=False):
        wave_red_multi(op, [v], [sdst], quads_equal)

    def rbf(dst, src):
        a.valu('v_cvt_pk_bf16_f32', dst, src, src)
        a.valu('v_and_b32', dst, 0xffff0000, dst)

    def unpack8(xf, raw):
        for i in range(4):
            a.valu('v_lshlrev_b32', xf[2 * i], 16, raw[i])
            a.valu('v_and_b32', xf[2 * i + 1], 0xffff0000, raw[i])

    def layernorm(rows):
        def each(f):
            for r_ in rows:
                f(*r_)
        each(lambda xf, t, s0, s1: a.valu('v_add_f32', t[0], xf[0], xf[1]))
        each(lambda xf, t, s0, s1: a.valu('v_add_f32', t[1], xf[2], xf[3]))
        each(lambda xf, t, s0, s1: a.valu('v_add_f32', t[2], xf[4], xf[5]))
        each(lambda xf, t, s0, s1: a.valu('v_add_f32', t[3], xf[6], xf[7]))
        each(lambda xf, t, s0, s1: a.valu('v_add_f32', t[0], t[0], t[1]))
        each(lambda xf, t, s0, s1: a.valu('v_add_f32', t[2], t[2], t[3]))
        each(lambda xf, t, s0, s1: a.valu('v_add_f32', t[0], t[0], t[2]))
        wave_red_multi('v_add_f32', [r_[1][0] for r_ in rows], [r_[2] for r_ in rows])
        each(lambda xf, t, s0, s1: a.valu('v_mov_b32', t[0], s0))
        each(lambda xf, t, s0, s1: a.valu('v_mul_f32', t[0], 1.0 / 448.0, t[0]))
        each(lambda xf, t, s0, s1: a.valu('v_sub_f32', t[1], xf[0], t[0]))
        each(lambda xf, t, s0, s1: a.valu('v_mul_f32', t[2], t[1], t[1]))
        for i in range(1, 8):
            each(lambda xf, t, s0, s1: a.valu('v_sub_f32', t[1], xf[i], t[0]))
            each(lambda xf, t, s0, s1: a.valu('v_fmac_f32', t[2], t[1], t[1]))
        each(lambda xf, t, s0, s1: a.valu('v_cndmask_b32', t[2], 0, t[2], m56))
        wave_red_multi('v_add_f32', [r_[1][2] for r_ in rows], [r_[3] for r_ in rows])
        each(lambda xf, t, s0, s1: rbf(t[0], t[0]))
        each(lambda xf, t, s0, s1: a.valu('v_mov_b32', t[2], s1))
        each(lambda xf, t, s0, s1: a.valu('v_mul_f32', t[2], 1.0 / 448.0, t[2]))
        each(lambda xf, t, s0, s1: rbf(t[2], t[2]))
        each(lambda xf, t, s0, s1: a.valu('v_add_f32', t[2], 1e-5, t[2]))
        each(lambda xf, t, s0, s1: rbf(t[2], t[2]))
        each(lambda xf, t, s0, s1: a.valu('v_sqrt_f32', t[2], t[2]))
        each(lambda xf, t, s0, s1: rbf(t[2], t[2]))
        each(lambda xf, t, s0, s1: a.valu('v_rcp_f32', t[2], t[2]))
        for i in range(0, 8, 2):
            each(lambda xf, t, s0, s1: a.valu('v_sub_f32', xf[i], xf[i], t[0]))
            each(lambda xf, t, s0, s1: a.valu('v_sub_f32', xf[i + 1], xf[i + 1], t[0]))
            each(lambda xf, t, s0, s1: a.valu('v_cvt_pk_bf16_f32', t[1], xf[i], xf[i + 1]))
            each(lambda xf, t, s0, s1: a.valu('v_lshlrev_b32', xf[i], 16, t[1]))
            each(lambda xf, t, s0, s1: a.valu('v_and_b32', xf[i + 1], 0xffff0000, t[1]))
            each(lambda xf, t, s0, s1: a.valu('v_mul_f32', xf[i], xf[i], t[2]))
            each(lambda xf, t, s0, s1: a.valu('v_mul_f32', xf[i + 1], xf[i + 1], t[2]))

    def spin_until(load_fn, cond_fn, first_check=True, sleep=1):
        done = a.newlabel('done')
        loop = a.newlabel('spin')
        if first_check:
            cond_fn()
            a.branch('s_cbranch_scc1', done)
        a.salu('s_mov_b32', sT5, SPIN_BOUND)
        a.label(loop)
        load_fn()
        a.wait_vm0()
        cond_fn()
        a.branch('s_cbranch_scc1', done)
        if sleep:
            a.misc(f's_sleep {sleep}')
        a.salu('s_sub_u32', sT5, sT5, 1)
        a.salu('s_cmp_lg_u32', None, sT5, 0)
        a.branch('s_cbranch_scc1', loop)
        a.label(done)

    def issue_k(buf, soff):
        for i in range(8):
            o = (i // 2) * 2048 + (i % 2) * 256
            a.vload('buffer_load_dwordx4', buf[4 * i:4 * i + 4], vKoff if o < 4096 else vKoff2, rK, soff, o % 4096, KP)

    def issue_v(buf, soff):
        for i in range(8):
            o = (i // 2) * 2048 + (i % 2) * 256
            a.vload('buffer_load_dwordx4', buf[4 * i:4 * i + 4], vVoff if o < 4096 else vVoff2, rV, soff, o % 4096, VP)

    def koff(i):
        o = (i // 2) * 2048 + (i % 2) * 256
        return (vKoff if o < 4096 else vKoff2), o % 4096

    def voff(i):
        o = (i // 2) * 2048 + (i % 2) * 256
        return (vVoff if o < 4096 else vVoff2), o % 4096

    def issue_static_units():
        a.salu('s_mul_i32', sT2, sSP, npriv)
        a.salu('s_add_u32', sT2, sT2, sW)
        a.salu('s_sub_u32', sT2, sT2, 4)
        a.salu('s_lshl_b32', sT2, sT2, 13)
        a.salu('s_add_u32', sT3, sT2, 4 * 8192)
        issue_k(KB, sT2)
        issue_v(VB, sT2)
        issue_k(KB2, sT3)
        issue_v(VB2, sT3)
        if not use_c:
            return
        L_cf = a.newlabel('cf')
        L_cd = a.newlabel('cd')
        a.salu('s_cmp_lt_u32', None, sF, NF)
        a.branch('s_cbranch_scc1', L_cf)
        a.salu('s_add_u32', sT3, sT2, 8 * 8192)
        a.salu('s_sub_u32', sT4, sW, 4)
        a.salu('s_lshl_b32', sT4, sT4, 14)
        a.salu('s_add_u32', sT4, sT4, L_W1)
        for i in range(16):
            vo, o = koff(i) if i < 8 else voff(i - 8)
            a.salu('s_add_u32', sT0, sT4, i * 1024 - o)
            a.salu('s_mov_b32', 'm0', sT0)
            a.vload_lds(vo, rK if i < 8 else rV, sT3, o, KP if i < 8 else VP)
        a.branch('s_branch', L_cd)
        a.label(L_cf)
        a.valu('v_mov_b32', vT[0], BIGOFF)
        for i in range(16):
            a.vload('buffer_load_dword', XT[20], vT[0], rK, 0, 0)
        a.label(L_cd)

    a.salu('s_cmp_ge_u32', None, sID, NWG)
    a.branch('s_cbranch_scc1', 'L_end')
    if prof:
        a.misc('s_memrealtime s[84:85]')
    a.misc('s_load_dwordx16 s[16:31], s[0:1], 0')
    a.misc('s_load_dwordx4 s[32:35], s[0:1], 64')
    a.misc('s_load_dwordx2 s[36:37], s[0:1], 80')
    a.valu('v_lshrrev_b32', vT[0], 6, vTid)
    a.valu('v_and_b32', vLane, 63, vTid)
    a.valu('v_readfirstlane_b32', sW, vT[0])
    a.valu('v_and_b32', vJ, 15, vTid)
    a.valu('v_lshrrev_b32', vG, 4, vLane)
    a.valu('v_bfe_u32', vT[1], vLane, 2, 2)
    a.valu('v_and_b32', vT[2], 3, vLane)
    a.valu('v_lshlrev_b32', vT[1], 9, vT[1])
    a.valu('v_lshlrev_b32', vT[2], 4, vT[2])
    a.valu('v_lshl_add_u32', vKoff, vG, 6, vT[1])
    a.valu('v_add_u32', vKoff, vKoff, vT[2])
    a.valu('v_add_u32', vKoff2, 4096, vKoff)
    a.valu('v_lshlrev_b32', vL16, 4, vLane)
    a.valu('v_lshlrev_b32', vVoff, 9, vG)
    a.valu('v_lshl_add_u32', vVoff, vJ, 4, vVoff)
    a.valu('v_add_u32', vVoff2, 4096, vVoff)
    if xmap == 1:
        a.salu('s_lshr_b32', sT0, sID, 3)
        a.salu('s_and_b32', sT2, sT0, 7)
        a.salu('s_mul_i32', sT1, sT2, 11)
        a.salu('s_lshr_b32', sT1, sT1, 5)
        a.salu('s_mul_i32', sT1, sT1, 3)
        a.salu('s_sub_u32', sT1, sT2, sT1)
        a.salu('s_add_u32', sT1, sT1, 1)
        a.salu('s_bfe_u32', sSP, sID, (2 << 16) | 1)
        a.salu('s_and_b32', sT3, sSP, sT1)
        a.salu('s_bcnt1_i32_b32', sT3, sT3)
        a.salu('s_xor_b32', sT3, sT3, sID)
        a.salu('s_and_b32', sT3, sT3, 1)
        a.salu('s_lshl_b32', sGrp, sT0, 1)
        a.salu('s_add_u32', sGrp, sGrp, sT3)
    else:
        a.salu('s_lshr_b32', sGrp, sID, 2)
        a.salu('s_and_b32', sSP, sID, 3)
    a.salu('s_lshr_b32', sB, sGrp, 4)
    a.salu('s_and_b32', sH, sGrp, 15)
    a.salu('s_lshl_b32', sT1, sGrp, 22)
    a.salu('s_lshr_b32', sT5, sID, 3)
    a.salu('s_xor_b32', sT4, sT5, sID)
    a.salu('s_and_b32', sT4, sT4, 7)
    a.salu('s_cmp_eq_u32', None, sT4, 0)
    a.salu('s_cselect_b32', sT5, sT5, 255)
    a.salu('s_cmp_lt_u32', None, sT5, NF)
    a.salu('s_cselect_b32', sT2, 8, 12 if use_c else 8)
    a.valu('v_mov_b32', vT[2], sT2)
    a.valu('v_mov_b32', vT[3], 0)
    a.valu('v_mov_b32', vCntA, L_CNT)
    a.valu('v_mov_b32', vT[4], 0)
    a.valu('v_mov_b32', vT[5], 0)
    a.ds('ds_write_b128', vCntA, vT[2:6])
    a.wait_lgkm(0)
    a.salu('s_mov_b32', sF, sT5)
    a.barrier()
    if prof:
        stamp_names.append('entry')
        a.valu('v_writelane_b32', V(0), S(84), 0, rmw=True)

    def common_setup():
        srd(rWS, pWS, WS_BYTES)
        srd(rOUT, pOUT, 4 * 896)
        srd(rDBG, pDBG, 256)
        a.salu('s_mov_b32', sXP[0], P(0)[0])
        a.salu('s_mov_b32', sXP[1], P(0)[1])
        if prof:
            a.salu('s_mov_b32', sCnt, 0)
        a.valu('v_cmp_gt_u32_e64', mJ8, 8, vJ)
        a.valu('v_cmp_gt_u32_e64', m56, 56, vLane)
        a.valu('v_cmp_gt_u32_e64', mG2, 2, vG)
        a.valu('v_and_b32', vT[2], 1, vJ)
        a.valu('v_lshlrev_b32', vT[2], 4, vT[2])
        a.valu('v_mov_b32', vT[3], 0xffff)
        a.valu('v_lshlrev_b32', vT[3], vT[2], vT[3])
        a.valu('v_bfe_u32', vT[2], vJ, 1, 2)
        for r in range(4):
            a.valu('v_cmp_eq_u32', 'vcc', r, vT[2])
            a.valu('v_cndmask_b32', vMask[r], 0, vT[3], 'vcc')
        a.valu('v_mov_b32', vOne, 1)
        a.salu('s_mov_b32', sCS, CS)
        a.salu('s_min_u32', sT2, sW, 6)
        a.salu('s_lshl_b32', sT2, sT2, 8)
        a.valu('v_lshrrev_b32', vAt, 5, vLane)
        a.valu('v_lshlrev_b32', vAt, 7, vAt)
        a.valu('v_and_b32', vT[6], 3, vJ)
        a.valu('v_lshl_add_u32', vAt, vT[6], 5, vAt)
        a.valu('v_bfe_u32', vT[7], vLane, 2, 3)
        a.valu('v_lshl_add_u32', vAt, vT[7], 2, vAt)
        a.valu('v_add_u32', vAt, sT2, vAt)

    L_stream = 'L_stream'
    L_b3 = 'L_b3'
    a.salu('s_cmp_ge_u32', None, sW, 4)
    a.branch('s_cbranch_scc1', L_stream)

    L_svc = a.newlabel('svc')
    L_svc2 = a.newlabel('svc2')
    if notail == 1:
        a.branch('s_branch', 'L_end')
    a.misc('s_setprio 3')
    a.salu('s_mul_i32', sT2, sW, 896)
    srd(rX, P(0), 896, sT2)
    srd(rWQ, P(3), 448 * 8192 if not nowq else 0)
    XR = KB[0:4]
    vEp = XT[12]
    a.vload('buffer_load_dwordx4', XR, vL16, rX)
    a.valu('v_lshrrev_b32', vT[1], 1, vLane)
    a.valu('v_lshlrev_b32', vT[1], 13, vT[1])
    a.valu('v_and_b32', vT[2], 1, vLane)
    a.valu('v_lshl_add_u32', vT[1], vT[2], 4, vT[1])
    a.salu('s_lshl_b32', sT2, sSP, 2)
    a.salu('s_add_u32', sT2, sT2, sB)
    a.salu('s_lshl_b32', sT2, sT2, 5)
    a.salu('s_lshl_b32', sT3, sH, 9)
    a.salu('s_add_u32', sT2, sT2, sT3)
    a.salu('s_lshl_b32', sT3, sW, 18)
    a.salu('s_add_u32', sT2, sT2, sT3)
    a.salu('s_lshl_b32', sT3, sW, 10)
    a.salu('s_add_u32', sT3, sT3, L_WQS)
    for i in range(4):
        a.salu('s_mov_b32', 'm0', sT3)
        a.vload_lds(vT[1], rWQ, sT2, 0, WF)
        if i < 3:
            a.salu('s_add_u32', sT2, sT2, 4 * 32 * 8192)
            a.salu('s_add_u32', sT3, sT3, 4096)
    srd(rWS, pWS, WS_BYTES)
    a.valu('v_mov_b32', vT[2], 0)
    a.salu('s_mov_b32', sT2, WS_EPOCH)
    a.vload('buffer_load_dword', vEp, vT[2], rWS, sT2, 0, LDF)
    MK = VB[0:4]
    ZR = VB[4:8]
    for i in range(4):
        a.valu('v_mov_b32', MK[i], -1)
        a.valu('v_mov_b32', ZR[i], 0)
    a.salu('s_lshl_b32', sT2, sGrp, 2)
    a.salu('s_add_u32', sT2, sT2, sSP)
    a.salu('s_lshl_b32', sT2, sT2, 2)
    a.salu('s_add_u32', sT2, sT2, sW)
    a.salu('s_lshl_b32', sT2, sT2, 9)
    a.salu('s_add_u32', sT2, sT2, WS_MAIL)
    a.valu('v_lshrrev_b32', vT[1], 5, vLane)
    a.valu('v_lshl_add_u32', vT[1], vT[1], 24, vL16)
    a.vstore('buffer_store_dwordx4', MK, vT[1], rWS, sT2, 0, STF)
    a.salu('s_lshl_b32', sT2, sGrp, 8)
    a.salu('s_add_u32', sT2, sT2, WS_POOL)
    a.salu('s_xor_b32', sT3, sW, 1)
    a.salu('s_add_u32', sT3, sT3, sSP)
    a.valu('v_add_u32', vT[1], sT3, vLane)
    a.valu('v_lshlrev_b32', vT[1], 24, vT[1])
    a.vstore('buffer_store_dword', ZR[0], vT[1], rWS, sT2, 0, STF)
    n_after_x = 7
    L_noinit = a.newlabel('noinit')
    a.salu('s_cmp_ge_u32', None, sF, NF)
    a.branch('s_cbranch_scc1', L_noinit)
    a.salu('s_mul_i32', sT2, sF, 7168)
    a.salu('s_add_u32', sT2, sT2, WS_INBOX)
    a.salu('s_lshl_b32', sT3, sW, 10)
    a.salu('s_add_u32', sT2, sT2, sT3)
    a.vstore('buffer_store_dwordx4', MK, vL16, rWS, sT2, 0, STF)
    a.salu('s_add_u32', sT2, sT2, 4096)
    L_i3 = a.newlabel('i3')
    a.salu('s_cmp_eq_u32', None, sW, 3)
    a.branch('s_cbranch_scc1', L_i3)
    a.vstore('buffer_store_dwordx4', MK, vL16, rWS, sT2, 0, STF)
    a.branch('s_branch', L_noinit)
    a.label(L_i3)
    a.salu('s_lshl_b32', sT2, sF, 8)
    a.valu('v_lshlrev_b32', vT[1], 24, vG)
    a.valu('v_add_u32', vT[1], vT[1], vL16)
    a.vstore('buffer_store_dwordx4', ZR, vT[1], rWS, sT2, WS_ACC, STF)
    a.salu('s_lshl_b32', sT2, sF, 10)
    a.salu('s_add_u32', sT2, sT2, WS_FLAG)
    a.vstore('buffer_store_dwordx4', ZR, vL16, rWS, sT2, 0, STF)
    a.label(L_noinit)
    srd(rWO, P(4), 4096 * 896 if not nowo else 0)
    srd(rW1, P(6), 448 * 3584 if not nodma else 0)
    srd(rW2, P(7), 448 * 3584 if not nodma else 0)
    common_setup()
    stamp('v_issued')
    XF = KB2[0:8]
    a.misc(f's_waitcnt vmcnt({n_after_x})')
    stamp('v_x')
    unpack8(XF, XR)
    layernorm([(XF, vT[0:4], sX0, sX1)])
    for i in range(4):
        a.valu('v_cvt_pk_bf16_f32', XR[i], XF[2 * i], XF[2 * i + 1])
    a.salu('s_mul_i32', sT2, sW, 896)
    a.valu('v_add_u32', vT[0], sT2, vL16)
    a.salu('s_mov_b64', 'exec', m56)
    a.ds('ds_write_b128', vT[0], XR, offset=L_XN2)
    a.salu('s_mov_b64', 'exec', 1)
    a.misc('s_waitcnt vmcnt(0) lgkmcnt(0)')
    a.misc(f'ds_add_u32 {vCntA}, {vOne} offset:8')
    a.salu('s_mov_b64', 'exec', -1)
    stamp('v_ln')
    a.salu('s_cmp_lg_u32', None, sW, 0)
    a.branch('s_cbranch_scc1', L_svc)
    QA = V(148, 56)
    QF = V(84, 56)
    a.valu('v_and_b32', vT[6], 3, vLane)
    a.valu('v_mul_u32_u24', vT[6], 896, vT[6])
    a.valu('v_lshl_add_u32', vT[6], vG, 4, vT[6])
    a.valu('v_bfe_u32', vT[4], vLane, 2, 2)
    a.valu('v_lshl_add_u32', vT[4], vG, 3, vT[4])
    a.valu('v_lshlrev_b32', vT[4], 5, vT[4])
    a.valu('v_and_b32', vT[5], 3, vLane)
    a.valu('v_lshl_add_u32', vT[4], vT[5], 3, vT[4])
    L_sw = a.newlabel('sw')
    L_sok = a.newlabel('sok')
    a.salu('s_mov_b32', sT5, SPIN_BOUND * 8)
    a.label(L_sw)
    a.ds('ds_read_b32', vT[0], vCntA, offset=8)
    a.wait_lgkm(0)
    a.valu('v_readfirstlane_b32', sT2, vT[0])
    a.salu('s_cmp_ge_u32', None, sT2, 4)
    a.branch('s_cbranch_scc1', L_sok)
    a.salu('s_sub_u32', sT5, sT5, 1)
    a.salu('s_cmp_lg_u32', None, sT5, 0)
    a.branch('s_cbranch_scc1', L_sw)
    a.label(L_sok)
    stamp('q_wq')
    for ks in range(14):
        a.ds('ds_read_b128', QA[4 * ks:4 * ks + 4], vT[6], offset=L_XN2 + 64 * ks)
    for ks in range(14):
        for qq in range(2):
            a.ds('ds_read_b64_tr_b16', QF[ks * 4 + 2 * qq:ks * 4 + 2 * qq + 2], vT[4], offset=L_WQS + (32 * ks + 4 * qq) * 32)
    a.valu('v_add_u32', vEp, 1, vEp)
    for ks in range(14):
        a.wait_lgkm(min(2 * (13 - ks), 15))
        a.mfma(KD, QA[4 * ks:4 * ks + 4], QF[4 * ks:4 * ks + 4], 0 if ks == 0 else KD)
    a.valu('v_lshlrev_b32', vT[4], 10, vG)
    a.valu('v_lshl_add_u32', vT[4], vJ, 2, vT[4])
    a.valu('v_and_b32', vT[5], 1, vJ)
    a.valu('v_lshl_add_u32', vT[4], vT[5], 24, vT[4])
    a.salu('s_lshl_b32', sT2, sSP, 2)
    a.salu('s_add_u32', sT2, sT2, sB)
    a.salu('s_lshl_b32', sT2, sT2, 6)
    a.salu('s_lshl_b32', sT3, sH, 12)
    a.salu('s_add_u32', sT2, sT2, sT3)
    a.salu('s_add_u32', sT2, sT2, WS_Q)
    for r in range(1, 4):
        a.valu('v_cmp_eq_u32', 'vcc', r, vG)
        a.valu('v_cndmask_b32', KD[0], KD[0], KD[r], 'vcc')
    a.dpp('v_mov_b32', KD[1], KD[0], ctrl='quad_perm:[1,0,3,2]')
    a.valu('v_cvt_pk_bf16_f32', PB[0], KD[0], KD[1])
    a.valu('v_mov_b32', PB[1], vEp)
    a.vstore('buffer_store_dwordx2', PB[0:2], vT[4], rWS, sT2, 0, STF)
    a.salu('s_lshl_b32', sT4, sB, 10)
    a.salu('s_add_u32', sT4, sT4, sT3)
    a.salu('s_add_u32', sT4, sT4, WS_Q)
    a.valu('v_readfirstlane_b32', sEp, vEp)
    L_nosig = a.newlabel('nosig')
    a.salu('s_cmp_ge_u32', None, sF, NF)
    a.branch('s_cbranch_scc1', L_nosig)
    a.salu('s_mov_b32', sT0, 1)
    a.misc(f's_atomic_add {sT0}, {pDBG}, {DB_INITF}')
    a.label(L_nosig)
    QG = PB[4:8]

    def ldq():
        a.vload('buffer_load_dwordx4', QG, vL16, rWS, sT4, 0, LDF)

    def condq():
        a.valu('v_cmp_ne_u32_e64', S(10, 2), sEp, QG[1])
        a.valu('v_cmp_ne_u32', 'vcc', sEp, QG[3])
        a.salu('s_or_b64', S(10, 2), S(10, 2), 'vcc')
        a.salu('s_cmp_eq_u64', None, S(10, 2), 0)

    spin_until(ldq, condq, first_check=False, sleep=0)
    a.valu('v_mov_b32', QG[1], QG[2])
    a.valu('v_lshlrev_b32', vT[4], 3, vLane)
    a.ds('ds_write_b64', vT[4], QG[0:2], offset=L_QBF)
    a.wait_lgkm(0)
    a.ds('ds_write_b32', vCntA, vOne, offset=4)
    stamp('q_got')
    a.branch('s_branch', L_svc2)
    a.label(L_svc)
    L_nodma = a.newlabel('nodma')
    a.salu('s_cmp_ge_u32', None, sF, NF)
    a.branch('s_cbranch_scc1', L_nodma)
    a.valu('v_lshrrev_b32', vT[6], 3, vLane)
    a.valu('v_mul_u32_u24', vT[6], 3584, vT[6])
    a.valu('v_and_b32', vT[7], 7, vLane)
    a.valu('v_lshl_add_u32', vT[6], vT[7], 4, vT[6])
    a.salu('s_sub_u32', sT2, sW, 1)
    L_dma = a.newlabel('dma')
    a.label(L_dma)
    a.salu('s_lshl_b32', sT3, sT2, 10)
    a.salu('s_mul_i32', sT4, sT2, 8 * 3584)
    a.salu('s_lshl_b32', sT5, sF, 7)
    a.salu('s_add_u32', sT4, sT4, sT5)
    a.salu('s_mul_i32', sT5, sF, 57344)
    a.salu('s_add_u32', sT5, sT5, sT3)
    a.salu('s_add_u32', sT0, sT3, L_W1)
    a.salu('s_mov_b32', 'm0', sT0)
    a.vload_lds(vT[6], rW1, sT4, 0, WF)
    a.salu('s_add_u32', sT0, sT3, L_W2)
    a.salu('s_mov_b32', 'm0', sT0)
    a.vload_lds(vL16, rW2, sT5, 0, WF)
    a.salu('s_add_u32', sT2, sT2, 3)
    a.salu('s_cmp_lt_u32', None, sT2, 56)
    a.branch('s_cbranch_scc1', L_dma)
    a.label(L_nodma)
    a.label(L_svc2)
    if debug or prof:
        srd(rWSD, pWS, (1 << 20) + (64 << 20))
    a.valu('v_mul_u32_u24', vWoOff, 896, vG)
    a.valu('v_lshl_add_u32', vWoOff, vJ, 4, vWoOff)
    a.valu('v_and_b32', vT[2], 7, vJ)
    a.valu('v_lshlrev_b32', vT[3], 4, vT[2])
    a.valu('v_lshrrev_b32', vT[4], 3, vJ)
    a.valu('v_mul_u32_u24', vT[5], 4 * 896, vT[4])
    a.valu('v_mul_u32_u24', vWoRem, 896, vG)
    a.valu('v_add3_u32', vWoRem, vWoRem, vT[3], vT[5])
    a.valu('v_add_u32', vWoRem, 768, vWoRem)
    a.salu('s_lshl_b32', sT2, sH, 8)
    a.salu('s_lshl_b32', sT3, sSP, 6)
    a.salu('s_add_u32', sT2, sT2, sT3)
    a.salu('s_lshl_b32', sT3, sW, 4)
    a.salu('s_add_u32', sT2, sT2, sT3)
    a.salu('s_mul_i32', sT2, sT2, 896)
    for Gp in range(4):
        for s_ in range(3):
            a.vload('buffer_load_dwordx4', WO[(Gp * 3 + s_) * 4:(Gp * 3 + s_) * 4 + 4], vWoOff, rWO, sT2, 256 * s_, WF)
        if Gp % 2 == 0:
            a.vload('buffer_load_dwordx4', WO[48 + 2 * Gp:52 + 2 * Gp], vWoRem, rWO, sT2, 0, WF)
        if Gp < 3:
            a.salu('s_add_u32', sT2, sT2, 4 * 896)
    a.valu('v_lshl_add_u32', vT[5], vT[4], 2, vG)
    a.valu('v_lshlrev_b32', vT[5], 7, vT[5])
    a.valu('v_lshl_add_u32', vYw, vT[2], 4, vT[5])
    a.salu('s_lshl_b32', sT2, sW, 11)
    a.valu('v_add_u32', vYw, sT2, vYw)
    a.valu('v_and_b32', vT[6], 3, vJ)
    a.valu('v_lshrrev_b32', vT[7], 2, vJ)
    a.valu('v_mul_u32_u24', vOr, 1040, vT[6])
    a.valu('v_lshl_add_u32', vOr, vG, 6, vOr)
    a.valu('v_lshl_add_u32', vOr, vT[7], 4, vOr)
    a.salu('s_lshl_b32', sT2, sW, 8)
    a.valu('v_add_u32', vOr, sT2, vOr)
    a.valu('v_lshlrev_b32', vMr, 3, vT[6])
    a.valu('v_lshrrev_b32', vT[2], 1, vG)
    a.valu('v_lshlrev_b32', vPubOff, 5, vT[2])
    a.valu('v_lshl_add_u32', vPubOff, vT[6], 3, vPubOff)
    a.valu('v_and_b32', vT[2], 1, vT[7])
    a.valu('v_lshl_add_u32', vPubOff, vT[2], 2, vPubOff)
    a.valu('v_and_b32', vT[2], 1, vG)
    a.valu('v_lshl_add_u32', vPubOff, vT[2], 1, vPubOff)
    a.valu('v_lshrrev_b32', vT[2], 1, vT[7])
    a.valu('v_add_u32', vPubOff, vPubOff, vT[2])
    a.valu('v_lshlrev_b32', vPubOff, 2, vPubOff)
    a.salu('s_lshl_b32', sT2, sSP, 9)
    a.valu('v_lshlrev_b32', vGatML, 11, vT[6])
    a.valu('v_add_u32', vGatML, sT2, vGatML)
    a.salu('s_lshl_b32', sT3, sW, 6)
    a.valu('v_lshl_add_u32', vT[2], vT[7], 2, vG)
    a.valu('v_lshl_add_u32', vGatOff, vT[2], 2, vGatML)
    a.valu('v_add_u32', vGatOff, sT3, vGatOff)
    a.valu('v_lshlrev_b32', vOw, 24, vLane)

    def ldfi():
        a.valu('v_mov_b32', vT[7], 0)
        a.vload('buffer_load_dword', vChk, vT[7], rDBG, 0, DB_INITF, LDF)

    def condf():
        a.valu('v_readfirstlane_b32', sT2, vChk)
        a.salu('s_cmp_ge_u32', None, sT2, NF)

    spin_until(ldfi, condf, first_check=False, sleep=32)
    a.salu('s_lshl_b32', sT4, sGrp, 13)
    a.salu('s_add_u32', sT4, sT4, WS_MAIL)
    a.salu('s_lshl_b32', sT2, sSP, 2)
    a.salu('s_add_u32', sT2, sT2, sW)
    a.salu('s_lshl_b32', sT2, sT2, 9)
    a.salu('s_add_u32', sT3, sT4, sT2)
    stamp('v_ready')
    if notail == 2:
        a.branch('s_branch', 'L_end')
    a.barrier()
    stamp('v_B3')
    ov = PB[0:4]
    ml = PB[4:6]
    a.ds('ds_read_b64', ml, vMr, offset=L_ML)
    a.ds('ds_read_b128', ov, vOr, offset=L_OP)
    a.valu('v_and_b32', vT[5], 3, vJ)
    a.wait_lgkm(1)
    red4 = ('quad_perm:[1,0,3,2]', 'quad_perm:[2,3,0,1]')
    a.valu('v_mov_b32', vT[0], ml[0])
    for c in red4:
        a.dpp('v_max_f32', vT[0], vT[0], vT[0], ctrl=c)
    a.valu('v_sub_f32', vT[2], ml[0], vT[0])
    a.valu('v_mul_f32', vT[2], sCS, vT[2])
    a.valu('v_exp_f32', vT[2], vT[2])
    a.wait_lgkm(0)
    a.valu('v_mul_f32', vT[1], ml[1], vT[2])
    for r in range(4):
        a.valu('v_mul_f32', ov[r], ov[r], vT[2])
    for c in red4:
        for r in range(4):
            a.dpp('v_add_f32', ov[r], ov[r], ov[r], ctrl=c)
        a.dpp('v_add_f32', vT[1], vT[1], vT[1], ctrl=c)
    for r in range(1, 4):
        a.valu('v_cmp_eq_u32', 'vcc', r, vT[5])
        a.valu('v_cndmask_b32', ov[0], ov[0], ov[r], 'vcc')
    a.valu('v_min_u32', ov[0], -2, ov[0])
    a.vstore('buffer_store_dword', ov[0], vPubOff, rWS, sT3, 0, STF)
    a.valu('v_min_u32', vT[0], -2, vT[0])
    a.valu('v_min_u32', vT[1], -2, vT[1])
    a.vstore('buffer_store_dwordx2', vT[0:2], vOw, rWS, sT3, 256, STF)
    gv = PB[8]
    gml = PB[10:12]

    def ldg():
        a.vload('buffer_load_dword', gv, vGatOff, rWS, sT4, 0, LDF)
        a.vload('buffer_load_dwordx2', gml, vGatML, rWS, sT4, 256, LDF)

    def condg():
        a.valu('v_max3_u32', vT[2], gv, gml[0], gml[1])
        a.valu('v_cmp_eq_u32_e64', S(10, 2), -1, vT[2])
        a.salu('s_cmp_eq_u64', None, S(10, 2), 0)

    spin_until(ldg, condg, first_check=False, sleep=gsleep)
    stamp('v_gath')
    a.valu('v_mov_b32', vT[0], gml[0])
    for c in red4:
        a.dpp('v_max_f32', vT[0], vT[0], vT[0], ctrl=c)
    a.valu('v_sub_f32', vT[1], gml[0], vT[0])
    a.valu('v_mul_f32', vT[1], sCS, vT[1])
    a.valu('v_exp_f32', vT[1], vT[1])
    a.valu('v_mul_f32', gv, gv, vT[1])
    a.valu('v_mul_f32', gml[1], gml[1], vT[1])
    for c in red4:
        a.dpp('v_add_f32', gv, gv, gv, ctrl=c)
        a.dpp('v_add_f32', gml[1], gml[1], gml[1], ctrl=c)
    a.valu('v_rcp_f32', gml[1], gml[1])
    a.valu('v_mul_f32', gv, gv, gml[1])
    a.valu('v_cvt_pk_bf16_f32', gv, gv, gv)
    dump(gv, 18)
    Y = [KB[0:4], KB[4:8], KB[8:12], KB[12:16], KB[16:20]]
    BT = [QB[4 * Gp:4 * Gp + 4] for Gp in range(4)]
    for Gp in range(4):
        for r in range(4):
            a.dpp('v_and_b32', BT[Gp][r], gv, vMask[r], ctrl=f'row_newbcast:{4 * Gp}')
        for s_ in range(3):
            a.mfma(Y[s_], WO[(Gp * 3 + s_) * 4:(Gp * 3 + s_) * 4 + 4], BT[Gp], 0 if Gp == 0 else Y[s_])
        a.mfma(Y[3 + Gp % 2], WO[48 + 4 * (Gp // 2):52 + 4 * (Gp // 2)], BT[Gp], 0 if Gp < 2 else Y[3 + Gp % 2])
    for r in range(4):
        a.valu('v_cndmask_b32', Y[0][r], Y[1][r], Y[0][r], mJ8)
    a.ds('ds_write_b128', vYw, Y[0], offset=L_YP)
    for r in range(4):
        a.valu('v_cndmask_b32', Y[3][r], Y[4][r], Y[3][r], mG2)
        a.valu('v_cndmask_b32', Y[2][r], Y[3][r], Y[2][r], mJ8)
    a.ds('ds_write_b128', vYw, Y[2], offset=L_YP + 1024)
    a.branch('s_branch', 'L_b4')

    a.label(L_stream)
    a.misc(f's_setprio {prio}')
    srd(rK, P(1), 4 << 20, sT1)
    srd(rV, P(2), 4 << 20, sT1)
    issue_static_units()
    common_setup()
    if debug or prof:
        srd(rWSD, pWS, (1 << 20) + (64 << 20))
    a.salu('s_lshl_b32', sT2, sGrp, 8)
    a.salu('s_add_u32', sT2, sT2, WS_POOL)
    a.salu('s_add_u32', sPool[0], pWS[0], sT2)
    a.salu('s_addc_u32', sPool[1], pWS[1], 0)
    a.valu('v_lshrrev_b32', vT[2], 2, vJ)
    for t in range(4):
        a.valu('v_cmp_eq_u32_e64', mT[t], t, vT[2])
    for r in range(4):
        a.valu('v_mov_b32', OD0[r], 0)
        a.valu('v_mov_b32', OD1[r], 0)
    a.valu('v_mov_b32', vL, 0)
    a.salu('s_mov_b32', sM, -3.0e38)
    a.salu('s_mov_b32', sExh, 0)
    a.valu('v_lshrrev_b32', vT[4], 3, vJ)
    a.valu('v_lshl_add_u32', vT[5], vT[4], 2, vG)
    a.valu('v_lshlrev_b32', vT[5], 7, vT[5])
    a.valu('v_and_b32', vT[6], 3, vJ)
    a.valu('v_lshl_add_u32', vOw, vT[6], 5, vT[5])
    a.valu('v_bfe_u32', vT[7], vJ, 2, 1)
    a.valu('v_lshl_add_u32', vOw, vT[7], 4, vOw)
    a.salu('s_sub_u32', sT2, sW, 4)
    a.salu('s_mul_i32', sT3, sT2, 1040)
    a.valu('v_add_u32', vOw, sT3, vOw)
    a.salu('s_lshl_b32', sT2, sT2, 3)
    a.valu('v_mov_b32', vMr, sT2)
    a.valu('v_lshl_add_u32', vT[1], vG, 2, vT[6])
    a.valu('v_lshlrev_b32', vT[1], 4, vT[1])
    stamp('s_issued')
    L_qw = a.newlabel('qw')
    L_qok = a.newlabel('qok')
    a.salu('s_mov_b32', sT5, SPIN_BOUND * 8)
    a.label(L_qw)
    a.ds('ds_read_b32', vT[0], vCntA, offset=4)
    a.wait_lgkm(0)
    a.valu('v_readfirstlane_b32', sT2, vT[0])
    a.salu('s_cmp_lg_u32', None, sT2, 0 if not skipq else 77)
    a.branch('s_cbranch_scc1', L_qok)
    a.misc('s_sleep 2')
    a.salu('s_sub_u32', sT5, sT5, 1)
    a.salu('s_cmp_lg_u32', None, sT5, 0)
    a.branch('s_cbranch_scc1', L_qw)
    a.label(L_qok)
    stamp('s_q')
    a.ds('ds_read_b128', PB[0:4], vT[1], offset=L_QBF)
    a.ds('ds_read_b128', PB[4:8], vT[1], offset=L_QBF + 256)
    a.wait_lgkm(0)
    for t in range(4):
        for hf in range(2):
            for r in range(4):
                a.valu('v_cndmask_b32', QB[(t * 2 + hf) * 4 + r], 0, PB[hf * 4 + r], mT[t])

    def qk(kb):
        for i in range(8):
            a.mfma(KD, kb[4 * i:4 * i + 4], QB[4 * i:4 * i + 4], 0 if i == 0 else KD)

    def softmax_step():
        s_, t_ = vT[0], vT[1]
        a.dpp('v_mov_b32', s_, KD[0], ctrl='quad_perm:[0,0,0,0]')
        a.dpp('v_add_f32', s_, KD[1], s_, ctrl='quad_perm:[1,1,1,1]')
        a.dpp('v_add_f32', s_, KD[2], s_, ctrl='quad_perm:[2,2,2,2]')
        a.dpp('v_add_f32', s_, KD[3], s_, ctrl='quad_perm:[3,3,3,3]')
        rbf(s_, s_)
        a.valu('v_max_f32', t_, sM, s_)
        wave_red('v_max_f32', t_, sMn, quads_equal=True)
        a.valu('v_mov_b32', t_, sM)
        a.valu('v_subrev_f32', s_, sMn, s_)
        a.valu('v_subrev_f32', t_, sMn, t_)
        a.valu('v_mul_f32', s_, sCS, s_)
        a.valu('v_mul_f32', t_, sCS, t_)
        a.valu('v_exp_f32', s_, s_)
        a.valu('v_exp_f32', t_, t_)
        a.salu('s_mov_b32', sM, sMn)
        a.valu('v_fma_f32', vL, vL, t_, s_)
        a.valu('v_cvt_pk_bf16_f32', s_, s_, s_)
        for r in range(4):
            a.valu('v_mul_f32', OD0[r], OD0[r], t_)
            a.valu('v_mul_f32', OD1[r], OD1[r], t_)
        for T in range(4):
            for r in range(4):
                a.dpp('v_and_b32', PB[4 * T + r], s_, vMask[r], ctrl=f'row_newbcast:{4 * T}')

    def pv(vb):
        for T in range(4):
            a.mfma(OD0, vb[8 * T:8 * T + 4], PB[4 * T:4 * T + 4], OD0)
            a.mfma(OD1, vb[8 * T + 4:8 * T + 8], PB[4 * T:4 * T + 4], OD1)

    def fetch_issue():
        L_f1 = a.newlabel('f1')
        L_f2 = a.newlabel('f2')
        a.salu('s_cmp_lg_u32', None, sExh, 0)
        a.branch('s_cbranch_scc1', L_f1)
        a.salu('s_mov_b64', 'exec', 1)
        a.misc(f'ds_add_rtn_u32 {vIdx}, {vCntA}, {vOne}')
        a.salu('s_mov_b64', 'exec', -1)
        a.branch('s_branch', L_f2)
        a.label(L_f1)
        a.salu('s_mov_b32', sIdx, 1)
        a.misc(f's_atomic_add {sIdx}, {sPool}, 0 glc')
        a.label(L_f2)

    def fetch_complete():
        a.wait_lgkm(0)
        L_g1 = a.newlabel('g1')
        L_g2 = a.newlabel('g2')
        a.salu('s_cmp_lg_u32', None, sExh, 0)
        a.branch('s_cbranch_scc1', L_g1)
        a.valu('v_readfirstlane_b32', sT2, vIdx)
        a.salu('s_mul_i32', sNext, sSP, npriv)
        a.salu('s_add_u32', sNext, sNext, sT2)
        a.salu('s_cmp_lt_u32', None, sT2, npriv)
        a.branch('s_cbranch_scc1', L_g2)
        a.salu('s_mov_b32', sExh, 1)
        a.salu('s_mov_b32', sIdx, 1)
        a.misc(f's_atomic_add {sIdx}, {sPool}, 0 glc')
        a.wait_lgkm(0)
        a.label(L_g1)
        a.salu('s_add_u32', sNext, sIdx, 4 * npriv)
        a.label(L_g2)

    def unit_rolling(cnt):
        for i in range(8):
            a.misc(f's_waitcnt vmcnt({cnt})')
            if not nocomp:
                a.mfma(KD, KB[4 * i:4 * i + 4], QB[4 * i:4 * i + 4], 0 if i == 0 else KD)
            vo, o = koff(i)
            a.vload('buffer_load_dwordx4', KB[4 * i:4 * i + 4], vo, rK, sNext, o, KP)
        fetch_issue()
        if not nocomp:
            softmax_step()
        for i in range(8):
            od = OD0 if i % 2 == 0 else OD1
            a.misc(f's_waitcnt vmcnt({cnt})')
            if not nocomp:
                a.mfma(od, VB[4 * i:4 * i + 4], PB[4 * (i // 2):4 * (i // 2) + 4], od)
            vo, o = voff(i)
            a.vload('buffer_load_dwordx4', VB[4 * i:4 * i + 4], vo, rV, sNext, o, VP)

    extra = 32 if use_c else 16
    fetch_issue()
    fetch_complete()
    a.salu('s_lshl_b32', sNext, sNext, 13)
    unit_rolling(15 + extra)
    a.misc(f's_waitcnt vmcnt({extra + 8})')
    qk(KB2)
    softmax_step()
    a.misc(f's_waitcnt vmcnt({extra})')
    pv(VB2)
    L_loop = 'L_loop'
    if use_c:
        a.salu('s_cmp_lt_u32', None, sF, NF)
        a.branch('s_cbranch_scc1', L_loop)
        a.salu('s_sub_u32', sT4, sW, 4)
        a.salu('s_lshl_b32', sT4, sT4, 14)
        a.salu('s_add_u32', sT4, sT4, L_W1)
        a.valu('v_add_u32', vT[2], sT4, vL16)
        a.misc('s_waitcnt vmcnt(16)')
        for i in range(8):
            a.ds('ds_read_b128', KB2[4 * i:4 * i + 4], vT[2], offset=1024 * i)
        for i in range(8):
            a.ds('ds_read_b128', VB2[4 * i:4 * i + 4], vT[2], offset=8192 + 1024 * i)
        a.wait_lgkm(8)
        qk(KB2)
        softmax_step()
        a.wait_lgkm(0)
        pv(VB2)

    a.label(L_loop)
    if prof:
        a.salu('s_add_u32', sCnt, sCnt, 1)
    fetch_complete()
    L_last = a.newlabel('last')
    a.salu('s_cmp_ge_u32', None, sNext, 512)
    a.branch('s_cbranch_scc1', L_last)
    a.salu('s_lshl_b32', sNext, sNext, 13)
    unit_rolling(15)
    a.branch('s_branch', L_loop)
    a.label(L_last)
    a.misc('s_waitcnt vmcnt(8)')
    qk(KB)
    softmax_step()
    wave_red('v_add_f32', vL, sMn, quads_equal=True)
    a.valu('v_mov_b32', vT[2], sM)
    a.valu('v_mov_b32', vT[3], sMn)
    a.ds('ds_write_b64', vMr, vT[2:4], offset=L_ML)
    for i in range(8):
        od = OD0 if i % 2 == 0 else OD1
        a.misc(f's_waitcnt vmcnt({7 - i})')
        a.mfma(od, VB[4 * i:4 * i + 4], PB[4 * (i // 2):4 * (i // 2) + 4], od)
    stamp('s_Vlast')
    if notail:
        a.branch('s_branch', 'L_end')
    for r in range(4):
        a.valu('v_cndmask_b32', PB[r], OD1[r], OD0[r], mJ8)
    a.ds('ds_write_b128', vOw, PB[0:4], offset=L_OP)
    a.wait_lgkm(0)
    a.barrier()
    a.misc('s_setprio 0')
    stamp_val('s_units', sCnt)

    a.label('L_b4')
    a.salu('s_lshl_b32', sT2, sW, 8)
    a.valu('v_lshlrev_b32', vT[4], 2, vLane)
    a.valu('v_add_u32', vT[4], sT2, vT[4])
    a.salu('s_mul_i32', sT0, sB, 1792)
    a.salu('s_add_u32', sT0, sT0, WS_ACC)
    a.salu('s_lshl_b32', sT1, sGrp, 2)
    a.salu('s_add_u32', sT1, sT1, sSP)
    a.salu('s_lshl_b32', sT1, sT1, 2)
    a.salu('s_add_u32', sT1, sT1, WS_FLAG)
    a.valu('v_lshlrev_b32', vT[6], 10, vLane)
    a.wait_lgkm(0)
    a.barrier()
    stamp('B4')
    YS = VB[0:4]
    for i in range(4):
        a.ds('ds_read_b32', YS[i], vT[4], offset=L_YP + 2048 * i)
    a.wait_lgkm(0)
    a.valu('v_add_f32', YS[0], YS[0], YS[1])
    a.valu('v_add_f32', YS[2], YS[2], YS[3])
    a.valu('v_add_f32', YS[0], YS[0], YS[2])
    a.vstore('buffer_atomic_add_f32', YS[0], vAt, rWS, sT0, 0, 'sc1')
    a.salu('s_mov_b64', 'exec', 1)
    a.wait_vm0()
    a.misc(f'ds_add_rtn_u32 {vIdx}, {vCntA}, {vOne} offset:12')
    a.wait_lgkm(0)
    a.valu('v_readfirstlane_b32', sT2, vIdx)
    L_nc = a.newlabel('nc')
    a.salu('s_cmp_lg_u32', None, sT2, 7)
    a.branch('s_cbranch_scc1', L_nc)
    a.salu('s_mov_b64', 'exec', (1 << NF) - 1)
    a.vstore('buffer_store_dword', vOne, vT[6], rWS, sT1, 0, STF)
    a.label(L_nc)
    a.salu('s_mov_b64', 'exec', -1)
    stamp('atom')
    a.salu('s_cmp_ge_u32', None, sF, NF)
    a.branch('s_cbranch_scc1', 'L_endp')

    F2B = V(84, 32)
    FA = V(116, 56)
    F1B = V(172, 56)
    RB = V(24, 28)
    a.valu('v_bfe_u32', vT[4], vLane, 2, 2)
    a.valu('v_lshl_add_u32', vT[4], vG, 3, vT[4])
    a.valu('v_and_b32', vT[5], 3, vLane)
    a.valu('v_lshlrev_b32', vT[5], 3, vT[5])
    a.valu('v_mul_u32_u24', vT[6], 896, vT[4])
    a.valu('v_add_u32', vT[6], vT[6], vT[5])
    a.salu('s_min_u32', sT2, sW, 6)
    a.salu('s_lshl_b32', sT2, sT2, 7)
    a.salu('s_add_u32', sT2, sT2, L_W2)
    a.valu('v_add_u32', vT[6], sT2, vT[6])
    for tt in range(4):
        for ks in range(2):
            for qq in range(2):
                d = F2B[(tt * 2 + ks) * 4 + 2 * qq:(tt * 2 + ks) * 4 + 2 * qq + 2]
                a.ds('ds_read_b64_tr_b16', d, vT[6], offset=(32 * ks + 4 * qq) * 896 + tt * 32)
    L_ln = a.newlabel('ln')
    L_b5 = a.newlabel('b5')
    a.salu('s_cmp_ge_u32', None, sW, 4)
    a.branch('s_cbranch_scc1', L_ln)
    a.valu('v_lshlrev_b32', vT[6], 7, vT[4])
    a.valu('v_add_u32', vT[6], vT[6], vT[5])
    a.salu('s_lshl_b32', sT2, sW, 5)
    a.salu('s_add_u32', sT2, sT2, L_W1)
    a.valu('v_add_u32', vT[6], sT2, vT[6])
    for ks in range(14):
        for qq in range(2):
            a.ds('ds_read_b64_tr_b16', F1B[ks * 4 + 2 * qq:ks * 4 + 2 * qq + 2], vT[6], offset=(32 * ks + 4 * qq) * 128)
            if (ks * 2 + qq) % 8 == 7:
                a.wait_lgkm(4)
    a.branch('s_branch', L_b5)
    a.label(L_ln)
    a.salu('s_sub_u32', sT3, sW, 4)
    a.salu('s_mul_i32', sT2, sT3, 896)
    srd(rX, sXP, 896, sT2)
    xraw = RB[0:4]
    a.vload('buffer_load_dwordx4', xraw, vL16, rX)
    a.salu('s_lshl_b32', sT4, sF, 2)
    a.salu('s_add_u32', sT4, sT4, sT3)
    a.salu('s_lshl_b32', sT4, sT4, 8)
    a.salu('s_add_u32', sT4, sT4, WS_FLAG)
    a.valu('v_lshlrev_b32', vT[7], 2, vLane)
    a.salu('s_mul_i32', sT1, sT3, 1792)
    a.salu('s_add_u32', sT1, sT1, WS_ACC)
    a.valu('v_lshlrev_b32', vT[0], 5, vLane)
    a.valu('v_mov_b32', vT[5], BIGOFF)
    a.valu('v_cndmask_b32', vT[0], vT[5], vT[0], m56)

    def ldc():
        a.vload('buffer_load_dword', vT[6], vT[7], rWS, sT4, 0, LDF)

    def condc():
        a.valu('v_cmp_eq_u32', 'vcc', 0, vT[6])
        a.salu('s_cmp_eq_u64', None, 'vcc', 0)

    spin_until(ldc, condc, first_check=False, sleep=psleep)
    stamp('poll')
    av = RB[8:16]
    a.vload('buffer_load_dwordx4', av[0:4], vT[0], rWS, sT1, 0, LDF)
    a.vload('buffer_load_dwordx4', av[4:8], vT[0], rWS, sT1, 16, LDF)
    xf = RB[16:24]
    unpack8(xf, xraw)
    a.salu('s_mul_i32', sT2, sT3, 896)
    a.valu('v_add_u32', vT[6], sT2, vL16)
    a.wait_vm0()
    hp = RB[4:8]
    for i in range(4):
        a.valu('v_cvt_pk_bf16_f32', RB[24 + i], av[2 * i], av[2 * i + 1])
    for i in range(4):
        a.valu('v_lshlrev_b32', av[2 * i], 16, RB[24 + i])
        a.valu('v_and_b32', av[2 * i + 1], 0xffff0000, RB[24 + i])
    for i in range(8):
        a.valu('v_add_f32', xf[i], xf[i], av[i])
    for i in range(4):
        a.valu('v_cvt_pk_bf16_f32', hp[i], xf[2 * i], xf[2 * i + 1])
    unpack8(xf, hp)
    a.salu('s_mov_b64', 'exec', m56)
    a.ds('ds_write_b128', vT[6], hp, offset=L_HB)
    a.salu('s_mov_b64', 'exec', -1)
    layernorm([(xf, vT[0:4], sX0, sX1)])
    for i in range(4):
        a.valu('v_cvt_pk_bf16_f32', RB[i], xf[2 * i], xf[2 * i + 1])
    a.salu('s_mov_b64', 'exec', m56)
    a.ds('ds_write_b128', vT[6], RB[0:4], offset=L_XN2)
    a.salu('s_mov_b64', 'exec', -1)
    if debug:
        for i in range(4):
            dump(hp[i], 33 + i)
            dump(RB[i], 37 + i)
    a.label(L_b5)
    a.wait_lgkm(0)
    a.barrier()
    stamp('B5')
    L_b6 = a.newlabel('b6')
    a.salu('s_cmp_ge_u32', None, sW, 4)
    a.branch('s_cbranch_scc1', L_b6)
    a.valu('v_and_b32', vT[6], 3, vLane)
    a.valu('v_mul_u32_u24', vT[6], 896, vT[6])
    a.valu('v_lshl_add_u32', vT[6], vG, 4, vT[6])
    for ks in range(14):
        a.ds('ds_read_b128', FA[4 * ks:4 * ks + 4], vT[6], offset=L_XN2 + 64 * ks)
    Z = RB[0:4]
    for ks in range(14):
        a.wait_lgkm(min(13 - ks, 15))
        a.mfma(Z, FA[4 * ks:4 * ks + 4], F1B[4 * ks:4 * ks + 4], 0 if ks == 0 else Z)
    a.salu('s_lshl_b32', sT2, sW, 5)
    a.valu('v_lshlrev_b32', vT[6], 1, vJ)
    a.valu('v_add_u32', vT[6], sT2, vT[6])
    a.salu('s_mov_b32', sT3, -LOG2E)
    for r in range(4):
        rbf(Z[r], Z[r])
    for r in range(4):
        a.valu('v_mul_f32', RB[4 + r], sT3, Z[r])
    for r in range(4):
        a.valu('v_exp_f32', RB[4 + r], RB[4 + r])
    for r in range(4):
        a.valu('v_add_f32', RB[4 + r], 1.0, RB[4 + r])
    for r in range(4):
        a.valu('v_rcp_f32', RB[4 + r], RB[4 + r])
    for r in range(4):
        a.valu('v_mul_f32', Z[r], Z[r], RB[4 + r])
    for r in range(4):
        a.valu('v_cvt_pk_bf16_f32', Z[r], Z[r], Z[r])
        a.ds('ds_write_b16', vT[6], Z[r], offset=L_GB + 128 * r)
    if debug:
        for r in range(4):
            dump(Z[r], 41 + r)
    a.label(L_b6)
    a.wait_lgkm(0)
    a.barrier()
    stamp('B6')
    L_fin = a.newlabel('fin')
    a.salu('s_cmp_ge_u32', None, sW, 7)
    a.branch('s_cbranch_scc1', L_fin)
    a.valu('v_and_b32', vT[6], 3, vLane)
    a.valu('v_lshlrev_b32', vT[6], 7, vT[6])
    a.valu('v_lshl_add_u32', vT[6], vG, 4, vT[6])
    a.ds('ds_read_b128', FA[0:4], vT[6], offset=L_GB)
    a.ds('ds_read_b128', FA[4:8], vT[6], offset=L_GB + 64)
    a.salu('s_mul_i32', sT2, sW, 4 * 7168)
    a.salu('s_lshl_b32', sT3, sF, 8)
    a.salu('s_add_u32', sT2, sT2, sT3)
    a.salu('s_add_u32', sT2, sT2, WS_INBOX)
    a.wait_lgkm(0)
    O2 = [RB[4 * tt:4 * tt + 4] for tt in range(4)]
    for tt in range(4):
        a.mfma(O2[tt], FA[0:4], F2B[(tt * 2) * 4:(tt * 2) * 4 + 4], 0)
    for tt in range(4):
        a.mfma(O2[tt], FA[4:8], F2B[(tt * 2 + 1) * 4:(tt * 2 + 1) * 4 + 4], O2[tt])
    a.salu('s_mov_b64', 'exec', 0xffff)
    for tt in range(4):
        for r in range(4):
            a.valu('v_min_u32', O2[tt][r], -2, O2[tt][r])
        a.vstore('buffer_store_dwordx4', O2[tt], vL16, rWS, sT2, 0, STF)
        if tt < 3:
            a.salu('s_add_u32', sT2, sT2, 7168)
    a.salu('s_or_b32', sT2, sF, sW)
    a.salu('s_cmp_lg_u32', None, sT2, 0)
    a.branch('s_cbranch_scc1', 'L_endp')
    a.salu('s_mov_b64', 'exec', 1)
    a.valu('v_mov_b32', vT[4], sEp)
    a.valu('v_mov_b32', vT[5], 0)
    a.salu('s_mov_b32', sT2, WS_EPOCH)
    a.vstore('buffer_store_dword', vT[4], vT[5], rWS, sT2, 0, STF)
    a.branch('s_branch', 'L_endp')
    a.label(L_fin)
    a.valu('v_mul_u32_u24', vT[6], 896, vG)
    a.valu('v_lshl_add_u32', vT[6], vJ, 1, vT[6])
    a.salu('s_lshl_b32', sT2, sF, 5)
    a.valu('v_add_u32', vT[6], sT2, vT[6])
    a.ds('ds_read_u16', vT[7], vT[6], offset=L_HB)
    a.salu('s_mul_i32', sT3, sF, 7168)
    a.salu('s_add_u32', sT3, sT3, WS_INBOX)
    a.salu('s_add_u32', sT4, sT3, 4096)
    IB = V(116, 28)

    def ldi():
        for i in range(7):
            a.vload('buffer_load_dwordx4', IB[4 * i:4 * i + 4], vL16, rWS, sT3 if i < 4 else sT4, (i % 4) * 1024, LDF)

    def condi():
        a.valu('v_max3_u32', vT[0], IB[0], IB[1], IB[2])
        for i in range(3, 27, 2):
            a.valu('v_max3_u32', vT[0], vT[0], IB[i], IB[i + 1])
        a.valu('v_max_u32', vT[0], vT[0], IB[27])
        a.valu('v_cmp_eq_u32_e64', S(100, 2), -1, vT[0])
        a.salu('s_cmp_eq_u64', None, S(100, 2), 0)

    spin_until(ldi, condi, first_check=False, sleep=0)
    stamp('inbox')
    for i in range(1, 7):
        for r in range(4):
            a.valu('v_add_f32', IB[r], IB[r], IB[4 * i + r])
    for r in range(4):
        a.valu('v_mov_b32', IB[4 + r], IB[r])
    for r in range(4):
        a.valu('v_permlane16_swap_b32', IB[r], IB[4 + r])
    for r in range(4):
        a.valu('v_add_f32', IB[r], IB[r], IB[4 + r])
    for r in range(4):
        a.valu('v_mov_b32', IB[4 + r], IB[r])
    for r in range(4):
        a.valu('v_permlane32_swap_b32', IB[r], IB[4 + r])
    for r in range(4):
        a.valu('v_add_f32', IB[r], IB[r], IB[4 + r])
    for r in range(1, 4):
        a.valu('v_cmp_eq_u32', 'vcc', r, vG)
        a.valu('v_cndmask_b32', IB[0], IB[0], IB[r], 'vcc')
    rbf(IB[0], IB[0])
    a.wait_lgkm(0)
    a.valu('v_lshlrev_b32', vT[7], 16, vT[7])
    a.valu('v_add_f32', IB[0], IB[0], vT[7])
    a.valu('v_cvt_pk_bf16_f32', IB[0], IB[0], IB[0])
    a.vstore('buffer_store_short', IB[0], vT[6], rOUT, 0, 0)
    a.label('L_endp')
    stamp('end')
    stamp_store()
    a.label('L_end')
    A('  s_endpgm')
    A('.section .rodata,"a"')
    A('.p2align 6')
    A(f'.amdhsa_kernel {KNAME}')
    A('  .amdhsa_next_free_vgpr 256')
    A('  .amdhsa_next_free_sgpr 102')
    A('  .amdhsa_accum_offset 256')
    A('  .amdhsa_group_segment_fixed_size 0')
    A('  .amdhsa_kernarg_size 88')
    A('  .amdhsa_user_sgpr_count 2')
    A('  .amdhsa_user_sgpr_kernarg_segment_ptr 1')
    A('  .amdhsa_system_sgpr_workgroup_id_x 1')
    A('  .amdhsa_float_denorm_mode_32 3')
    A('.end_amdhsa_kernel')
    if prof:
        A('; STAMPS ' + ' '.join(stamp_names))
    return a.text()


if __name__ == '__main__':
    out = [x for x in sys.argv[1:] if not x.startswith('--')]
    path = out[0] if out else os.path.join(os.path.dirname(os.path.abspath(__file__)), '..', 'cdna_kernels', NAME + '.s')
    kw = {}
    for x in sys.argv[1:]:
        if x.startswith('--') and '=' in x:
            k_, v_ = x[2:].split('=')
            kw[k_] = int(v_)
    open(path, 'w').write(build(debug='--debug' in sys.argv, prof='--prof' in sys.argv, **kw))
    print('wrote', path)
```

```python
import os
import sys

sys.path.insert(0, os.path.dirname(os.path.abspath(__file__)))
from asmlib import Asm, V, S

NAME = 'sequential_preLN__mha_block_cached__dense_activation_silu__decode'
KNAME = NAME + '_kernel'

NWG = 256
NF = 28
LOG2E = 1.4426950408889634
CS = LOG2E / 16.0

WS_ACC = 0
WS_EPOCH = 24576
WS_INBOX = 32768
WS_Q = 0x40000
WS_POOL = 0x60000
WS_FLAG = 0x70000
WS_MAIL = 0x80000
WS_BYTES = 1 << 20
WS_DBG = 1 << 20
DB_INITF = 40

L_XN2 = 0
L_HB = 4096
L_GB = 8192
L_QBF = 8704
L_ML = 9216
L_CNT = 9344
L_FLAG = 9348
L_SVC = 9352
L_ARR = 9356
L_OP = 9472
L_YP = 17920
L_WQS = L_YP
L_W1 = 34816
L_W2 = L_W1 + 57344
LDS_BYTES = L_W2 + 57344

SPIN_BOUND = 200000
BIGOFF = 0x1000000


def build(debug=False, prof=False, npriv=112, xmap=1, gsleep=0, ldf=0, stf=0, use_c=1, skipq=0, nocomp=0, nowo=0, notail=0, prio=2, smalllds=0, nodma=0, nowq=0, wnt=1, psleep=0, kpol=0, vpol=0, diag=0):
    POL = ['nt', '', 'nt sc0', 'nt sc1', 'sc1']
    KP, VP = POL[kpol], POL[vpol]
    WF = 'nt' if wnt else ''
    LDF = ['sc1', 'sc0 sc1'][ldf]
    STF = ['sc1', 'sc0 sc1'][stf]
    a = Asm()
    A = a.raw
    hdr = open(os.path.join(os.path.dirname(os.path.abspath(__file__)), '..', 'cdna_kernels', NAME + '.s.ref')).read().split('\n')
    for ln in hdr:
        if ln.startswith(';') and '@launch' not in ln:
            A(ln)
        elif '@launch' in ln:
            A(f'; @launch grid=({NWG},1,1) block=(512,1,1) lds={LDS_BYTES if not smalllds else 16384}')
        else:
            break
    A('.amdgcn_target "amdgcn-amd-amdhsa--gfx950"')
    A('.text')
    A(f'.globl {KNAME}')
    A('.p2align 8')
    A(f'.type {KNAME},@function')
    A(f'{KNAME}:')

    sID = S(2)
    sF = S(0)
    sGrp = S(3)
    sW, sB, sH, sSP = S(4), S(5), S(6), S(7)
    sT0, sT1, sT2, sT3, sT4, sT5 = S(8), S(9), S(10), S(11), S(12), S(13)
    sNext = S(14)
    sIdx = S(15)
    P = lambda i: S(16 + 2 * i, 2)
    pOUT, pDBG, pWS = S(32, 2), S(34, 2), S(36, 2)
    sM = S(38)
    sMn = S(39)
    rK, rV, rWQ, rWO, rX, rW1, rW2, rOUT, rDBG, rWS = [S(40 + 4 * i, 4) for i in range(10)]
    sPool = S(80, 2)
    sExh = S(82)
    sCS = S(83)
    mT = [S(84 + 2 * t, 2) for t in range(4)]
    mJ8 = S(92, 2)
    m56 = S(94, 2)
    mG2 = S(96, 2)
    sX0, sX1 = S(98), S(99)
    sXP = S(100, 2)
    sEp = S(32)
    rWSD = rWQ
    LNS = [S(16), S(17), S(18), S(19), S(20), S(21), S(0), S(1)]
    sCnt = S(33)

    vTid = V(0)
    vLane, vJ, vG = V(1), V(2), V(3)
    vKoff, vKoff2, vVoff, vVoff2 = V(4), V(5), V(6), V(7)
    vMask = V(8, 4)
    vWoOff, vWoRem = V(12), V(13)
    vL = V(14)
    vL16 = V(15)
    vT = V(16, 8)
    OD0, OD1 = V(24, 4), V(28, 4)
    KD = V(32, 4)
    PB = V(36, 16)
    QB = V(52, 32)
    KB, VB, KB2, VB2 = V(84, 32), V(116, 32), V(148, 32), V(180, 32)
    XT = V(212, 44)
    WO = V(148, 56)
    vIdx, vOne, vCntA, vChk = XT[0], XT[1], XT[2], XT[3]
    vOw, vOr, vMr, vYw, vAt = XT[4], XT[5], XT[6], XT[7], XT[8]
    vPubOff, vGatOff, vGatML = XT[9], XT[10], XT[11]

    def dump(reg, slot):
        if not debug:
            return
        a.salu('s_lshl_b32', sX0, sID, 3)
        a.salu('s_add_u32', sX0, sX0, sW)
        a.salu('s_lshl_b32', sX0, sX0, 14)
        a.salu('s_add_u32', sX0, sX0, WS_DBG + slot * 256)
        a.valu('v_lshlrev_b32', XT[43], 2, vLane)
        a.vstore('buffer_store_dword', reg, XT[43], rWSD, sX0)

    stamp_names = []
    early = []

    DIAG = {'v_issued': 2, 'q_got': 3, 's_issued': 4, 'v_B3': 5, 'v_gath': 6, 'atom': 7, 'poll': 8, 'B6': 9, 'end': 11, 's_q': 12}

    def diag_put(slot, sreg, invert=False):
        r_ = S(25) if invert else S(24)
        a.salu('s_not_b32' if invert else 's_mov_b32', r_, sreg)
        a.misc(f's_atomic_umax {r_}, {pDBG}, {slot * 4}')

    def stamp(name, late=True):
        if diag and name in DIAG:
            wv = 0 if name[:2] in ('v_', 'q_') else 4 if name[:2] == 's_' else 7
            L_d = a.newlabel('diag')
            a.salu('s_cmp_lg_u32', None, sW, wv)
            a.branch('s_cbranch_scc1', L_d)
            a.misc('s_memrealtime s[22:23]')
            a.wait_lgkm(0)
            diag_put(DIAG[name], S(22))
            if name == 'v_B3':
                diag_put(13, S(22), True)
            if name == 'v_issued':
                a.wait_lgkm(0)
                diag_put(0, S(26), True)
                diag_put(1, S(26))
            a.label(L_d)
            return
        if not prof:
            return
        k = len(stamp_names)
        stamp_names.append(name)
        a.misc('s_memrealtime s[22:23]')
        a.wait_lgkm(0)
        if late:
            a.valu('v_writelane_b32', V(0), S(22), k, rmw=True)
        else:
            a.salu('s_mov_b32', S(24 + len(early)), S(22))
            early.append(k)

    def stamp_val(name, sreg):
        if not prof:
            return
        k = len(stamp_names)
        stamp_names.append(name)
        a.valu('v_writelane_b32', V(0), sreg, k, rmw=True)

    def stamp_flush_early():
        if not prof:
            return
        for i, k in enumerate(early):
            a.valu('v_writelane_b32', V(0), S(24 + i), k, rmw=True)

    def stamp_store():
        if not prof:
            return
        a.salu('s_mov_b64', 'exec', -1)
        a.salu('s_lshl_b32', sX0, sID, 3)
        a.salu('s_add_u32', sX0, sX0, sW)
        a.salu('s_lshl_b32', sX0, sX0, 8)
        a.salu('s_add_u32', sX0, sX0, WS_DBG)
        a.valu('v_lshlrev_b32', V(23), 2, vLane)
        a.vstore('buffer_store_dword', V(0), V(23), rWSD, sX0)

    def srd(r, ptr, nbytes, off=None):
        if off is None:
            a.salu('s_mov_b32', r[0], ptr[0])
            a.salu('s_mov_b32', r[1], ptr[1])
        else:
            a.salu('s_add_u32', r[0], ptr[0], off)
            a.salu('s_addc_u32', r[1], ptr[1], 0)
        a.salu('s_mov_b32', r[2], nbytes)
        a.salu('s_mov_b32', r[3], 0x00020000)

    def wave_red_multi(op, vs, sdsts, quads_equal=False):
        ctrls = ['row_ror:4', 'row_ror:8'] if quads_equal else ['quad_perm:[1,0,3,2]', 'quad_perm:[2,3,0,1]', 'row_half_mirror', 'row_mirror']
        for c in ctrls:
            for v in vs:
                a.dpp(op, v, v, v, ctrl=c)
        for v in vs:
            a.dpp(op, v, v, v, ctrl='row_bcast:15', row_mask=0xa)
        for v in vs:
            a.dpp(op, v, v, v, ctrl='row_bcast:31', row_mask=0xc)
        for v, s_ in zip(vs, sdsts):
            a.valu('v_readlane_b32', s_, v, 63)

    def wave_red(op, v, sdst, quads_equal=False):
        wave_red_multi(op, [v], [sdst], quads_equal)

    def rbf(dst, src):
        a.valu('v_cvt_pk_bf16_f32', dst, src, src)
        a.valu('v_and_b32', dst, 0xffff0000, dst)

    def unpack8(xf, raw):
        for i in range(4):
            a.valu('v_lshlrev_b32', xf[2 * i], 16, raw[i])
            a.valu('v_and_b32', xf[2 * i + 1], 0xffff0000, raw[i])

    def layernorm(rows):
        def each(f):
            for r_ in rows:
                f(*r_)
        each(lambda xf, t, s0, s1: a.valu('v_add_f32', t[0], xf[0], xf[1]))
        each(lambda xf, t, s0, s1: a.valu('v_add_f32', t[1], xf[2], xf[3]))
        each(lambda xf, t, s0, s1: a.valu('v_add_f32', t[2], xf[4], xf[5]))
        each(lambda xf, t, s0, s1: a.valu('v_add_f32', t[3], xf[6], xf[7]))
        each(lambda xf, t, s0, s1: a.valu('v_add_f32', t[0], t[0], t[1]))
        each(lambda xf, t, s0, s1: a.valu('v_add_f32', t[2], t[2], t[3]))
        each(lambda xf, t, s0, s1: a.valu('v_add_f32', t[0], t[0], t[2]))
        wave_red_multi('v_add_f32', [r_[1][0] for r_ in rows], [r_[2] for r_ in rows])
        each(lambda xf, t, s0, s1: a.valu('v_mov_b32', t[0], s0))
        each(lambda xf, t, s0, s1: a.valu('v_mul_f32', t[0], 1.0 / 448.0, t[0]))
        each(lambda xf, t, s0, s1: a.valu('v_sub_f32', t[1], xf[0], t[0]))
        each(lambda xf, t, s0, s1: a.valu('v_mul_f32', t[2], t[1], t[1]))
        for i in range(1, 8):
            each(lambda xf, t, s0, s1: a.valu('v_sub_f32', t[1], xf[i], t[0]))
            each(lambda xf, t, s0, s1: a.valu('v_fmac_f32', t[2], t[1], t[1]))
        each(lambda xf, t, s0, s1: a.valu('v_cndmask_b32', t[2], 0, t[2], m56))
        wave_red_multi('v_add_f32', [r_[1][2] for r_ in rows], [r_[3] for r_ in rows])
        each(lambda xf, t, s0, s1: rbf(t[0], t[0]))
        each(lambda xf, t, s0, s1: a.valu('v_mov_b32', t[2], s1))
        each(lambda xf, t, s0, s1: a.valu('v_mul_f32', t[2], 1.0 / 448.0, t[2]))
        each(lambda xf, t, s0, s1: rbf(t[2], t[2]))
        each(lambda xf, t, s0, s1: a.valu('v_add_f32', t[2], 1e-5, t[2]))
        each(lambda xf, t, s0, s1: rbf(t[2], t[2]))
        each(lambda xf, t, s0, s1: a.valu('v_sqrt_f32', t[2], t[2]))
        each(lambda xf, t, s0, s1: rbf(t[2], t[2]))
        each(lambda xf, t, s0, s1: a.valu('v_rcp_f32', t[2], t[2]))
        for i in range(0, 8, 2):
            each(lambda xf, t, s0, s1: a.valu('v_sub_f32', xf[i], xf[i], t[0]))
            each(lambda xf, t, s0, s1: a.valu('v_sub_f32', xf[i + 1], xf[i + 1], t[0]))
            each(lambda xf, t, s0, s1: a.valu('v_cvt_pk_bf16_f32', t[1], xf[i], xf[i + 1]))
            each(lambda xf, t, s0, s1: a.valu('v_lshlrev_b32', xf[i], 16, t[1]))
            each(lambda xf, t, s0, s1: a.valu('v_and_b32', xf[i + 1], 0xffff0000, t[1]))
            each(lambda xf, t, s0, s1: a.valu('v_mul_f32', xf[i], xf[i], t[2]))
            each(lambda xf, t, s0, s1: a.valu('v_mul_f32', xf[i + 1], xf[i + 1], t[2]))

    def spin_until(load_fn, cond_fn, first_check=True, sleep=1):
        done = a.newlabel('done')
        loop = a.newlabel('spin')
        if first_check:
            cond_fn()
            a.branch('s_cbranch_scc1', done)
        a.salu('s_mov_b32', sT5, SPIN_BOUND)
        a.label(loop)
        load_fn()
        a.wait_vm0()
        cond_fn()
        a.branch('s_cbranch_scc1', done)
        if sleep:
            a.misc(f's_sleep {sleep}')
        a.salu('s_sub_u32', sT5, sT5, 1)
        a.salu('s_cmp_lg_u32', None, sT5, 0)
        a.branch('s_cbranch_scc1', loop)
        a.label(done)

    def issue_k(buf, soff):
        for i in range(8):
            o = (i // 2) * 2048 + (i % 2) * 256
            a.vload('buffer_load_dwordx4', buf[4 * i:4 * i + 4], vKoff if o < 4096 else vKoff2, rK, soff, o % 4096, KP)

    def issue_v(buf, soff):
        for i in range(8):
            o = (i // 2) * 2048 + (i % 2) * 256
            a.vload('buffer_load_dwordx4', buf[4 * i:4 * i + 4], vVoff if o < 4096 else vVoff2, rV, soff, o % 4096, VP)

    def koff(i):
        o = (i // 2) * 2048 + (i % 2) * 256
        return (vKoff if o < 4096 else vKoff2), o % 4096

    def voff(i):
        o = (i // 2) * 2048 + (i % 2) * 256
        return (vVoff if o < 4096 else vVoff2), o % 4096

    def issue_static_units():
        a.salu('s_mul_i32', sT2, sSP, npriv)
        a.salu('s_add_u32', sT2, sT2, sW)
        a.salu('s_sub_u32', sT2, sT2, 4)
        a.salu('s_lshl_b32', sT2, sT2, 13)
        a.salu('s_add_u32', sT3, sT2, 4 * 8192)
        issue_k(KB, sT2)
        issue_v(VB, sT2)
        issue_k(KB2, sT3)
        issue_v(VB2, sT3)
        if not use_c:
            return
        L_cf = a.newlabel('cf')
        L_cd = a.newlabel('cd')
        a.salu('s_cmp_lt_u32', None, sF, NF)
        a.branch('s_cbranch_scc1', L_cf)
        a.salu('s_add_u32', sT3, sT2, 8 * 8192)
        a.salu('s_sub_u32', sT4, sW, 4)
        a.salu('s_lshl_b32', sT4, sT4, 14)
        a.salu('s_add_u32', sT4, sT4, L_W1)
        for i in range(16):
            vo, o = koff(i) if i < 8 else voff(i - 8)
            a.salu('s_add_u32', sT0, sT4, i * 1024 - o)
            a.salu('s_mov_b32', 'm0', sT0)
            a.vload_lds(vo, rK if i < 8 else rV, sT3, o, KP if i < 8 else VP)
        a.branch('s_branch', L_cd)
        a.label(L_cf)
        a.valu('v_mov_b32', vT[0], BIGOFF)
        for i in range(16):
            a.vload('buffer_load_dword', XT[20], vT[0], rK, 0, 0)
        a.label(L_cd)

    a.salu('s_cmp_ge_u32', None, sID, NWG)
    a.branch('s_cbranch_scc1', 'L_end')
    if prof or diag:
        a.misc('s_memrealtime s[84:85]')
    a.misc('s_load_dwordx16 s[16:31], s[0:1], 0')
    a.misc('s_load_dwordx4 s[32:35], s[0:1], 64')
    a.misc('s_load_dwordx2 s[36:37], s[0:1], 80')
    a.valu('v_lshrrev_b32', vT[0], 6, vTid)
    a.valu('v_and_b32', vLane, 63, vTid)
    a.valu('v_readfirstlane_b32', sW, vT[0])
    a.valu('v_and_b32', vJ, 15, vTid)
    a.valu('v_lshrrev_b32', vG, 4, vLane)
    a.valu('v_bfe_u32', vT[1], vLane, 2, 2)
    a.valu('v_and_b32', vT[2], 3, vLane)
    a.valu('v_lshlrev_b32', vT[1], 9, vT[1])
    a.valu('v_lshlrev_b32', vT[2], 4, vT[2])
    a.valu('v_lshl_add_u32', vKoff, vG, 6, vT[1])
    a.valu('v_add_u32', vKoff, vKoff, vT[2])
    a.valu('v_add_u32', vKoff2, 4096, vKoff)
    a.valu('v_lshlrev_b32', vL16, 4, vLane)
    a.valu('v_lshlrev_b32', vVoff, 9, vG)
    a.valu('v_lshl_add_u32', vVoff, vJ, 4, vVoff)
    a.valu('v_add_u32', vVoff2, 4096, vVoff)
    if xmap == 1:
        a.salu('s_lshr_b32', sT0, sID, 3)
        a.salu('s_and_b32', sT2, sT0, 7)
        a.salu('s_mul_i32', sT1, sT2, 11)
        a.salu('s_lshr_b32', sT1, sT1, 5)
        a.salu('s_mul_i32', sT1, sT1, 3)
        a.salu('s_sub_u32', sT1, sT2, sT1)
        a.salu('s_add_u32', sT1, sT1, 1)
        a.salu('s_bfe_u32', sSP, sID, (2 << 16) | 1)
        a.salu('s_and_b32', sT3, sSP, sT1)
        a.salu('s_bcnt1_i32_b32', sT3, sT3)
        a.salu('s_xor_b32', sT3, sT3, sID)
        a.salu('s_and_b32', sT3, sT3, 1)
        a.salu('s_lshl_b32', sGrp, sT0, 1)
        a.salu('s_add_u32', sGrp, sGrp, sT3)
    else:
        a.salu('s_lshr_b32', sGrp, sID, 2)
        a.salu('s_and_b32', sSP, sID, 3)
    a.salu('s_lshr_b32', sB, sGrp, 4)
    a.salu('s_and_b32', sH, sGrp, 15)
    a.salu('s_lshl_b32', sT1, sGrp, 22)
    a.salu('s_lshr_b32', sT5, sID, 3)
    a.salu('s_xor_b32', sT4, sT5, sID)
    a.salu('s_and_b32', sT4, sT4, 7)
    a.salu('s_cmp_eq_u32', None, sT4, 0)
    a.salu('s_cselect_b32', sT5, sT5, 255)
    a.salu('s_cmp_lt_u32', None, sT5, NF)
    a.salu('s_cselect_b32', sT2, 8, 12 if use_c else 8)
    a.valu('v_mov_b32', vT[2], sT2)
    a.valu('v_mov_b32', vT[3], 0)
    a.valu('v_mov_b32', vCntA, L_CNT)
    a.valu('v_mov_b32', vT[4], 0)
    a.valu('v_mov_b32', vT[5], 0)
    a.ds('ds_write_b128', vCntA, vT[2:6])
    a.wait_lgkm(0)
    a.salu('s_mov_b32', sF, sT5)
    if diag:
        a.salu('s_mov_b32', S(26), S(84))
    a.barrier()
    if prof:
        stamp_names.append('entry')
        a.valu('v_writelane_b32', V(0), S(84), 0, rmw=True)

    def common_setup():
        srd(rWS, pWS, WS_BYTES)
        srd(rOUT, pOUT, 4 * 896)
        srd(rDBG, pDBG, 256)
        a.salu('s_mov_b32', sXP[0], P(0)[0])
        a.salu('s_mov_b32', sXP[1], P(0)[1])
        if prof:
            a.salu('s_mov_b32', sCnt, 0)
        a.valu('v_cmp_gt_u32_e64', mJ8, 8, vJ)
        a.valu('v_cmp_gt_u32_e64', m56, 56, vLane)
        a.valu('v_cmp_gt_u32_e64', mG2, 2, vG)
        a.valu('v_and_b32', vT[2], 1, vJ)
        a.valu('v_lshlrev_b32', vT[2], 4, vT[2])
        a.valu('v_mov_b32', vT[3], 0xffff)
        a.valu('v_lshlrev_b32', vT[3], vT[2], vT[3])
        a.valu('v_bfe_u32', vT[2], vJ, 1, 2)
        for r in range(4):
            a.valu('v_cmp_eq_u32', 'vcc', r, vT[2])
            a.valu('v_cndmask_b32', vMask[r], 0, vT[3], 'vcc')
        a.valu('v_mov_b32', vOne, 1)
        a.salu('s_mov_b32', sCS, CS)
        a.salu('s_min_u32', sT2, sW, 6)
        a.salu('s_lshl_b32', sT2, sT2, 8)
        a.valu('v_lshrrev_b32', vAt, 5, vLane)
        a.valu('v_lshlrev_b32', vAt, 7, vAt)
        a.valu('v_and_b32', vT[6], 3, vJ)
        a.valu('v_lshl_add_u32', vAt, vT[6], 5, vAt)
        a.valu('v_bfe_u32', vT[7], vLane, 2, 3)
        a.valu('v_lshl_add_u32', vAt, vT[7], 2, vAt)
        a.valu('v_add_u32', vAt, sT2, vAt)

    L_stream = 'L_stream'
    L_b3 = 'L_b3'
    a.salu('s_cmp_ge_u32', None, sW, 4)
    a.branch('s_cbranch_scc1', L_stream)

    L_svc = a.newlabel('svc')
    L_svc2 = a.newlabel('svc2')
    if notail == 1:
        a.branch('s_branch', 'L_end')
    a.misc('s_setprio 3')
    a.salu('s_mul_i32', sT2, sW, 896)
    srd(rX, P(0), 896, sT2)
    srd(rWQ, P(3), 448 * 8192 if not nowq else 0)
    XR = KB[0:4]
    vEp = XT[12]
    a.vload('buffer_load_dwordx4', XR, vL16, rX)
    a.valu('v_lshrrev_b32', vT[1], 1, vLane)
    a.valu('v_lshlrev_b32', vT[1], 13, vT[1])
    a.valu('v_and_b32', vT[2], 1, vLane)
    a.valu('v_lshl_add_u32', vT[1], vT[2], 4, vT[1])
    a.salu('s_lshl_b32', sT2, sSP, 2)
    a.salu('s_add_u32', sT2, sT2, sB)
    a.salu('s_lshl_b32', sT2, sT2, 5)
    a.salu('s_lshl_b32', sT3, sH, 9)
    a.salu('s_add_u32', sT2, sT2, sT3)
    a.salu('s_lshl_b32', sT3, sW, 18)
    a.salu('s_add_u32', sT2, sT2, sT3)
    a.salu('s_lshl_b32', sT3, sW, 10)
    a.salu('s_add_u32', sT3, sT3, L_WQS)
    for i in range(4):
        a.salu('s_mov_b32', 'm0', sT3)
        a.vload_lds(vT[1], rWQ, sT2, 0, WF)
        if i < 3:
            a.salu('s_add_u32', sT2, sT2, 4 * 32 * 8192)
            a.salu('s_add_u32', sT3, sT3, 4096)
    srd(rWS, pWS, WS_BYTES)
    a.valu('v_mov_b32', vT[2], 0)
    a.salu('s_mov_b32', sT2, WS_EPOCH)
    a.vload('buffer_load_dword', vEp, vT[2], rWS, sT2, 0, LDF)
    MK = VB[0:4]
    ZR = VB[4:8]
    for i in range(4):
        a.valu('v_mov_b32', MK[i], -1)
        a.valu('v_mov_b32', ZR[i], 0)
    a.salu('s_lshl_b32', sT2, sGrp, 2)
    a.salu('s_add_u32', sT2, sT2, sSP)
    a.salu('s_lshl_b32', sT2, sT2, 2)
    a.salu('s_add_u32', sT2, sT2, sW)
    a.salu('s_lshl_b32', sT2, sT2, 9)
    a.salu('s_add_u32', sT2, sT2, WS_MAIL)
    a.valu('v_lshrrev_b32', vT[1], 5, vLane)
    a.valu('v_lshl_add_u32', vT[1], vT[1], 24, vL16)
    a.vstore('buffer_store_dwordx4', MK, vT[1], rWS, sT2, 0, STF)
    a.salu('s_lshl_b32', sT2, sGrp, 8)
    a.salu('s_add_u32', sT2, sT2, WS_POOL)
    a.salu('s_xor_b32', sT3, sW, 1)
    a.salu('s_add_u32', sT3, sT3, sSP)
    a.valu('v_add_u32', vT[1], sT3, vLane)
    a.valu('v_lshlrev_b32', vT[1], 24, vT[1])
    a.vstore('buffer_store_dword', ZR[0], vT[1], rWS, sT2, 0, STF)
    n_after_x = 7
    L_noinit = a.newlabel('noinit')
    a.salu('s_cmp_ge_u32', None, sF, NF)
    a.branch('s_cbranch_scc1', L_noinit)
    a.salu('s_mul_i32', sT2, sF, 7168)
    a.salu('s_add_u32', sT2, sT2, WS_INBOX)
    a.salu('s_lshl_b32', sT3, sW, 10)
    a.salu('s_add_u32', sT2, sT2, sT3)
    a.vstore('buffer_store_dwordx4', MK, vL16, rWS, sT2, 0, STF)
    a.salu('s_add_u32', sT2, sT2, 4096)
    L_i3 = a.newlabel('i3')
    a.salu('s_cmp_eq_u32', None, sW, 3)
    a.branch('s_cbranch_scc1', L_i3)
    a.vstore('buffer_store_dwordx4', MK, vL16, rWS, sT2, 0, STF)
    a.branch('s_branch', L_noinit)
    a.label(L_i3)
    a.salu('s_lshl_b32', sT2, sF, 8)
    a.valu('v_lshlrev_b32', vT[1], 24, vG)
    a.valu('v_add_u32', vT[1], vT[1], vL16)
    a.vstore('buffer_store_dwordx4', ZR, vT[1], rWS, sT2, WS_ACC, STF)
    a.salu('s_lshl_b32', sT2, sF, 10)
    a.salu('s_add_u32', sT2, sT2, WS_FLAG)
    a.vstore('buffer_store_dwordx4', ZR, vL16, rWS, sT2, 0, STF)
    a.label(L_noinit)
    srd(rWO, P(4), 4096 * 896 if not nowo else 0)
    srd(rW1, P(6), 448 * 3584 if not nodma else 0)
    srd(rW2, P(7), 448 * 3584 if not nodma else 0)
    common_setup()
    stamp('v_issued')
    XF = KB2[0:8]
    a.misc(f's_waitcnt vmcnt({n_after_x})')
    stamp('v_x')
    unpack8(XF, XR)
    layernorm([(XF, vT[0:4], sX0, sX1)])
    for i in range(4):
        a.valu('v_cvt_pk_bf16_f32', XR[i], XF[2 * i], XF[2 * i + 1])
    a.salu('s_mul_i32', sT2, sW, 896)
    a.valu('v_add_u32', vT[0], sT2, vL16)
    a.salu('s_mov_b64', 'exec', m56)
    a.ds('ds_write_b128', vT[0], XR, offset=L_XN2)
    a.salu('s_mov_b64', 'exec', 1)
    a.misc('s_waitcnt vmcnt(0) lgkmcnt(0)')
    a.misc(f'ds_add_u32 {vCntA}, {vOne} offset:8')
    a.salu('s_mov_b64', 'exec', -1)
    stamp('v_ln')
    a.salu('s_cmp_lg_u32', None, sW, 0)
    a.branch('s_cbranch_scc1', L_svc)
    QA = V(148, 56)
    QF = V(84, 56)
    a.valu('v_and_b32', vT[6], 3, vLane)
    a.valu('v_mul_u32_u24', vT[6], 896, vT[6])
    a.valu('v_lshl_add_u32', vT[6], vG, 4, vT[6])
    a.valu('v_bfe_u32', vT[4], vLane, 2, 2)
    a.valu('v_lshl_add_u32', vT[4], vG, 3, vT[4])
    a.valu('v_lshlrev_b32', vT[4], 5, vT[4])
    a.valu('v_and_b32', vT[5], 3, vLane)
    a.valu('v_lshl_add_u32', vT[4], vT[5], 3, vT[4])
    L_sw = a.newlabel('sw')
    L_sok = a.newlabel('sok')
    a.salu('s_mov_b32', sT5, SPIN_BOUND * 8)
    a.label(L_sw)
    a.ds('ds_read_b32', vT[0], vCntA, offset=8)
    a.wait_lgkm(0)
    a.valu('v_readfirstlane_b32', sT2, vT[0])
    a.salu('s_cmp_ge_u32', None, sT2, 4)
    a.branch('s_cbranch_scc1', L_sok)
    a.salu('s_sub_u32', sT5, sT5, 1)
    a.salu('s_cmp_lg_u32', None, sT5, 0)
    a.branch('s_cbranch_scc1', L_sw)
    a.label(L_sok)
    stamp('q_wq')
    for ks in range(14):
        a.ds('ds_read_b128', QA[4 * ks:4 * ks + 4], vT[6], offset=L_XN2 + 64 * ks)
    for ks in range(14):
        for qq in range(2):
            a.ds('ds_read_b64_tr_b16', QF[ks * 4 + 2 * qq:ks * 4 + 2 * qq + 2], vT[4], offset=L_WQS + (32 * ks + 4 * qq) * 32)
    a.valu('v_add_u32', vEp, 1, vEp)
    for ks in range(14):
        a.wait_lgkm(min(2 * (13 - ks), 15))
        a.mfma(KD, QA[4 * ks:4 * ks + 4], QF[4 * ks:4 * ks + 4], 0 if ks == 0 else KD)
    a.valu('v_lshlrev_b32', vT[4], 10, vG)
    a.valu('v_lshl_add_u32', vT[4], vJ, 2, vT[4])
    a.valu('v_and_b32', vT[5], 1, vJ)
    a.valu('v_lshl_add_u32', vT[4], vT[5], 24, vT[4])
    a.salu('s_lshl_b32', sT2, sSP, 2)
    a.salu('s_add_u32', sT2, sT2, sB)
    a.salu('s_lshl_b32', sT2, sT2, 6)
    a.salu('s_lshl_b32', sT3, sH, 12)
    a.salu('s_add_u32', sT2, sT2, sT3)
    a.salu('s_add_u32', sT2, sT2, WS_Q)
    for r in range(1, 4):
        a.valu('v_cmp_eq_u32', 'vcc', r, vG)
        a.valu('v_cndmask_b32', KD[0], KD[0], KD[r], 'vcc')
    a.dpp('v_mov_b32', KD[1], KD[0], ctrl='quad_perm:[1,0,3,2]')
    a.valu('v_cvt_pk_bf16_f32', PB[0], KD[0], KD[1])
    a.valu('v_mov_b32', PB[1], vEp)
    a.vstore('buffer_store_dwordx2', PB[0:2], vT[4], rWS, sT2, 0, STF)
    a.salu('s_lshl_b32', sT4, sB, 10)
    a.salu('s_add_u32', sT4, sT4, sT3)
    a.salu('s_add_u32', sT4, sT4, WS_Q)
    a.valu('v_readfirstlane_b32', sEp, vEp)
    L_nosig = a.newlabel('nosig')
    a.salu('s_cmp_ge_u32', None, sF, NF)
    a.branch('s_cbranch_scc1', L_nosig)
    a.salu('s_mov_b32', sT0, 1)
    a.misc(f's_atomic_add {sT0}, {pDBG}, {DB_INITF}')
    a.label(L_nosig)
    QG = PB[4:8]

    def ldq():
        a.vload('buffer_load_dwordx4', QG, vL16, rWS, sT4, 0, LDF)

    def condq():
        a.valu('v_cmp_ne_u32_e64', S(10, 2), sEp, QG[1])
        a.valu('v_cmp_ne_u32', 'vcc', sEp, QG[3])
        a.salu('s_or_b64', S(10, 2), S(10, 2), 'vcc')
        a.salu('s_cmp_eq_u64', None, S(10, 2), 0)

    spin_until(ldq, condq, first_check=False, sleep=0)
    a.valu('v_mov_b32', QG[1], QG[2])
    a.valu('v_lshlrev_b32', vT[4], 3, vLane)
    a.ds('ds_write_b64', vT[4], QG[0:2], offset=L_QBF)
    a.wait_lgkm(0)
    a.ds('ds_write_b32', vCntA, vOne, offset=4)
    stamp('q_got')
    a.branch('s_branch', L_svc2)
    a.label(L_svc)
    L_nodma = a.newlabel('nodma')
    a.salu('s_cmp_ge_u32', None, sF, NF)
    a.branch('s_cbranch_scc1', L_nodma)
    a.valu('v_lshrrev_b32', vT[6], 3, vLane)
    a.valu('v_mul_u32_u24', vT[6], 3584, vT[6])
    a.valu('v_and_b32', vT[7], 7, vLane)
    a.valu('v_lshl_add_u32', vT[6], vT[7], 4, vT[6])
    a.salu('s_sub_u32', sT2, sW, 1)
    L_dma = a.newlabel('dma')
    a.label(L_dma)
    a.salu('s_lshl_b32', sT3, sT2, 10)
    a.salu('s_mul_i32', sT4, sT2, 8 * 3584)
    a.salu('s_lshl_b32', sT5, sF, 7)
    a.salu('s_add_u32', sT4, sT4, sT5)
    a.salu('s_mul_i32', sT5, sF, 57344)
    a.salu('s_add_u32', sT5, sT5, sT3)
    a.salu('s_add_u32', sT0, sT3, L_W1)
    a.salu('s_mov_b32', 'm0', sT0)
    a.vload_lds(vT[6], rW1, sT4, 0, WF)
    a.salu('s_add_u32', sT0, sT3, L_W2)
    a.salu('s_mov_b32', 'm0', sT0)
    a.vload_lds(vL16, rW2, sT5, 0, WF)
    a.salu('s_add_u32', sT2, sT2, 3)
    a.salu('s_cmp_lt_u32', None, sT2, 56)
    a.branch('s_cbranch_scc1', L_dma)
    a.label(L_nodma)
    a.label(L_svc2)
    if debug or prof:
        srd(rWSD, pWS, (1 << 20) + (64 << 20))
    a.valu('v_mul_u32_u24', vWoOff, 896, vG)
    a.valu('v_lshl_add_u32', vWoOff, vJ, 4, vWoOff)
    a.valu('v_and_b32', vT[2], 7, vJ)
    a.valu('v_lshlrev_b32', vT[3], 4, vT[2])
    a.valu('v_lshrrev_b32', vT[4], 3, vJ)
    a.valu('v_mul_u32_u24', vT[5], 4 * 896, vT[4])
    a.valu('v_mul_u32_u24', vWoRem, 896, vG)
    a.valu('v_add3_u32', vWoRem, vWoRem, vT[3], vT[5])
    a.valu('v_add_u32', vWoRem, 768, vWoRem)
    a.salu('s_lshl_b32', sT2, sH, 8)
    a.salu('s_lshl_b32', sT3, sSP, 6)
    a.salu('s_add_u32', sT2, sT2, sT3)
    a.salu('s_lshl_b32', sT3, sW, 4)
    a.salu('s_add_u32', sT2, sT2, sT3)
    a.salu('s_mul_i32', sT2, sT2, 896)
    for Gp in range(4):
        for s_ in range(3):
            a.vload('buffer_load_dwordx4', WO[(Gp * 3 + s_) * 4:(Gp * 3 + s_) * 4 + 4], vWoOff, rWO, sT2, 256 * s_, WF)
        if Gp % 2 == 0:
            a.vload('buffer_load_dwordx4', WO[48 + 2 * Gp:52 + 2 * Gp], vWoRem, rWO, sT2, 0, WF)
        if Gp < 3:
            a.salu('s_add_u32', sT2, sT2, 4 * 896)
    a.valu('v_lshl_add_u32', vT[5], vT[4], 2, vG)
    a.valu('v_lshlrev_b32', vT[5], 7, vT[5])
    a.valu('v_lshl_add_u32', vYw, vT[2], 4, vT[5])
    a.salu('s_lshl_b32', sT2, sW, 11)
    a.valu('v_add_u32', vYw, sT2, vYw)
    a.valu('v_and_b32', vT[6], 3, vJ)
    a.valu('v_lshrrev_b32', vT[7], 2, vJ)
    a.valu('v_mul_u32_u24', vOr, 1040, vT[6])
    a.valu('v_lshl_add_u32', vOr, vG, 6, vOr)
    a.valu('v_lshl_add_u32', vOr, vT[7], 4, vOr)
    a.salu('s_lshl_b32', sT2, sW, 8)
    a.valu('v_add_u32', vOr, sT2, vOr)
    a.valu('v_lshlrev_b32', vMr, 3, vT[6])
    a.valu('v_lshrrev_b32', vT[2], 1, vG)
    a.valu('v_lshlrev_b32', vPubOff, 5, vT[2])
    a.valu('v_lshl_add_u32', vPubOff, vT[6], 3, vPubOff)
    a.valu('v_and_b32', vT[2], 1, vT[7])
    a.valu('v_lshl_add_u32', vPubOff, vT[2], 2, vPubOff)
    a.valu('v_and_b32', vT[2], 1, vG)
    a.valu('v_lshl_add_u32', vPubOff, vT[2], 1, vPubOff)
    a.valu('v_lshrrev_b32', vT[2], 1, vT[7])
    a.valu('v_add_u32', vPubOff, vPubOff, vT[2])
    a.valu('v_lshlrev_b32', vPubOff, 2, vPubOff)
    a.salu('s_lshl_b32', sT2, sSP, 9)
    a.valu('v_lshlrev_b32', vGatML, 11, vT[6])
    a.valu('v_add_u32', vGatML, sT2, vGatML)
    a.salu('s_lshl_b32', sT3, sW, 6)
    a.valu('v_lshl_add_u32', vT[2], vT[7], 2, vG)
    a.valu('v_lshl_add_u32', vGatOff, vT[2], 2, vGatML)
    a.valu('v_add_u32', vGatOff, sT3, vGatOff)
    a.valu('v_lshlrev_b32', vOw, 24, vLane)

    def ldfi():
        a.valu('v_mov_b32', vT[7], 0)
        a.vload('buffer_load_dword', vChk, vT[7], rDBG, 0, DB_INITF, LDF)

    def condf():
        a.valu('v_readfirstlane_b32', sT2, vChk)
        a.salu('s_cmp_ge_u32', None, sT2, NF)

    spin_until(ldfi, condf, first_check=False, sleep=32)
    a.salu('s_lshl_b32', sT4, sGrp, 13)
    a.salu('s_add_u32', sT4, sT4, WS_MAIL)
    a.salu('s_lshl_b32', sT2, sSP, 2)
    a.salu('s_add_u32', sT2, sT2, sW)
    a.salu('s_lshl_b32', sT2, sT2, 9)
    a.salu('s_add_u32', sT3, sT4, sT2)
    stamp('v_ready')
    if notail == 2:
        a.branch('s_branch', 'L_end')
    a.barrier()
    stamp('v_B3')
    ov = PB[0:4]
    ml = PB[4:6]
    a.ds('ds_read_b64', ml, vMr, offset=L_ML)
    a.ds('ds_read_b128', ov, vOr, offset=L_OP)
    a.valu('v_and_b32', vT[5], 3, vJ)
    a.wait_lgkm(1)
    red4 = ('quad_perm:[1,0,3,2]', 'quad_perm:[2,3,0,1]')
    a.valu('v_mov_b32', vT[0], ml[0])
    for c in red4:
        a.dpp('v_max_f32', vT[0], vT[0], vT[0], ctrl=c)
    a.valu('v_sub_f32', vT[2], ml[0], vT[0])
    a.valu('v_mul_f32', vT[2], sCS, vT[2])
    a.valu('v_exp_f32', vT[2], vT[2])
    a.wait_lgkm(0)
    a.valu('v_mul_f32', vT[1], ml[1], vT[2])
    for r in range(4):
        a.valu('v_mul_f32', ov[r], ov[r], vT[2])
    for c in red4:
        for r in range(4):
            a.dpp('v_add_f32', ov[r], ov[r], ov[r], ctrl=c)
        a.dpp('v_add_f32', vT[1], vT[1], vT[1], ctrl=c)
    for r in range(1, 4):
        a.valu('v_cmp_eq_u32', 'vcc', r, vT[5])
        a.valu('v_cndmask_b32', ov[0], ov[0], ov[r], 'vcc')
    a.valu('v_min_u32', ov[0], -2, ov[0])
    a.vstore('buffer_store_dword', ov[0], vPubOff, rWS, sT3, 0, STF)
    a.valu('v_min_u32', vT[0], -2, vT[0])
    a.valu('v_min_u32', vT[1], -2, vT[1])
    a.vstore('buffer_store_dwordx2', vT[0:2], vOw, rWS, sT3, 256, STF)
    gv = PB[8]
    gml = PB[10:12]

    def ldg():
        a.vload('buffer_load_dword', gv, vGatOff, rWS, sT4, 0, LDF)
        a.vload('buffer_load_dwordx2', gml, vGatML, rWS, sT4, 256, LDF)

    def condg():
        a.valu('v_max3_u32', vT[2], gv, gml[0], gml[1])
        a.valu('v_cmp_eq_u32_e64', S(10, 2), -1, vT[2])
        a.salu('s_cmp_eq_u64', None, S(10, 2), 0)

    spin_until(ldg, condg, first_check=False, sleep=gsleep)
    stamp('v_gath')
    a.valu('v_mov_b32', vT[0], gml[0])
    for c in red4:
        a.dpp('v_max_f32', vT[0], vT[0], vT[0], ctrl=c)
    a.valu('v_sub_f32', vT[1], gml[0], vT[0])
    a.valu('v_mul_f32', vT[1], sCS, vT[1])
    a.valu('v_exp_f32', vT[1], vT[1])
    a.valu('v_mul_f32', gv, gv, vT[1])
    a.valu('v_mul_f32', gml[1], gml[1], vT[1])
    for c in red4:
        a.dpp('v_add_f32', gv, gv, gv, ctrl=c)
        a.dpp('v_add_f32', gml[1], gml[1], gml[1], ctrl=c)
    a.valu('v_rcp_f32', gml[1], gml[1])
    a.valu('v_mul_f32', gv, gv, gml[1])
    a.valu('v_cvt_pk_bf16_f32', gv, gv, gv)
    dump(gv, 18)
    Y = [KB[0:4], KB[4:8], KB[8:12], KB[12:16], KB[16:20]]
    BT = [QB[4 * Gp:4 * Gp + 4] for Gp in range(4)]
    for Gp in range(4):
        for r in range(4):
            a.dpp('v_and_b32', BT[Gp][r], gv, vMask[r], ctrl=f'row_newbcast:{4 * Gp}')
        for s_ in range(3):
            a.mfma(Y[s_], WO[(Gp * 3 + s_) * 4:(Gp * 3 + s_) * 4 + 4], BT[Gp], 0 if Gp == 0 else Y[s_])
        a.mfma(Y[3 + Gp % 2], WO[48 + 4 * (Gp // 2):52 + 4 * (Gp // 2)], BT[Gp], 0 if Gp < 2 else Y[3 + Gp % 2])
    for r in range(4):
        a.valu('v_cndmask_b32', Y[0][r], Y[1][r], Y[0][r], mJ8)
    a.ds('ds_write_b128', vYw, Y[0], offset=L_YP)
    for r in range(4):
        a.valu('v_cndmask_b32', Y[3][r], Y[4][r], Y[3][r], mG2)
        a.valu('v_cndmask_b32', Y[2][r], Y[3][r], Y[2][r], mJ8)
    a.ds('ds_write_b128', vYw, Y[2], offset=L_YP + 1024)
    a.branch('s_branch', 'L_b4')

    a.label(L_stream)
    a.misc(f's_setprio {prio}')
    srd(rK, P(1), 4 << 20, sT1)
    srd(rV, P(2), 4 << 20, sT1)
    issue_static_units()
    common_setup()
    if debug or prof:
        srd(rWSD, pWS, (1 << 20) + (64 << 20))
    a.salu('s_lshl_b32', sT2, sGrp, 8)
    a.salu('s_add_u32', sT2, sT2, WS_POOL)
    a.salu('s_add_u32', sPool[0], pWS[0], sT2)
    a.salu('s_addc_u32', sPool[1], pWS[1], 0)
    a.valu('v_lshrrev_b32', vT[2], 2, vJ)
    for t in range(4):
        a.valu('v_cmp_eq_u32_e64', mT[t], t, vT[2])
    for r in range(4):
        a.valu('v_mov_b32', OD0[r], 0)
        a.valu('v_mov_b32', OD1[r], 0)
    a.valu('v_mov_b32', vL, 0)
    a.salu('s_mov_b32', sM, -3.0e38)
    a.salu('s_mov_b32', sExh, 0)
    a.valu('v_lshrrev_b32', vT[4], 3, vJ)
    a.valu('v_lshl_add_u32', vT[5], vT[4], 2, vG)
    a.valu('v_lshlrev_b32', vT[5], 7, vT[5])
    a.valu('v_and_b32', vT[6], 3, vJ)
    a.valu('v_lshl_add_u32', vOw, vT[6], 5, vT[5])
    a.valu('v_bfe_u32', vT[7], vJ, 2, 1)
    a.valu('v_lshl_add_u32', vOw, vT[7], 4, vOw)
    a.salu('s_sub_u32', sT2, sW, 4)
    a.salu('s_mul_i32', sT3, sT2, 1040)
    a.valu('v_add_u32', vOw, sT3, vOw)
    a.salu('s_lshl_b32', sT2, sT2, 3)
    a.valu('v_mov_b32', vMr, sT2)
    a.valu('v_lshl_add_u32', vT[1], vG, 2, vT[6])
    a.valu('v_lshlrev_b32', vT[1], 4, vT[1])
    stamp('s_issued')
    L_qw = a.newlabel('qw')
    L_qok = a.newlabel('qok')
    a.salu('s_mov_b32', sT5, SPIN_BOUND * 8)
    a.label(L_qw)
    a.ds('ds_read_b32', vT[0], vCntA, offset=4)
    a.wait_lgkm(0)
    a.valu('v_readfirstlane_b32', sT2, vT[0])
    a.salu('s_cmp_lg_u32', None, sT2, 0 if not skipq else 77)
    a.branch('s_cbranch_scc1', L_qok)
    a.misc('s_sleep 2')
    a.salu('s_sub_u32', sT5, sT5, 1)
    a.salu('s_cmp_lg_u32', None, sT5, 0)
    a.branch('s_cbranch_scc1', L_qw)
    a.label(L_qok)
    stamp('s_q')
    a.ds('ds_read_b128', PB[0:4], vT[1], offset=L_QBF)
    a.ds('ds_read_b128', PB[4:8], vT[1], offset=L_QBF + 256)
    a.wait_lgkm(0)
    for t in range(4):
        for hf in range(2):
            for r in range(4):
                a.valu('v_cndmask_b32', QB[(t * 2 + hf) * 4 + r], 0, PB[hf * 4 + r], mT[t])

    def qk(kb):
        for i in range(8):
            a.mfma(KD, kb[4 * i:4 * i + 4], QB[4 * i:4 * i + 4], 0 if i == 0 else KD)

    def softmax_step():
        s_, t_ = vT[0], vT[1]
        a.dpp('v_mov_b32', s_, KD[0], ctrl='quad_perm:[0,0,0,0]')
        a.dpp('v_add_f32', s_, KD[1], s_, ctrl='quad_perm:[1,1,1,1]')
        a.dpp('v_add_f32', s_, KD[2], s_, ctrl='quad_perm:[2,2,2,2]')
        a.dpp('v_add_f32', s_, KD[3], s_, ctrl='quad_perm:[3,3,3,3]')
        rbf(s_, s_)
        a.valu('v_max_f32', t_, sM, s_)
        wave_red('v_max_f32', t_, sMn, quads_equal=True)
        a.valu('v_mov_b32', t_, sM)
        a.valu('v_subrev_f32', s_, sMn, s_)
        a.valu('v_subrev_f32', t_, sMn, t_)
        a.valu('v_mul_f32', s_, sCS, s_)
        a.valu('v_mul_f32', t_, sCS, t_)
        a.valu('v_exp_f32', s_, s_)
        a.valu('v_exp_f32', t_, t_)
        a.salu('s_mov_b32', sM, sMn)
        a.valu('v_fma_f32', vL, vL, t_, s_)
        a.valu('v_cvt_pk_bf16_f32', s_, s_, s_)
        for r in range(4):
            a.valu('v_mul_f32', OD0[r], OD0[r], t_)
            a.valu('v_mul_f32', OD1[r], OD1[r], t_)
        for T in range(4):
            for r in range(4):
                a.dpp('v_and_b32', PB[4 * T + r], s_, vMask[r], ctrl=f'row_newbcast:{4 * T}')

    def pv(vb):
        for T in range(4):
            a.mfma(OD0, vb[8 * T:8 * T + 4], PB[4 * T:4 * T + 4], OD0)
            a.mfma(OD1, vb[8 * T + 4:8 * T + 8], PB[4 * T:4 * T + 4], OD1)

    def fetch_issue():
        L_f1 = a.newlabel('f1')
        L_f2 = a.newlabel('f2')
        a.salu('s_cmp_lg_u32', None, sExh, 0)
        a.branch('s_cbranch_scc1', L_f1)
        a.salu('s_mov_b64', 'exec', 1)
        a.misc(f'ds_add_rtn_u32 {vIdx}, {vCntA}, {vOne}')
        a.salu('s_mov_b64', 'exec', -1)
        a.branch('s_branch', L_f2)
        a.label(L_f1)
        a.salu('s_mov_b32', sIdx, 1)
        a.misc(f's_atomic_add {sIdx}, {sPool}, 0 glc')
        a.label(L_f2)

    def fetch_complete():
        a.wait_lgkm(0)
        L_g1 = a.newlabel('g1')
        L_g2 = a.newlabel('g2')
        a.salu('s_cmp_lg_u32', None, sExh, 0)
        a.branch('s_cbranch_scc1', L_g1)
        a.valu('v_readfirstlane_b32', sT2, vIdx)
        a.salu('s_mul_i32', sNext, sSP, npriv)
        a.salu('s_add_u32', sNext, sNext, sT2)
        a.salu('s_cmp_lt_u32', None, sT2, npriv)
        a.branch('s_cbranch_scc1', L_g2)
        a.salu('s_mov_b32', sExh, 1)
        a.salu('s_mov_b32', sIdx, 1)
        a.misc(f's_atomic_add {sIdx}, {sPool}, 0 glc')
        a.wait_lgkm(0)
        a.label(L_g1)
        a.salu('s_add_u32', sNext, sIdx, 4 * npriv)
        a.label(L_g2)

    def unit_rolling(cnt):
        for i in range(8):
            a.misc(f's_waitcnt vmcnt({cnt})')
            if not nocomp:
                a.mfma(KD, KB[4 * i:4 * i + 4], QB[4 * i:4 * i + 4], 0 if i == 0 else KD)
            vo, o = koff(i)
            a.vload('buffer_load_dwordx4', KB[4 * i:4 * i + 4], vo, rK, sNext, o, KP)
        fetch_issue()
        if not nocomp:
            softmax_step()
        for i in range(8):
            od = OD0 if i % 2 == 0 else OD1
            a.misc(f's_waitcnt vmcnt({cnt})')
            if not nocomp:
                a.mfma(od, VB[4 * i:4 * i + 4], PB[4 * (i // 2):4 * (i // 2) + 4], od)
            vo, o = voff(i)
            a.vload('buffer_load_dwordx4', VB[4 * i:4 * i + 4], vo, rV, sNext, o, VP)

    extra = 32 if use_c else 16
    fetch_issue()
    fetch_complete()
    a.salu('s_lshl_b32', sNext, sNext, 13)
    unit_rolling(15 + extra)
    a.misc(f's_waitcnt vmcnt({extra + 8})')
    qk(KB2)
    softmax_step()
    a.misc(f's_waitcnt vmcnt({extra})')
    pv(VB2)
    L_loop = 'L_loop'
    if use_c:
        a.salu('s_cmp_lt_u32', None, sF, NF)
        a.branch('s_cbranch_scc1', L_loop)
        a.salu('s_sub_u32', sT4, sW, 4)
        a.salu('s_lshl_b32', sT4, sT4, 14)
        a.salu('s_add_u32', sT4, sT4, L_W1)
        a.valu('v_add_u32', vT[2], sT4, vL16)
        a.misc('s_waitcnt vmcnt(16)')
        for i in range(8):
            a.ds('ds_read_b128', KB2[4 * i:4 * i + 4], vT[2], offset=1024 * i)
        for i in range(8):
            a.ds('ds_read_b128', VB2[4 * i:4 * i + 4], vT[2], offset=8192 + 1024 * i)
        a.wait_lgkm(8)
        qk(KB2)
        softmax_step()
        a.wait_lgkm(0)
        pv(VB2)

    a.label(L_loop)
    if prof:
        a.salu('s_add_u32', sCnt, sCnt, 1)
    fetch_complete()
    L_last = a.newlabel('last')
    a.salu('s_cmp_ge_u32', None, sNext, 512)
    a.branch('s_cbranch_scc1', L_last)
    a.salu('s_lshl_b32', sNext, sNext, 13)
    unit_rolling(15)
    a.branch('s_branch', L_loop)
    a.label(L_last)
    a.misc('s_waitcnt vmcnt(8)')
    qk(KB)
    softmax_step()
    wave_red('v_add_f32', vL, sMn, quads_equal=True)
    a.valu('v_mov_b32', vT[2], sM)
    a.valu('v_mov_b32', vT[3], sMn)
    a.ds('ds_write_b64', vMr, vT[2:4], offset=L_ML)
    for i in range(8):
        od = OD0 if i % 2 == 0 else OD1
        a.misc(f's_waitcnt vmcnt({7 - i})')
        a.mfma(od, VB[4 * i:4 * i + 4], PB[4 * (i // 2):4 * (i // 2) + 4], od)
    stamp('s_Vlast')
    if notail:
        a.branch('s_branch', 'L_end')
    for r in range(4):
        a.valu('v_cndmask_b32', PB[r], OD1[r], OD0[r], mJ8)
    a.ds('ds_write_b128', vOw, PB[0:4], offset=L_OP)
    a.wait_lgkm(0)
    a.barrier()
    a.misc('s_setprio 0')
    stamp_val('s_units', sCnt)

    a.label('L_b4')
    a.salu('s_lshl_b32', sT2, sW, 8)
    a.valu('v_lshlrev_b32', vT[4], 2, vLane)
    a.valu('v_add_u32', vT[4], sT2, vT[4])
    a.salu('s_mul_i32', sT0, sB, 1792)
    a.salu('s_add_u32', sT0, sT0, WS_ACC)
    a.salu('s_lshl_b32', sT1, sGrp, 2)
    a.salu('s_add_u32', sT1, sT1, sSP)
    a.salu('s_lshl_b32', sT1, sT1, 2)
    a.salu('s_add_u32', sT1, sT1, WS_FLAG)
    a.valu('v_lshlrev_b32', vT[6], 10, vLane)
    a.wait_lgkm(0)
    a.barrier()
    stamp('B4')
    YS = VB[0:4]
    for i in range(4):
        a.ds('ds_read_b32', YS[i], vT[4], offset=L_YP + 2048 * i)
    a.wait_lgkm(0)
    a.valu('v_add_f32', YS[0], YS[0], YS[1])
    a.valu('v_add_f32', YS[2], YS[2], YS[3])
    a.valu('v_add_f32', YS[0], YS[0], YS[2])
    a.vstore('buffer_atomic_add_f32', YS[0], vAt, rWS, sT0, 0, 'sc1')
    a.salu('s_mov_b64', 'exec', 1)
    a.wait_vm0()
    a.misc(f'ds_add_rtn_u32 {vIdx}, {vCntA}, {vOne} offset:12')
    a.wait_lgkm(0)
    a.valu('v_readfirstlane_b32', sT2, vIdx)
    L_nc = a.newlabel('nc')
    a.salu('s_cmp_lg_u32', None, sT2, 7)
    a.branch('s_cbranch_scc1', L_nc)
    a.salu('s_mov_b64', 'exec', (1 << NF) - 1)
    a.vstore('buffer_store_dword', vOne, vT[6], rWS, sT1, 0, STF)
    a.label(L_nc)
    a.salu('s_mov_b64', 'exec', -1)
    stamp('atom')
    a.salu('s_cmp_ge_u32', None, sF, NF)
    a.branch('s_cbranch_scc1', 'L_endp')

    F2B = V(84, 32)
    FA = V(116, 56)
    F1B = V(172, 56)
    RB = V(24, 28)
    a.valu('v_bfe_u32', vT[4], vLane, 2, 2)
    a.valu('v_lshl_add_u32', vT[4], vG, 3, vT[4])
    a.valu('v_and_b32', vT[5], 3, vLane)
    a.valu('v_lshlrev_b32', vT[5], 3, vT[5])
    a.valu('v_mul_u32_u24', vT[6], 896, vT[4])
    a.valu('v_add_u32', vT[6], vT[6], vT[5])
    a.salu('s_min_u32', sT2, sW, 6)
    a.salu('s_lshl_b32', sT2, sT2, 7)
    a.salu('s_add_u32', sT2, sT2, L_W2)
    a.valu('v_add_u32', vT[6], sT2, vT[6])
    for tt in range(4):
        for ks in range(2):
            for qq in range(2):
                d = F2B[(tt * 2 + ks) * 4 + 2 * qq:(tt * 2 + ks) * 4 + 2 * qq + 2]
                a.ds('ds_read_b64_tr_b16', d, vT[6], offset=(32 * ks + 4 * qq) * 896 + tt * 32)
    L_ln = a.newlabel('ln')
    L_b5 = a.newlabel('b5')
    a.salu('s_cmp_ge_u32', None, sW, 4)
    a.branch('s_cbranch_scc1', L_ln)
    a.valu('v_lshlrev_b32', vT[6], 7, vT[4])
    a.valu('v_add_u32', vT[6], vT[6], vT[5])
    a.salu('s_lshl_b32', sT2, sW, 5)
    a.salu('s_add_u32', sT2, sT2, L_W1)
    a.valu('v_add_u32', vT[6], sT2, vT[6])
    for ks in range(14):
        for qq in range(2):
            a.ds('ds_read_b64_tr_b16', F1B[ks * 4 + 2 * qq:ks * 4 + 2 * qq + 2], vT[6], offset=(32 * ks + 4 * qq) * 128)
            if (ks * 2 + qq) % 8 == 7:
                a.wait_lgkm(4)
    a.branch('s_branch', L_b5)
    a.label(L_ln)
    a.salu('s_sub_u32', sT3, sW, 4)
    a.salu('s_mul_i32', sT2, sT3, 896)
    srd(rX, sXP, 896, sT2)
    xraw = RB[0:4]
    a.vload('buffer_load_dwordx4', xraw, vL16, rX)
    a.salu('s_lshl_b32', sT4, sF, 2)
    a.salu('s_add_u32', sT4, sT4, sT3)
    a.salu('s_lshl_b32', sT4, sT4, 8)
    a.salu('s_add_u32', sT4, sT4, WS_FLAG)
    a.valu('v_lshlrev_b32', vT[7], 2, vLane)
    a.salu('s_mul_i32', sT1, sT3, 1792)
    a.salu('s_add_u32', sT1, sT1, WS_ACC)
    a.valu('v_lshlrev_b32', vT[0], 5, vLane)
    a.valu('v_mov_b32', vT[5], BIGOFF)
    a.valu('v_cndmask_b32', vT[0], vT[5], vT[0], m56)

    def ldc():
        a.vload('buffer_load_dword', vT[6], vT[7], rWS, sT4, 0, LDF)

    def condc():
        a.valu('v_cmp_eq_u32', 'vcc', 0, vT[6])
        a.salu('s_cmp_eq_u64', None, 'vcc', 0)

    spin_until(ldc, condc, first_check=False, sleep=psleep)
    stamp('poll')
    av = RB[8:16]
    a.vload('buffer_load_dwordx4', av[0:4], vT[0], rWS, sT1, 0, LDF)
    a.vload('buffer_load_dwordx4', av[4:8], vT[0], rWS, sT1, 16, LDF)
    xf = RB[16:24]
    unpack8(xf, xraw)
    a.salu('s_mul_i32', sT2, sT3, 896)
    a.valu('v_add_u32', vT[6], sT2, vL16)
    a.wait_vm0()
    hp = RB[4:8]
    for i in range(4):
        a.valu('v_cvt_pk_bf16_f32', RB[24 + i], av[2 * i], av[2 * i + 1])
    for i in range(4):
        a.valu('v_lshlrev_b32', av[2 * i], 16, RB[24 + i])
        a.valu('v_and_b32', av[2 * i + 1], 0xffff0000, RB[24 + i])
    for i in range(8):
        a.valu('v_add_f32', xf[i], xf[i], av[i])
    for i in range(4):
        a.valu('v_cvt_pk_bf16_f32', hp[i], xf[2 * i], xf[2 * i + 1])
    unpack8(xf, hp)
    a.salu('s_mov_b64', 'exec', m56)
    a.ds('ds_write_b128', vT[6], hp, offset=L_HB)
    a.salu('s_mov_b64', 'exec', -1)
    layernorm([(xf, vT[0:4], sX0, sX1)])
    for i in range(4):
        a.valu('v_cvt_pk_bf16_f32', RB[i], xf[2 * i], xf[2 * i + 1])
    a.salu('s_mov_b64', 'exec', m56)
    a.ds('ds_write_b128', vT[6], RB[0:4], offset=L_XN2)
    a.salu('s_mov_b64', 'exec', -1)
    if debug:
        for i in range(4):
            dump(hp[i], 33 + i)
            dump(RB[i], 37 + i)
    a.label(L_b5)
    a.wait_lgkm(0)
    a.barrier()
    stamp('B5')
    L_b6 = a.newlabel('b6')
    a.salu('s_cmp_ge_u32', None, sW, 4)
    a.branch('s_cbranch_scc1', L_b6)
    a.valu('v_and_b32', vT[6], 3, vLane)
    a.valu('v_mul_u32_u24', vT[6], 896, vT[6])
    a.valu('v_lshl_add_u32', vT[6], vG, 4, vT[6])
    for ks in range(14):
        a.ds('ds_read_b128', FA[4 * ks:4 * ks + 4], vT[6], offset=L_XN2 + 64 * ks)
    Z = RB[0:4]
    for ks in range(14):
        a.wait_lgkm(min(13 - ks, 15))
        a.mfma(Z, FA[4 * ks:4 * ks + 4], F1B[4 * ks:4 * ks + 4], 0 if ks == 0 else Z)
    a.salu('s_lshl_b32', sT2, sW, 5)
    a.valu('v_lshlrev_b32', vT[6], 1, vJ)
    a.valu('v_add_u32', vT[6], sT2, vT[6])
    a.salu('s_mov_b32', sT3, -LOG2E)
    for r in range(4):
        rbf(Z[r], Z[r])
    for r in range(4):
        a.valu('v_mul_f32', RB[4 + r], sT3, Z[r])
    for r in range(4):
        a.valu('v_exp_f32', RB[4 + r], RB[4 + r])
    for r in range(4):
        a.valu('v_add_f32', RB[4 + r], 1.0, RB[4 + r])
    for r in range(4):
        a.valu('v_rcp_f32', RB[4 + r], RB[4 + r])
    for r in range(4):
        a.valu('v_mul_f32', Z[r], Z[r], RB[4 + r])
    for r in range(4):
        a.valu('v_cvt_pk_bf16_f32', Z[r], Z[r], Z[r])
        a.ds('ds_write_b16', vT[6], Z[r], offset=L_GB + 128 * r)
    if debug:
        for r in range(4):
            dump(Z[r], 41 + r)
    a.label(L_b6)
    a.wait_lgkm(0)
    a.barrier()
    stamp('B6')
    L_fin = a.newlabel('fin')
    a.salu('s_cmp_ge_u32', None, sW, 7)
    a.branch('s_cbranch_scc1', L_fin)
    a.valu('v_and_b32', vT[6], 3, vLane)
    a.valu('v_lshlrev_b32', vT[6], 7, vT[6])
    a.valu('v_lshl_add_u32', vT[6], vG, 4, vT[6])
    a.ds('ds_read_b128', FA[0:4], vT[6], offset=L_GB)
    a.ds('ds_read_b128', FA[4:8], vT[6], offset=L_GB + 64)
    a.salu('s_mul_i32', sT2, sW, 4 * 7168)
    a.salu('s_lshl_b32', sT3, sF, 8)
    a.salu('s_add_u32', sT2, sT2, sT3)
    a.salu('s_add_u32', sT2, sT2, WS_INBOX)
    a.wait_lgkm(0)
    O2 = [RB[4 * tt:4 * tt + 4] for tt in range(4)]
    for tt in range(4):
        a.mfma(O2[tt], FA[0:4], F2B[(tt * 2) * 4:(tt * 2) * 4 + 4], 0)
    for tt in range(4):
        a.mfma(O2[tt], FA[4:8], F2B[(tt * 2 + 1) * 4:(tt * 2 + 1) * 4 + 4], O2[tt])
    a.salu('s_mov_b64', 'exec', 0xffff)
    for tt in range(4):
        for r in range(4):
            a.valu('v_min_u32', O2[tt][r], -2, O2[tt][r])
        a.vstore('buffer_store_dwordx4', O2[tt], vL16, rWS, sT2, 0, STF)
        if tt < 3:
            a.salu('s_add_u32', sT2, sT2, 7168)
    a.salu('s_or_b32', sT2, sF, sW)
    a.salu('s_cmp_lg_u32', None, sT2, 0)
    a.branch('s_cbranch_scc1', 'L_endp')
    a.salu('s_mov_b64', 'exec', 1)
    a.valu('v_mov_b32', vT[4], sEp)
    a.valu('v_mov_b32', vT[5], 0)
    a.salu('s_mov_b32', sT2, WS_EPOCH)
    a.vstore('buffer_store_dword', vT[4], vT[5], rWS, sT2, 0, STF)
    a.branch('s_branch', 'L_endp')
    a.label(L_fin)
    a.valu('v_mul_u32_u24', vT[6], 896, vG)
    a.valu('v_lshl_add_u32', vT[6], vJ, 1, vT[6])
    a.salu('s_lshl_b32', sT2, sF, 5)
    a.valu('v_add_u32', vT[6], sT2, vT[6])
    a.ds('ds_read_u16', vT[7], vT[6], offset=L_HB)
    a.salu('s_mul_i32', sT3, sF, 7168)
    a.salu('s_add_u32', sT3, sT3, WS_INBOX)
    a.salu('s_add_u32', sT4, sT3, 4096)
    IB = V(116, 28)

    def ldi():
        for i in range(7):
            a.vload('buffer_load_dwordx4', IB[4 * i:4 * i + 4], vL16, rWS, sT3 if i < 4 else sT4, (i % 4) * 1024, LDF)

    def condi():
        a.valu('v_max3_u32', vT[0], IB[0], IB[1], IB[2])
        for i in range(3, 27, 2):
            a.valu('v_max3_u32', vT[0], vT[0], IB[i], IB[i + 1])
        a.valu('v_max_u32', vT[0], vT[0], IB[27])
        a.valu('v_cmp_eq_u32_e64', S(100, 2), -1, vT[0])
        a.salu('s_cmp_eq_u64', None, S(100, 2), 0)

    spin_until(ldi, condi, first_check=False, sleep=0)
    stamp('inbox')
    for i in range(1, 7):
        for r in range(4):
            a.valu('v_add_f32', IB[r], IB[r], IB[4 * i + r])
    for r in range(4):
        a.valu('v_mov_b32', IB[4 + r], IB[r])
    for r in range(4):
        a.valu('v_permlane16_swap_b32', IB[r], IB[4 + r])
    for r in range(4):
        a.valu('v_add_f32', IB[r], IB[r], IB[4 + r])
    for r in range(4):
        a.valu('v_mov_b32', IB[4 + r], IB[r])
    for r in range(4):
        a.valu('v_permlane32_swap_b32', IB[r], IB[4 + r])
    for r in range(4):
        a.valu('v_add_f32', IB[r], IB[r], IB[4 + r])
    for r in range(1, 4):
        a.valu('v_cmp_eq_u32', 'vcc', r, vG)
        a.valu('v_cndmask_b32', IB[0], IB[0], IB[r], 'vcc')
    rbf(IB[0], IB[0])
    a.wait_lgkm(0)
    a.valu('v_lshlrev_b32', vT[7], 16, vT[7])
    a.valu('v_add_f32', IB[0], IB[0], vT[7])
    a.valu('v_cvt_pk_bf16_f32', IB[0], IB[0], IB[0])
    a.vstore('buffer_store_short', IB[0], vT[6], rOUT, 0, 0)
    a.label('L_endp')
    stamp('end')
    stamp_store()
    a.label('L_end')
    A('  s_endpgm')
    A('.section .rodata,"a"')
    A('.p2align 6')
    A(f'.amdhsa_kernel {KNAME}')
    A('  .amdhsa_next_free_vgpr 256')
    A('  .amdhsa_next_free_sgpr 102')
    A('  .amdhsa_accum_offset 256')
    A('  .amdhsa_group_segment_fixed_size 0')
    A('  .amdhsa_kernarg_size 88')
    A('  .amdhsa_user_sgpr_count 2')
    A('  .amdhsa_user_sgpr_kernarg_segment_ptr 1')
    A('  .amdhsa_system_sgpr_workgroup_id_x 1')
    A('  .amdhsa_float_denorm_mode_32 3')
    A('.end_amdhsa_kernel')
    if prof:
        A('; STAMPS ' + ' '.join(stamp_names))
    return a.text()


if __name__ == '__main__':
    out = [x for x in sys.argv[1:] if not x.startswith('--')]
    path = out[0] if out else os.path.join(os.path.dirname(os.path.abspath(__file__)), '..', 'cdna_kernels', NAME + '.s')
    kw = {}
    for x in sys.argv[1:]:
        if x.startswith('--') and '=' in x:
            k_, v_ = x[2:].split('=')
            kw[k_] = int(v_)
    open(path, 'w').write(build(debug='--debug' in sys.argv, prof='--prof' in sys.argv, **kw))
    print('wrote', path)
```

```python
import os
import sys

sys.path.insert(0, os.path.dirname(os.path.abspath(__file__)))
from asmlib import Asm, V, S

NAME = 'sequential_preLN__mha_block_cached__dense_activation_silu__decode'
KNAME = NAME + '_kernel'

NWG = 256
NF = 28
LOG2E = 1.4426950408889634
CS = LOG2E / 16.0

WS_H = 0
WS_EPOCH = 24576
WS_INBOX = 32768
WS_Q = 0x40000
WS_POOL = 0x60000
WS_MAIL = 0x80000
WS_IN1 = 0x100000
WS_BYTES = 2 << 20
WS_DBG = 2 << 20
DB_INITF = 40

L_XN2 = 0
L_HB = 4096
L_GB = 8192
L_QBF = 8704
L_ML = 9216
L_CNT = 9344
L_FLAG = 9348
L_SVC = 9352
L_ARR = 9356
L_SAME = 9360
L_OP = 9472
L_YP = 17920
L_WQS = L_YP
L_W1 = 34816
L_W2 = L_W1 + 57344
LDS_BYTES = L_W2 + 57344

SPIN_BOUND = 200000
BIGOFF = 0x1000000


def build(debug=False, prof=False, npriv=112, xmap=1, gsleep=0, ldf=0, stf=0, use_c=1, skipq=0, nocomp=0, nowo=0, notail=0, prio=2, smalllds=0, nodma=0, nowq=0, wnt=1, psleep=0, kpol=0, vpol=0, diag=0, fastx=1, rmask=1):
    POL = ['nt', '', 'nt sc0', 'nt sc1', 'sc1']
    KP, VP = POL[kpol], POL[vpol]
    WF = 'nt' if wnt else ''
    LDF = ['sc1', 'sc0 sc1'][ldf]
    STF = ['sc1', 'sc0 sc1'][stf]
    a = Asm()
    A = a.raw
    hdr = open(os.path.join(os.path.dirname(os.path.abspath(__file__)), '..', 'cdna_kernels', NAME + '.s.ref')).read().split('\n')
    for ln in hdr:
        if ln.startswith(';') and '@launch' not in ln:
            A(ln)
        elif '@launch' in ln:
            A(f'; @launch grid=({NWG},1,1) block=(512,1,1) lds={LDS_BYTES if not smalllds else 16384}')
        else:
            break
    A('.amdgcn_target "amdgcn-amd-amdhsa--gfx950"')
    A('.text')
    A(f'.globl {KNAME}')
    A('.p2align 8')
    A(f'.type {KNAME},@function')
    A(f'{KNAME}:')

    sID = S(2)
    sF = S(0)
    sGrp = S(3)
    sW, sB, sH, sSP = S(4), S(5), S(6), S(7)
    sT0, sT1, sT2, sT3, sT4, sT5 = S(8), S(9), S(10), S(11), S(12), S(13)
    sNext = S(14)
    sIdx = S(15)
    P = lambda i: S(16 + 2 * i, 2)
    pOUT, pDBG, pWS = S(32, 2), S(34, 2), S(36, 2)
    sM = S(38)
    sMn = S(39)
    rK, rV, rWQ, rWO, rX, rW1, rW2, rOUT, rDBG, rWS = [S(40 + 4 * i, 4) for i in range(10)]
    sPool = S(80, 2)
    sExh = S(82)
    sCS = S(83)
    mT = [S(84 + 2 * t, 2) for t in range(4)]
    mJ8 = S(92, 2)
    m56 = S(94, 2)
    mG2 = S(96, 2)
    sX0, sX1 = S(98), S(99)
    sXP = S(100, 2)
    sEp = S(32)
    rWSD = rWQ
    LNS = [S(16), S(17), S(18), S(19), S(20), S(21), S(0), S(1)]
    sCnt = S(33)

    vTid = V(0)
    vLane, vJ, vG = V(1), V(2), V(3)
    vKoff, vKoff2, vVoff, vVoff2 = V(4), V(5), V(6), V(7)
    vMask = V(8, 4)
    vWoOff, vWoRem = V(12), V(13)
    vL = V(14)
    vL16 = V(15)
    vT = V(16, 8)
    OD0, OD1 = V(24, 4), V(28, 4)
    KD = V(32, 4)
    PB = V(36, 16)
    QB = V(52, 32)
    KB, VB, KB2, VB2 = V(84, 32), V(116, 32), V(148, 32), V(180, 32)
    XT = V(212, 44)
    WO = V(148, 56)
    vIdx, vOne, vCntA, vChk = XT[0], XT[1], XT[2], XT[3]
    vOw, vOr, vMr, vYw, vAt = XT[4], XT[5], XT[6], XT[7], XT[8]
    vPubOff, vGatOff, vGatML = XT[9], XT[10], XT[11]

    def dump(reg, slot):
        if not debug:
            return
        a.salu('s_lshl_b32', sX0, sID, 3)
        a.salu('s_add_u32', sX0, sX0, sW)
        a.salu('s_lshl_b32', sX0, sX0, 14)
        a.salu('s_add_u32', sX0, sX0, WS_DBG + slot * 256)
        a.valu('v_lshlrev_b32', XT[43], 2, vLane)
        a.vstore('buffer_store_dword', reg, XT[43], rWSD, sX0)

    stamp_names = []
    early = []

    DIAG = {'v_issued': 2, 'q_got': 3, 's_issued': 4, 'v_B3': 5, 'v_gath': 6, 'atom': 7, 'poll': 8, 'B6': 9, 'end': 11, 's_q': 12}

    def diag_put(slot, sreg, invert=False):
        r_ = S(25) if invert else S(24)
        a.salu('s_not_b32' if invert else 's_mov_b32', r_, sreg)
        a.misc(f's_atomic_umax {r_}, {pDBG}, {slot * 4}')

    def stamp(name, late=True):
        if diag and name in DIAG:
            wv = 0 if name[:2] in ('v_', 'q_') else 4 if name[:2] == 's_' else 7
            L_d = a.newlabel('diag')
            a.salu('s_cmp_lg_u32', None, sW, wv)
            a.branch('s_cbranch_scc1', L_d)
            a.misc('s_memrealtime s[22:23]')
            a.wait_lgkm(0)
            diag_put(DIAG[name], S(22))
            if name == 'v_B3':
                diag_put(13, S(22), True)
            if name == 'v_issued':
                a.wait_lgkm(0)
                diag_put(0, S(26), True)
                diag_put(1, S(26))
            a.label(L_d)
            return
        if not prof:
            return
        k = len(stamp_names)
        stamp_names.append(name)
        a.misc('s_memrealtime s[22:23]')
        a.wait_lgkm(0)
        if late:
            a.valu('v_writelane_b32', V(0), S(22), k, rmw=True)
        else:
            a.salu('s_mov_b32', S(24 + len(early)), S(22))
            early.append(k)

    def stamp_val(name, sreg):
        if not prof:
            return
        k = len(stamp_names)
        stamp_names.append(name)
        a.valu('v_writelane_b32', V(0), sreg, k, rmw=True)

    def stamp_flush_early():
        if not prof:
            return
        for i, k in enumerate(early):
            a.valu('v_writelane_b32', V(0), S(24 + i), k, rmw=True)

    def stamp_store():
        if not prof:
            return
        a.salu('s_mov_b64', 'exec', -1)
        a.salu('s_lshl_b32', sX0, sID, 3)
        a.salu('s_add_u32', sX0, sX0, sW)
        a.salu('s_lshl_b32', sX0, sX0, 8)
        a.salu('s_add_u32', sX0, sX0, WS_DBG)
        a.valu('v_lshlrev_b32', V(23), 2, vLane)
        a.vstore('buffer_store_dword', V(0), V(23), rWSD, sX0)

    def srd(r, ptr, nbytes, off=None):
        if off is None:
            a.salu('s_mov_b32', r[0], ptr[0])
            a.salu('s_mov_b32', r[1], ptr[1])
        else:
            a.salu('s_add_u32', r[0], ptr[0], off)
            a.salu('s_addc_u32', r[1], ptr[1], 0)
        a.salu('s_mov_b32', r[2], nbytes)
        a.salu('s_mov_b32', r[3], 0x00020000)

    def wave_red_multi(op, vs, sdsts, quads_equal=False):
        ctrls = ['row_ror:4', 'row_ror:8'] if quads_equal else ['quad_perm:[1,0,3,2]', 'quad_perm:[2,3,0,1]', 'row_half_mirror', 'row_mirror']
        for c in ctrls:
            for v in vs:
                a.dpp(op, v, v, v, ctrl=c)
        for v in vs:
            a.dpp(op, v, v, v, ctrl='row_bcast:15', row_mask=0xa)
        for v in vs:
            a.dpp(op, v, v, v, ctrl='row_bcast:31', row_mask=0xc)
        for v, s_ in zip(vs, sdsts):
            a.valu('v_readlane_b32', s_, v, 63)

    def wave_red(op, v, sdst, quads_equal=False):
        wave_red_multi(op, [v], [sdst], quads_equal)

    def rbf(dst, src):
        a.valu('v_cvt_pk_bf16_f32', dst, src, src)
        a.valu('v_and_b32', dst, 0xffff0000, dst)

    def unpack8(xf, raw):
        for i in range(4):
            a.valu('v_lshlrev_b32', xf[2 * i], 16, raw[i])
            a.valu('v_and_b32', xf[2 * i + 1], 0xffff0000, raw[i])

    def layernorm(rows):
        def each(f):
            for r_ in rows:
                f(*r_)
        each(lambda xf, t, s0, s1: a.valu('v_add_f32', t[0], xf[0], xf[1]))
        each(lambda xf, t, s0, s1: a.valu('v_add_f32', t[1], xf[2], xf[3]))
        each(lambda xf, t, s0, s1: a.valu('v_add_f32', t[2], xf[4], xf[5]))
        each(lambda xf, t, s0, s1: a.valu('v_add_f32', t[3], xf[6], xf[7]))
        each(lambda xf, t, s0, s1: a.valu('v_add_f32', t[0], t[0], t[1]))
        each(lambda xf, t, s0, s1: a.valu('v_add_f32', t[2], t[2], t[3]))
        each(lambda xf, t, s0, s1: a.valu('v_add_f32', t[0], t[0], t[2]))
        wave_red_multi('v_add_f32', [r_[1][0] for r_ in rows], [r_[2] for r_ in rows])
        each(lambda xf, t, s0, s1: a.valu('v_mov_b32', t[0], s0))
        each(lambda xf, t, s0, s1: a.valu('v_mul_f32', t[0], 1.0 / 448.0, t[0]))
        each(lambda xf, t, s0, s1: a.valu('v_sub_f32', t[1], xf[0], t[0]))
        each(lambda xf, t, s0, s1: a.valu('v_mul_f32', t[2], t[1], t[1]))
        for i in range(1, 8):
            each(lambda xf, t, s0, s1: a.valu('v_sub_f32', t[1], xf[i], t[0]))
            each(lambda xf, t, s0, s1: a.valu('v_fmac_f32', t[2], t[1], t[1]))
        each(lambda xf, t, s0, s1: a.valu('v_cndmask_b32', t[2], 0, t[2], m56))
        wave_red_multi('v_add_f32', [r_[1][2] for r_ in rows], [r_[3] for r_ in rows])
        each(lambda xf, t, s0, s1: rbf(t[0], t[0]))
        each(lambda xf, t, s0, s1: a.valu('v_mov_b32', t[2], s1))
        each(lambda xf, t, s0, s1: a.valu('v_mul_f32', t[2], 1.0 / 448.0, t[2]))
        each(lambda xf, t, s0, s1: rbf(t[2], t[2]))
        each(lambda xf, t, s0, s1: a.valu('v_add_f32', t[2], 1e-5, t[2]))
        each(lambda xf, t, s0, s1: rbf(t[2], t[2]))
        each(lambda xf, t, s0, s1: a.valu('v_sqrt_f32', t[2], t[2]))
        each(lambda xf, t, s0, s1: rbf(t[2], t[2]))
        each(lambda xf, t, s0, s1: a.valu('v_rcp_f32', t[2], t[2]))
        for i in range(0, 8, 2):
            each(lambda xf, t, s0, s1: a.valu('v_sub_f32', xf[i], xf[i], t[0]))
            each(lambda xf, t, s0, s1: a.valu('v_sub_f32', xf[i + 1], xf[i + 1], t[0]))
            each(lambda xf, t, s0, s1: a.valu('v_cvt_pk_bf16_f32', t[1], xf[i], xf[i + 1]))
            each(lambda xf, t, s0, s1: a.valu('v_lshlrev_b32', xf[i], 16, t[1]))
            each(lambda xf, t, s0, s1: a.valu('v_and_b32', xf[i + 1], 0xffff0000, t[1]))
            each(lambda xf, t, s0, s1: a.valu('v_mul_f32', xf[i], xf[i], t[2]))
            each(lambda xf, t, s0, s1: a.valu('v_mul_f32', xf[i + 1], xf[i + 1], t[2]))

    def spin_until(load_fn, cond_fn, first_check=True, sleep=1):
        done = a.newlabel('done')
        loop = a.newlabel('spin')
        if first_check:
            cond_fn()
            a.branch('s_cbranch_scc1', done)
        a.salu('s_mov_b32', sT5, SPIN_BOUND)
        a.label(loop)
        load_fn()
        a.wait_vm0()
        cond_fn()
        a.branch('s_cbranch_scc1', done)
        if sleep:
            a.misc(f's_sleep {sleep}')
        a.salu('s_sub_u32', sT5, sT5, 1)
        a.salu('s_cmp_lg_u32', None, sT5, 0)
        a.branch('s_cbranch_scc1', loop)
        a.label(done)

    def issue_k(buf, soff):
        for i in range(8):
            o = (i // 2) * 2048 + (i % 2) * 256
            a.vload('buffer_load_dwordx4', buf[4 * i:4 * i + 4], vKoff if o < 4096 else vKoff2, rK, soff, o % 4096, KP)

    def issue_v(buf, soff):
        for i in range(8):
            o = (i // 2) * 2048 + (i % 2) * 256
            a.vload('buffer_load_dwordx4', buf[4 * i:4 * i + 4], vVoff if o < 4096 else vVoff2, rV, soff, o % 4096, VP)

    def koff(i):
        o = (i // 2) * 2048 + (i % 2) * 256
        return (vKoff if o < 4096 else vKoff2), o % 4096

    def voff(i):
        o = (i // 2) * 2048 + (i % 2) * 256
        return (vVoff if o < 4096 else vVoff2), o % 4096

    def issue_static_units():
        a.salu('s_mul_i32', sT2, sSP, npriv)
        a.salu('s_add_u32', sT2, sT2, sW)
        a.salu('s_sub_u32', sT2, sT2, 4)
        a.salu('s_lshl_b32', sT2, sT2, 13)
        a.salu('s_add_u32', sT3, sT2, 4 * 8192)
        issue_k(KB, sT2)
        issue_v(VB, sT2)
        issue_k(KB2, sT3)
        issue_v(VB2, sT3)
        if not use_c:
            return
        L_cf = a.newlabel('cf')
        L_cd = a.newlabel('cd')
        a.salu('s_cmp_lt_u32', None, sF, NF)
        a.branch('s_cbranch_scc1', L_cf)
        a.salu('s_add_u32', sT3, sT2, 8 * 8192)
        a.salu('s_sub_u32', sT4, sW, 4)
        a.salu('s_lshl_b32', sT4, sT4, 14)
        a.salu('s_add_u32', sT4, sT4, L_W1)
        for i in range(16):
            vo, o = koff(i) if i < 8 else voff(i - 8)
            a.salu('s_add_u32', sT0, sT4, i * 1024 - o)
            a.salu('s_mov_b32', 'm0', sT0)
            a.vload_lds(vo, rK if i < 8 else rV, sT3, o, KP if i < 8 else VP)
        a.branch('s_branch', L_cd)
        a.label(L_cf)
        a.valu('v_mov_b32', vT[0], BIGOFF)
        for i in range(16):
            a.vload('buffer_load_dword', XT[20], vT[0], rK, 0, 0)
        a.label(L_cd)

    a.salu('s_cmp_ge_u32', None, sID, NWG)
    a.branch('s_cbranch_scc1', 'L_end')
    if prof or diag:
        a.misc('s_memrealtime s[84:85]')
    a.misc('s_load_dwordx16 s[16:31], s[0:1], 0')
    a.misc('s_load_dwordx4 s[32:35], s[0:1], 64')
    a.misc('s_load_dwordx2 s[36:37], s[0:1], 80')
    a.valu('v_lshrrev_b32', vT[0], 6, vTid)
    a.valu('v_and_b32', vLane, 63, vTid)
    a.valu('v_readfirstlane_b32', sW, vT[0])
    a.valu('v_and_b32', vJ, 15, vTid)
    a.valu('v_lshrrev_b32', vG, 4, vLane)
    a.valu('v_bfe_u32', vT[1], vLane, 2, 2)
    a.valu('v_and_b32', vT[2], 3, vLane)
    a.valu('v_lshlrev_b32', vT[1], 9, vT[1])
    a.valu('v_lshlrev_b32', vT[2], 4, vT[2])
    a.valu('v_lshl_add_u32', vKoff, vG, 6, vT[1])
    a.valu('v_add_u32', vKoff, vKoff, vT[2])
    a.valu('v_add_u32', vKoff2, 4096, vKoff)
    a.valu('v_lshlrev_b32', vL16, 4, vLane)
    a.valu('v_lshlrev_b32', vVoff, 9, vG)
    a.valu('v_lshl_add_u32', vVoff, vJ, 4, vVoff)
    a.valu('v_add_u32', vVoff2, 4096, vVoff)
    if xmap == 1:
        a.salu('s_lshr_b32', sT0, sID, 3)
        a.salu('s_and_b32', sT2, sT0, 7)
        a.salu('s_mul_i32', sT1, sT2, 11)
        a.salu('s_lshr_b32', sT1, sT1, 5)
        a.salu('s_mul_i32', sT1, sT1, 3)
        a.salu('s_sub_u32', sT1, sT2, sT1)
        a.salu('s_add_u32', sT1, sT1, 1)
        a.salu('s_bfe_u32', sSP, sID, (2 << 16) | 1)
        a.salu('s_and_b32', sT3, sSP, sT1)
        a.salu('s_bcnt1_i32_b32', sT3, sT3)
        a.salu('s_xor_b32', sT3, sT3, sID)
        a.salu('s_and_b32', sT3, sT3, 1)
        a.salu('s_lshl_b32', sGrp, sT0, 1)
        a.salu('s_add_u32', sGrp, sGrp, sT3)
    else:
        a.salu('s_lshr_b32', sGrp, sID, 2)
        a.salu('s_and_b32', sSP, sID, 3)
    a.salu('s_lshr_b32', sB, sGrp, 4)
    a.salu('s_and_b32', sH, sGrp, 15)
    a.salu('s_lshl_b32', sT1, sGrp, 22)
    a.salu('s_lshr_b32', sT5, sID, 3)
    if fastx:
        a.salu('s_and_b32', sT4, sID, 7)
    else:
        a.salu('s_lshl_b32', sT4, sT5, 1)
        a.salu('s_xor_b32', sT4, sT4, sID)
        a.salu('s_and_b32', sT4, sT4, 7)
    a.salu('s_cmp_eq_u32', None, sT4, 0)
    a.salu('s_cselect_b32', sT5, sT5, 255)
    a.salu('s_cmp_lt_u32', None, sT5, NF)
    a.salu('s_cselect_b32', sT2, 8, 12 if use_c else 8)
    a.valu('v_mov_b32', vT[2], sT2)
    a.valu('v_mov_b32', vT[3], 0)
    a.valu('v_mov_b32', vCntA, L_CNT)
    a.valu('v_mov_b32', vT[4], 0)
    a.valu('v_mov_b32', vT[5], 0)
    a.ds('ds_write_b128', vCntA, vT[2:6])
    a.wait_lgkm(0)
    a.salu('s_mov_b32', sF, sT5)
    if diag:
        a.salu('s_mov_b32', S(26), S(84))
    a.barrier()
    if prof:
        stamp_names.append('entry')
        a.valu('v_writelane_b32', V(0), S(84), 0, rmw=True)

    def xcc_word(dst, n):
        a.misc(f's_getreg_b32 {sX0}, hwreg(HW_REG_XCC_ID)')
        a.salu('s_and_b32', sX0, sX0, 15)
        a.salu('s_mul_i32', sX1, sX0, sX0)
        a.salu('s_lshl_b32', sX0, sX0, 8)
        a.salu('s_lshl_b32', sX1, sX1, 18)
        a.salu('s_or_b32', dst, sX0, sX1)
        a.salu('s_or_b32', dst, dst, 1)
        if n != 1:
            a.salu('s_mul_i32', dst, dst, n)

    def common_setup():
        srd(rWS, pWS, WS_BYTES)
        srd(rOUT, pOUT, 4 * 896)
        srd(rDBG, pDBG, 256)
        a.salu('s_mov_b32', sXP[0], P(0)[0])
        a.salu('s_mov_b32', sXP[1], P(0)[1])
        if prof:
            a.salu('s_mov_b32', sCnt, 0)
        a.valu('v_cmp_gt_u32_e64', mJ8, 8, vJ)
        a.valu('v_cmp_gt_u32_e64', m56, 56, vLane)
        a.valu('v_cmp_gt_u32_e64', mG2, 2, vG)
        a.valu('v_and_b32', vT[2], 1, vJ)
        a.valu('v_lshlrev_b32', vT[2], 4, vT[2])
        a.valu('v_mov_b32', vT[3], 0xffff)
        a.valu('v_lshlrev_b32', vT[3], vT[2], vT[3])
        a.valu('v_bfe_u32', vT[2], vJ, 1, 2)
        for r in range(4):
            a.valu('v_cmp_eq_u32', 'vcc', r, vT[2])
            a.valu('v_cndmask_b32', vMask[r], 0, vT[3], 'vcc')
        a.valu('v_mov_b32', vOne, 1)
        a.salu('s_mov_b32', sCS, CS)
        a.valu('v_lshrrev_b32', vAt, 5, vLane)
        a.valu('v_lshlrev_b32', vAt, 15, vAt)
        a.valu('v_bfe_u32', vT[6], vLane, 1, 1)
        a.valu('v_lshl_add_u32', vAt, vT[6], 14, vAt)
        a.valu('v_and_b32', vT[6], 1, vLane)
        a.valu('v_lshl_add_u32', vAt, vT[6], 5, vAt)
        a.valu('v_bfe_u32', vT[7], vLane, 2, 3)
        a.valu('v_lshl_add_u32', vAt, vT[7], 2, vAt)

    L_stream = 'L_stream'
    L_b3 = 'L_b3'
    a.salu('s_cmp_ge_u32', None, sW, 4)
    a.branch('s_cbranch_scc1', L_stream)

    L_svc = a.newlabel('svc')
    L_svc2 = a.newlabel('svc2')
    if notail == 1:
        a.branch('s_branch', 'L_end')
    a.misc('s_setprio 3')
    a.salu('s_mul_i32', sT2, sW, 896)
    srd(rX, P(0), 896, sT2)
    srd(rWQ, P(3), 448 * 8192 if not nowq else 0)
    XR = KB[0:4]
    vEp = XT[12]
    a.vload('buffer_load_dwordx4', XR, vL16, rX)
    a.valu('v_lshrrev_b32', vT[1], 1, vLane)
    a.valu('v_lshlrev_b32', vT[1], 13, vT[1])
    a.valu('v_and_b32', vT[2], 1, vLane)
    a.valu('v_lshl_add_u32', vT[1], vT[2], 4, vT[1])
    a.salu('s_lshl_b32', sT2, sSP, 2)
    a.salu('s_add_u32', sT2, sT2, sB)
    a.salu('s_lshl_b32', sT2, sT2, 5)
    a.salu('s_lshl_b32', sT3, sH, 9)
    a.salu('s_add_u32', sT2, sT2, sT3)
    a.salu('s_lshl_b32', sT3, sW, 18)
    a.salu('s_add_u32', sT2, sT2, sT3)
    a.salu('s_lshl_b32', sT3, sW, 10)
    a.salu('s_add_u32', sT3, sT3, L_WQS)
    for i in range(4):
        a.salu('s_mov_b32', 'm0', sT3)
        a.vload_lds(vT[1], rWQ, sT2, 0, WF)
        if i < 3:
            a.salu('s_add_u32', sT2, sT2, 4 * 32 * 8192)
            a.salu('s_add_u32', sT3, sT3, 4096)
    srd(rWS, pWS, WS_BYTES)
    a.salu('s_lshl_b32', sT2, sW, 24)
    a.valu('v_mov_b32', vT[2], sT2)
    a.salu('s_mov_b32', sT2, WS_EPOCH)
    a.vload('buffer_load_dword', vEp, vT[2], rWS, sT2, 0, LDF)
    MK = VB[0:4]
    ZR = VB[4:8]
    for i in range(4):
        a.valu('v_mov_b32', MK[i], -1)
        a.valu('v_mov_b32', ZR[i], 0)
    a.salu('s_lshl_b32', sT2, sGrp, 2)
    a.salu('s_add_u32', sT2, sT2, sSP)
    a.salu('s_lshl_b32', sT2, sT2, 2)
    a.salu('s_add_u32', sT2, sT2, sW)
    a.salu('s_lshl_b32', sT2, sT2, 9)
    a.salu('s_add_u32', sT2, sT2, WS_MAIL)
    a.valu('v_lshrrev_b32', vT[1], 5, vLane)
    a.valu('v_lshl_add_u32', vT[1], vT[1], 24, vL16)
    a.vstore('buffer_store_dwordx4', MK, vT[1], rWS, sT2, 0, STF)
    a.salu('s_lshl_b32', sT2, sGrp, 8)
    a.salu('s_add_u32', sT2, sT2, WS_POOL)
    a.salu('s_xor_b32', sT3, sW, 1)
    a.salu('s_add_u32', sT3, sT3, sSP)
    a.valu('v_add_u32', vT[1], sT3, vLane)
    a.valu('v_lshlrev_b32', vT[1], 24, vT[1])
    a.vstore('buffer_store_dword', ZR[0], vT[1], rWS, sT2, 0, STF)
    n_after_x = 7
    srd(rWO, P(4), 4096 * 896 if not nowo else 0)
    srd(rW1, P(6), 448 * 3584 if not nodma else 0)
    srd(rW2, P(7), 448 * 3584 if not nodma else 0)
    common_setup()
    stamp('v_issued')
    XF = KB2[0:8]
    a.misc(f's_waitcnt vmcnt({n_after_x})')
    stamp('v_x')
    unpack8(XF, XR)
    layernorm([(XF, vT[0:4], sX0, sX1)])
    for i in range(4):
        a.valu('v_cvt_pk_bf16_f32', XR[i], XF[2 * i], XF[2 * i + 1])
    a.salu('s_mul_i32', sT2, sW, 896)
    a.valu('v_add_u32', vT[0], sT2, vL16)
    a.salu('s_mov_b64', 'exec', m56)
    a.ds('ds_write_b128', vT[0], XR, offset=L_XN2)
    a.salu('s_mov_b64', 'exec', 1)
    a.misc('s_waitcnt vmcnt(0) lgkmcnt(0)')
    a.misc(f'ds_add_u32 {vCntA}, {vOne} offset:8')
    a.salu('s_mov_b64', 'exec', -1)
    stamp('v_ln')
    a.salu('s_cmp_lg_u32', None, sW, 0)
    a.branch('s_cbranch_scc1', L_svc)
    QA = V(148, 56)
    QF = V(84, 56)
    a.valu('v_and_b32', vT[6], 3, vLane)
    a.valu('v_mul_u32_u24', vT[6], 896, vT[6])
    a.valu('v_lshl_add_u32', vT[6], vG, 4, vT[6])
    a.valu('v_bfe_u32', vT[4], vLane, 2, 2)
    a.valu('v_lshl_add_u32', vT[4], vG, 3, vT[4])
    a.valu('v_lshlrev_b32', vT[4], 5, vT[4])
    a.valu('v_and_b32', vT[5], 3, vLane)
    a.valu('v_lshl_add_u32', vT[4], vT[5], 3, vT[4])
    L_sw = a.newlabel('sw')
    L_sok = a.newlabel('sok')
    a.salu('s_mov_b32', sT5, SPIN_BOUND * 8)
    a.label(L_sw)
    a.ds('ds_read_b32', vT[0], vCntA, offset=8)
    a.wait_lgkm(0)
    a.valu('v_readfirstlane_b32', sT2, vT[0])
    a.salu('s_cmp_ge_u32', None, sT2, 4)
    a.branch('s_cbranch_scc1', L_sok)
    a.salu('s_sub_u32', sT5, sT5, 1)
    a.salu('s_cmp_lg_u32', None, sT5, 0)
    a.branch('s_cbranch_scc1', L_sw)
    a.label(L_sok)
    stamp('q_wq')
    for ks in range(14):
        a.ds('ds_read_b128', QA[4 * ks:4 * ks + 4], vT[6], offset=L_XN2 + 64 * ks)
    for ks in range(14):
        for qq in range(2):
            a.ds('ds_read_b64_tr_b16', QF[ks * 4 + 2 * qq:ks * 4 + 2 * qq + 2], vT[4], offset=L_WQS + (32 * ks + 4 * qq) * 32)
    a.valu('v_add_u32', vEp, 1, vEp)
    for ks in range(14):
        a.wait_lgkm(min(2 * (13 - ks), 15))
        a.mfma(KD, QA[4 * ks:4 * ks + 4], QF[4 * ks:4 * ks + 4], 0 if ks == 0 else KD)
    a.valu('v_lshlrev_b32', vT[4], 10, vG)
    a.valu('v_lshl_add_u32', vT[4], vJ, 2, vT[4])
    a.valu('v_and_b32', vT[5], 1, vJ)
    a.valu('v_lshl_add_u32', vT[4], vT[5], 24, vT[4])
    a.salu('s_lshl_b32', sT2, sSP, 2)
    a.salu('s_add_u32', sT2, sT2, sB)
    a.salu('s_lshl_b32', sT2, sT2, 6)
    a.salu('s_lshl_b32', sT3, sH, 12)
    a.salu('s_add_u32', sT2, sT2, sT3)
    a.salu('s_add_u32', sT2, sT2, WS_Q)
    for r in range(1, 4):
        a.valu('v_cmp_eq_u32', 'vcc', r, vG)
        a.valu('v_cndmask_b32', KD[0], KD[0], KD[r], 'vcc')
    a.dpp('v_mov_b32', KD[1], KD[0], ctrl='quad_perm:[1,0,3,2]')
    a.valu('v_cvt_pk_bf16_f32', PB[0], KD[0], KD[1])
    a.valu('v_mov_b32', PB[1], vEp)
    a.vstore('buffer_store_dwordx2', PB[0:2], vT[4], rWS, sT2, 0, STF)
    a.salu('s_lshl_b32', sT4, sB, 10)
    a.salu('s_add_u32', sT4, sT4, sT3)
    a.salu('s_add_u32', sT4, sT4, WS_Q)
    a.valu('v_readfirstlane_b32', sEp, vEp)
    QG = PB[4:8]

    def ldq():
        a.vload('buffer_load_dwordx4', QG, vL16, rWS, sT4, 0, LDF)

    def condq():
        a.valu('v_cmp_ne_u32_e64', S(10, 2), sEp, QG[1])
        a.valu('v_cmp_ne_u32', 'vcc', sEp, QG[3])
        a.salu('s_or_b64', S(10, 2), S(10, 2), 'vcc')
        a.salu('s_cmp_eq_u64', None, S(10, 2), 0)

    spin_until(ldq, condq, first_check=False, sleep=0)
    a.valu('v_mov_b32', QG[1], QG[2])
    a.valu('v_lshlrev_b32', vT[4], 3, vLane)
    a.ds('ds_write_b64', vT[4], QG[0:2], offset=L_QBF)
    a.wait_lgkm(0)
    a.ds('ds_write_b32', vCntA, vOne, offset=4)
    stamp('q_got')
    a.branch('s_branch', L_svc2)
    a.label(L_svc)
    L_nodma = a.newlabel('nodma')
    a.salu('s_cmp_ge_u32', None, sF, NF)
    a.branch('s_cbranch_scc1', L_nodma)
    a.salu('s_sub_u32', sT2, sW, 1)
    L_ini = a.newlabel('ini')
    a.label(L_ini)
    a.salu('s_lshl_b32', sT3, sT2, 10)
    a.salu('s_lshl_b32', sT4, sF, 14)
    a.salu('s_add_u32', sT4, sT4, WS_IN1)
    a.salu('s_mul_i32', sT5, sF, 7168)
    a.salu('s_add_u32', sT5, sT5, WS_INBOX - 16384)
    a.salu('s_cmp_lt_u32', None, sT2, 16)
    a.salu('s_cselect_b32', sT4, sT4, sT5)
    a.salu('s_add_u32', sT4, sT4, sT3)
    a.vstore('buffer_store_dwordx4', MK, vL16, rWS, sT4, 0, STF)
    a.salu('s_add_u32', sT2, sT2, 3)
    a.salu('s_cmp_lt_u32', None, sT2, 23)
    a.branch('s_cbranch_scc1', L_ini)
    a.valu('v_mul_u32_u24', vT[1], 896, vG)
    a.valu('v_lshl_add_u32', vT[1], vJ, 2, vT[1])
    a.valu('v_lshrrev_b32', vT[2], 3, vJ)
    a.valu('v_lshl_add_u32', vT[1], vT[2], 24, vT[1])
    a.salu('s_lshl_b32', sT4, sF, 5)
    a.vstore('buffer_store_dword', MK[0], vT[1], rWS, sT4, WS_H, STF)
    a.salu('s_mov_b64', 'exec', 1)
    a.wait_vm0()
    a.misc(f'ds_add_rtn_u32 {vIdx}, {vCntA}, {vOne} offset:12')
    a.wait_lgkm(0)
    a.salu('s_mov_b64', 'exec', -1)
    a.valu('v_readfirstlane_b32', sT2, vIdx)
    L_nosig = a.newlabel('nosig')
    a.salu('s_cmp_lg_u32', None, sT2, 2)
    a.branch('s_cbranch_scc1', L_nosig)
    xcc_word(sT0, 1)
    a.misc(f's_atomic_add {sT0}, {pDBG}, {DB_INITF}')
    a.label(L_nosig)
    a.valu('v_lshrrev_b32', vT[6], 3, vLane)
    a.valu('v_mul_u32_u24', vT[6], 3584, vT[6])
    a.valu('v_and_b32', vT[7], 7, vLane)
    a.valu('v_lshl_add_u32', vT[6], vT[7], 4, vT[6])
    a.salu('s_sub_u32', sT2, sW, 1)
    L_dma = a.newlabel('dma')
    a.label(L_dma)
    a.salu('s_lshl_b32', sT3, sT2, 10)
    a.salu('s_mul_i32', sT4, sT2, 8 * 3584)
    a.salu('s_lshl_b32', sT5, sF, 7)
    a.salu('s_add_u32', sT4, sT4, sT5)
    a.salu('s_mul_i32', sT5, sF, 57344)
    a.salu('s_add_u32', sT5, sT5, sT3)
    a.salu('s_add_u32', sT0, sT3, L_W1)
    a.salu('s_mov_b32', 'm0', sT0)
    a.vload_lds(vT[6], rW1, sT4, 0, WF)
    a.salu('s_add_u32', sT0, sT3, L_W2)
    a.salu('s_mov_b32', 'm0', sT0)
    a.vload_lds(vL16, rW2, sT5, 0, WF)
    a.salu('s_add_u32', sT2, sT2, 3)
    a.salu('s_cmp_lt_u32', None, sT2, 56)
    a.branch('s_cbranch_scc1', L_dma)
    a.label(L_nodma)
    a.label(L_svc2)
    if debug or prof:
        srd(rWSD, pWS, (2 << 20) + (64 << 20))
    a.valu('v_mul_u32_u24', vWoOff, 896, vG)
    a.valu('v_lshl_add_u32', vWoOff, vJ, 4, vWoOff)
    a.valu('v_and_b32', vT[2], 7, vJ)
    a.valu('v_lshlrev_b32', vT[3], 4, vT[2])
    a.valu('v_lshrrev_b32', vT[4], 3, vJ)
    a.valu('v_mul_u32_u24', vT[5], 4 * 896, vT[4])
    a.valu('v_mul_u32_u24', vWoRem, 896, vG)
    a.valu('v_add3_u32', vWoRem, vWoRem, vT[3], vT[5])
    a.valu('v_add_u32', vWoRem, 768, vWoRem)
    a.salu('s_lshl_b32', sT2, sH, 8)
    a.salu('s_lshl_b32', sT3, sSP, 6)
    a.salu('s_add_u32', sT2, sT2, sT3)
    a.salu('s_lshl_b32', sT3, sW, 4)
    a.salu('s_add_u32', sT2, sT2, sT3)
    a.salu('s_mul_i32', sT2, sT2, 896)
    for Gp in range(4):
        for s_ in range(3):
            a.vload('buffer_load_dwordx4', WO[(Gp * 3 + s_) * 4:(Gp * 3 + s_) * 4 + 4], vWoOff, rWO, sT2, 256 * s_, WF)
        if Gp % 2 == 0:
            a.vload('buffer_load_dwordx4', WO[48 + 2 * Gp:52 + 2 * Gp], vWoRem, rWO, sT2, 0, WF)
        if Gp < 3:
            a.salu('s_add_u32', sT2, sT2, 4 * 896)
    a.valu('v_lshl_add_u32', vT[5], vT[4], 2, vG)
    a.valu('v_lshlrev_b32', vT[5], 7, vT[5])
    a.valu('v_lshl_add_u32', vYw, vT[2], 4, vT[5])
    a.salu('s_lshl_b32', sT2, sW, 11)
    a.valu('v_add_u32', vYw, sT2, vYw)
    a.valu('v_and_b32', vT[6], 3, vJ)
    a.valu('v_lshrrev_b32', vT[7], 2, vJ)
    a.valu('v_mul_u32_u24', vOr, 1040, vT[6])
    a.valu('v_lshl_add_u32', vOr, vG, 6, vOr)
    a.valu('v_lshl_add_u32', vOr, vT[7], 4, vOr)
    a.salu('s_lshl_b32', sT2, sW, 8)
    a.valu('v_add_u32', vOr, sT2, vOr)
    a.valu('v_lshlrev_b32', vMr, 3, vT[6])
    a.valu('v_lshrrev_b32', vT[2], 1, vG)
    a.valu('v_lshlrev_b32', vPubOff, 5, vT[2])
    a.valu('v_lshl_add_u32', vPubOff, vT[6], 3, vPubOff)
    a.valu('v_and_b32', vT[2], 1, vT[7])
    a.valu('v_lshl_add_u32', vPubOff, vT[2], 2, vPubOff)
    a.valu('v_and_b32', vT[2], 1, vG)
    a.valu('v_lshl_add_u32', vPubOff, vT[2], 1, vPubOff)
    a.valu('v_lshrrev_b32', vT[2], 1, vT[7])
    a.valu('v_add_u32', vPubOff, vPubOff, vT[2])
    a.valu('v_lshlrev_b32', vPubOff, 2, vPubOff)
    a.salu('s_lshl_b32', sT2, sSP, 9)
    a.valu('v_lshlrev_b32', vGatML, 11, vT[6])
    a.valu('v_add_u32', vGatML, sT2, vGatML)
    a.salu('s_lshl_b32', sT3, sW, 6)
    a.valu('v_lshl_add_u32', vT[2], vT[7], 2, vG)
    a.valu('v_lshl_add_u32', vGatOff, vT[2], 2, vGatML)
    a.valu('v_add_u32', vGatOff, sT3, vGatOff)
    a.valu('v_lshlrev_b32', vOw, 24, vLane)

    def ldfi():
        a.valu('v_mov_b32', vT[7], 0)
        a.vload('buffer_load_dword', vChk, vT[7], rDBG, 0, DB_INITF, LDF)

    def condf():
        a.valu('v_readfirstlane_b32', sT2, vChk)
        a.salu('s_and_b32', sT3, sT2, 255)
        a.salu('s_cmp_ge_u32', None, sT3, NF)

    L_nochk = a.newlabel('nochk')
    a.salu('s_cmp_lg_u32', None, sW, 1)
    a.branch('s_cbranch_scc1', L_nochk)
    L_mw = a.newlabel('mw')
    L_mok = a.newlabel('mok')
    a.salu('s_mov_b32', sT5, SPIN_BOUND)
    a.label(L_mw)
    a.ds('ds_read_b32', vT[0], vCntA)
    a.wait_lgkm(0)
    a.valu('v_readfirstlane_b32', sT2, vT[0])
    a.salu('s_cmp_ge_u32', None, sT2, npriv // 2)
    a.branch('s_cbranch_scc1', L_mok)
    a.misc('s_sleep 64')
    a.salu('s_sub_u32', sT5, sT5, 1)
    a.salu('s_cmp_lg_u32', None, sT5, 0)
    a.branch('s_cbranch_scc1', L_mw)
    a.label(L_mok)
    spin_until(ldfi, condf, first_check=False, sleep=64)
    xcc_word(sT3, NF)
    a.salu('s_cmp_eq_u32', None, sT2, sT3)
    a.salu('s_cselect_b32', sT2, fastx, 0)
    a.valu('v_mov_b32', vT[7], sT2)
    a.ds('ds_write_b32', vCntA, vT[7], offset=16)
    a.label(L_nochk)
    a.misc('s_waitcnt vmcnt(0) lgkmcnt(0)')
    a.salu('s_lshl_b32', sT4, sGrp, 13)
    a.salu('s_add_u32', sT4, sT4, WS_MAIL)
    a.salu('s_lshl_b32', sT2, sSP, 2)
    a.salu('s_add_u32', sT2, sT2, sW)
    a.salu('s_lshl_b32', sT2, sT2, 9)
    a.salu('s_add_u32', sT3, sT4, sT2)
    stamp('v_ready')
    if notail == 2:
        a.branch('s_branch', 'L_end')
    a.barrier()
    stamp('v_B3')
    ov = PB[0:4]
    ml = PB[4:6]
    a.ds('ds_read_b64', ml, vMr, offset=L_ML)
    a.ds('ds_read_b128', ov, vOr, offset=L_OP)
    a.valu('v_and_b32', vT[5], 3, vJ)
    a.wait_lgkm(1)
    red4 = ('quad_perm:[1,0,3,2]', 'quad_perm:[2,3,0,1]')
    a.valu('v_mov_b32', vT[0], ml[0])
    for c in red4:
        a.dpp('v_max_f32', vT[0], vT[0], vT[0], ctrl=c)
    a.valu('v_sub_f32', vT[2], ml[0], vT[0])
    a.valu('v_mul_f32', vT[2], sCS, vT[2])
    a.valu('v_exp_f32', vT[2], vT[2])
    a.wait_lgkm(0)
    a.valu('v_mul_f32', vT[1], ml[1], vT[2])
    for r in range(4):
        a.valu('v_mul_f32', ov[r], ov[r], vT[2])
    for c in red4:
        for r in range(4):
            a.dpp('v_add_f32', ov[r], ov[r], ov[r], ctrl=c)
        a.dpp('v_add_f32', vT[1], vT[1], vT[1], ctrl=c)
    for r in range(1, 4):
        a.valu('v_cmp_eq_u32', 'vcc', r, vT[5])
        a.valu('v_cndmask_b32', ov[0], ov[0], ov[r], 'vcc')
    a.valu('v_min_u32', ov[0], -2, ov[0])
    a.vstore('buffer_store_dword', ov[0], vPubOff, rWS, sT3, 0, STF)
    a.valu('v_min_u32', vT[0], -2, vT[0])
    a.valu('v_min_u32', vT[1], -2, vT[1])
    a.vstore('buffer_store_dwordx2', vT[0:2], vOw, rWS, sT3, 256, STF)
    stamp('v_pub')
    gv = PB[8]
    gml = PB[10:12]

    def ldg():
        a.vload('buffer_load_dword', gv, vGatOff, rWS, sT4, 0, LDF)
        a.vload('buffer_load_dwordx2', gml, vGatML, rWS, sT4, 256, LDF)

    def condg():
        a.valu('v_max3_u32', vT[2], gv, gml[0], gml[1])
        a.valu('v_cmp_eq_u32_e64', S(10, 2), -1, vT[2])
        a.salu('s_cmp_eq_u64', None, S(10, 2), 0)

    spin_until(ldg, condg, first_check=False, sleep=gsleep)
    stamp('v_gath')
    a.valu('v_mov_b32', vT[0], gml[0])
    for c in red4:
        a.dpp('v_max_f32', vT[0], vT[0], vT[0], ctrl=c)
    a.valu('v_sub_f32', vT[1], gml[0], vT[0])
    a.valu('v_mul_f32', vT[1], sCS, vT[1])
    a.valu('v_exp_f32', vT[1], vT[1])
    a.valu('v_mul_f32', gv, gv, vT[1])
    a.valu('v_mul_f32', gml[1], gml[1], vT[1])
    for c in red4:
        a.dpp('v_add_f32', gv, gv, gv, ctrl=c)
        a.dpp('v_add_f32', gml[1], gml[1], gml[1], ctrl=c)
    a.valu('v_rcp_f32', gml[1], gml[1])
    a.valu('v_mul_f32', gv, gv, gml[1])
    a.valu('v_cvt_pk_bf16_f32', gv, gv, gv)
    dump(gv, 18)
    Y = [KB[0:4], KB[4:8], KB[8:12], KB[12:16], KB[16:20]]
    BT = [QB[4 * Gp:4 * Gp + 4] for Gp in range(4)]
    for Gp in range(4):
        for r in range(4):
            a.dpp('v_and_b32', BT[Gp][r], gv, vMask[r], ctrl=f'row_newbcast:{4 * Gp}')
        for s_ in range(3):
            a.mfma(Y[s_], WO[(Gp * 3 + s_) * 4:(Gp * 3 + s_) * 4 + 4], BT[Gp], 0 if Gp == 0 else Y[s_])
        a.mfma(Y[3 + Gp % 2], WO[48 + 4 * (Gp // 2):52 + 4 * (Gp // 2)], BT[Gp], 0 if Gp < 2 else Y[3 + Gp % 2])
    for r in range(4):
        a.valu('v_cndmask_b32', Y[0][r], Y[1][r], Y[0][r], mJ8)
    a.ds('ds_write_b128', vYw, Y[0], offset=L_YP)
    for r in range(4):
        a.valu('v_cndmask_b32', Y[3][r], Y[4][r], Y[3][r], mG2)
        a.valu('v_cndmask_b32', Y[2][r], Y[3][r], Y[2][r], mJ8)
    a.ds('ds_write_b128', vYw, Y[2], offset=L_YP + 1024)
    a.branch('s_branch', 'L_b4')

    a.label(L_stream)
    a.misc(f's_setprio {prio}')
    srd(rK, P(1), 4 << 20, sT1)
    srd(rV, P(2), 4 << 20, sT1)
    issue_static_units()
    common_setup()
    if debug or prof:
        srd(rWSD, pWS, (2 << 20) + (64 << 20))
    a.salu('s_lshl_b32', sT2, sGrp, 8)
    a.salu('s_add_u32', sT2, sT2, WS_POOL)
    a.salu('s_add_u32', sPool[0], pWS[0], sT2)
    a.salu('s_addc_u32', sPool[1], pWS[1], 0)
    a.valu('v_lshrrev_b32', vT[2], 2, vJ)
    for t in range(4):
        a.valu('v_cmp_eq_u32_e64', mT[t], t, vT[2])
    for r in range(4):
        a.valu('v_mov_b32', OD0[r], 0)
        a.valu('v_mov_b32', OD1[r], 0)
    a.valu('v_mov_b32', vL, 0)
    a.salu('s_mov_b32', sM, -3.0e38)
    a.salu('s_mov_b32', sExh, 0)
    a.valu('v_lshrrev_b32', vT[4], 3, vJ)
    a.valu('v_lshl_add_u32', vT[5], vT[4], 2, vG)
    a.valu('v_lshlrev_b32', vT[5], 7, vT[5])
    a.valu('v_and_b32', vT[6], 3, vJ)
    a.valu('v_lshl_add_u32', vOw, vT[6], 5, vT[5])
    a.valu('v_bfe_u32', vT[7], vJ, 2, 1)
    a.valu('v_lshl_add_u32', vOw, vT[7], 4, vOw)
    a.salu('s_sub_u32', sT2, sW, 4)
    a.salu('s_mul_i32', sT3, sT2, 1040)
    a.valu('v_add_u32', vOw, sT3, vOw)
    a.salu('s_lshl_b32', sT2, sT2, 3)
    a.valu('v_mov_b32', vMr, sT2)
    a.valu('v_lshl_add_u32', vT[1], vG, 2, vT[6])
    a.valu('v_lshlrev_b32', vT[1], 4, vT[1])
    stamp('s_issued')
    L_qw = a.newlabel('qw')
    L_qok = a.newlabel('qok')
    a.salu('s_mov_b32', sT5, SPIN_BOUND * 8)
    a.label(L_qw)
    a.ds('ds_read_b32', vT[0], vCntA, offset=4)
    a.wait_lgkm(0)
    a.valu('v_readfirstlane_b32', sT2, vT[0])
    a.salu('s_cmp_lg_u32', None, sT2, 0 if not skipq else 77)
    a.branch('s_cbranch_scc1', L_qok)
    a.misc('s_sleep 2')
    a.salu('s_sub_u32', sT5, sT5, 1)
    a.salu('s_cmp_lg_u32', None, sT5, 0)
    a.branch('s_cbranch_scc1', L_qw)
    a.label(L_qok)
    stamp('s_q')
    a.ds('ds_read_b128', PB[0:4], vT[1], offset=L_QBF)
    a.ds('ds_read_b128', PB[4:8], vT[1], offset=L_QBF + 256)
    a.wait_lgkm(0)
    for t in range(4):
        for hf in range(2):
            for r in range(4):
                a.valu('v_cndmask_b32', QB[(t * 2 + hf) * 4 + r], 0, PB[hf * 4 + r], mT[t])

    def qk(kb):
        for i in range(8):
            a.mfma(KD, kb[4 * i:4 * i + 4], QB[4 * i:4 * i + 4], 0 if i == 0 else KD)

    def softmax_step():
        s_, t_ = vT[0], vT[1]
        a.dpp('v_mov_b32', s_, KD[0], ctrl='quad_perm:[0,0,0,0]')
        a.dpp('v_add_f32', s_, KD[1], s_, ctrl='quad_perm:[1,1,1,1]')
        a.dpp('v_add_f32', s_, KD[2], s_, ctrl='quad_perm:[2,2,2,2]')
        a.dpp('v_add_f32', s_, KD[3], s_, ctrl='quad_perm:[3,3,3,3]')
        rbf(s_, s_)
        a.valu('v_max_f32', t_, sM, s_)
        wave_red('v_max_f32', t_, sMn, quads_equal=True)
        a.valu('v_mov_b32', t_, sM)
        a.valu('v_subrev_f32', s_, sMn, s_)
        a.valu('v_subrev_f32', t_, sMn, t_)
        a.valu('v_mul_f32', s_, sCS, s_)
        a.valu('v_mul_f32', t_, sCS, t_)
        a.valu('v_exp_f32', s_, s_)
        a.valu('v_exp_f32', t_, t_)
        a.salu('s_mov_b32', sM, sMn)
        a.valu('v_fma_f32', vL, vL, t_, s_)
        a.valu('v_cvt_pk_bf16_f32', s_, s_, s_)
        for r in range(4):
            a.valu('v_mul_f32', OD0[r], OD0[r], t_)
            a.valu('v_mul_f32', OD1[r], OD1[r], t_)
        for T in range(4):
            for r in range(4):
                a.dpp('v_and_b32', PB[4 * T + r], s_, vMask[r], ctrl=f'row_newbcast:{4 * T}')

    def pv(vb):
        for T in range(4):
            a.mfma(OD0, vb[8 * T:8 * T + 4], PB[4 * T:4 * T + 4], OD0)
            a.mfma(OD1, vb[8 * T + 4:8 * T + 8], PB[4 * T:4 * T + 4], OD1)

    def fetch_issue():
        L_f1 = a.newlabel('f1')
        L_f2 = a.newlabel('f2')
        a.salu('s_cmp_lg_u32', None, sExh, 0)
        a.branch('s_cbranch_scc1', L_f1)
        a.salu('s_mov_b64', 'exec', 1)
        a.misc(f'ds_add_rtn_u32 {vIdx}, {vCntA}, {vOne}')
        a.salu('s_mov_b64', 'exec', -1)
        a.branch('s_branch', L_f2)
        a.label(L_f1)
        a.salu('s_mov_b32', sIdx, 1)
        a.misc(f's_atomic_add {sIdx}, {sPool}, 0 glc')
        a.label(L_f2)

    def fetch_complete():
        a.wait_lgkm(0)
        L_g1 = a.newlabel('g1')
        L_g2 = a.newlabel('g2')
        a.salu('s_cmp_lg_u32', None, sExh, 0)
        a.branch('s_cbranch_scc1', L_g1)
        a.valu('v_readfirstlane_b32', sT2, vIdx)
        a.salu('s_mul_i32', sNext, sSP, npriv)
        a.salu('s_add_u32', sNext, sNext, sT2)
        a.salu('s_cmp_lt_u32', None, sT2, npriv)
        a.branch('s_cbranch_scc1', L_g2)
        a.salu('s_mov_b32', sExh, 1)
        a.salu('s_mov_b32', sIdx, 1)
        a.misc(f's_atomic_add {sIdx}, {sPool}, 0 glc')
        a.wait_lgkm(0)
        a.label(L_g1)
        a.salu('s_add_u32', sNext, sIdx, 4 * npriv)
        a.label(L_g2)

    def unit_rolling(cnt):
        for i in range(8):
            a.misc(f's_waitcnt vmcnt({cnt})')
            if not nocomp:
                a.mfma(KD, KB[4 * i:4 * i + 4], QB[4 * i:4 * i + 4], 0 if i == 0 else KD)
            vo, o = koff(i)
            a.vload('buffer_load_dwordx4', KB[4 * i:4 * i + 4], vo, rK, sNext, o, KP)
        fetch_issue()
        if not nocomp:
            softmax_step()
        for i in range(8):
            od = OD0 if i % 2 == 0 else OD1
            a.misc(f's_waitcnt vmcnt({cnt})')
            if not nocomp:
                a.mfma(od, VB[4 * i:4 * i + 4], PB[4 * (i // 2):4 * (i // 2) + 4], od)
            vo, o = voff(i)
            a.vload('buffer_load_dwordx4', VB[4 * i:4 * i + 4], vo, rV, sNext, o, VP)

    extra = 32 if use_c else 16
    fetch_issue()
    fetch_complete()
    a.salu('s_lshl_b32', sNext, sNext, 13)
    unit_rolling(15 + extra)
    a.misc(f's_waitcnt vmcnt({extra + 8})')
    qk(KB2)
    softmax_step()
    a.misc(f's_waitcnt vmcnt({extra})')
    pv(VB2)
    L_loop = 'L_loop'
    if use_c:
        a.salu('s_cmp_lt_u32', None, sF, NF)
        a.branch('s_cbranch_scc1', L_loop)
        a.salu('s_sub_u32', sT4, sW, 4)
        a.salu('s_lshl_b32', sT4, sT4, 14)
        a.salu('s_add_u32', sT4, sT4, L_W1)
        a.valu('v_add_u32', vT[2], sT4, vL16)
        a.misc('s_waitcnt vmcnt(16)')
        for i in range(8):
            a.ds('ds_read_b128', KB2[4 * i:4 * i + 4], vT[2], offset=1024 * i)
        for i in range(8):
            a.ds('ds_read_b128', VB2[4 * i:4 * i + 4], vT[2], offset=8192 + 1024 * i)
        a.wait_lgkm(8)
        qk(KB2)
        softmax_step()
        a.wait_lgkm(0)
        pv(VB2)

    a.label(L_loop)
    if prof:
        a.salu('s_add_u32', sCnt, sCnt, 1)
    fetch_complete()
    L_last = a.newlabel('last')
    a.salu('s_cmp_ge_u32', None, sNext, 512)
    a.branch('s_cbranch_scc1', L_last)
    a.salu('s_lshl_b32', sNext, sNext, 13)
    unit_rolling(15)
    a.branch('s_branch', L_loop)
    a.label(L_last)
    a.misc('s_waitcnt vmcnt(8)')
    qk(KB)
    softmax_step()
    wave_red('v_add_f32', vL, sMn, quads_equal=True)
    a.valu('v_mov_b32', vT[2], sM)
    a.valu('v_mov_b32', vT[3], sMn)
    a.ds('ds_write_b64', vMr, vT[2:4], offset=L_ML)
    for i in range(8):
        od = OD0 if i % 2 == 0 else OD1
        a.misc(f's_waitcnt vmcnt({7 - i})')
        a.mfma(od, VB[4 * i:4 * i + 4], PB[4 * (i // 2):4 * (i // 2) + 4], od)
    stamp('s_Vlast')
    if notail:
        a.branch('s_branch', 'L_end')
    for r in range(4):
        a.valu('v_cndmask_b32', PB[r], OD1[r], OD0[r], mJ8)
    a.ds('ds_write_b128', vOw, PB[0:4], offset=L_OP)
    a.wait_lgkm(0)
    a.barrier()
    a.misc('s_setprio 0')
    stamp_val('s_units', sCnt)

    a.label('L_b4')
    a.salu('s_lshl_b32', sT2, sW, 8)
    a.valu('v_lshlrev_b32', vT[4], 2, vLane)
    a.valu('v_add_u32', vT[4], sT2, vT[4])
    a.salu('s_lshl_b32', sT1, sGrp, 2)
    a.salu('s_add_u32', sT1, sT1, sSP)
    a.salu('s_lshl_b32', sT1, sT1, 6)
    a.salu('s_lshl_b32', sT0, sW, 16)
    a.salu('s_add_u32', sT1, sT1, sT0)
    a.salu('s_add_u32', sT1, sT1, WS_IN1)
    a.wait_lgkm(0)
    a.barrier()
    stamp('B4')
    YS = VB[0:8]
    L_nc = a.newlabel('nc')
    L_y6 = a.newlabel('y6')
    a.salu('s_cmp_eq_u32', None, sW, 7)
    a.branch('s_cbranch_scc1', L_nc)
    for i in range(4):
        a.ds('ds_read_b32', YS[i], vT[4], offset=L_YP + 2048 * i)
    a.salu('s_cmp_lg_u32', None, sW, 6)
    a.branch('s_cbranch_scc1', L_y6)
    for i in range(4):
        a.ds('ds_read_b32', YS[4 + i], vT[4], offset=L_YP + 2048 * i + 256)
    a.wait_lgkm(0)
    for i in range(4):
        a.valu('v_add_f32', YS[i], YS[i], YS[4 + i])
    a.label(L_y6)
    a.wait_lgkm(0)
    a.valu('v_add_f32', YS[0], YS[0], YS[1])
    a.valu('v_add_f32', YS[2], YS[2], YS[3])
    a.valu('v_add_f32', YS[0], YS[0], YS[2])
    a.valu('v_min_u32', YS[0], -2, YS[0])
    a.vstore('buffer_store_dword', YS[0], vAt, rWS, sT1, 0, STF)
    a.label(L_nc)
    stamp('atom')
    a.salu('s_cmp_ge_u32', None, sF, NF)
    a.branch('s_cbranch_scc1', 'L_endp')

    F2B = V(84, 32)
    FA = V(116, 56)
    F1B = V(172, 56)
    RB = V(24, 28)
    a.valu('v_bfe_u32', vT[4], vLane, 2, 2)
    a.valu('v_lshl_add_u32', vT[4], vG, 3, vT[4])
    a.valu('v_and_b32', vT[5], 3, vLane)
    a.valu('v_lshlrev_b32', vT[5], 3, vT[5])
    a.valu('v_mul_u32_u24', vT[6], 896, vT[4])
    a.valu('v_add_u32', vT[6], vT[6], vT[5])
    a.salu('s_min_u32', sT2, sW, 6)
    a.salu('s_lshl_b32', sT2, sT2, 7)
    a.salu('s_add_u32', sT2, sT2, L_W2)
    a.valu('v_add_u32', vT[6], sT2, vT[6])
    for tt in range(4):
        for ks in range(2):
            for qq in range(2):
                d = F2B[(tt * 2 + ks) * 4 + 2 * qq:(tt * 2 + ks) * 4 + 2 * qq + 2]
                a.ds('ds_read_b64_tr_b16', d, vT[6], offset=(32 * ks + 4 * qq) * 896 + tt * 32)
    L_ln = a.newlabel('ln')
    L_b5 = a.newlabel('b5')
    a.salu('s_cmp_ge_u32', None, sW, 4)
    a.branch('s_cbranch_scc1', L_ln)
    a.valu('v_lshlrev_b32', vT[6], 7, vT[4])
    a.valu('v_add_u32', vT[6], vT[6], vT[5])
    a.salu('s_lshl_b32', sT2, sW, 5)
    a.salu('s_add_u32', sT2, sT2, L_W1)
    a.valu('v_add_u32', vT[6], sT2, vT[6])
    for ks in range(14):
        for qq in range(2):
            a.ds('ds_read_b64_tr_b16', F1B[ks * 4 + 2 * qq:ks * 4 + 2 * qq + 2], vT[6], offset=(32 * ks + 4 * qq) * 128)
            if (ks * 2 + qq) % 8 == 7:
                a.wait_lgkm(4)
    a.label(L_ln)
    srd(rX, sXP, 4 * 896)
    a.valu('v_mul_u32_u24', vT[7], 896, vG)
    a.valu('v_lshl_add_u32', vT[7], vJ, 1, vT[7])
    a.salu('s_lshl_b32', sT1, sF, 5)
    a.vload('buffer_load_ushort', RB[24], vT[7], rX, sT1, 0)
    a.valu('v_mov_b32', vT[4], L_SAME)
    a.ds('ds_read_b32', RB[25], vT[4])
    a.salu('s_lshl_b32', sT4, sF, 14)
    a.salu('s_lshl_b32', sT3, sW, 11)
    a.salu('s_add_u32', sT4, sT4, sT3)
    a.salu('s_add_u32', sT4, sT4, WS_IN1)
    a.salu('s_lshl_b32', sT3, sW, 8)
    a.valu('v_and_b32', vT[5], 3, vJ)
    a.valu('v_lshlrev_b32', vT[5], 4, vT[5])
    a.valu('v_lshl_add_u32', vT[5], vG, 6, vT[5])
    a.valu('v_add_u32', vT[5], sT3, vT[5])
    RI = RB[0:8]

    def ldr():
        a.vload('buffer_load_dwordx4', RI[0:4], vL16, rWS, sT4, 0, LDF)
        a.vload('buffer_load_dwordx4', RI[4:8], vL16, rWS, sT4, 1024, LDF)

    def condr():
        a.valu('v_max3_u32', vT[0], RI[0], RI[1], RI[2])
        a.valu('v_max3_u32', vT[1], RI[3], RI[4], RI[5])
        a.valu('v_max3_u32', vT[0], vT[0], RI[6], RI[7])
        a.valu('v_max_u32', vT[0], vT[0], vT[1])
        a.valu('v_cmp_eq_u32', 'vcc', -1, vT[0])
        a.salu('s_cmp_eq_u64', None, 'vcc', 0)
        if rmask:
            a.salu('s_cselect_b64', 'exec', -1, 'vcc')

    spin_until(ldr, condr, first_check=False, sleep=psleep)
    a.salu('s_mov_b64', 'exec', -1)
    stamp('red')
    for r in range(4):
        a.valu('v_add_f32', RI[r], RI[r], RI[4 + r])
    for c in ('row_ror:4', 'row_ror:8'):
        for r in range(4):
            a.dpp('v_add_f32', RI[r], RI[r], RI[r], ctrl=c)
    a.ds('ds_write_b128', vT[5], RI[0:4], offset=L_OP)
    a.valu('v_lshlrev_b32', vT[4], 9, vG)
    a.valu('v_lshl_add_u32', vT[4], vJ, 2, vT[4])
    a.valu('v_and_b32', vT[5], 1, vJ)
    a.valu('v_lshl_add_u32', vT[7], vT[5], 24, vT[7])
    a.wait_lgkm(0)
    a.barrier()
    L_nw0 = a.newlabel('nw0')
    a.salu('s_cmp_lg_u32', None, sW, 0)
    a.branch('s_cbranch_scc1', L_nw0)
    for i in range(8):
        a.ds('ds_read_b32', RB[i], vT[4], offset=L_OP + 64 * i)
    a.valu('v_lshlrev_b32', RB[24], 16, RB[24])
    a.valu('v_readfirstlane_b32', sT3, RB[25])
    a.wait_lgkm(0)
    a.valu('v_add_f32', RB[0], RB[0], RB[1])
    a.valu('v_add_f32', RB[2], RB[2], RB[3])
    a.valu('v_add_f32', RB[4], RB[4], RB[5])
    a.valu('v_add_f32', RB[6], RB[6], RB[7])
    a.valu('v_add_f32', RB[0], RB[0], RB[2])
    a.valu('v_add_f32', RB[4], RB[4], RB[6])
    a.valu('v_add_f32', RB[0], RB[0], RB[4])
    rbf(RB[0], RB[0])
    a.valu('v_add_f32', RB[0], RB[0], RB[24])
    a.dpp('v_mov_b32', RB[1], RB[0], ctrl='quad_perm:[1,0,3,2]')
    a.valu('v_cvt_pk_bf16_f32', RB[0], RB[0], RB[1])
    a.valu('v_min_u32', RB[0], -2, RB[0])
    L_hs = a.newlabel('hs')
    a.salu('s_cmp_eq_u32', None, sT3, 0)
    a.branch('s_cbranch_scc1', L_hs)
    a.vstore('buffer_store_dword', RB[0], vT[7], rWS, sT1, WS_H, '')
    a.branch('s_branch', L_b5)
    a.label(L_hs)
    a.vstore('buffer_store_dword', RB[0], vT[7], rWS, sT1, WS_H, STF)
    a.branch('s_branch', L_b5)
    a.label(L_nw0)
    a.salu('s_cmp_lt_u32', None, sW, 4)
    a.branch('s_cbranch_scc1', L_b5)
    a.salu('s_sub_u32', sT3, sW, 4)
    a.salu('s_mul_i32', sT4, sT3, 896)
    a.valu('v_mov_b32', vT[5], BIGOFF)
    a.valu('v_cndmask_b32', vT[7], vT[5], vL16, m56)
    a.valu('v_add_u32', vT[6], sT4, vL16)
    hp = RB[4:8]
    xf = RB[16:24]

    def ldc():
        a.vload('buffer_load_dwordx4', hp, vT[7], rWS, sT4, WS_H, LDF)

    def condc():
        a.valu('v_max3_u32', vT[0], hp[0], hp[1], hp[2])
        a.valu('v_max_u32', vT[0], vT[0], hp[3])
        a.valu('v_cmp_eq_u32', 'vcc', -1, vT[0])
        a.salu('s_cmp_eq_u64', None, 'vcc', 0)

    spin_until(ldc, condc, first_check=False, sleep=0)
    stamp('poll')
    unpack8(xf, hp)
    a.salu('s_mov_b64', 'exec', m56)
    a.ds('ds_write_b128', vT[6], hp, offset=L_HB)
    a.salu('s_mov_b64', 'exec', -1)
    layernorm([(xf, vT[0:4], sX0, sX1)])
    for i in range(4):
        a.valu('v_cvt_pk_bf16_f32', RB[i], xf[2 * i], xf[2 * i + 1])
    a.salu('s_mov_b64', 'exec', m56)
    a.ds('ds_write_b128', vT[6], RB[0:4], offset=L_XN2)
    a.salu('s_mov_b64', 'exec', -1)
    if debug:
        for i in range(4):
            dump(hp[i], 33 + i)
            dump(RB[i], 37 + i)
    a.label(L_b5)
    a.wait_lgkm(0)
    a.barrier()
    stamp('B5')
    L_b6 = a.newlabel('b6')
    a.salu('s_cmp_ge_u32', None, sW, 4)
    a.branch('s_cbranch_scc1', L_b6)
    a.valu('v_and_b32', vT[6], 3, vLane)
    a.valu('v_mul_u32_u24', vT[6], 896, vT[6])
    a.valu('v_lshl_add_u32', vT[6], vG, 4, vT[6])
    for ks in range(14):
        a.ds('ds_read_b128', FA[4 * ks:4 * ks + 4], vT[6], offset=L_XN2 + 64 * ks)
    Z = RB[0:4]
    for ks in range(14):
        a.wait_lgkm(min(13 - ks, 15))
        a.mfma(Z, FA[4 * ks:4 * ks + 4], F1B[4 * ks:4 * ks + 4], 0 if ks == 0 else Z)
    a.salu('s_lshl_b32', sT2, sW, 5)
    a.valu('v_lshlrev_b32', vT[6], 1, vJ)
    a.valu('v_add_u32', vT[6], sT2, vT[6])
    a.salu('s_mov_b32', sT3, -LOG2E)
    for r in range(4):
        rbf(Z[r], Z[r])
    for r in range(4):
        a.valu('v_mul_f32', RB[4 + r], sT3, Z[r])
    for r in range(4):
        a.valu('v_exp_f32', RB[4 + r], RB[4 + r])
    for r in range(4):
        a.valu('v_add_f32', RB[4 + r], 1.0, RB[4 + r])
    for r in range(4):
        a.valu('v_rcp_f32', RB[4 + r], RB[4 + r])
    for r in range(4):
        a.valu('v_mul_f32', Z[r], Z[r], RB[4 + r])
    for r in range(4):
        a.valu('v_cvt_pk_bf16_f32', Z[r], Z[r], Z[r])
        a.ds('ds_write_b16', vT[6], Z[r], offset=L_GB + 128 * r)
    if debug:
        for r in range(4):
            dump(Z[r], 41 + r)
    a.label(L_b6)
    a.wait_lgkm(0)
    a.barrier()
    stamp('B6')
    L_fin = a.newlabel('fin')
    a.salu('s_cmp_ge_u32', None, sW, 7)
    a.branch('s_cbranch_scc1', L_fin)
    a.valu('v_and_b32', vT[6], 3, vLane)
    a.valu('v_lshlrev_b32', vT[6], 7, vT[6])
    a.valu('v_lshl_add_u32', vT[6], vG, 4, vT[6])
    a.ds('ds_read_b128', FA[0:4], vT[6], offset=L_GB)
    a.ds('ds_read_b128', FA[4:8], vT[6], offset=L_GB + 64)
    a.valu('v_mov_b32', vT[4], L_SAME)
    a.ds('ds_read_b32', vT[5], vT[4])
    a.salu('s_mul_i32', sT2, sW, 4 * 7168)
    a.salu('s_lshl_b32', sT3, sF, 8)
    a.salu('s_add_u32', sT2, sT2, sT3)
    a.salu('s_add_u32', sT2, sT2, WS_INBOX)
    a.wait_lgkm(0)
    O2 = [RB[4 * tt:4 * tt + 4] for tt in range(4)]
    for tt in range(4):
        a.mfma(O2[tt], FA[0:4], F2B[(tt * 2) * 4:(tt * 2) * 4 + 4], 0)
    for tt in range(4):
        a.mfma(O2[tt], FA[4:8], F2B[(tt * 2 + 1) * 4:(tt * 2 + 1) * 4 + 4], O2[tt])
    a.valu('v_readfirstlane_b32', sT3, vT[5])
    a.salu('s_mov_b64', 'exec', 0xffff)
    L_slow = a.newlabel('slow')
    L_sd = a.newlabel('sd')
    a.salu('s_cmp_eq_u32', None, sT3, 0)
    a.branch('s_cbranch_scc1', L_slow)
    for flags, lab in (('', None), (STF, L_slow)):
        if lab:
            a.label(lab)
        for tt in range(4):
            for r in range(4):
                a.valu('v_min_u32', O2[tt][r], -2, O2[tt][r])
            a.vstore('buffer_store_dwordx4', O2[tt], vL16, rWS, sT2, 0, flags)
            if tt < 3:
                a.salu('s_add_u32', sT2, sT2, 7168)
        if not lab:
            a.branch('s_branch', L_sd)
    a.label(L_sd)
    a.salu('s_or_b32', sT2, sF, sW)
    a.salu('s_cmp_lg_u32', None, sT2, 0)
    a.branch('s_cbranch_scc1', 'L_endp')
    a.salu('s_mov_b64', 'exec', 1)
    a.valu('v_mov_b32', vT[4], sEp)
    a.valu('v_mov_b32', vT[5], 0)
    a.salu('s_mov_b32', sT2, WS_EPOCH)
    a.vstore('buffer_store_dword', vT[4], vT[5], rWS, sT2, 0, STF)
    a.branch('s_branch', 'L_endp')
    a.label(L_fin)
    a.valu('v_mul_u32_u24', vT[6], 896, vG)
    a.valu('v_lshl_add_u32', vT[6], vJ, 1, vT[6])
    a.salu('s_lshl_b32', sT2, sF, 5)
    a.valu('v_add_u32', vT[6], sT2, vT[6])
    a.ds('ds_read_u16', vT[7], vT[6], offset=L_HB)
    a.salu('s_mul_i32', sT3, sF, 7168)
    a.salu('s_add_u32', sT3, sT3, WS_INBOX)
    a.salu('s_add_u32', sT4, sT3, 4096)
    IB = V(116, 28)

    def ldi():
        for i in range(7):
            a.vload('buffer_load_dwordx4', IB[4 * i:4 * i + 4], vL16, rWS, sT3 if i < 4 else sT4, (i % 4) * 1024, LDF)

    def condi():
        a.valu('v_max3_u32', vT[0], IB[0], IB[1], IB[2])
        for i in range(3, 27, 2):
            a.valu('v_max3_u32', vT[0], vT[0], IB[i], IB[i + 1])
        a.valu('v_max_u32', vT[0], vT[0], IB[27])
        a.valu('v_cmp_eq_u32_e64', S(100, 2), -1, vT[0])
        a.salu('s_cmp_eq_u64', None, S(100, 2), 0)

    spin_until(ldi, condi, first_check=False, sleep=0)
    stamp('inbox')
    for i in range(1, 7):
        for r in range(4):
            a.valu('v_add_f32', IB[r], IB[r], IB[4 * i + r])
    for r in range(4):
        a.valu('v_mov_b32', IB[4 + r], IB[r])
    for r in range(4):
        a.valu('v_permlane16_swap_b32', IB[r], IB[4 + r])
    for r in range(4):
        a.valu('v_add_f32', IB[r], IB[r], IB[4 + r])
    for r in range(4):
        a.valu('v_mov_b32', IB[4 + r], IB[r])
    for r in range(4):
        a.valu('v_permlane32_swap_b32', IB[r], IB[4 + r])
    for r in range(4):
        a.valu('v_add_f32', IB[r], IB[r], IB[4 + r])
    for r in range(1, 4):
        a.valu('v_cmp_eq_u32', 'vcc', r, vG)
        a.valu('v_cndmask_b32', IB[0], IB[0], IB[r], 'vcc')
    rbf(IB[0], IB[0])
    a.wait_lgkm(0)
    a.valu('v_lshlrev_b32', vT[7], 16, vT[7])
    a.valu('v_add_f32', IB[0], IB[0], vT[7])
    a.valu('v_cvt_pk_bf16_f32', IB[0], IB[0], IB[0])
    a.vstore('buffer_store_short', IB[0], vT[6], rOUT, 0, 0)
    a.label('L_endp')
    stamp('end')
    stamp_store()
    a.label('L_end')
    A('  s_endpgm')
    A('.section .rodata,"a"')
    A('.p2align 6')
    A(f'.amdhsa_kernel {KNAME}')
    A('  .amdhsa_next_free_vgpr 256')
    A('  .amdhsa_next_free_sgpr 102')
    A('  .amdhsa_accum_offset 256')
    A('  .amdhsa_group_segment_fixed_size 0')
    A('  .amdhsa_kernarg_size 88')
    A('  .amdhsa_user_sgpr_count 2')
    A('  .amdhsa_user_sgpr_kernarg_segment_ptr 1')
    A('  .amdhsa_system_sgpr_workgroup_id_x 1')
    A('  .amdhsa_float_denorm_mode_32 3')
    A('.end_amdhsa_kernel')
    if prof:
        A('; STAMPS ' + ' '.join(stamp_names))
    return a.text()


if __name__ == '__main__':
    out = [x for x in sys.argv[1:] if not x.startswith('--')]
    path = out[0] if out else os.path.join(os.path.dirname(os.path.abspath(__file__)), '..', 'cdna_kernels', NAME + '.s')
    kw = {}
    for x in sys.argv[1:]:
        if x.startswith('--') and '=' in x:
            k_, v_ = x[2:].split('=')
            kw[k_] = int(v_)
    open(path, 'w').write(build(debug='--debug' in sys.argv, prof='--prof' in sys.argv, **kw))
    print('wrote', path)
```

```python
import os
import sys

sys.path.insert(0, os.path.dirname(os.path.abspath(__file__)))
from asmlib import Asm, V, S

NAME = 'sequential_preLN__mha_block_cached__dense_activation_silu__decode'
KNAME = NAME + '_kernel'

NWG = 256
NF = 28
LOG2E = 1.4426950408889634
CS = LOG2E / 16.0

WS_H = 0
WS_EPOCH = 24576
WS_INBOX = 32768
WS_Q = 0x40000
WS_POOL = 0x60000
WS_MAIL = 0x80000
WS_IN1 = 0x100000
WS_BYTES = 2 << 20
WS_DBG = 2 << 20
DB_INITF = 40

L_XN2 = 0
L_HB = 4096
L_GB = 8192
L_QBF = 8704
L_ML = 9216
L_CNT = 9344
L_FLAG = 9348
L_SVC = 9352
L_ARR = 9356
L_SAME = 9360
L_OP = 9472
L_YP = 17920
L_WQS = L_YP
L_W1 = 34816
L_W2 = L_W1 + 57344
LDS_BYTES = L_W2 + 57344

SPIN_BOUND = 200000
BIGOFF = 0x1000000


def build(debug=False, prof=False, npriv=112, xmap=1, gsleep=0, ldf=0, stf=0, use_c=1, skipq=0, nocomp=0, nowo=0, notail=0, prio=2, smalllds=0, nodma=0, nowq=0, wnt=1, psleep=0, kpol=0, vpol=0, diag=0, fastx=1, rmask=1, nffn=96):
    POL = ['nt', '', 'nt sc0', 'nt sc1', 'sc1']
    KP, VP = POL[kpol], POL[vpol]
    WF = 'nt' if wnt else ''
    LDF = ['sc1', 'sc0 sc1'][ldf]
    STF = ['sc1', 'sc0 sc1'][stf]
    a = Asm()
    A = a.raw
    hdr = open(os.path.join(os.path.dirname(os.path.abspath(__file__)), '..', 'cdna_kernels', NAME + '.s.ref')).read().split('\n')
    for ln in hdr:
        if ln.startswith(';') and '@launch' not in ln:
            A(ln)
        elif '@launch' in ln:
            A(f'; @launch grid=({NWG},1,1) block=(512,1,1) lds={LDS_BYTES if not smalllds else 16384}')
        else:
            break
    A('.amdgcn_target "amdgcn-amd-amdhsa--gfx950"')
    A('.text')
    A(f'.globl {KNAME}')
    A('.p2align 8')
    A(f'.type {KNAME},@function')
    A(f'{KNAME}:')

    sID = S(2)
    sF = S(0)
    sGrp = S(3)
    sW, sB, sH, sSP = S(4), S(5), S(6), S(7)
    sT0, sT1, sT2, sT3, sT4, sT5 = S(8), S(9), S(10), S(11), S(12), S(13)
    sNext = S(14)
    sIdx = S(15)
    P = lambda i: S(16 + 2 * i, 2)
    pOUT, pDBG, pWS = S(32, 2), S(34, 2), S(36, 2)
    sM = S(38)
    sMn = S(39)
    rK, rV, rWQ, rWO, rX, rW1, rW2, rOUT, rDBG, rWS = [S(40 + 4 * i, 4) for i in range(10)]
    sPool = S(80, 2)
    sExh = S(82)
    sBase, sNP, sPB = S(28), S(29), S(30)
    sCS = S(83)
    mT = [S(84 + 2 * t, 2) for t in range(4)]
    mJ8 = S(92, 2)
    m56 = S(94, 2)
    mG2 = S(96, 2)
    sX0, sX1 = S(98), S(99)
    sXP = S(100, 2)
    sEp = S(32)
    rWSD = rWQ
    LNS = [S(16), S(17), S(18), S(19), S(20), S(21), S(0), S(1)]
    sCnt = S(33)

    vTid = V(0)
    vLane, vJ, vG = V(1), V(2), V(3)
    vKoff, vKoff2, vVoff, vVoff2 = V(4), V(5), V(6), V(7)
    vMask = V(8, 4)
    vWoOff, vWoRem = V(12), V(13)
    vL = V(14)
    vL16 = V(15)
    vT = V(16, 8)
    OD0, OD1 = V(24, 4), V(28, 4)
    KD = V(32, 4)
    PB = V(36, 16)
    QB = V(52, 32)
    KB, VB, KB2, VB2 = V(84, 32), V(116, 32), V(148, 32), V(180, 32)
    XT = V(212, 44)
    WO = V(148, 56)
    vIdx, vOne, vCntA, vChk = XT[0], XT[1], XT[2], XT[3]
    vOw, vOr, vMr, vYw, vAt = XT[4], XT[5], XT[6], XT[7], XT[8]
    vPubOff, vGatOff, vGatML = XT[9], XT[10], XT[11]

    def dump(reg, slot):
        if not debug:
            return
        a.salu('s_lshl_b32', sX0, sID, 3)
        a.salu('s_add_u32', sX0, sX0, sW)
        a.salu('s_lshl_b32', sX0, sX0, 14)
        a.salu('s_add_u32', sX0, sX0, WS_DBG + slot * 256)
        a.valu('v_lshlrev_b32', XT[43], 2, vLane)
        a.vstore('buffer_store_dword', reg, XT[43], rWSD, sX0)

    stamp_names = []
    early = []

    DIAG = {'v_issued': 2, 'q_got': 3, 's_issued': 4, 'v_B3': 5, 'v_gath': 6, 'atom': 7, 'poll': 8, 'B6': 9, 'end': 11, 's_q': 12}

    def diag_put(slot, sreg, invert=False):
        r_ = S(25) if invert else S(24)
        a.salu('s_not_b32' if invert else 's_mov_b32', r_, sreg)
        a.misc(f's_atomic_umax {r_}, {pDBG}, {slot * 4}')

    def stamp(name, late=True):
        if diag and name in DIAG:
            wv = 0 if name[:2] in ('v_', 'q_') else 4 if name[:2] == 's_' else 7
            L_d = a.newlabel('diag')
            a.salu('s_cmp_lg_u32', None, sW, wv)
            a.branch('s_cbranch_scc1', L_d)
            a.misc('s_memrealtime s[22:23]')
            a.wait_lgkm(0)
            diag_put(DIAG[name], S(22))
            if name == 'v_B3':
                diag_put(13, S(22), True)
            if name == 'v_issued':
                a.wait_lgkm(0)
                diag_put(0, S(26), True)
                diag_put(1, S(26))
            a.label(L_d)
            return
        if not prof:
            return
        k = len(stamp_names)
        stamp_names.append(name)
        a.misc('s_memrealtime s[22:23]')
        a.wait_lgkm(0)
        if late:
            a.valu('v_writelane_b32', V(0), S(22), k, rmw=True)
        else:
            a.salu('s_mov_b32', S(24 + len(early)), S(22))
            early.append(k)

    def stamp_val(name, sreg):
        if not prof:
            return
        k = len(stamp_names)
        stamp_names.append(name)
        a.valu('v_writelane_b32', V(0), sreg, k, rmw=True)

    def stamp_flush_early():
        if not prof:
            return
        for i, k in enumerate(early):
            a.valu('v_writelane_b32', V(0), S(24 + i), k, rmw=True)

    def stamp_store():
        if not prof:
            return
        a.salu('s_mov_b64', 'exec', -1)
        a.salu('s_lshl_b32', sX0, sID, 3)
        a.salu('s_add_u32', sX0, sX0, sW)
        a.salu('s_lshl_b32', sX0, sX0, 8)
        a.salu('s_add_u32', sX0, sX0, WS_DBG)
        a.valu('v_lshlrev_b32', V(23), 2, vLane)
        a.vstore('buffer_store_dword', V(0), V(23), rWSD, sX0)

    def srd(r, ptr, nbytes, off=None):
        if off is None:
            a.salu('s_mov_b32', r[0], ptr[0])
            a.salu('s_mov_b32', r[1], ptr[1])
        else:
            a.salu('s_add_u32', r[0], ptr[0], off)
            a.salu('s_addc_u32', r[1], ptr[1], 0)
        a.salu('s_mov_b32', r[2], nbytes)
        a.salu('s_mov_b32', r[3], 0x00020000)

    def wave_red_multi(op, vs, sdsts, quads_equal=False):
        ctrls = ['row_ror:4', 'row_ror:8'] if quads_equal else ['quad_perm:[1,0,3,2]', 'quad_perm:[2,3,0,1]', 'row_half_mirror', 'row_mirror']
        for c in ctrls:
            for v in vs:
                a.dpp(op, v, v, v, ctrl=c)
        for v in vs:
            a.dpp(op, v, v, v, ctrl='row_bcast:15', row_mask=0xa)
        for v in vs:
            a.dpp(op, v, v, v, ctrl='row_bcast:31', row_mask=0xc)
        for v, s_ in zip(vs, sdsts):
            a.valu('v_readlane_b32', s_, v, 63)

    def wave_red(op, v, sdst, quads_equal=False):
        wave_red_multi(op, [v], [sdst], quads_equal)

    def rbf(dst, src):
        a.valu('v_cvt_pk_bf16_f32', dst, src, src)
        a.valu('v_and_b32', dst, 0xffff0000, dst)

    def unpack8(xf, raw):
        for i in range(4):
            a.valu('v_lshlrev_b32', xf[2 * i], 16, raw[i])
            a.valu('v_and_b32', xf[2 * i + 1], 0xffff0000, raw[i])

    def layernorm(rows):
        def each(f):
            for r_ in rows:
                f(*r_)
        each(lambda xf, t, s0, s1: a.valu('v_add_f32', t[0], xf[0], xf[1]))
        each(lambda xf, t, s0, s1: a.valu('v_add_f32', t[1], xf[2], xf[3]))
        each(lambda xf, t, s0, s1: a.valu('v_add_f32', t[2], xf[4], xf[5]))
        each(lambda xf, t, s0, s1: a.valu('v_add_f32', t[3], xf[6], xf[7]))
        each(lambda xf, t, s0, s1: a.valu('v_add_f32', t[0], t[0], t[1]))
        each(lambda xf, t, s0, s1: a.valu('v_add_f32', t[2], t[2], t[3]))
        each(lambda xf, t, s0, s1: a.valu('v_add_f32', t[0], t[0], t[2]))
        wave_red_multi('v_add_f32', [r_[1][0] for r_ in rows], [r_[2] for r_ in rows])
        each(lambda xf, t, s0, s1: a.valu('v_mov_b32', t[0], s0))
        each(lambda xf, t, s0, s1: a.valu('v_mul_f32', t[0], 1.0 / 448.0, t[0]))
        each(lambda xf, t, s0, s1: a.valu('v_sub_f32', t[1], xf[0], t[0]))
        each(lambda xf, t, s0, s1: a.valu('v_mul_f32', t[2], t[1], t[1]))
        for i in range(1, 8):
            each(lambda xf, t, s0, s1: a.valu('v_sub_f32', t[1], xf[i], t[0]))
            each(lambda xf, t, s0, s1: a.valu('v_fmac_f32', t[2], t[1], t[1]))
        each(lambda xf, t, s0, s1: a.valu('v_cndmask_b32', t[2], 0, t[2], m56))
        wave_red_multi('v_add_f32', [r_[1][2] for r_ in rows], [r_[3] for r_ in rows])
        each(lambda xf, t, s0, s1: rbf(t[0], t[0]))
        each(lambda xf, t, s0, s1: a.valu('v_mov_b32', t[2], s1))
        each(lambda xf, t, s0, s1: a.valu('v_mul_f32', t[2], 1.0 / 448.0, t[2]))
        each(lambda xf, t, s0, s1: rbf(t[2], t[2]))
        each(lambda xf, t, s0, s1: a.valu('v_add_f32', t[2], 1e-5, t[2]))
        each(lambda xf, t, s0, s1: rbf(t[2], t[2]))
        each(lambda xf, t, s0, s1: a.valu('v_sqrt_f32', t[2], t[2]))
        each(lambda xf, t, s0, s1: rbf(t[2], t[2]))
        each(lambda xf, t, s0, s1: a.valu('v_rcp_f32', t[2], t[2]))
        for i in range(0, 8, 2):
            each(lambda xf, t, s0, s1: a.valu('v_sub_f32', xf[i], xf[i], t[0]))
            each(lambda xf, t, s0, s1: a.valu('v_sub_f32', xf[i + 1], xf[i + 1], t[0]))
            each(lambda xf, t, s0, s1: a.valu('v_cvt_pk_bf16_f32', t[1], xf[i], xf[i + 1]))
            each(lambda xf, t, s0, s1: a.valu('v_lshlrev_b32', xf[i], 16, t[1]))
            each(lambda xf, t, s0, s1: a.valu('v_and_b32', xf[i + 1], 0xffff0000, t[1]))
            each(lambda xf, t, s0, s1: a.valu('v_mul_f32', xf[i], xf[i], t[2]))
            each(lambda xf, t, s0, s1: a.valu('v_mul_f32', xf[i + 1], xf[i + 1], t[2]))

    def spin_until(load_fn, cond_fn, first_check=True, sleep=1):
        done = a.newlabel('done')
        loop = a.newlabel('spin')
        if first_check:
            cond_fn()
            a.branch('s_cbranch_scc1', done)
        a.salu('s_mov_b32', sT5, SPIN_BOUND)
        a.label(loop)
        load_fn()
        a.wait_vm0()
        cond_fn()
        a.branch('s_cbranch_scc1', done)
        if sleep:
            a.misc(f's_sleep {sleep}')
        a.salu('s_sub_u32', sT5, sT5, 1)
        a.salu('s_cmp_lg_u32', None, sT5, 0)
        a.branch('s_cbranch_scc1', loop)
        a.label(done)

    def issue_k(buf, soff):
        for i in range(8):
            o = (i // 2) * 2048 + (i % 2) * 256
            a.vload('buffer_load_dwordx4', buf[4 * i:4 * i + 4], vKoff if o < 4096 else vKoff2, rK, soff, o % 4096, KP)

    def issue_v(buf, soff):
        for i in range(8):
            o = (i // 2) * 2048 + (i % 2) * 256
            a.vload('buffer_load_dwordx4', buf[4 * i:4 * i + 4], vVoff if o < 4096 else vVoff2, rV, soff, o % 4096, VP)

    def koff(i):
        o = (i // 2) * 2048 + (i % 2) * 256
        return (vKoff if o < 4096 else vKoff2), o % 4096

    def voff(i):
        o = (i // 2) * 2048 + (i % 2) * 256
        return (vVoff if o < 4096 else vVoff2), o % 4096

    def issue_static_units():
        assert fastx and xmap == 1
        a.salu('s_and_b32', sT2, sGrp, 1)
        a.salu('s_lshl_b32', sT2, sT2, 8)
        a.salu('s_add_u32', sT2, sT2, sGrp)
        a.salu('s_cmp_lt_u32', None, sT2, 2 * NF)
        a.salu('s_cselect_b32', sT2, npriv - min(nffn, npriv), 0)
        a.salu('s_sub_u32', sT2, npriv, sT2)
        a.salu('s_add_u32', sPB, sT2, 3 * npriv)
        a.salu('s_mul_i32', sBase, sSP, npriv)
        a.salu('s_add_u32', sBase, sBase, sT2)
        a.salu('s_sub_u32', sBase, sBase, npriv)
        a.salu('s_cmp_eq_u32', None, sSP, 0)
        a.salu('s_cselect_b32', sBase, 0, sBase)
        a.salu('s_cselect_b32', sNP, sT2, npriv)
        a.salu('s_add_u32', sT2, sBase, sW)
        a.salu('s_sub_u32', sT2, sT2, 4)
        a.salu('s_lshl_b32', sT2, sT2, 13)
        a.salu('s_add_u32', sT3, sT2, 4 * 8192)
        issue_k(KB, sT2)
        issue_v(VB, sT2)
        issue_k(KB2, sT3)
        issue_v(VB2, sT3)
        if not use_c:
            return
        L_cf = a.newlabel('cf')
        L_cd = a.newlabel('cd')
        a.salu('s_cmp_lt_u32', None, sF, NF)
        a.branch('s_cbranch_scc1', L_cf)
        a.salu('s_add_u32', sT3, sT2, 8 * 8192)
        a.salu('s_sub_u32', sT4, sW, 4)
        a.salu('s_lshl_b32', sT4, sT4, 14)
        a.salu('s_add_u32', sT4, sT4, L_W1)
        for i in range(16):
            vo, o = koff(i) if i < 8 else voff(i - 8)
            a.salu('s_add_u32', sT0, sT4, i * 1024 - o)
            a.salu('s_mov_b32', 'm0', sT0)
            a.vload_lds(vo, rK if i < 8 else rV, sT3, o, KP if i < 8 else VP)
        a.branch('s_branch', L_cd)
        a.label(L_cf)
        a.valu('v_mov_b32', vT[0], BIGOFF)
        for i in range(16):
            a.vload('buffer_load_dword', XT[20], vT[0], rK, 0, 0)
        a.label(L_cd)

    a.salu('s_cmp_ge_u32', None, sID, NWG)
    a.branch('s_cbranch_scc1', 'L_end')
    if prof or diag:
        a.misc('s_memrealtime s[84:85]')
    a.misc('s_load_dwordx16 s[16:31], s[0:1], 0')
    a.misc('s_load_dwordx4 s[32:35], s[0:1], 64')
    a.misc('s_load_dwordx2 s[36:37], s[0:1], 80')
    a.valu('v_lshrrev_b32', vT[0], 6, vTid)
    a.valu('v_and_b32', vLane, 63, vTid)
    a.valu('v_readfirstlane_b32', sW, vT[0])
    a.valu('v_and_b32', vJ, 15, vTid)
    a.valu('v_lshrrev_b32', vG, 4, vLane)
    a.valu('v_bfe_u32', vT[1], vLane, 2, 2)
    a.valu('v_and_b32', vT[2], 3, vLane)
    a.valu('v_lshlrev_b32', vT[1], 9, vT[1])
    a.valu('v_lshlrev_b32', vT[2], 4, vT[2])
    a.valu('v_lshl_add_u32', vKoff, vG, 6, vT[1])
    a.valu('v_add_u32', vKoff, vKoff, vT[2])
    a.valu('v_add_u32', vKoff2, 4096, vKoff)
    a.valu('v_lshlrev_b32', vL16, 4, vLane)
    a.valu('v_lshlrev_b32', vVoff, 9, vG)
    a.valu('v_lshl_add_u32', vVoff, vJ, 4, vVoff)
    a.valu('v_add_u32', vVoff2, 4096, vVoff)
    if xmap == 1:
        a.salu('s_lshr_b32', sT0, sID, 3)
        a.salu('s_and_b32', sT2, sT0, 7)
        a.salu('s_mul_i32', sT1, sT2, 11)
        a.salu('s_lshr_b32', sT1, sT1, 5)
        a.salu('s_mul_i32', sT1, sT1, 3)
        a.salu('s_sub_u32', sT1, sT2, sT1)
        a.salu('s_add_u32', sT1, sT1, 1)
        a.salu('s_bfe_u32', sSP, sID, (2 << 16) | 1)
        a.salu('s_and_b32', sT3, sSP, sT1)
        a.salu('s_bcnt1_i32_b32', sT3, sT3)
        a.salu('s_xor_b32', sT3, sT3, sID)
        a.salu('s_and_b32', sT3, sT3, 1)
        a.salu('s_lshl_b32', sGrp, sT0, 1)
        a.salu('s_add_u32', sGrp, sGrp, sT3)
    else:
        a.salu('s_lshr_b32', sGrp, sID, 2)
        a.salu('s_and_b32', sSP, sID, 3)
    a.salu('s_lshr_b32', sB, sGrp, 4)
    a.salu('s_and_b32', sH, sGrp, 15)
    a.salu('s_lshl_b32', sT1, sGrp, 22)
    a.salu('s_lshr_b32', sT5, sID, 3)
    if fastx:
        a.salu('s_and_b32', sT4, sID, 7)
    else:
        a.salu('s_lshl_b32', sT4, sT5, 1)
        a.salu('s_xor_b32', sT4, sT4, sID)
        a.salu('s_and_b32', sT4, sT4, 7)
    a.salu('s_cmp_eq_u32', None, sT4, 0)
    a.salu('s_cselect_b32', sT5, sT5, 255)
    a.salu('s_cmp_lt_u32', None, sT5, NF)
    a.salu('s_cselect_b32', sT2, 8, 12 if use_c else 8)
    a.valu('v_mov_b32', vT[2], sT2)
    a.valu('v_mov_b32', vT[3], 0)
    a.valu('v_mov_b32', vCntA, L_CNT)
    a.valu('v_mov_b32', vT[4], 0)
    a.valu('v_mov_b32', vT[5], 0)
    a.ds('ds_write_b128', vCntA, vT[2:6])
    a.wait_lgkm(0)
    a.salu('s_mov_b32', sF, sT5)
    if diag:
        a.salu('s_mov_b32', S(26), S(84))
    a.barrier()
    if prof:
        stamp_names.append('entry')
        a.valu('v_writelane_b32', V(0), S(84), 0, rmw=True)

    def xcc_word(dst, n):
        a.misc(f's_getreg_b32 {sX0}, hwreg(HW_REG_XCC_ID)')
        a.salu('s_and_b32', sX0, sX0, 15)
        a.salu('s_mul_i32', sX1, sX0, sX0)
        a.salu('s_lshl_b32', sX0, sX0, 8)
        a.salu('s_lshl_b32', sX1, sX1, 18)
        a.salu('s_or_b32', dst, sX0, sX1)
        a.salu('s_or_b32', dst, dst, 1)
        if n != 1:
            a.salu('s_mul_i32', dst, dst, n)

    def common_setup():
        srd(rWS, pWS, WS_BYTES)
        srd(rOUT, pOUT, 4 * 896)
        srd(rDBG, pDBG, 256)
        a.salu('s_mov_b32', sXP[0], P(0)[0])
        a.salu('s_mov_b32', sXP[1], P(0)[1])
        if prof:
            a.salu('s_mov_b32', sCnt, 0)
        a.valu('v_cmp_gt_u32_e64', mJ8, 8, vJ)
        a.valu('v_cmp_gt_u32_e64', m56, 56, vLane)
        a.valu('v_cmp_gt_u32_e64', mG2, 2, vG)
        a.valu('v_and_b32', vT[2], 1, vJ)
        a.valu('v_lshlrev_b32', vT[2], 4, vT[2])
        a.valu('v_mov_b32', vT[3], 0xffff)
        a.valu('v_lshlrev_b32', vT[3], vT[2], vT[3])
        a.valu('v_bfe_u32', vT[2], vJ, 1, 2)
        for r in range(4):
            a.valu('v_cmp_eq_u32', 'vcc', r, vT[2])
            a.valu('v_cndmask_b32', vMask[r], 0, vT[3], 'vcc')
        a.valu('v_mov_b32', vOne, 1)
        a.salu('s_mov_b32', sCS, CS)
        a.valu('v_lshrrev_b32', vAt, 5, vLane)
        a.valu('v_lshlrev_b32', vAt, 15, vAt)
        a.valu('v_bfe_u32', vT[6], vLane, 1, 1)
        a.valu('v_lshl_add_u32', vAt, vT[6], 14, vAt)
        a.valu('v_and_b32', vT[6], 1, vLane)
        a.valu('v_lshl_add_u32', vAt, vT[6], 5, vAt)
        a.valu('v_bfe_u32', vT[7], vLane, 2, 3)
        a.valu('v_lshl_add_u32', vAt, vT[7], 2, vAt)

    L_stream = 'L_stream'
    L_b3 = 'L_b3'
    a.salu('s_cmp_ge_u32', None, sW, 4)
    a.branch('s_cbranch_scc1', L_stream)

    L_svc = a.newlabel('svc')
    L_svc2 = a.newlabel('svc2')
    if notail == 1:
        a.branch('s_branch', 'L_end')
    a.misc('s_setprio 3')
    a.salu('s_mul_i32', sT2, sW, 896)
    srd(rX, P(0), 896, sT2)
    srd(rWQ, P(3), 448 * 8192 if not nowq else 0)
    XR = KB[0:4]
    vEp = XT[12]
    a.vload('buffer_load_dwordx4', XR, vL16, rX)
    a.valu('v_lshrrev_b32', vT[1], 1, vLane)
    a.valu('v_lshlrev_b32', vT[1], 13, vT[1])
    a.valu('v_and_b32', vT[2], 1, vLane)
    a.valu('v_lshl_add_u32', vT[1], vT[2], 4, vT[1])
    a.salu('s_lshl_b32', sT2, sSP, 2)
    a.salu('s_add_u32', sT2, sT2, sB)
    a.salu('s_lshl_b32', sT2, sT2, 5)
    a.salu('s_lshl_b32', sT3, sH, 9)
    a.salu('s_add_u32', sT2, sT2, sT3)
    a.salu('s_lshl_b32', sT3, sW, 18)
    a.salu('s_add_u32', sT2, sT2, sT3)
    a.salu('s_lshl_b32', sT3, sW, 10)
    a.salu('s_add_u32', sT3, sT3, L_WQS)
    for i in range(4):
        a.salu('s_mov_b32', 'm0', sT3)
        a.vload_lds(vT[1], rWQ, sT2, 0, WF)
        if i < 3:
            a.salu('s_add_u32', sT2, sT2, 4 * 32 * 8192)
            a.salu('s_add_u32', sT3, sT3, 4096)
    srd(rWS, pWS, WS_BYTES)
    a.salu('s_lshl_b32', sT2, sW, 24)
    a.valu('v_mov_b32', vT[2], sT2)
    a.salu('s_mov_b32', sT2, WS_EPOCH)
    a.vload('buffer_load_dword', vEp, vT[2], rWS, sT2, 0, LDF)
    MK = VB[0:4]
    ZR = VB[4:8]
    for i in range(4):
        a.valu('v_mov_b32', MK[i], -1)
        a.valu('v_mov_b32', ZR[i], 0)
    a.salu('s_lshl_b32', sT2, sGrp, 2)
    a.salu('s_add_u32', sT2, sT2, sSP)
    a.salu('s_lshl_b32', sT2, sT2, 2)
    a.salu('s_add_u32', sT2, sT2, sW)
    a.salu('s_lshl_b32', sT2, sT2, 9)
    a.salu('s_add_u32', sT2, sT2, WS_MAIL)
    a.valu('v_lshrrev_b32', vT[1], 5, vLane)
    a.valu('v_lshl_add_u32', vT[1], vT[1], 24, vL16)
    a.vstore('buffer_store_dwordx4', MK, vT[1], rWS, sT2, 0, STF)
    a.salu('s_lshl_b32', sT2, sGrp, 8)
    a.salu('s_add_u32', sT2, sT2, WS_POOL)
    a.salu('s_xor_b32', sT3, sW, 1)
    a.salu('s_add_u32', sT3, sT3, sSP)
    a.valu('v_add_u32', vT[1], sT3, vLane)
    a.valu('v_lshlrev_b32', vT[1], 24, vT[1])
    a.vstore('buffer_store_dword', ZR[0], vT[1], rWS, sT2, 0, STF)
    n_after_x = 7
    srd(rWO, P(4), 4096 * 896 if not nowo else 0)
    srd(rW1, P(6), 448 * 3584 if not nodma else 0)
    srd(rW2, P(7), 448 * 3584 if not nodma else 0)
    common_setup()
    stamp('v_issued')
    XF = KB2[0:8]
    a.misc(f's_waitcnt vmcnt({n_after_x})')
    stamp('v_x')
    unpack8(XF, XR)
    layernorm([(XF, vT[0:4], sX0, sX1)])
    for i in range(4):
        a.valu('v_cvt_pk_bf16_f32', XR[i], XF[2 * i], XF[2 * i + 1])
    a.salu('s_mul_i32', sT2, sW, 896)
    a.valu('v_add_u32', vT[0], sT2, vL16)
    a.salu('s_mov_b64', 'exec', m56)
    a.ds('ds_write_b128', vT[0], XR, offset=L_XN2)
    a.salu('s_mov_b64', 'exec', 1)
    a.misc('s_waitcnt vmcnt(0) lgkmcnt(0)')
    a.misc(f'ds_add_u32 {vCntA}, {vOne} offset:8')
    a.salu('s_mov_b64', 'exec', -1)
    stamp('v_ln')
    a.salu('s_cmp_lg_u32', None, sW, 0)
    a.branch('s_cbranch_scc1', L_svc)
    QA = V(148, 56)
    QF = V(84, 56)
    a.valu('v_and_b32', vT[6], 3, vLane)
    a.valu('v_mul_u32_u24', vT[6], 896, vT[6])
    a.valu('v_lshl_add_u32', vT[6], vG, 4, vT[6])
    a.valu('v_bfe_u32', vT[4], vLane, 2, 2)
    a.valu('v_lshl_add_u32', vT[4], vG, 3, vT[4])
    a.valu('v_lshlrev_b32', vT[4], 5, vT[4])
    a.valu('v_and_b32', vT[5], 3, vLane)
    a.valu('v_lshl_add_u32', vT[4], vT[5], 3, vT[4])
    L_sw = a.newlabel('sw')
    L_sok = a.newlabel('sok')
    a.salu('s_mov_b32', sT5, SPIN_BOUND * 8)
    a.label(L_sw)
    a.ds('ds_read_b32', vT[0], vCntA, offset=8)
    a.wait_lgkm(0)
    a.valu('v_readfirstlane_b32', sT2, vT[0])
    a.salu('s_cmp_ge_u32', None, sT2, 4)
    a.branch('s_cbranch_scc1', L_sok)
    a.salu('s_sub_u32', sT5, sT5, 1)
    a.salu('s_cmp_lg_u32', None, sT5, 0)
    a.branch('s_cbranch_scc1', L_sw)
    a.label(L_sok)
    stamp('q_wq')
    for ks in range(14):
        a.ds('ds_read_b128', QA[4 * ks:4 * ks + 4], vT[6], offset=L_XN2 + 64 * ks)
    for ks in range(14):
        for qq in range(2):
            a.ds('ds_read_b64_tr_b16', QF[ks * 4 + 2 * qq:ks * 4 + 2 * qq + 2], vT[4], offset=L_WQS + (32 * ks + 4 * qq) * 32)
    a.valu('v_add_u32', vEp, 1, vEp)
    for ks in range(14):
        a.wait_lgkm(min(2 * (13 - ks), 15))
        a.mfma(KD, QA[4 * ks:4 * ks + 4], QF[4 * ks:4 * ks + 4], 0 if ks == 0 else KD)
    a.valu('v_lshlrev_b32', vT[4], 10, vG)
    a.valu('v_lshl_add_u32', vT[4], vJ, 2, vT[4])
    a.valu('v_and_b32', vT[5], 1, vJ)
    a.valu('v_lshl_add_u32', vT[4], vT[5], 24, vT[4])
    a.salu('s_lshl_b32', sT2, sSP, 2)
    a.salu('s_add_u32', sT2, sT2, sB)
    a.salu('s_lshl_b32', sT2, sT2, 6)
    a.salu('s_lshl_b32', sT3, sH, 12)
    a.salu('s_add_u32', sT2, sT2, sT3)
    a.salu('s_add_u32', sT2, sT2, WS_Q)
    for r in range(1, 4):
        a.valu('v_cmp_eq_u32', 'vcc', r, vG)
        a.valu('v_cndmask_b32', KD[0], KD[0], KD[r], 'vcc')
    a.dpp('v_mov_b32', KD[1], KD[0], ctrl='quad_perm:[1,0,3,2]')
    a.valu('v_cvt_pk_bf16_f32', PB[0], KD[0], KD[1])
    a.valu('v_mov_b32', PB[1], vEp)
    a.vstore('buffer_store_dwordx2', PB[0:2], vT[4], rWS, sT2, 0, STF)
    a.salu('s_lshl_b32', sT4, sB, 10)
    a.salu('s_add_u32', sT4, sT4, sT3)
    a.salu('s_add_u32', sT4, sT4, WS_Q)
    a.valu('v_readfirstlane_b32', sEp, vEp)
    QG = PB[4:8]

    def ldq():
        a.vload('buffer_load_dwordx4', QG, vL16, rWS, sT4, 0, LDF)

    def condq():
        a.valu('v_cmp_ne_u32_e64', S(10, 2), sEp, QG[1])
        a.valu('v_cmp_ne_u32', 'vcc', sEp, QG[3])
        a.salu('s_or_b64', S(10, 2), S(10, 2), 'vcc')
        a.salu('s_cmp_eq_u64', None, S(10, 2), 0)

    spin_until(ldq, condq, first_check=False, sleep=0)
    a.valu('v_mov_b32', QG[1], QG[2])
    a.valu('v_lshlrev_b32', vT[4], 3, vLane)
    a.ds('ds_write_b64', vT[4], QG[0:2], offset=L_QBF)
    a.wait_lgkm(0)
    a.ds('ds_write_b32', vCntA, vOne, offset=4)
    stamp('q_got')
    a.branch('s_branch', L_svc2)
    a.label(L_svc)
    L_nodma = a.newlabel('nodma')
    a.salu('s_cmp_ge_u32', None, sF, NF)
    a.branch('s_cbranch_scc1', L_nodma)
    a.salu('s_sub_u32', sT2, sW, 1)
    L_ini = a.newlabel('ini')
    a.label(L_ini)
    a.salu('s_lshl_b32', sT3, sT2, 10)
    a.salu('s_lshl_b32', sT4, sF, 14)
    a.salu('s_add_u32', sT4, sT4, WS_IN1)
    a.salu('s_mul_i32', sT5, sF, 7168)
    a.salu('s_add_u32', sT5, sT5, WS_INBOX - 16384)
    a.salu('s_cmp_lt_u32', None, sT2, 16)
    a.salu('s_cselect_b32', sT4, sT4, sT5)
    a.salu('s_add_u32', sT4, sT4, sT3)
    a.vstore('buffer_store_dwordx4', MK, vL16, rWS, sT4, 0, STF)
    a.salu('s_add_u32', sT2, sT2, 3)
    a.salu('s_cmp_lt_u32', None, sT2, 23)
    a.branch('s_cbranch_scc1', L_ini)
    a.valu('v_mul_u32_u24', vT[1], 896, vG)
    a.valu('v_lshl_add_u32', vT[1], vJ, 2, vT[1])
    a.valu('v_lshrrev_b32', vT[2], 3, vJ)
    a.valu('v_lshl_add_u32', vT[1], vT[2], 24, vT[1])
    a.salu('s_lshl_b32', sT4, sF, 5)
    a.vstore('buffer_store_dword', MK[0], vT[1], rWS, sT4, WS_H, STF)
    a.salu('s_mov_b64', 'exec', 1)
    a.wait_vm0()
    a.misc(f'ds_add_rtn_u32 {vIdx}, {vCntA}, {vOne} offset:12')
    a.wait_lgkm(0)
    a.salu('s_mov_b64', 'exec', -1)
    a.valu('v_readfirstlane_b32', sT2, vIdx)
    L_nosig = a.newlabel('nosig')
    a.salu('s_cmp_lg_u32', None, sT2, 2)
    a.branch('s_cbranch_scc1', L_nosig)
    xcc_word(sT0, 1)
    a.misc(f's_atomic_add {sT0}, {pDBG}, {DB_INITF}')
    a.label(L_nosig)
    a.valu('v_lshrrev_b32', vT[6], 3, vLane)
    a.valu('v_mul_u32_u24', vT[6], 3584, vT[6])
    a.valu('v_and_b32', vT[7], 7, vLane)
    a.valu('v_lshl_add_u32', vT[6], vT[7], 4, vT[6])
    a.salu('s_sub_u32', sT2, sW, 1)
    L_dma = a.newlabel('dma')
    a.label(L_dma)
    a.salu('s_lshl_b32', sT3, sT2, 10)
    a.salu('s_mul_i32', sT4, sT2, 8 * 3584)
    a.salu('s_lshl_b32', sT5, sF, 7)
    a.salu('s_add_u32', sT4, sT4, sT5)
    a.salu('s_mul_i32', sT5, sF, 57344)
    a.salu('s_add_u32', sT5, sT5, sT3)
    a.salu('s_add_u32', sT0, sT3, L_W1)
    a.salu('s_mov_b32', 'm0', sT0)
    a.vload_lds(vT[6], rW1, sT4, 0, WF)
    a.salu('s_add_u32', sT0, sT3, L_W2)
    a.salu('s_mov_b32', 'm0', sT0)
    a.vload_lds(vL16, rW2, sT5, 0, WF)
    a.salu('s_add_u32', sT2, sT2, 3)
    a.salu('s_cmp_lt_u32', None, sT2, 56)
    a.branch('s_cbranch_scc1', L_dma)
    a.label(L_nodma)
    a.label(L_svc2)
    if debug or prof:
        srd(rWSD, pWS, (2 << 20) + (64 << 20))
    a.valu('v_mul_u32_u24', vWoOff, 896, vG)
    a.valu('v_lshl_add_u32', vWoOff, vJ, 4, vWoOff)
    a.valu('v_and_b32', vT[2], 7, vJ)
    a.valu('v_lshlrev_b32', vT[3], 4, vT[2])
    a.valu('v_lshrrev_b32', vT[4], 3, vJ)
    a.valu('v_mul_u32_u24', vT[5], 4 * 896, vT[4])
    a.valu('v_mul_u32_u24', vWoRem, 896, vG)
    a.valu('v_add3_u32', vWoRem, vWoRem, vT[3], vT[5])
    a.valu('v_add_u32', vWoRem, 768, vWoRem)
    a.salu('s_lshl_b32', sT2, sH, 8)
    a.salu('s_lshl_b32', sT3, sSP, 6)
    a.salu('s_add_u32', sT2, sT2, sT3)
    a.salu('s_lshl_b32', sT3, sW, 4)
    a.salu('s_add_u32', sT2, sT2, sT3)
    a.salu('s_mul_i32', sT2, sT2, 896)
    for Gp in range(4):
        for s_ in range(3):
            a.vload('buffer_load_dwordx4', WO[(Gp * 3 + s_) * 4:(Gp * 3 + s_) * 4 + 4], vWoOff, rWO, sT2, 256 * s_, WF)
        if Gp % 2 == 0:
            a.vload('buffer_load_dwordx4', WO[48 + 2 * Gp:52 + 2 * Gp], vWoRem, rWO, sT2, 0, WF)
        if Gp < 3:
            a.salu('s_add_u32', sT2, sT2, 4 * 896)
    a.valu('v_lshl_add_u32', vT[5], vT[4], 2, vG)
    a.valu('v_lshlrev_b32', vT[5], 7, vT[5])
    a.valu('v_lshl_add_u32', vYw, vT[2], 4, vT[5])
    a.salu('s_lshl_b32', sT2, sW, 11)
    a.valu('v_add_u32', vYw, sT2, vYw)
    a.valu('v_and_b32', vT[6], 3, vJ)
    a.valu('v_lshrrev_b32', vT[7], 2, vJ)
    a.valu('v_mul_u32_u24', vOr, 1040, vT[6])
    a.valu('v_lshl_add_u32', vOr, vG, 6, vOr)
    a.valu('v_lshl_add_u32', vOr, vT[7], 4, vOr)
    a.salu('s_lshl_b32', sT2, sW, 8)
    a.valu('v_add_u32', vOr, sT2, vOr)
    a.valu('v_lshlrev_b32', vMr, 3, vT[6])
    a.valu('v_lshrrev_b32', vT[2], 1, vG)
    a.valu('v_lshlrev_b32', vPubOff, 5, vT[2])
    a.valu('v_lshl_add_u32', vPubOff, vT[6], 3, vPubOff)
    a.valu('v_and_b32', vT[2], 1, vT[7])
    a.valu('v_lshl_add_u32', vPubOff, vT[2], 2, vPubOff)
    a.valu('v_and_b32', vT[2], 1, vG)
    a.valu('v_lshl_add_u32', vPubOff, vT[2], 1, vPubOff)
    a.valu('v_lshrrev_b32', vT[2], 1, vT[7])
    a.valu('v_add_u32', vPubOff, vPubOff, vT[2])
    a.valu('v_lshlrev_b32', vPubOff, 2, vPubOff)
    a.salu('s_lshl_b32', sT2, sSP, 9)
    a.valu('v_lshlrev_b32', vGatML, 11, vT[6])
    a.valu('v_add_u32', vGatML, sT2, vGatML)
    a.salu('s_lshl_b32', sT3, sW, 6)
    a.valu('v_lshl_add_u32', vT[2], vT[7], 2, vG)
    a.valu('v_lshl_add_u32', vGatOff, vT[2], 2, vGatML)
    a.valu('v_add_u32', vGatOff, sT3, vGatOff)
    a.valu('v_lshlrev_b32', vOw, 24, vLane)

    def ldfi():
        a.valu('v_mov_b32', vT[7], 0)
        a.vload('buffer_load_dword', vChk, vT[7], rDBG, 0, DB_INITF, LDF)

    def condf():
        a.valu('v_readfirstlane_b32', sT2, vChk)
        a.salu('s_and_b32', sT3, sT2, 255)
        a.salu('s_cmp_ge_u32', None, sT3, NF)

    L_nochk = a.newlabel('nochk')
    a.salu('s_cmp_lg_u32', None, sW, 1)
    a.branch('s_cbranch_scc1', L_nochk)
    L_mw = a.newlabel('mw')
    L_mok = a.newlabel('mok')
    a.salu('s_mov_b32', sT5, SPIN_BOUND)
    a.label(L_mw)
    a.ds('ds_read_b32', vT[0], vCntA)
    a.wait_lgkm(0)
    a.valu('v_readfirstlane_b32', sT2, vT[0])
    a.salu('s_cmp_ge_u32', None, sT2, 40)
    a.branch('s_cbranch_scc1', L_mok)
    a.misc('s_sleep 64')
    a.salu('s_sub_u32', sT5, sT5, 1)
    a.salu('s_cmp_lg_u32', None, sT5, 0)
    a.branch('s_cbranch_scc1', L_mw)
    a.label(L_mok)
    spin_until(ldfi, condf, first_check=False, sleep=64)
    xcc_word(sT3, NF)
    a.salu('s_cmp_eq_u32', None, sT2, sT3)
    a.salu('s_cselect_b32', sT2, fastx, 0)
    a.valu('v_mov_b32', vT[7], sT2)
    a.ds('ds_write_b32', vCntA, vT[7], offset=16)
    a.label(L_nochk)
    a.misc('s_waitcnt vmcnt(0) lgkmcnt(0)')
    a.salu('s_lshl_b32', sT4, sGrp, 13)
    a.salu('s_add_u32', sT4, sT4, WS_MAIL)
    a.salu('s_lshl_b32', sT2, sSP, 2)
    a.salu('s_add_u32', sT2, sT2, sW)
    a.salu('s_lshl_b32', sT2, sT2, 9)
    a.salu('s_add_u32', sT3, sT4, sT2)
    stamp('v_ready')
    if notail == 2:
        a.branch('s_branch', 'L_end')
    a.barrier()
    stamp('v_B3')
    ov = PB[0:4]
    ml = PB[4:6]
    a.ds('ds_read_b64', ml, vMr, offset=L_ML)
    a.ds('ds_read_b128', ov, vOr, offset=L_OP)
    a.valu('v_and_b32', vT[5], 3, vJ)
    a.wait_lgkm(1)
    red4 = ('quad_perm:[1,0,3,2]', 'quad_perm:[2,3,0,1]')
    a.valu('v_mov_b32', vT[0], ml[0])
    for c in red4:
        a.dpp('v_max_f32', vT[0], vT[0], vT[0], ctrl=c)
    a.valu('v_sub_f32', vT[2], ml[0], vT[0])
    a.valu('v_mul_f32', vT[2], sCS, vT[2])
    a.valu('v_exp_f32', vT[2], vT[2])
    a.wait_lgkm(0)
    a.valu('v_mul_f32', vT[1], ml[1], vT[2])
    for r in range(4):
        a.valu('v_mul_f32', ov[r], ov[r], vT[2])
    for c in red4:
        for r in range(4):
            a.dpp('v_add_f32', ov[r], ov[r], ov[r], ctrl=c)
        a.dpp('v_add_f32', vT[1], vT[1], vT[1], ctrl=c)
    for r in range(1, 4):
        a.valu('v_cmp_eq_u32', 'vcc', r, vT[5])
        a.valu('v_cndmask_b32', ov[0], ov[0], ov[r], 'vcc')
    a.valu('v_min_u32', ov[0], -2, ov[0])
    a.vstore('buffer_store_dword', ov[0], vPubOff, rWS, sT3, 0, STF)
    a.valu('v_min_u32', vT[0], -2, vT[0])
    a.valu('v_min_u32', vT[1], -2, vT[1])
    a.vstore('buffer_store_dwordx2', vT[0:2], vOw, rWS, sT3, 256, STF)
    stamp('v_pub')
    gv = PB[8]
    gml = PB[10:12]

    def ldg():
        a.vload('buffer_load_dword', gv, vGatOff, rWS, sT4, 0, LDF)
        a.vload('buffer_load_dwordx2', gml, vGatML, rWS, sT4, 256, LDF)

    def condg():
        a.valu('v_max3_u32', vT[2], gv, gml[0], gml[1])
        a.valu('v_cmp_eq_u32_e64', S(10, 2), -1, vT[2])
        a.salu('s_cmp_eq_u64', None, S(10, 2), 0)

    spin_until(ldg, condg, first_check=False, sleep=gsleep)
    stamp('v_gath')
    a.valu('v_mov_b32', vT[0], gml[0])
    for c in red4:
        a.dpp('v_max_f32', vT[0], vT[0], vT[0], ctrl=c)
    a.valu('v_sub_f32', vT[1], gml[0], vT[0])
    a.valu('v_mul_f32', vT[1], sCS, vT[1])
    a.valu('v_exp_f32', vT[1], vT[1])
    a.valu('v_mul_f32', gv, gv, vT[1])
    a.valu('v_mul_f32', gml[1], gml[1], vT[1])
    for c in red4:
        a.dpp('v_add_f32', gv, gv, gv, ctrl=c)
        a.dpp('v_add_f32', gml[1], gml[1], gml[1], ctrl=c)
    a.valu('v_rcp_f32', gml[1], gml[1])
    a.valu('v_mul_f32', gv, gv, gml[1])
    a.valu('v_cvt_pk_bf16_f32', gv, gv, gv)
    dump(gv, 18)
    Y = [KB[0:4], KB[4:8], KB[8:12], KB[12:16], KB[16:20]]
    BT = [QB[4 * Gp:4 * Gp + 4] for Gp in range(4)]
    for Gp in range(4):
        for r in range(4):
            a.dpp('v_and_b32', BT[Gp][r], gv, vMask[r], ctrl=f'row_newbcast:{4 * Gp}')
        for s_ in range(3):
            a.mfma(Y[s_], WO[(Gp * 3 + s_) * 4:(Gp * 3 + s_) * 4 + 4], BT[Gp], 0 if Gp == 0 else Y[s_])
        a.mfma(Y[3 + Gp % 2], WO[48 + 4 * (Gp // 2):52 + 4 * (Gp // 2)], BT[Gp], 0 if Gp < 2 else Y[3 + Gp % 2])
    for r in range(4):
        a.valu('v_cndmask_b32', Y[0][r], Y[1][r], Y[0][r], mJ8)
    a.ds('ds_write_b128', vYw, Y[0], offset=L_YP)
    for r in range(4):
        a.valu('v_cndmask_b32', Y[3][r], Y[4][r], Y[3][r], mG2)
        a.valu('v_cndmask_b32', Y[2][r], Y[3][r], Y[2][r], mJ8)
    a.ds('ds_write_b128', vYw, Y[2], offset=L_YP + 1024)
    a.branch('s_branch', 'L_b4')

    a.label(L_stream)
    a.misc(f's_setprio {prio}')
    srd(rK, P(1), 4 << 20, sT1)
    srd(rV, P(2), 4 << 20, sT1)
    issue_static_units()
    common_setup()
    if debug or prof:
        srd(rWSD, pWS, (2 << 20) + (64 << 20))
    a.salu('s_lshl_b32', sT2, sGrp, 8)
    a.salu('s_add_u32', sT2, sT2, WS_POOL)
    a.salu('s_add_u32', sPool[0], pWS[0], sT2)
    a.salu('s_addc_u32', sPool[1], pWS[1], 0)
    a.valu('v_lshrrev_b32', vT[2], 2, vJ)
    for t in range(4):
        a.valu('v_cmp_eq_u32_e64', mT[t], t, vT[2])
    for r in range(4):
        a.valu('v_mov_b32', OD0[r], 0)
        a.valu('v_mov_b32', OD1[r], 0)
    a.valu('v_mov_b32', vL, 0)
    a.salu('s_mov_b32', sM, -3.0e38)
    a.salu('s_mov_b32', sExh, 0)
    a.valu('v_lshrrev_b32', vT[4], 3, vJ)
    a.valu('v_lshl_add_u32', vT[5], vT[4], 2, vG)
    a.valu('v_lshlrev_b32', vT[5], 7, vT[5])
    a.valu('v_and_b32', vT[6], 3, vJ)
    a.valu('v_lshl_add_u32', vOw, vT[6], 5, vT[5])
    a.valu('v_bfe_u32', vT[7], vJ, 2, 1)
    a.valu('v_lshl_add_u32', vOw, vT[7], 4, vOw)
    a.salu('s_sub_u32', sT2, sW, 4)
    a.salu('s_mul_i32', sT3, sT2, 1040)
    a.valu('v_add_u32', vOw, sT3, vOw)
    a.salu('s_lshl_b32', sT2, sT2, 3)
    a.valu('v_mov_b32', vMr, sT2)
    a.valu('v_lshl_add_u32', vT[1], vG, 2, vT[6])
    a.valu('v_lshlrev_b32', vT[1], 4, vT[1])
    stamp('s_issued')
    L_qw = a.newlabel('qw')
    L_qok = a.newlabel('qok')
    a.salu('s_mov_b32', sT5, SPIN_BOUND * 8)
    a.label(L_qw)
    a.ds('ds_read_b32', vT[0], vCntA, offset=4)
    a.wait_lgkm(0)
    a.valu('v_readfirstlane_b32', sT2, vT[0])
    a.salu('s_cmp_lg_u32', None, sT2, 0 if not skipq else 77)
    a.branch('s_cbranch_scc1', L_qok)
    a.misc('s_sleep 2')
    a.salu('s_sub_u32', sT5, sT5, 1)
    a.salu('s_cmp_lg_u32', None, sT5, 0)
    a.branch('s_cbranch_scc1', L_qw)
    a.label(L_qok)
    stamp('s_q')
    a.ds('ds_read_b128', PB[0:4], vT[1], offset=L_QBF)
    a.ds('ds_read_b128', PB[4:8], vT[1], offset=L_QBF + 256)
    a.wait_lgkm(0)
    for t in range(4):
        for hf in range(2):
            for r in range(4):
                a.valu('v_cndmask_b32', QB[(t * 2 + hf) * 4 + r], 0, PB[hf * 4 + r], mT[t])

    def qk(kb):
        for i in range(8):
            a.mfma(KD, kb[4 * i:4 * i + 4], QB[4 * i:4 * i + 4], 0 if i == 0 else KD)

    def softmax_step():
        s_, t_ = vT[0], vT[1]
        a.dpp('v_mov_b32', s_, KD[0], ctrl='quad_perm:[0,0,0,0]')
        a.dpp('v_add_f32', s_, KD[1], s_, ctrl='quad_perm:[1,1,1,1]')
        a.dpp('v_add_f32', s_, KD[2], s_, ctrl='quad_perm:[2,2,2,2]')
        a.dpp('v_add_f32', s_, KD[3], s_, ctrl='quad_perm:[3,3,3,3]')
        rbf(s_, s_)
        a.valu('v_max_f32', t_, sM, s_)
        wave_red('v_max_f32', t_, sMn, quads_equal=True)
        a.valu('v_mov_b32', t_, sM)
        a.valu('v_subrev_f32', s_, sMn, s_)
        a.valu('v_subrev_f32', t_, sMn, t_)
        a.valu('v_mul_f32', s_, sCS, s_)
        a.valu('v_mul_f32', t_, sCS, t_)
        a.valu('v_exp_f32', s_, s_)
        a.valu('v_exp_f32', t_, t_)
        a.salu('s_mov_b32', sM, sMn)
        a.valu('v_fma_f32', vL, vL, t_, s_)
        a.valu('v_cvt_pk_bf16_f32', s_, s_, s_)
        for r in range(4):
            a.valu('v_mul_f32', OD0[r], OD0[r], t_)
            a.valu('v_mul_f32', OD1[r], OD1[r], t_)
        for T in range(4):
            for r in range(4):
                a.dpp('v_and_b32', PB[4 * T + r], s_, vMask[r], ctrl=f'row_newbcast:{4 * T}')

    def pv(vb):
        for T in range(4):
            a.mfma(OD0, vb[8 * T:8 * T + 4], PB[4 * T:4 * T + 4], OD0)
            a.mfma(OD1, vb[8 * T + 4:8 * T + 8], PB[4 * T:4 * T + 4], OD1)

    def fetch_issue():
        L_f1 = a.newlabel('f1')
        L_f2 = a.newlabel('f2')
        a.salu('s_cmp_lg_u32', None, sExh, 0)
        a.branch('s_cbranch_scc1', L_f1)
        a.salu('s_mov_b64', 'exec', 1)
        a.misc(f'ds_add_rtn_u32 {vIdx}, {vCntA}, {vOne}')
        a.salu('s_mov_b64', 'exec', -1)
        a.branch('s_branch', L_f2)
        a.label(L_f1)
        a.salu('s_mov_b32', sIdx, 1)
        a.misc(f's_atomic_add {sIdx}, {sPool}, 0 glc')
        a.label(L_f2)

    def fetch_complete():
        a.wait_lgkm(0)
        L_g1 = a.newlabel('g1')
        L_g2 = a.newlabel('g2')
        a.salu('s_cmp_lg_u32', None, sExh, 0)
        a.branch('s_cbranch_scc1', L_g1)
        a.valu('v_readfirstlane_b32', sT2, vIdx)
        a.salu('s_add_u32', sNext, sBase, sT2)
        a.salu('s_cmp_lt_u32', None, sT2, sNP)
        a.branch('s_cbranch_scc1', L_g2)
        a.salu('s_mov_b32', sExh, 1)
        a.salu('s_mov_b32', sIdx, 1)
        a.misc(f's_atomic_add {sIdx}, {sPool}, 0 glc')
        a.wait_lgkm(0)
        a.label(L_g1)
        a.salu('s_add_u32', sNext, sIdx, sPB)
        a.label(L_g2)

    def unit_rolling(cnt):
        for i in range(8):
            a.misc(f's_waitcnt vmcnt({cnt})')
            if not nocomp:
                a.mfma(KD, KB[4 * i:4 * i + 4], QB[4 * i:4 * i + 4], 0 if i == 0 else KD)
            vo, o = koff(i)
            a.vload('buffer_load_dwordx4', KB[4 * i:4 * i + 4], vo, rK, sNext, o, KP)
        fetch_issue()
        if not nocomp:
            softmax_step()
        for i in range(8):
            od = OD0 if i % 2 == 0 else OD1
            a.misc(f's_waitcnt vmcnt({cnt})')
            if not nocomp:
                a.mfma(od, VB[4 * i:4 * i + 4], PB[4 * (i // 2):4 * (i // 2) + 4], od)
            vo, o = voff(i)
            a.vload('buffer_load_dwordx4', VB[4 * i:4 * i + 4], vo, rV, sNext, o, VP)

    extra = 32 if use_c else 16
    fetch_issue()
    fetch_complete()
    a.salu('s_lshl_b32', sNext, sNext, 13)
    unit_rolling(15 + extra)
    a.misc(f's_waitcnt vmcnt({extra + 8})')
    qk(KB2)
    softmax_step()
    a.misc(f's_waitcnt vmcnt({extra})')
    pv(VB2)
    L_loop = 'L_loop'
    if use_c:
        a.salu('s_cmp_lt_u32', None, sF, NF)
        a.branch('s_cbranch_scc1', L_loop)
        a.salu('s_sub_u32', sT4, sW, 4)
        a.salu('s_lshl_b32', sT4, sT4, 14)
        a.salu('s_add_u32', sT4, sT4, L_W1)
        a.valu('v_add_u32', vT[2], sT4, vL16)
        a.misc('s_waitcnt vmcnt(16)')
        for i in range(8):
            a.ds('ds_read_b128', KB2[4 * i:4 * i + 4], vT[2], offset=1024 * i)
        for i in range(8):
            a.ds('ds_read_b128', VB2[4 * i:4 * i + 4], vT[2], offset=8192 + 1024 * i)
        a.wait_lgkm(8)
        qk(KB2)
        softmax_step()
        a.wait_lgkm(0)
        pv(VB2)

    a.label(L_loop)
    if prof:
        a.salu('s_add_u32', sCnt, sCnt, 1)
    fetch_complete()
    L_last = a.newlabel('last')
    a.salu('s_cmp_ge_u32', None, sNext, 512)
    a.branch('s_cbranch_scc1', L_last)
    a.salu('s_lshl_b32', sNext, sNext, 13)
    unit_rolling(15)
    a.branch('s_branch', L_loop)
    a.label(L_last)
    a.misc('s_waitcnt vmcnt(8)')
    qk(KB)
    softmax_step()
    wave_red('v_add_f32', vL, sMn, quads_equal=True)
    a.valu('v_mov_b32', vT[2], sM)
    a.valu('v_mov_b32', vT[3], sMn)
    a.ds('ds_write_b64', vMr, vT[2:4], offset=L_ML)
    for i in range(8):
        od = OD0 if i % 2 == 0 else OD1
        a.misc(f's_waitcnt vmcnt({7 - i})')
        a.mfma(od, VB[4 * i:4 * i + 4], PB[4 * (i // 2):4 * (i // 2) + 4], od)
    stamp('s_Vlast')
    if notail:
        a.branch('s_branch', 'L_end')
    for r in range(4):
        a.valu('v_cndmask_b32', PB[r], OD1[r], OD0[r], mJ8)
    a.ds('ds_write_b128', vOw, PB[0:4], offset=L_OP)
    a.wait_lgkm(0)
    a.barrier()
    a.misc('s_setprio 0')
    stamp_val('s_units', sCnt)

    a.label('L_b4')
    a.salu('s_lshl_b32', sT2, sW, 8)
    a.valu('v_lshlrev_b32', vT[4], 2, vLane)
    a.valu('v_add_u32', vT[4], sT2, vT[4])
    a.salu('s_lshl_b32', sT1, sGrp, 2)
    a.salu('s_add_u32', sT1, sT1, sSP)
    a.salu('s_lshl_b32', sT1, sT1, 6)
    a.salu('s_lshl_b32', sT0, sW, 16)
    a.salu('s_add_u32', sT1, sT1, sT0)
    a.salu('s_add_u32', sT1, sT1, WS_IN1)
    a.wait_lgkm(0)
    a.barrier()
    stamp('B4')
    YS = VB[0:8]
    L_nc = a.newlabel('nc')
    L_y6 = a.newlabel('y6')
    a.salu('s_cmp_eq_u32', None, sW, 7)
    a.branch('s_cbranch_scc1', L_nc)
    for i in range(4):
        a.ds('ds_read_b32', YS[i], vT[4], offset=L_YP + 2048 * i)
    a.salu('s_cmp_lg_u32', None, sW, 6)
    a.branch('s_cbranch_scc1', L_y6)
    for i in range(4):
        a.ds('ds_read_b32', YS[4 + i], vT[4], offset=L_YP + 2048 * i + 256)
    a.wait_lgkm(0)
    for i in range(4):
        a.valu('v_add_f32', YS[i], YS[i], YS[4 + i])
    a.label(L_y6)
    a.wait_lgkm(0)
    a.valu('v_add_f32', YS[0], YS[0], YS[1])
    a.valu('v_add_f32', YS[2], YS[2], YS[3])
    a.valu('v_add_f32', YS[0], YS[0], YS[2])
    a.valu('v_min_u32', YS[0], -2, YS[0])
    a.vstore('buffer_store_dword', YS[0], vAt, rWS, sT1, 0, STF)
    a.label(L_nc)
    stamp('atom')
    a.salu('s_cmp_ge_u32', None, sF, NF)
    a.branch('s_cbranch_scc1', 'L_endp')

    F2B = V(84, 32)
    FA = V(116, 56)
    F1B = V(172, 56)
    RB = V(24, 28)
    a.valu('v_bfe_u32', vT[4], vLane, 2, 2)
    a.valu('v_lshl_add_u32', vT[4], vG, 3, vT[4])
    a.valu('v_and_b32', vT[5], 3, vLane)
    a.valu('v_lshlrev_b32', vT[5], 3, vT[5])
    a.valu('v_mul_u32_u24', vT[6], 896, vT[4])
    a.valu('v_add_u32', vT[6], vT[6], vT[5])
    a.salu('s_min_u32', sT2, sW, 6)
    a.salu('s_lshl_b32', sT2, sT2, 7)
    a.salu('s_add_u32', sT2, sT2, L_W2)
    a.valu('v_add_u32', vT[6], sT2, vT[6])
    for tt in range(4):
        for ks in range(2):
            for qq in range(2):
                d = F2B[(tt * 2 + ks) * 4 + 2 * qq:(tt * 2 + ks) * 4 + 2 * qq + 2]
                a.ds('ds_read_b64_tr_b16', d, vT[6], offset=(32 * ks + 4 * qq) * 896 + tt * 32)
    L_ln = a.newlabel('ln')
    L_b5 = a.newlabel('b5')
    a.salu('s_cmp_ge_u32', None, sW, 4)
    a.branch('s_cbranch_scc1', L_ln)
    a.valu('v_lshlrev_b32', vT[6], 7, vT[4])
    a.valu('v_add_u32', vT[6], vT[6], vT[5])
    a.salu('s_lshl_b32', sT2, sW, 5)
    a.salu('s_add_u32', sT2, sT2, L_W1)
    a.valu('v_add_u32', vT[6], sT2, vT[6])
    for ks in range(14):
        for qq in range(2):
            a.ds('ds_read_b64_tr_b16', F1B[ks * 4 + 2 * qq:ks * 4 + 2 * qq + 2], vT[6], offset=(32 * ks + 4 * qq) * 128)
            if (ks * 2 + qq) % 8 == 7:
                a.wait_lgkm(4)
    a.label(L_ln)
    srd(rX, sXP, 4 * 896)
    a.valu('v_mul_u32_u24', vT[7], 896, vG)
    a.valu('v_lshl_add_u32', vT[7], vJ, 1, vT[7])
    a.salu('s_lshl_b32', sT1, sF, 5)
    a.vload('buffer_load_ushort', RB[24], vT[7], rX, sT1, 0)
    a.valu('v_mov_b32', vT[4], L_SAME)
    a.ds('ds_read_b32', RB[25], vT[4])
    a.salu('s_lshl_b32', sT4, sF, 14)
    a.salu('s_lshl_b32', sT3, sW, 11)
    a.salu('s_add_u32', sT4, sT4, sT3)
    a.salu('s_add_u32', sT4, sT4, WS_IN1)
    a.salu('s_lshl_b32', sT3, sW, 8)
    a.valu('v_and_b32', vT[5], 3, vJ)
    a.valu('v_lshlrev_b32', vT[5], 4, vT[5])
    a.valu('v_lshl_add_u32', vT[5], vG, 6, vT[5])
    a.valu('v_add_u32', vT[5], sT3, vT[5])
    RI = RB[0:8]

    def ldr():
        a.vload('buffer_load_dwordx4', RI[0:4], vL16, rWS, sT4, 0, LDF)
        a.vload('buffer_load_dwordx4', RI[4:8], vL16, rWS, sT4, 1024, LDF)

    def condr():
        a.valu('v_max3_u32', vT[0], RI[0], RI[1], RI[2])
        a.valu('v_max3_u32', vT[1], RI[3], RI[4], RI[5])
        a.valu('v_max3_u32', vT[0], vT[0], RI[6], RI[7])
        a.valu('v_max_u32', vT[0], vT[0], vT[1])
        a.valu('v_cmp_eq_u32', 'vcc', -1, vT[0])
        a.salu('s_cmp_eq_u64', None, 'vcc', 0)
        if rmask:
            a.salu('s_cselect_b64', 'exec', -1, 'vcc')

    spin_until(ldr, condr, first_check=False, sleep=psleep)
    a.salu('s_mov_b64', 'exec', -1)
    stamp('red')
    for r in range(4):
        a.valu('v_add_f32', RI[r], RI[r], RI[4 + r])
    for c in ('row_ror:4', 'row_ror:8'):
        for r in range(4):
            a.dpp('v_add_f32', RI[r], RI[r], RI[r], ctrl=c)
    a.ds('ds_write_b128', vT[5], RI[0:4], offset=L_OP)
    a.valu('v_lshlrev_b32', vT[4], 9, vG)
    a.valu('v_lshl_add_u32', vT[4], vJ, 2, vT[4])
    a.valu('v_and_b32', vT[5], 1, vJ)
    a.valu('v_lshl_add_u32', vT[7], vT[5], 24, vT[7])
    a.wait_lgkm(0)
    a.barrier()
    L_nw0 = a.newlabel('nw0')
    a.salu('s_cmp_lg_u32', None, sW, 0)
    a.branch('s_cbranch_scc1', L_nw0)
    for i in range(8):
        a.ds('ds_read_b32', RB[i], vT[4], offset=L_OP + 64 * i)
    a.valu('v_lshlrev_b32', RB[24], 16, RB[24])
    a.valu('v_readfirstlane_b32', sT3, RB[25])
    a.wait_lgkm(0)
    a.valu('v_add_f32', RB[0], RB[0], RB[1])
    a.valu('v_add_f32', RB[2], RB[2], RB[3])
    a.valu('v_add_f32', RB[4], RB[4], RB[5])
    a.valu('v_add_f32', RB[6], RB[6], RB[7])
    a.valu('v_add_f32', RB[0], RB[0], RB[2])
    a.valu('v_add_f32', RB[4], RB[4], RB[6])
    a.valu('v_add_f32', RB[0], RB[0], RB[4])
    rbf(RB[0], RB[0])
    a.valu('v_add_f32', RB[0], RB[0], RB[24])
    a.dpp('v_mov_b32', RB[1], RB[0], ctrl='quad_perm:[1,0,3,2]')
    a.valu('v_cvt_pk_bf16_f32', RB[0], RB[0], RB[1])
    a.valu('v_min_u32', RB[0], -2, RB[0])
    L_hs = a.newlabel('hs')
    a.salu('s_cmp_eq_u32', None, sT3, 0)
    a.branch('s_cbranch_scc1', L_hs)
    a.vstore('buffer_store_dword', RB[0], vT[7], rWS, sT1, WS_H, '')
    a.branch('s_branch', L_b5)
    a.label(L_hs)
    a.vstore('buffer_store_dword', RB[0], vT[7], rWS, sT1, WS_H, STF)
    a.branch('s_branch', L_b5)
    a.label(L_nw0)
    a.salu('s_cmp_lt_u32', None, sW, 4)
    a.branch('s_cbranch_scc1', L_b5)
    a.salu('s_sub_u32', sT3, sW, 4)
    a.salu('s_mul_i32', sT4, sT3, 896)
    a.valu('v_mov_b32', vT[5], BIGOFF)
    a.valu('v_cndmask_b32', vT[7], vT[5], vL16, m56)
    a.valu('v_add_u32', vT[6], sT4, vL16)
    hp = RB[4:8]
    xf = RB[16:24]

    def ldc():
        a.vload('buffer_load_dwordx4', hp, vT[7], rWS, sT4, WS_H, LDF)

    def condc():
        a.valu('v_max3_u32', vT[0], hp[0], hp[1], hp[2])
        a.valu('v_max_u32', vT[0], vT[0], hp[3])
        a.valu('v_cmp_eq_u32', 'vcc', -1, vT[0])
        a.salu('s_cmp_eq_u64', None, 'vcc', 0)

    spin_until(ldc, condc, first_check=False, sleep=0)
    stamp('poll')
    unpack8(xf, hp)
    a.salu('s_mov_b64', 'exec', m56)
    a.ds('ds_write_b128', vT[6], hp, offset=L_HB)
    a.salu('s_mov_b64', 'exec', -1)
    layernorm([(xf, vT[0:4], sX0, sX1)])
    for i in range(4):
        a.valu('v_cvt_pk_bf16_f32', RB[i], xf[2 * i], xf[2 * i + 1])
    a.salu('s_mov_b64', 'exec', m56)
    a.ds('ds_write_b128', vT[6], RB[0:4], offset=L_XN2)
    a.salu('s_mov_b64', 'exec', -1)
    if debug:
        for i in range(4):
            dump(hp[i], 33 + i)
            dump(RB[i], 37 + i)
    a.label(L_b5)
    a.wait_lgkm(0)
    a.barrier()
    stamp('B5')
    L_b6 = a.newlabel('b6')
    a.salu('s_cmp_ge_u32', None, sW, 4)
    a.branch('s_cbranch_scc1', L_b6)
    a.valu('v_and_b32', vT[6], 3, vLane)
    a.valu('v_mul_u32_u24', vT[6], 896, vT[6])
    a.valu('v_lshl_add_u32', vT[6], vG, 4, vT[6])
    for ks in range(14):
        a.ds('ds_read_b128', FA[4 * ks:4 * ks + 4], vT[6], offset=L_XN2 + 64 * ks)
    Z = RB[0:4]
    for ks in range(14):
        a.wait_lgkm(min(13 - ks, 15))
        a.mfma(Z, FA[4 * ks:4 * ks + 4], F1B[4 * ks:4 * ks + 4], 0 if ks == 0 else Z)
    a.salu('s_lshl_b32', sT2, sW, 5)
    a.valu('v_lshlrev_b32', vT[6], 1, vJ)
    a.valu('v_add_u32', vT[6], sT2, vT[6])
    a.salu('s_mov_b32', sT3, -LOG2E)
    for r in range(4):
        rbf(Z[r], Z[r])
    for r in range(4):
        a.valu('v_mul_f32', RB[4 + r], sT3, Z[r])
    for r in range(4):
        a.valu('v_exp_f32', RB[4 + r], RB[4 + r])
    for r in range(4):
        a.valu('v_add_f32', RB[4 + r], 1.0, RB[4 + r])
    for r in range(4):
        a.valu('v_rcp_f32', RB[4 + r], RB[4 + r])
    for r in range(4):
        a.valu('v_mul_f32', Z[r], Z[r], RB[4 + r])
    for r in range(4):
        a.valu('v_cvt_pk_bf16_f32', Z[r], Z[r], Z[r])
        a.ds('ds_write_b16', vT[6], Z[r], offset=L_GB + 128 * r)
    if debug:
        for r in range(4):
            dump(Z[r], 41 + r)
    a.label(L_b6)
    a.wait_lgkm(0)
    a.barrier()
    stamp('B6')
    L_fin = a.newlabel('fin')
    a.salu('s_cmp_ge_u32', None, sW, 7)
    a.branch('s_cbranch_scc1', L_fin)
    a.valu('v_and_b32', vT[6], 3, vLane)
    a.valu('v_lshlrev_b32', vT[6], 7, vT[6])
    a.valu('v_lshl_add_u32', vT[6], vG, 4, vT[6])
    a.ds('ds_read_b128', FA[0:4], vT[6], offset=L_GB)
    a.ds('ds_read_b128', FA[4:8], vT[6], offset=L_GB + 64)
    a.valu('v_mov_b32', vT[4], L_SAME)
    a.ds('ds_read_b32', vT[5], vT[4])
    a.salu('s_mul_i32', sT2, sW, 4 * 7168)
    a.salu('s_lshl_b32', sT3, sF, 8)
    a.salu('s_add_u32', sT2, sT2, sT3)
    a.salu('s_add_u32', sT2, sT2, WS_INBOX)
    a.wait_lgkm(0)
    O2 = [RB[4 * tt:4 * tt + 4] for tt in range(4)]
    for tt in range(4):
        a.mfma(O2[tt], FA[0:4], F2B[(tt * 2) * 4:(tt * 2) * 4 + 4], 0)
    for tt in range(4):
        a.mfma(O2[tt], FA[4:8], F2B[(tt * 2 + 1) * 4:(tt * 2 + 1) * 4 + 4], O2[tt])
    a.valu('v_readfirstlane_b32', sT3, vT[5])
    a.salu('s_mov_b64', 'exec', 0xffff)
    L_slow = a.newlabel('slow')
    L_sd = a.newlabel('sd')
    a.salu('s_cmp_eq_u32', None, sT3, 0)
    a.branch('s_cbranch_scc1', L_slow)
    for flags, lab in (('', None), (STF, L_slow)):
        if lab:
            a.label(lab)
        for tt in range(4):
            for r in range(4):
                a.valu('v_min_u32', O2[tt][r], -2, O2[tt][r])
            a.vstore('buffer_store_dwordx4', O2[tt], vL16, rWS, sT2, 0, flags)
            if tt < 3:
                a.salu('s_add_u32', sT2, sT2, 7168)
        if not lab:
            a.branch('s_branch', L_sd)
    a.label(L_sd)
    a.salu('s_or_b32', sT2, sF, sW)
    a.salu('s_cmp_lg_u32', None, sT2, 0)
    a.branch('s_cbranch_scc1', 'L_endp')
    a.salu('s_mov_b64', 'exec', 1)
    a.valu('v_mov_b32', vT[4], sEp)
    a.valu('v_mov_b32', vT[5], 0)
    a.salu('s_mov_b32', sT2, WS_EPOCH)
    a.vstore('buffer_store_dword', vT[4], vT[5], rWS, sT2, 0, STF)
    a.branch('s_branch', 'L_endp')
    a.label(L_fin)
    a.valu('v_mul_u32_u24', vT[6], 896, vG)
    a.valu('v_lshl_add_u32', vT[6], vJ, 1, vT[6])
    a.salu('s_lshl_b32', sT2, sF, 5)
    a.valu('v_add_u32', vT[6], sT2, vT[6])
    a.ds('ds_read_u16', vT[7], vT[6], offset=L_HB)
    a.salu('s_mul_i32', sT3, sF, 7168)
    a.salu('s_add_u32', sT3, sT3, WS_INBOX)
    a.salu('s_add_u32', sT4, sT3, 4096)
    IB = V(116, 28)

    def ldi():
        for i in range(7):
            a.vload('buffer_load_dwordx4', IB[4 * i:4 * i + 4], vL16, rWS, sT3 if i < 4 else sT4, (i % 4) * 1024, LDF)

    def condi():
        a.valu('v_max3_u32', vT[0], IB[0], IB[1], IB[2])
        for i in range(3, 27, 2):
            a.valu('v_max3_u32', vT[0], vT[0], IB[i], IB[i + 1])
        a.valu('v_max_u32', vT[0], vT[0], IB[27])
        a.valu('v_cmp_eq_u32_e64', S(100, 2), -1, vT[0])
        a.salu('s_cmp_eq_u64', None, S(100, 2), 0)

    spin_until(ldi, condi, first_check=False, sleep=0)
    stamp('inbox')
    for i in range(1, 7):
        for r in range(4):
            a.valu('v_add_f32', IB[r], IB[r], IB[4 * i + r])
    for r in range(4):
        a.valu('v_mov_b32', IB[4 + r], IB[r])
    for r in range(4):
        a.valu('v_permlane16_swap_b32', IB[r], IB[4 + r])
    for r in range(4):
        a.valu('v_add_f32', IB[r], IB[r], IB[4 + r])
    for r in range(4):
        a.valu('v_mov_b32', IB[4 + r], IB[r])
    for r in range(4):
        a.valu('v_permlane32_swap_b32', IB[r], IB[4 + r])
    for r in range(4):
        a.valu('v_add_f32', IB[r], IB[r], IB[4 + r])
    for r in range(1, 4):
        a.valu('v_cmp_eq_u32', 'vcc', r, vG)
        a.valu('v_cndmask_b32', IB[0], IB[0], IB[r], 'vcc')
    rbf(IB[0], IB[0])
    a.wait_lgkm(0)
    a.valu('v_lshlrev_b32', vT[7], 16, vT[7])
    a.valu('v_add_f32', IB[0], IB[0], vT[7])
    a.valu('v_cvt_pk_bf16_f32', IB[0], IB[0], IB[0])
    a.vstore('buffer_store_short', IB[0], vT[6], rOUT, 0, 0)
    a.label('L_endp')
    stamp('end')
    stamp_store()
    a.label('L_end')
    A('  s_endpgm')
    A('.section .rodata,"a"')
    A('.p2align 6')
    A(f'.amdhsa_kernel {KNAME}')
    A('  .amdhsa_next_free_vgpr 256')
    A('  .amdhsa_next_free_sgpr 102')
    A('  .amdhsa_accum_offset 256')
    A('  .amdhsa_group_segment_fixed_size 0')
    A('  .amdhsa_kernarg_size 88')
    A('  .amdhsa_user_sgpr_count 2')
    A('  .amdhsa_user_sgpr_kernarg_segment_ptr 1')
    A('  .amdhsa_system_sgpr_workgroup_id_x 1')
    A('  .amdhsa_float_denorm_mode_32 3')
    A('.end_amdhsa_kernel')
    if prof:
        A('; STAMPS ' + ' '.join(stamp_names))
    return a.text()


if __name__ == '__main__':
    out = [x for x in sys.argv[1:] if not x.startswith('--')]
    path = out[0] if out else os.path.join(os.path.dirname(os.path.abspath(__file__)), '..', 'cdna_kernels', NAME + '.s')
    kw = {}
    for x in sys.argv[1:]:
        if x.startswith('--') and '=' in x:
            k_, v_ = x[2:].split('=')
            kw[k_] = int(v_)
    open(path, 'w').write(build(debug='--debug' in sys.argv, prof='--prof' in sys.argv, **kw))
    print('wrote', path)
```

```python
import os
import sys

sys.path.insert(0, os.path.dirname(os.path.abspath(__file__)))
from asmlib import Asm, V, S

NAME = 'sequential_preLN__mha_block_cached__dense_activation_silu__decode'
KNAME = NAME + '_kernel'

NWG = 256
NF = 28
LOG2E = 1.4426950408889634
CS = LOG2E / 16.0

WS_H = 0
WS_EPOCH = 24576
WS_INBOX = 32768
WS_Q = 0x40000
WS_POOL = 0x60000
WS_MAIL = 0x80000
WS_IN1 = 0x100000
WS_BYTES = 2 << 20
WS_DBG = 2 << 20
DB_INITF = 40

L_XN2 = 0
L_HB = 4096
L_GB = 8192
L_QBF = 8704
L_ML = 9216
L_CNT = 9344
L_FLAG = 9348
L_SVC = 9352
L_ARR = 9356
L_SAME = 9360
L_OP = 9472
L_YP = 17920
L_WQS = L_YP
L_W1 = 34816
L_W2 = L_W1 + 57344
LDS_BYTES = L_W2 + 57344

SPIN_BOUND = 200000
BIGOFF = 0x1000000


def build(debug=False, prof=False, npriv=112, xmap=1, gsleep=0, ldf=0, stf=0, use_c=1, skipq=0, nocomp=0, nowo=0, notail=0, prio=2, smalllds=0, nodma=0, nowq=0, wnt=1, psleep=0, kpol=0, vpol=0, diag=0, fastx=1, rmask=1, nffn=80, rot=0):
    POL = ['nt', '', 'nt sc0', 'nt sc1', 'sc1']
    KP, VP = POL[kpol], POL[vpol]
    WF = 'nt' if wnt else ''
    LDF = ['sc1', 'sc0 sc1'][ldf]
    STF = ['sc1', 'sc0 sc1'][stf]
    a = Asm()
    A = a.raw
    hdr = open(os.path.join(os.path.dirname(os.path.abspath(__file__)), '..', 'cdna_kernels', NAME + '.s.ref')).read().split('\n')
    for ln in hdr:
        if ln.startswith(';') and '@launch' not in ln:
            A(ln)
        elif '@launch' in ln:
            A(f'; @launch grid=({NWG},1,1) block=(512,1,1) lds={LDS_BYTES if not smalllds else 16384}')
        else:
            break
    A('.amdgcn_target "amdgcn-amd-amdhsa--gfx950"')
    A('.text')
    A(f'.globl {KNAME}')
    A('.p2align 8')
    A(f'.type {KNAME},@function')
    A(f'{KNAME}:')

    sID = S(2)
    sF = S(0)
    sGrp = S(3)
    sW, sB, sH, sSP = S(4), S(5), S(6), S(7)
    sT0, sT1, sT2, sT3, sT4, sT5 = S(8), S(9), S(10), S(11), S(12), S(13)
    sNext = S(14)
    sIdx = S(15)
    P = lambda i: S(16 + 2 * i, 2)
    pOUT, pDBG, pWS = S(32, 2), S(34, 2), S(36, 2)
    sM = S(38)
    sMn = S(39)
    rK, rV, rWQ, rWO, rX, rW1, rW2, rOUT, rDBG, rWS = [S(40 + 4 * i, 4) for i in range(10)]
    sPool = S(80, 2)
    sExh = S(82)
    sBase, sNP, sPB = S(28), S(29), S(30)
    sCS = S(83)
    mT = [S(84 + 2 * t, 2) for t in range(4)]
    mJ8 = S(92, 2)
    m56 = S(94, 2)
    mG2 = S(96, 2)
    sX0, sX1 = S(98), S(99)
    sXP = S(100, 2)
    sEp = S(32)
    rWSD = rWQ
    LNS = [S(16), S(17), S(18), S(19), S(20), S(21), S(0), S(1)]
    sCnt = S(33)

    vTid = V(0)
    vLane, vJ, vG = V(1), V(2), V(3)
    vKoff, vKoff2, vVoff, vVoff2 = V(4), V(5), V(6), V(7)
    vMask = V(8, 4)
    vWoOff, vWoRem = V(12), V(13)
    vL = V(14)
    vL16 = V(15)
    vT = V(16, 8)
    OD0, OD1 = V(24, 4), V(28, 4)
    KD = V(32, 4)
    PB = V(36, 16)
    QB = V(52, 32)
    KB, VB, KB2, VB2 = V(84, 32), V(116, 32), V(148, 32), V(180, 32)
    XT = V(212, 44)
    WO = V(148, 56)
    vIdx, vOne, vCntA, vChk = XT[0], XT[1], XT[2], XT[3]
    vOw, vOr, vMr, vYw, vAt = XT[4], XT[5], XT[6], XT[7], XT[8]
    vPubOff, vGatOff, vGatML = XT[9], XT[10], XT[11]

    def dump(reg, slot):
        if not debug:
            return
        a.salu('s_lshl_b32', sX0, sID, 3)
        a.salu('s_add_u32', sX0, sX0, sW)
        a.salu('s_lshl_b32', sX0, sX0, 14)
        a.salu('s_add_u32', sX0, sX0, WS_DBG + slot * 256)
        a.valu('v_lshlrev_b32', XT[43], 2, vLane)
        a.vstore('buffer_store_dword', reg, XT[43], rWSD, sX0)

    stamp_names = []
    early = []

    DIAG = {'v_issued': 2, 'q_got': 3, 's_issued': 4, 'v_B3': 5, 'v_gath': 6, 'atom': 7, 'poll': 8, 'B6': 9, 'end': 11, 's_q': 12}

    def diag_put(slot, sreg, invert=False):
        r_ = S(25) if invert else S(24)
        a.salu('s_not_b32' if invert else 's_mov_b32', r_, sreg)
        a.misc(f's_atomic_umax {r_}, {pDBG}, {slot * 4}')

    def stamp(name, late=True):
        if diag and name in DIAG:
            wv = 0 if name[:2] in ('v_', 'q_') else 4 if name[:2] == 's_' else 7
            L_d = a.newlabel('diag')
            a.salu('s_cmp_lg_u32', None, sW, wv)
            a.branch('s_cbranch_scc1', L_d)
            a.misc('s_memrealtime s[22:23]')
            a.wait_lgkm(0)
            diag_put(DIAG[name], S(22))
            if name == 'v_B3':
                diag_put(13, S(22), True)
            if name == 'v_issued':
                a.wait_lgkm(0)
                diag_put(0, S(26), True)
                diag_put(1, S(26))
            a.label(L_d)
            return
        if not prof:
            return
        k = len(stamp_names)
        stamp_names.append(name)
        a.misc('s_memrealtime s[22:23]')
        a.wait_lgkm(0)
        if late:
            a.valu('v_writelane_b32', V(0), S(22), k, rmw=True)
        else:
            a.salu('s_mov_b32', S(24 + len(early)), S(22))
            early.append(k)

    def stamp_val(name, sreg):
        if not prof:
            return
        k = len(stamp_names)
        stamp_names.append(name)
        a.valu('v_writelane_b32', V(0), sreg, k, rmw=True)

    def stamp_flush_early():
        if not prof:
            return
        for i, k in enumerate(early):
            a.valu('v_writelane_b32', V(0), S(24 + i), k, rmw=True)

    def stamp_store():
        if not prof:
            return
        a.salu('s_mov_b64', 'exec', -1)
        a.salu('s_lshl_b32', sX0, sID, 3)
        a.salu('s_add_u32', sX0, sX0, sW)
        a.salu('s_lshl_b32', sX0, sX0, 8)
        a.salu('s_add_u32', sX0, sX0, WS_DBG)
        a.valu('v_lshlrev_b32', V(23), 2, vLane)
        a.vstore('buffer_store_dword', V(0), V(23), rWSD, sX0)

    def srd(r, ptr, nbytes, off=None):
        if off is None:
            a.salu('s_mov_b32', r[0], ptr[0])
            a.salu('s_mov_b32', r[1], ptr[1])
        else:
            a.salu('s_add_u32', r[0], ptr[0], off)
            a.salu('s_addc_u32', r[1], ptr[1], 0)
        a.salu('s_mov_b32', r[2], nbytes)
        a.salu('s_mov_b32', r[3], 0x00020000)

    def wave_red_multi(op, vs, sdsts, quads_equal=False):
        ctrls = ['row_ror:4', 'row_ror:8'] if quads_equal else ['quad_perm:[1,0,3,2]', 'quad_perm:[2,3,0,1]', 'row_half_mirror', 'row_mirror']
        for c in ctrls:
            for v in vs:
                a.dpp(op, v, v, v, ctrl=c)
        for v in vs:
            a.dpp(op, v, v, v, ctrl='row_bcast:15', row_mask=0xa)
        for v in vs:
            a.dpp(op, v, v, v, ctrl='row_bcast:31', row_mask=0xc)
        for v, s_ in zip(vs, sdsts):
            a.valu('v_readlane_b32', s_, v, 63)

    def wave_red(op, v, sdst, quads_equal=False):
        wave_red_multi(op, [v], [sdst], quads_equal)

    def rbf(dst, src):
        a.valu('v_cvt_pk_bf16_f32', dst, src, src)
        a.valu('v_and_b32', dst, 0xffff0000, dst)

    def unpack8(xf, raw):
        for i in range(4):
            a.valu('v_lshlrev_b32', xf[2 * i], 16, raw[i])
            a.valu('v_and_b32', xf[2 * i + 1], 0xffff0000, raw[i])

    def layernorm(rows):
        def each(f):
            for r_ in rows:
                f(*r_)
        each(lambda xf, t, s0, s1: a.valu('v_add_f32', t[0], xf[0], xf[1]))
        each(lambda xf, t, s0, s1: a.valu('v_add_f32', t[1], xf[2], xf[3]))
        each(lambda xf, t, s0, s1: a.valu('v_add_f32', t[2], xf[4], xf[5]))
        each(lambda xf, t, s0, s1: a.valu('v_add_f32', t[3], xf[6], xf[7]))
        each(lambda xf, t, s0, s1: a.valu('v_add_f32', t[0], t[0], t[1]))
        each(lambda xf, t, s0, s1: a.valu('v_add_f32', t[2], t[2], t[3]))
        each(lambda xf, t, s0, s1: a.valu('v_add_f32', t[0], t[0], t[2]))
        wave_red_multi('v_add_f32', [r_[1][0] for r_ in rows], [r_[2] for r_ in rows])
        each(lambda xf, t, s0, s1: a.valu('v_mov_b32', t[0], s0))
        each(lambda xf, t, s0, s1: a.valu('v_mul_f32', t[0], 1.0 / 448.0, t[0]))
        each(lambda xf, t, s0, s1: a.valu('v_sub_f32', t[1], xf[0], t[0]))
        each(lambda xf, t, s0, s1: a.valu('v_mul_f32', t[2], t[1], t[1]))
        for i in range(1, 8):
            each(lambda xf, t, s0, s1: a.valu('v_sub_f32', t[1], xf[i], t[0]))
            each(lambda xf, t, s0, s1: a.valu('v_fmac_f32', t[2], t[1], t[1]))
        each(lambda xf, t, s0, s1: a.valu('v_cndmask_b32', t[2], 0, t[2], m56))
        wave_red_multi('v_add_f32', [r_[1][2] for r_ in rows], [r_[3] for r_ in rows])
        each(lambda xf, t, s0, s1: rbf(t[0], t[0]))
        each(lambda xf, t, s0, s1: a.valu('v_mov_b32', t[2], s1))
        each(lambda xf, t, s0, s1: a.valu('v_mul_f32', t[2], 1.0 / 448.0, t[2]))
        each(lambda xf, t, s0, s1: rbf(t[2], t[2]))
        each(lambda xf, t, s0, s1: a.valu('v_add_f32', t[2], 1e-5, t[2]))
        each(lambda xf, t, s0, s1: rbf(t[2], t[2]))
        each(lambda xf, t, s0, s1: a.valu('v_sqrt_f32', t[2], t[2]))
        each(lambda xf, t, s0, s1: rbf(t[2], t[2]))
        each(lambda xf, t, s0, s1: a.valu('v_rcp_f32', t[2], t[2]))
        for i in range(0, 8, 2):
            each(lambda xf, t, s0, s1: a.valu('v_sub_f32', xf[i], xf[i], t[0]))
            each(lambda xf, t, s0, s1: a.valu('v_sub_f32', xf[i + 1], xf[i + 1], t[0]))
            each(lambda xf, t, s0, s1: a.valu('v_cvt_pk_bf16_f32', t[1], xf[i], xf[i + 1]))
            each(lambda xf, t, s0, s1: a.valu('v_lshlrev_b32', xf[i], 16, t[1]))
            each(lambda xf, t, s0, s1: a.valu('v_and_b32', xf[i + 1], 0xffff0000, t[1]))
            each(lambda xf, t, s0, s1: a.valu('v_mul_f32', xf[i], xf[i], t[2]))
            each(lambda xf, t, s0, s1: a.valu('v_mul_f32', xf[i + 1], xf[i + 1], t[2]))

    def spin_until(load_fn, cond_fn, first_check=True, sleep=1):
        done = a.newlabel('done')
        loop = a.newlabel('spin')
        if first_check:
            cond_fn()
            a.branch('s_cbranch_scc1', done)
        a.salu('s_mov_b32', sT5, SPIN_BOUND)
        a.label(loop)
        load_fn()
        a.wait_vm0()
        cond_fn()
        a.branch('s_cbranch_scc1', done)
        if sleep:
            a.misc(f's_sleep {sleep}')
        a.salu('s_sub_u32', sT5, sT5, 1)
        a.salu('s_cmp_lg_u32', None, sT5, 0)
        a.branch('s_cbranch_scc1', loop)
        a.label(done)

    def issue_k(buf, soff):
        for i in range(8):
            o = (i // 2) * 2048 + (i % 2) * 256
            a.vload('buffer_load_dwordx4', buf[4 * i:4 * i + 4], vKoff if o < 4096 else vKoff2, rK, soff, o % 4096, KP)

    def issue_v(buf, soff):
        for i in range(8):
            o = (i // 2) * 2048 + (i % 2) * 256
            a.vload('buffer_load_dwordx4', buf[4 * i:4 * i + 4], vVoff if o < 4096 else vVoff2, rV, soff, o % 4096, VP)

    def koff(i):
        o = (i // 2) * 2048 + (i % 2) * 256
        return (vKoff if o < 4096 else vKoff2), o % 4096

    def voff(i):
        o = (i // 2) * 2048 + (i % 2) * 256
        return (vVoff if o < 4096 else vVoff2), o % 4096

    def issue_static_units():
        assert fastx and xmap == 1
        a.salu('s_and_b32', sT2, sGrp, 1)
        a.salu('s_lshl_b32', sT2, sT2, 8)
        a.salu('s_add_u32', sT2, sT2, sGrp)
        a.salu('s_cmp_lt_u32', None, sT2, 2 * NF)
        a.salu('s_cselect_b32', sT2, npriv - min(nffn, npriv), 0)
        a.salu('s_sub_u32', sT2, npriv, sT2)
        a.salu('s_add_u32', sPB, sT2, 3 * npriv)
        a.salu('s_mul_i32', sBase, sSP, npriv)
        a.salu('s_add_u32', sBase, sBase, sT2)
        a.salu('s_sub_u32', sBase, sBase, npriv)
        a.salu('s_cmp_eq_u32', None, sSP, 0)
        a.salu('s_cselect_b32', sBase, 0, sBase)
        a.salu('s_cselect_b32', sNP, sT2, npriv)
        a.salu('s_add_u32', sT2, sBase, sW)
        a.salu('s_sub_u32', sT2, sT2, 4)
        a.salu('s_lshl_b32', sT2, sT2, 13)
        a.salu('s_add_u32', sT3, sT2, 4 * 8192)
        issue_k(KB, sT2)
        issue_v(VB, sT2)
        issue_k(KB2, sT3)
        issue_v(VB2, sT3)
        if not use_c:
            return
        L_cf = a.newlabel('cf')
        L_cd = a.newlabel('cd')
        a.salu('s_cmp_lt_u32', None, sF, NF)
        a.branch('s_cbranch_scc1', L_cf)
        a.salu('s_add_u32', sT3, sT2, 8 * 8192)
        a.salu('s_sub_u32', sT4, sW, 4)
        a.salu('s_lshl_b32', sT4, sT4, 14)
        a.salu('s_add_u32', sT4, sT4, L_W1)
        for i in range(16):
            vo, o = koff(i) if i < 8 else voff(i - 8)
            a.salu('s_add_u32', sT0, sT4, i * 1024 - o)
            a.salu('s_mov_b32', 'm0', sT0)
            a.vload_lds(vo, rK if i < 8 else rV, sT3, o, KP if i < 8 else VP)
        a.branch('s_branch', L_cd)
        a.label(L_cf)
        a.valu('v_mov_b32', vT[0], BIGOFF)
        for i in range(16):
            a.vload('buffer_load_dword', XT[20], vT[0], rK, 0, 0)
        a.label(L_cd)

    a.salu('s_cmp_ge_u32', None, sID, NWG)
    a.branch('s_cbranch_scc1', 'L_end')
    if rot:
        a.salu('s_add_u32', sID, sID, rot)
        a.salu('s_and_b32', sID, sID, 255)
    if prof or diag:
        a.misc('s_memrealtime s[84:85]')
    a.misc('s_load_dwordx16 s[16:31], s[0:1], 0')
    a.misc('s_load_dwordx4 s[32:35], s[0:1], 64')
    a.misc('s_load_dwordx2 s[36:37], s[0:1], 80')
    a.valu('v_lshrrev_b32', vT[0], 6, vTid)
    a.valu('v_and_b32', vLane, 63, vTid)
    a.valu('v_readfirstlane_b32', sW, vT[0])
    a.valu('v_and_b32', vJ, 15, vTid)
    a.valu('v_lshrrev_b32', vG, 4, vLane)
    a.valu('v_bfe_u32', vT[1], vLane, 2, 2)
    a.valu('v_and_b32', vT[2], 3, vLane)
    a.valu('v_lshlrev_b32', vT[1], 9, vT[1])
    a.valu('v_lshlrev_b32', vT[2], 4, vT[2])
    a.valu('v_lshl_add_u32', vKoff, vG, 6, vT[1])
    a.valu('v_add_u32', vKoff, vKoff, vT[2])
    a.valu('v_add_u32', vKoff2, 4096, vKoff)
    a.valu('v_lshlrev_b32', vL16, 4, vLane)
    a.valu('v_lshlrev_b32', vVoff, 9, vG)
    a.valu('v_lshl_add_u32', vVoff, vJ, 4, vVoff)
    a.valu('v_add_u32', vVoff2, 4096, vVoff)
    if xmap == 1:
        a.salu('s_lshr_b32', sT0, sID, 3)
        a.salu('s_and_b32', sT2, sT0, 7)
        a.salu('s_mul_i32', sT1, sT2, 11)
        a.salu('s_lshr_b32', sT1, sT1, 5)
        a.salu('s_mul_i32', sT1, sT1, 3)
        a.salu('s_sub_u32', sT1, sT2, sT1)
        a.salu('s_add_u32', sT1, sT1, 1)
        a.salu('s_bfe_u32', sSP, sID, (2 << 16) | 1)
        a.salu('s_and_b32', sT3, sSP, sT1)
        a.salu('s_bcnt1_i32_b32', sT3, sT3)
        a.salu('s_xor_b32', sT3, sT3, sID)
        a.salu('s_and_b32', sT3, sT3, 1)
        a.salu('s_lshl_b32', sGrp, sT0, 1)
        a.salu('s_add_u32', sGrp, sGrp, sT3)
    else:
        a.salu('s_lshr_b32', sGrp, sID, 2)
        a.salu('s_and_b32', sSP, sID, 3)
    a.salu('s_lshr_b32', sB, sGrp, 4)
    a.salu('s_and_b32', sH, sGrp, 15)
    a.salu('s_lshl_b32', sT1, sGrp, 22)
    a.salu('s_lshr_b32', sT5, sID, 3)
    if fastx:
        a.salu('s_and_b32', sT4, sID, 7)
    else:
        a.salu('s_lshl_b32', sT4, sT5, 1)
        a.salu('s_xor_b32', sT4, sT4, sID)
        a.salu('s_and_b32', sT4, sT4, 7)
    a.salu('s_cmp_eq_u32', None, sT4, 0)
    a.salu('s_cselect_b32', sT5, sT5, 255)
    a.salu('s_cmp_lt_u32', None, sT5, NF)
    a.salu('s_cselect_b32', sT2, 8, 12 if use_c else 8)
    a.valu('v_mov_b32', vT[2], sT2)
    a.valu('v_mov_b32', vT[3], 0)
    a.valu('v_mov_b32', vCntA, L_CNT)
    a.valu('v_mov_b32', vT[4], 0)
    a.valu('v_mov_b32', vT[5], 0)
    a.ds('ds_write_b128', vCntA, vT[2:6])
    a.wait_lgkm(0)
    a.salu('s_mov_b32', sF, sT5)
    if diag:
        a.salu('s_mov_b32', S(26), S(84))
    a.barrier()
    if prof:
        stamp_names.append('entry')
        a.valu('v_writelane_b32', V(0), S(84), 0, rmw=True)

    def xcc_word(dst, n):
        a.misc(f's_getreg_b32 {sX0}, hwreg(HW_REG_XCC_ID)')
        a.salu('s_and_b32', sX0, sX0, 15)
        a.salu('s_mul_i32', sX1, sX0, sX0)
        a.salu('s_lshl_b32', sX0, sX0, 8)
        a.salu('s_lshl_b32', sX1, sX1, 18)
        a.salu('s_or_b32', dst, sX0, sX1)
        a.salu('s_or_b32', dst, dst, 1)
        if n != 1:
            a.salu('s_mul_i32', dst, dst, n)

    def common_setup():
        srd(rWS, pWS, WS_BYTES)
        srd(rOUT, pOUT, 4 * 896)
        srd(rDBG, pDBG, 256)
        a.salu('s_mov_b32', sXP[0], P(0)[0])
        a.salu('s_mov_b32', sXP[1], P(0)[1])
        if prof:
            a.salu('s_mov_b32', sCnt, 0)
        a.valu('v_cmp_gt_u32_e64', mJ8, 8, vJ)
        a.valu('v_cmp_gt_u32_e64', m56, 56, vLane)
        a.valu('v_cmp_gt_u32_e64', mG2, 2, vG)
        a.valu('v_and_b32', vT[2], 1, vJ)
        a.valu('v_lshlrev_b32', vT[2], 4, vT[2])
        a.valu('v_mov_b32', vT[3], 0xffff)
        a.valu('v_lshlrev_b32', vT[3], vT[2], vT[3])
        a.valu('v_bfe_u32', vT[2], vJ, 1, 2)
        for r in range(4):
            a.valu('v_cmp_eq_u32', 'vcc', r, vT[2])
            a.valu('v_cndmask_b32', vMask[r], 0, vT[3], 'vcc')
        a.valu('v_mov_b32', vOne, 1)
        a.salu('s_mov_b32', sCS, CS)
        a.valu('v_lshrrev_b32', vAt, 5, vLane)
        a.valu('v_lshlrev_b32', vAt, 15, vAt)
        a.valu('v_bfe_u32', vT[6], vLane, 1, 1)
        a.valu('v_lshl_add_u32', vAt, vT[6], 14, vAt)
        a.valu('v_and_b32', vT[6], 1, vLane)
        a.valu('v_lshl_add_u32', vAt, vT[6], 5, vAt)
        a.valu('v_bfe_u32', vT[7], vLane, 2, 3)
        a.valu('v_lshl_add_u32', vAt, vT[7], 2, vAt)

    L_stream = 'L_stream'
    L_b3 = 'L_b3'
    a.salu('s_cmp_ge_u32', None, sW, 4)
    a.branch('s_cbranch_scc1', L_stream)

    L_svc = a.newlabel('svc')
    L_svc2 = a.newlabel('svc2')
    if notail == 1:
        a.branch('s_branch', 'L_end')
    a.misc('s_setprio 3')
    a.salu('s_mul_i32', sT2, sW, 896)
    srd(rX, P(0), 896, sT2)
    srd(rWQ, P(3), 448 * 8192 if not nowq else 0)
    XR = KB[0:4]
    vEp = XT[12]
    a.vload('buffer_load_dwordx4', XR, vL16, rX)
    a.valu('v_lshrrev_b32', vT[1], 1, vLane)
    a.valu('v_lshlrev_b32', vT[1], 13, vT[1])
    a.valu('v_and_b32', vT[2], 1, vLane)
    a.valu('v_lshl_add_u32', vT[1], vT[2], 4, vT[1])
    a.salu('s_lshl_b32', sT2, sSP, 2)
    a.salu('s_add_u32', sT2, sT2, sB)
    a.salu('s_lshl_b32', sT2, sT2, 5)
    a.salu('s_lshl_b32', sT3, sH, 9)
    a.salu('s_add_u32', sT2, sT2, sT3)
    a.salu('s_lshl_b32', sT3, sW, 18)
    a.salu('s_add_u32', sT2, sT2, sT3)
    a.salu('s_lshl_b32', sT3, sW, 10)
    a.salu('s_add_u32', sT3, sT3, L_WQS)
    for i in range(4):
        a.salu('s_mov_b32', 'm0', sT3)
        a.vload_lds(vT[1], rWQ, sT2, 0, WF)
        if i < 3:
            a.salu('s_add_u32', sT2, sT2, 4 * 32 * 8192)
            a.salu('s_add_u32', sT3, sT3, 4096)
    srd(rWS, pWS, WS_BYTES)
    a.salu('s_lshl_b32', sT2, sW, 24)
    a.valu('v_mov_b32', vT[2], sT2)
    a.salu('s_mov_b32', sT2, WS_EPOCH)
    a.vload('buffer_load_dword', vEp, vT[2], rWS, sT2, 0, LDF)
    MK = VB[0:4]
    ZR = VB[4:8]
    for i in range(4):
        a.valu('v_mov_b32', MK[i], -1)
        a.valu('v_mov_b32', ZR[i], 0)
    a.salu('s_lshl_b32', sT2, sGrp, 2)
    a.salu('s_add_u32', sT2, sT2, sSP)
    a.salu('s_lshl_b32', sT2, sT2, 2)
    a.salu('s_add_u32', sT2, sT2, sW)
    a.salu('s_lshl_b32', sT2, sT2, 9)
    a.salu('s_add_u32', sT2, sT2, WS_MAIL)
    a.valu('v_lshrrev_b32', vT[1], 5, vLane)
    a.valu('v_lshl_add_u32', vT[1], vT[1], 24, vL16)
    a.vstore('buffer_store_dwordx4', MK, vT[1], rWS, sT2, 0, STF)
    a.salu('s_lshl_b32', sT2, sGrp, 8)
    a.salu('s_add_u32', sT2, sT2, WS_POOL)
    a.salu('s_xor_b32', sT3, sW, 1)
    a.salu('s_add_u32', sT3, sT3, sSP)
    a.valu('v_add_u32', vT[1], sT3, vLane)
    a.valu('v_lshlrev_b32', vT[1], 24, vT[1])
    a.vstore('buffer_store_dword', ZR[0], vT[1], rWS, sT2, 0, STF)
    n_after_x = 7
    srd(rWO, P(4), 4096 * 896 if not nowo else 0)
    srd(rW1, P(6), 448 * 3584 if not nodma else 0)
    srd(rW2, P(7), 448 * 3584 if not nodma else 0)
    common_setup()
    stamp('v_issued')
    XF = KB2[0:8]
    a.misc(f's_waitcnt vmcnt({n_after_x})')
    stamp('v_x')
    unpack8(XF, XR)
    layernorm([(XF, vT[0:4], sX0, sX1)])
    for i in range(4):
        a.valu('v_cvt_pk_bf16_f32', XR[i], XF[2 * i], XF[2 * i + 1])
    a.salu('s_mul_i32', sT2, sW, 896)
    a.valu('v_add_u32', vT[0], sT2, vL16)
    a.salu('s_mov_b64', 'exec', m56)
    a.ds('ds_write_b128', vT[0], XR, offset=L_XN2)
    a.salu('s_mov_b64', 'exec', 1)
    a.misc('s_waitcnt vmcnt(0) lgkmcnt(0)')
    a.misc(f'ds_add_u32 {vCntA}, {vOne} offset:8')
    a.salu('s_mov_b64', 'exec', -1)
    stamp('v_ln')
    a.salu('s_cmp_lg_u32', None, sW, 0)
    a.branch('s_cbranch_scc1', L_svc)
    QA = V(148, 56)
    QF = V(84, 56)
    a.valu('v_and_b32', vT[6], 3, vLane)
    a.valu('v_mul_u32_u24', vT[6], 896, vT[6])
    a.valu('v_lshl_add_u32', vT[6], vG, 4, vT[6])
    a.valu('v_bfe_u32', vT[4], vLane, 2, 2)
    a.valu('v_lshl_add_u32', vT[4], vG, 3, vT[4])
    a.valu('v_lshlrev_b32', vT[4], 5, vT[4])
    a.valu('v_and_b32', vT[5], 3, vLane)
    a.valu('v_lshl_add_u32', vT[4], vT[5], 3, vT[4])
    L_sw = a.newlabel('sw')
    L_sok = a.newlabel('sok')
    a.salu('s_mov_b32', sT5, SPIN_BOUND * 8)
    a.label(L_sw)
    a.ds('ds_read_b32', vT[0], vCntA, offset=8)
    a.wait_lgkm(0)
    a.valu('v_readfirstlane_b32', sT2, vT[0])
    a.salu('s_cmp_ge_u32', None, sT2, 4)
    a.branch('s_cbranch_scc1', L_sok)
    a.salu('s_sub_u32', sT5, sT5, 1)
    a.salu('s_cmp_lg_u32', None, sT5, 0)
    a.branch('s_cbranch_scc1', L_sw)
    a.label(L_sok)
    stamp('q_wq')
    for ks in range(14):
        a.ds('ds_read_b128', QA[4 * ks:4 * ks + 4], vT[6], offset=L_XN2 + 64 * ks)
    for ks in range(14):
        for qq in range(2):
            a.ds('ds_read_b64_tr_b16', QF[ks * 4 + 2 * qq:ks * 4 + 2 * qq + 2], vT[4], offset=L_WQS + (32 * ks + 4 * qq) * 32)
    a.valu('v_add_u32', vEp, 1, vEp)
    for ks in range(14):
        a.wait_lgkm(min(2 * (13 - ks), 15))
        a.mfma(KD, QA[4 * ks:4 * ks + 4], QF[4 * ks:4 * ks + 4], 0 if ks == 0 else KD)
    a.valu('v_lshlrev_b32', vT[4], 10, vG)
    a.valu('v_lshl_add_u32', vT[4], vJ, 2, vT[4])
    a.valu('v_and_b32', vT[5], 1, vJ)
    a.valu('v_lshl_add_u32', vT[4], vT[5], 24, vT[4])
    a.salu('s_lshl_b32', sT2, sSP, 2)
    a.salu('s_add_u32', sT2, sT2, sB)
    a.salu('s_lshl_b32', sT2, sT2, 6)
    a.salu('s_lshl_b32', sT3, sH, 12)
    a.salu('s_add_u32', sT2, sT2, sT3)
    a.salu('s_add_u32', sT2, sT2, WS_Q)
    for r in range(1, 4):
        a.valu('v_cmp_eq_u32', 'vcc', r, vG)
        a.valu('v_cndmask_b32', KD[0], KD[0], KD[r], 'vcc')
    a.dpp('v_mov_b32', KD[1], KD[0], ctrl='quad_perm:[1,0,3,2]')
    a.valu('v_cvt_pk_bf16_f32', PB[0], KD[0], KD[1])
    a.valu('v_mov_b32', PB[1], vEp)
    a.vstore('buffer_store_dwordx2', PB[0:2], vT[4], rWS, sT2, 0, STF)
    a.salu('s_lshl_b32', sT4, sB, 10)
    a.salu('s_add_u32', sT4, sT4, sT3)
    a.salu('s_add_u32', sT4, sT4, WS_Q)
    a.valu('v_readfirstlane_b32', sEp, vEp)
    QG = PB[4:8]

    def ldq():
        a.vload('buffer_load_dwordx4', QG, vL16, rWS, sT4, 0, LDF)

    def condq():
        a.valu('v_cmp_ne_u32_e64', S(10, 2), sEp, QG[1])
        a.valu('v_cmp_ne_u32', 'vcc', sEp, QG[3])
        a.salu('s_or_b64', S(10, 2), S(10, 2), 'vcc')
        a.salu('s_cmp_eq_u64', None, S(10, 2), 0)

    spin_until(ldq, condq, first_check=False, sleep=0)
    a.valu('v_mov_b32', QG[1], QG[2])
    a.valu('v_lshlrev_b32', vT[4], 3, vLane)
    a.ds('ds_write_b64', vT[4], QG[0:2], offset=L_QBF)
    a.wait_lgkm(0)
    a.ds('ds_write_b32', vCntA, vOne, offset=4)
    stamp('q_got')
    a.branch('s_branch', L_svc2)
    a.label(L_svc)
    L_nodma = a.newlabel('nodma')
    a.salu('s_cmp_ge_u32', None, sF, NF)
    a.branch('s_cbranch_scc1', L_nodma)
    a.salu('s_sub_u32', sT2, sW, 1)
    L_ini = a.newlabel('ini')
    a.label(L_ini)
    a.salu('s_lshl_b32', sT3, sT2, 10)
    a.salu('s_lshl_b32', sT4, sF, 14)
    a.salu('s_add_u32', sT4, sT4, WS_IN1)
    a.salu('s_mul_i32', sT5, sF, 7168)
    a.salu('s_add_u32', sT5, sT5, WS_INBOX - 16384)
    a.salu('s_cmp_lt_u32', None, sT2, 16)
    a.salu('s_cselect_b32', sT4, sT4, sT5)
    a.salu('s_add_u32', sT4, sT4, sT3)
    a.vstore('buffer_store_dwordx4', MK, vL16, rWS, sT4, 0, STF)
    a.salu('s_add_u32', sT2, sT2, 3)
    a.salu('s_cmp_lt_u32', None, sT2, 23)
    a.branch('s_cbranch_scc1', L_ini)
    a.valu('v_mul_u32_u24', vT[1], 896, vG)
    a.valu('v_lshl_add_u32', vT[1], vJ, 2, vT[1])
    a.valu('v_lshrrev_b32', vT[2], 3, vJ)
    a.valu('v_lshl_add_u32', vT[1], vT[2], 24, vT[1])
    a.salu('s_lshl_b32', sT4, sF, 5)
    a.vstore('buffer_store_dword', MK[0], vT[1], rWS, sT4, WS_H, STF)
    a.salu('s_mov_b64', 'exec', 1)
    a.wait_vm0()
    a.misc(f'ds_add_rtn_u32 {vIdx}, {vCntA}, {vOne} offset:12')
    a.wait_lgkm(0)
    a.salu('s_mov_b64', 'exec', -1)
    a.valu('v_readfirstlane_b32', sT2, vIdx)
    L_nosig = a.newlabel('nosig')
    a.salu('s_cmp_lg_u32', None, sT2, 2)
    a.branch('s_cbranch_scc1', L_nosig)
    xcc_word(sT0, 1)
    a.misc(f's_atomic_add {sT0}, {pDBG}, {DB_INITF}')
    a.label(L_nosig)
    a.valu('v_lshrrev_b32', vT[6], 3, vLane)
    a.valu('v_mul_u32_u24', vT[6], 3584, vT[6])
    a.valu('v_and_b32', vT[7], 7, vLane)
    a.valu('v_lshl_add_u32', vT[6], vT[7], 4, vT[6])
    a.salu('s_sub_u32', sT2, sW, 1)
    L_dma = a.newlabel('dma')
    a.label(L_dma)
    a.salu('s_lshl_b32', sT3, sT2, 10)
    a.salu('s_mul_i32', sT4, sT2, 8 * 3584)
    a.salu('s_lshl_b32', sT5, sF, 7)
    a.salu('s_add_u32', sT4, sT4, sT5)
    a.salu('s_mul_i32', sT5, sF, 57344)
    a.salu('s_add_u32', sT5, sT5, sT3)
    a.salu('s_add_u32', sT0, sT3, L_W1)
    a.salu('s_mov_b32', 'm0', sT0)
    a.vload_lds(vT[6], rW1, sT4, 0, WF)
    a.salu('s_add_u32', sT0, sT3, L_W2)
    a.salu('s_mov_b32', 'm0', sT0)
    a.vload_lds(vL16, rW2, sT5, 0, WF)
    a.salu('s_add_u32', sT2, sT2, 3)
    a.salu('s_cmp_lt_u32', None, sT2, 56)
    a.branch('s_cbranch_scc1', L_dma)
    a.label(L_nodma)
    a.label(L_svc2)
    if debug or prof:
        srd(rWSD, pWS, (2 << 20) + (64 << 20))
    a.valu('v_mul_u32_u24', vWoOff, 896, vG)
    a.valu('v_lshl_add_u32', vWoOff, vJ, 4, vWoOff)
    a.valu('v_and_b32', vT[2], 7, vJ)
    a.valu('v_lshlrev_b32', vT[3], 4, vT[2])
    a.valu('v_lshrrev_b32', vT[4], 3, vJ)
    a.valu('v_mul_u32_u24', vT[5], 4 * 896, vT[4])
    a.valu('v_mul_u32_u24', vWoRem, 896, vG)
    a.valu('v_add3_u32', vWoRem, vWoRem, vT[3], vT[5])
    a.valu('v_add_u32', vWoRem, 768, vWoRem)
    a.salu('s_lshl_b32', sT2, sH, 8)
    a.salu('s_lshl_b32', sT3, sSP, 6)
    a.salu('s_add_u32', sT2, sT2, sT3)
    a.salu('s_lshl_b32', sT3, sW, 4)
    a.salu('s_add_u32', sT2, sT2, sT3)
    a.salu('s_mul_i32', sT2, sT2, 896)
    for Gp in range(4):
        for s_ in range(3):
            a.vload('buffer_load_dwordx4', WO[(Gp * 3 + s_) * 4:(Gp * 3 + s_) * 4 + 4], vWoOff, rWO, sT2, 256 * s_, WF)
        if Gp % 2 == 0:
            a.vload('buffer_load_dwordx4', WO[48 + 2 * Gp:52 + 2 * Gp], vWoRem, rWO, sT2, 0, WF)
        if Gp < 3:
            a.salu('s_add_u32', sT2, sT2, 4 * 896)
    a.valu('v_lshl_add_u32', vT[5], vT[4], 2, vG)
    a.valu('v_lshlrev_b32', vT[5], 7, vT[5])
    a.valu('v_lshl_add_u32', vYw, vT[2], 4, vT[5])
    a.salu('s_lshl_b32', sT2, sW, 11)
    a.valu('v_add_u32', vYw, sT2, vYw)
    a.valu('v_and_b32', vT[6], 3, vJ)
    a.valu('v_lshrrev_b32', vT[7], 2, vJ)
    a.valu('v_mul_u32_u24', vOr, 1040, vT[6])
    a.valu('v_lshl_add_u32', vOr, vG, 6, vOr)
    a.valu('v_lshl_add_u32', vOr, vT[7], 4, vOr)
    a.salu('s_lshl_b32', sT2, sW, 8)
    a.valu('v_add_u32', vOr, sT2, vOr)
    a.valu('v_lshlrev_b32', vMr, 3, vT[6])
    a.valu('v_lshrrev_b32', vT[2], 1, vG)
    a.valu('v_lshlrev_b32', vPubOff, 5, vT[2])
    a.valu('v_lshl_add_u32', vPubOff, vT[6], 3, vPubOff)
    a.valu('v_and_b32', vT[2], 1, vT[7])
    a.valu('v_lshl_add_u32', vPubOff, vT[2], 2, vPubOff)
    a.valu('v_and_b32', vT[2], 1, vG)
    a.valu('v_lshl_add_u32', vPubOff, vT[2], 1, vPubOff)
    a.valu('v_lshrrev_b32', vT[2], 1, vT[7])
    a.valu('v_add_u32', vPubOff, vPubOff, vT[2])
    a.valu('v_lshlrev_b32', vPubOff, 2, vPubOff)
    a.salu('s_lshl_b32', sT2, sSP, 9)
    a.valu('v_lshlrev_b32', vGatML, 11, vT[6])
    a.valu('v_add_u32', vGatML, sT2, vGatML)
    a.salu('s_lshl_b32', sT3, sW, 6)
    a.valu('v_lshl_add_u32', vT[2], vT[7], 2, vG)
    a.valu('v_lshl_add_u32', vGatOff, vT[2], 2, vGatML)
    a.valu('v_add_u32', vGatOff, sT3, vGatOff)
    a.valu('v_lshlrev_b32', vOw, 24, vLane)

    def ldfi():
        a.valu('v_mov_b32', vT[7], 0)
        a.vload('buffer_load_dword', vChk, vT[7], rDBG, 0, DB_INITF, LDF)

    def condf():
        a.valu('v_readfirstlane_b32', sT2, vChk)
        a.salu('s_and_b32', sT3, sT2, 255)
        a.salu('s_cmp_ge_u32', None, sT3, NF)

    L_nochk = a.newlabel('nochk')
    a.salu('s_cmp_lg_u32', None, sW, 1)
    a.branch('s_cbranch_scc1', L_nochk)
    L_mw = a.newlabel('mw')
    L_mok = a.newlabel('mok')
    a.salu('s_mov_b32', sT5, SPIN_BOUND)
    a.label(L_mw)
    a.ds('ds_read_b32', vT[0], vCntA)
    a.wait_lgkm(0)
    a.valu('v_readfirstlane_b32', sT2, vT[0])
    a.salu('s_cmp_ge_u32', None, sT2, 40)
    a.branch('s_cbranch_scc1', L_mok)
    a.misc('s_sleep 64')
    a.salu('s_sub_u32', sT5, sT5, 1)
    a.salu('s_cmp_lg_u32', None, sT5, 0)
    a.branch('s_cbranch_scc1', L_mw)
    a.label(L_mok)
    spin_until(ldfi, condf, first_check=False, sleep=64)
    xcc_word(sT3, NF)
    a.salu('s_cmp_eq_u32', None, sT2, sT3)
    a.salu('s_cselect_b32', sT2, fastx, 0)
    a.valu('v_mov_b32', vT[7], sT2)
    a.ds('ds_write_b32', vCntA, vT[7], offset=16)
    a.label(L_nochk)
    a.misc('s_waitcnt vmcnt(0) lgkmcnt(0)')
    a.salu('s_lshl_b32', sT4, sGrp, 13)
    a.salu('s_add_u32', sT4, sT4, WS_MAIL)
    a.salu('s_lshl_b32', sT2, sSP, 2)
    a.salu('s_add_u32', sT2, sT2, sW)
    a.salu('s_lshl_b32', sT2, sT2, 9)
    a.salu('s_add_u32', sT3, sT4, sT2)
    stamp('v_ready')
    if notail == 2:
        a.branch('s_branch', 'L_end')
    a.barrier()
    stamp('v_B3')
    ov = PB[0:4]
    ml = PB[4:6]
    a.ds('ds_read_b64', ml, vMr, offset=L_ML)
    a.ds('ds_read_b128', ov, vOr, offset=L_OP)
    a.valu('v_and_b32', vT[5], 3, vJ)
    a.wait_lgkm(1)
    red4 = ('quad_perm:[1,0,3,2]', 'quad_perm:[2,3,0,1]')
    a.valu('v_mov_b32', vT[0], ml[0])
    for c in red4:
        a.dpp('v_max_f32', vT[0], vT[0], vT[0], ctrl=c)
    a.valu('v_sub_f32', vT[2], ml[0], vT[0])
    a.valu('v_mul_f32', vT[2], sCS, vT[2])
    a.valu('v_exp_f32', vT[2], vT[2])
    a.wait_lgkm(0)
    a.valu('v_mul_f32', vT[1], ml[1], vT[2])
    for r in range(4):
        a.valu('v_mul_f32', ov[r], ov[r], vT[2])
    for c in red4:
        for r in range(4):
            a.dpp('v_add_f32', ov[r], ov[r], ov[r], ctrl=c)
        a.dpp('v_add_f32', vT[1], vT[1], vT[1], ctrl=c)
    for r in range(1, 4):
        a.valu('v_cmp_eq_u32', 'vcc', r, vT[5])
        a.valu('v_cndmask_b32', ov[0], ov[0], ov[r], 'vcc')
    a.valu('v_min_u32', ov[0], -2, ov[0])
    a.vstore('buffer_store_dword', ov[0], vPubOff, rWS, sT3, 0, STF)
    a.valu('v_min_u32', vT[0], -2, vT[0])
    a.valu('v_min_u32', vT[1], -2, vT[1])
    a.vstore('buffer_store_dwordx2', vT[0:2], vOw, rWS, sT3, 256, STF)
    stamp('v_pub')
    gv = PB[8]
    gml = PB[10:12]

    def ldg():
        a.vload('buffer_load_dword', gv, vGatOff, rWS, sT4, 0, LDF)
        a.vload('buffer_load_dwordx2', gml, vGatML, rWS, sT4, 256, LDF)

    def condg():
        a.valu('v_max3_u32', vT[2], gv, gml[0], gml[1])
        a.valu('v_cmp_eq_u32_e64', S(10, 2), -1, vT[2])
        a.salu('s_cmp_eq_u64', None, S(10, 2), 0)

    spin_until(ldg, condg, first_check=False, sleep=gsleep)
    stamp('v_gath')
    a.valu('v_mov_b32', vT[0], gml[0])
    for c in red4:
        a.dpp('v_max_f32', vT[0], vT[0], vT[0], ctrl=c)
    a.valu('v_sub_f32', vT[1], gml[0], vT[0])
    a.valu('v_mul_f32', vT[1], sCS, vT[1])
    a.valu('v_exp_f32', vT[1], vT[1])
    a.valu('v_mul_f32', gv, gv, vT[1])
    a.valu('v_mul_f32', gml[1], gml[1], vT[1])
    for c in red4:
        a.dpp('v_add_f32', gv, gv, gv, ctrl=c)
        a.dpp('v_add_f32', gml[1], gml[1], gml[1], ctrl=c)
    a.valu('v_rcp_f32', gml[1], gml[1])
    a.valu('v_mul_f32', gv, gv, gml[1])
    a.valu('v_cvt_pk_bf16_f32', gv, gv, gv)
    dump(gv, 18)
    Y = [KB[0:4], KB[4:8], KB[8:12], KB[12:16], KB[16:20]]
    BT = [QB[4 * Gp:4 * Gp + 4] for Gp in range(4)]
    for Gp in range(4):
        for r in range(4):
            a.dpp('v_and_b32', BT[Gp][r], gv, vMask[r], ctrl=f'row_newbcast:{4 * Gp}')
        for s_ in range(3):
            a.mfma(Y[s_], WO[(Gp * 3 + s_) * 4:(Gp * 3 + s_) * 4 + 4], BT[Gp], 0 if Gp == 0 else Y[s_])
        a.mfma(Y[3 + Gp % 2], WO[48 + 4 * (Gp // 2):52 + 4 * (Gp // 2)], BT[Gp], 0 if Gp < 2 else Y[3 + Gp % 2])
    for r in range(4):
        a.valu('v_cndmask_b32', Y[0][r], Y[1][r], Y[0][r], mJ8)
    a.ds('ds_write_b128', vYw, Y[0], offset=L_YP)
    for r in range(4):
        a.valu('v_cndmask_b32', Y[3][r], Y[4][r], Y[3][r], mG2)
        a.valu('v_cndmask_b32', Y[2][r], Y[3][r], Y[2][r], mJ8)
    a.ds('ds_write_b128', vYw, Y[2], offset=L_YP + 1024)
    a.branch('s_branch', 'L_b4')

    a.label(L_stream)
    a.misc(f's_setprio {prio}')
    srd(rK, P(1), 4 << 20, sT1)
    srd(rV, P(2), 4 << 20, sT1)
    issue_static_units()
    common_setup()
    if debug or prof:
        srd(rWSD, pWS, (2 << 20) + (64 << 20))
    a.salu('s_lshl_b32', sT2, sGrp, 8)
    a.salu('s_add_u32', sT2, sT2, WS_POOL)
    a.salu('s_add_u32', sPool[0], pWS[0], sT2)
    a.salu('s_addc_u32', sPool[1], pWS[1], 0)
    a.valu('v_lshrrev_b32', vT[2], 2, vJ)
    for t in range(4):
        a.valu('v_cmp_eq_u32_e64', mT[t], t, vT[2])
    for r in range(4):
        a.valu('v_mov_b32', OD0[r], 0)
        a.valu('v_mov_b32', OD1[r], 0)
    a.valu('v_mov_b32', vL, 0)
    a.salu('s_mov_b32', sM, -3.0e38)
    a.salu('s_mov_b32', sExh, 0)
    a.valu('v_lshrrev_b32', vT[4], 3, vJ)
    a.valu('v_lshl_add_u32', vT[5], vT[4], 2, vG)
    a.valu('v_lshlrev_b32', vT[5], 7, vT[5])
    a.valu('v_and_b32', vT[6], 3, vJ)
    a.valu('v_lshl_add_u32', vOw, vT[6], 5, vT[5])
    a.valu('v_bfe_u32', vT[7], vJ, 2, 1)
    a.valu('v_lshl_add_u32', vOw, vT[7], 4, vOw)
    a.salu('s_sub_u32', sT2, sW, 4)
    a.salu('s_mul_i32', sT3, sT2, 1040)
    a.valu('v_add_u32', vOw, sT3, vOw)
    a.salu('s_lshl_b32', sT2, sT2, 3)
    a.valu('v_mov_b32', vMr, sT2)
    a.valu('v_lshl_add_u32', vT[1], vG, 2, vT[6])
    a.valu('v_lshlrev_b32', vT[1], 4, vT[1])
    stamp('s_issued')
    L_qw = a.newlabel('qw')
    L_qok = a.newlabel('qok')
    a.salu('s_mov_b32', sT5, SPIN_BOUND * 8)
    a.label(L_qw)
    a.ds('ds_read_b32', vT[0], vCntA, offset=4)
    a.wait_lgkm(0)
    a.valu('v_readfirstlane_b32', sT2, vT[0])
    a.salu('s_cmp_lg_u32', None, sT2, 0 if not skipq else 77)
    a.branch('s_cbranch_scc1', L_qok)
    a.misc('s_sleep 2')
    a.salu('s_sub_u32', sT5, sT5, 1)
    a.salu('s_cmp_lg_u32', None, sT5, 0)
    a.branch('s_cbranch_scc1', L_qw)
    a.label(L_qok)
    stamp('s_q')
    a.ds('ds_read_b128', PB[0:4], vT[1], offset=L_QBF)
    a.ds('ds_read_b128', PB[4:8], vT[1], offset=L_QBF + 256)
    a.wait_lgkm(0)
    for t in range(4):
        for hf in range(2):
            for r in range(4):
                a.valu('v_cndmask_b32', QB[(t * 2 + hf) * 4 + r], 0, PB[hf * 4 + r], mT[t])

    def qk(kb):
        for i in range(8):
            a.mfma(KD, kb[4 * i:4 * i + 4], QB[4 * i:4 * i + 4], 0 if i == 0 else KD)

    def softmax_step():
        s_, t_ = vT[0], vT[1]
        a.dpp('v_mov_b32', s_, KD[0], ctrl='quad_perm:[0,0,0,0]')
        a.dpp('v_add_f32', s_, KD[1], s_, ctrl='quad_perm:[1,1,1,1]')
        a.dpp('v_add_f32', s_, KD[2], s_, ctrl='quad_perm:[2,2,2,2]')
        a.dpp('v_add_f32', s_, KD[3], s_, ctrl='quad_perm:[3,3,3,3]')
        rbf(s_, s_)
        a.valu('v_max_f32', t_, sM, s_)
        wave_red('v_max_f32', t_, sMn, quads_equal=True)
        a.valu('v_mov_b32', t_, sM)
        a.valu('v_subrev_f32', s_, sMn, s_)
        a.valu('v_subrev_f32', t_, sMn, t_)
        a.valu('v_mul_f32', s_, sCS, s_)
        a.valu('v_mul_f32', t_, sCS, t_)
        a.valu('v_exp_f32', s_, s_)
        a.valu('v_exp_f32', t_, t_)
        a.salu('s_mov_b32', sM, sMn)
        a.valu('v_fma_f32', vL, vL, t_, s_)
        a.valu('v_cvt_pk_bf16_f32', s_, s_, s_)
        for r in range(4):
            a.valu('v_mul_f32', OD0[r], OD0[r], t_)
            a.valu('v_mul_f32', OD1[r], OD1[r], t_)
        for T in range(4):
            for r in range(4):
                a.dpp('v_and_b32', PB[4 * T + r], s_, vMask[r], ctrl=f'row_newbcast:{4 * T}')

    def pv(vb):
        for T in range(4):
            a.mfma(OD0, vb[8 * T:8 * T + 4], PB[4 * T:4 * T + 4], OD0)
            a.mfma(OD1, vb[8 * T + 4:8 * T + 8], PB[4 * T:4 * T + 4], OD1)

    def fetch_issue():
        L_f1 = a.newlabel('f1')
        L_f2 = a.newlabel('f2')
        a.salu('s_cmp_lg_u32', None, sExh, 0)
        a.branch('s_cbranch_scc1', L_f1)
        a.salu('s_mov_b64', 'exec', 1)
        a.misc(f'ds_add_rtn_u32 {vIdx}, {vCntA}, {vOne}')
        a.salu('s_mov_b64', 'exec', -1)
        a.branch('s_branch', L_f2)
        a.label(L_f1)
        a.salu('s_mov_b32', sIdx, 1)
        a.misc(f's_atomic_add {sIdx}, {sPool}, 0 glc')
        a.label(L_f2)

    def fetch_complete():
        a.wait_lgkm(0)
        L_g1 = a.newlabel('g1')
        L_g2 = a.newlabel('g2')
        a.salu('s_cmp_lg_u32', None, sExh, 0)
        a.branch('s_cbranch_scc1', L_g1)
        a.valu('v_readfirstlane_b32', sT2, vIdx)
        a.salu('s_add_u32', sNext, sBase, sT2)
        a.salu('s_cmp_lt_u32', None, sT2, sNP)
        a.branch('s_cbranch_scc1', L_g2)
        a.salu('s_mov_b32', sExh, 1)
        a.salu('s_mov_b32', sIdx, 1)
        a.misc(f's_atomic_add {sIdx}, {sPool}, 0 glc')
        a.wait_lgkm(0)
        a.label(L_g1)
        a.salu('s_add_u32', sNext, sIdx, sPB)
        a.label(L_g2)

    def unit_rolling(cnt):
        for i in range(8):
            a.misc(f's_waitcnt vmcnt({cnt})')
            if not nocomp:
                a.mfma(KD, KB[4 * i:4 * i + 4], QB[4 * i:4 * i + 4], 0 if i == 0 else KD)
            vo, o = koff(i)
            a.vload('buffer_load_dwordx4', KB[4 * i:4 * i + 4], vo, rK, sNext, o, KP)
        fetch_issue()
        if not nocomp:
            softmax_step()
        for i in range(8):
            od = OD0 if i % 2 == 0 else OD1
            a.misc(f's_waitcnt vmcnt({cnt})')
            if not nocomp:
                a.mfma(od, VB[4 * i:4 * i + 4], PB[4 * (i // 2):4 * (i // 2) + 4], od)
            vo, o = voff(i)
            a.vload('buffer_load_dwordx4', VB[4 * i:4 * i + 4], vo, rV, sNext, o, VP)

    extra = 32 if use_c else 16
    fetch_issue()
    fetch_complete()
    a.salu('s_lshl_b32', sNext, sNext, 13)
    unit_rolling(15 + extra)
    a.misc(f's_waitcnt vmcnt({extra + 8})')
    qk(KB2)
    softmax_step()
    a.misc(f's_waitcnt vmcnt({extra})')
    pv(VB2)
    L_loop = 'L_loop'
    if use_c:
        a.salu('s_cmp_lt_u32', None, sF, NF)
        a.branch('s_cbranch_scc1', L_loop)
        a.salu('s_sub_u32', sT4, sW, 4)
        a.salu('s_lshl_b32', sT4, sT4, 14)
        a.salu('s_add_u32', sT4, sT4, L_W1)
        a.valu('v_add_u32', vT[2], sT4, vL16)
        a.misc('s_waitcnt vmcnt(16)')
        for i in range(8):
            a.ds('ds_read_b128', KB2[4 * i:4 * i + 4], vT[2], offset=1024 * i)
        for i in range(8):
            a.ds('ds_read_b128', VB2[4 * i:4 * i + 4], vT[2], offset=8192 + 1024 * i)
        a.wait_lgkm(8)
        qk(KB2)
        softmax_step()
        a.wait_lgkm(0)
        pv(VB2)

    a.label(L_loop)
    if prof:
        a.salu('s_add_u32', sCnt, sCnt, 1)
    fetch_complete()
    L_last = a.newlabel('last')
    a.salu('s_cmp_ge_u32', None, sNext, 512)
    a.branch('s_cbranch_scc1', L_last)
    a.salu('s_lshl_b32', sNext, sNext, 13)
    unit_rolling(15)
    a.branch('s_branch', L_loop)
    a.label(L_last)
    a.misc('s_waitcnt vmcnt(8)')
    qk(KB)
    softmax_step()
    wave_red('v_add_f32', vL, sMn, quads_equal=True)
    a.valu('v_mov_b32', vT[2], sM)
    a.valu('v_mov_b32', vT[3], sMn)
    a.ds('ds_write_b64', vMr, vT[2:4], offset=L_ML)
    for i in range(8):
        od = OD0 if i % 2 == 0 else OD1
        a.misc(f's_waitcnt vmcnt({7 - i})')
        a.mfma(od, VB[4 * i:4 * i + 4], PB[4 * (i // 2):4 * (i // 2) + 4], od)
    stamp('s_Vlast')
    if notail:
        a.branch('s_branch', 'L_end')
    for r in range(4):
        a.valu('v_cndmask_b32', PB[r], OD1[r], OD0[r], mJ8)
    a.ds('ds_write_b128', vOw, PB[0:4], offset=L_OP)
    a.wait_lgkm(0)
    a.barrier()
    a.misc('s_setprio 0')
    stamp_val('s_units', sCnt)

    a.label('L_b4')
    a.salu('s_lshl_b32', sT2, sW, 8)
    a.valu('v_lshlrev_b32', vT[4], 2, vLane)
    a.valu('v_add_u32', vT[4], sT2, vT[4])
    a.salu('s_lshl_b32', sT1, sGrp, 2)
    a.salu('s_add_u32', sT1, sT1, sSP)
    a.salu('s_lshl_b32', sT1, sT1, 6)
    a.salu('s_lshl_b32', sT0, sW, 16)
    a.salu('s_add_u32', sT1, sT1, sT0)
    a.salu('s_add_u32', sT1, sT1, WS_IN1)
    a.wait_lgkm(0)
    a.barrier()
    stamp('B4')
    YS = VB[0:8]
    L_nc = a.newlabel('nc')
    L_y6 = a.newlabel('y6')
    a.salu('s_cmp_eq_u32', None, sW, 7)
    a.branch('s_cbranch_scc1', L_nc)
    for i in range(4):
        a.ds('ds_read_b32', YS[i], vT[4], offset=L_YP + 2048 * i)
    a.salu('s_cmp_lg_u32', None, sW, 6)
    a.branch('s_cbranch_scc1', L_y6)
    for i in range(4):
        a.ds('ds_read_b32', YS[4 + i], vT[4], offset=L_YP + 2048 * i + 256)
    a.wait_lgkm(0)
    for i in range(4):
        a.valu('v_add_f32', YS[i], YS[i], YS[4 + i])
    a.label(L_y6)
    a.wait_lgkm(0)
    a.valu('v_add_f32', YS[0], YS[0], YS[1])
    a.valu('v_add_f32', YS[2], YS[2], YS[3])
    a.valu('v_add_f32', YS[0], YS[0], YS[2])
    a.valu('v_min_u32', YS[0], -2, YS[0])
    a.vstore('buffer_store_dword', YS[0], vAt, rWS, sT1, 0, STF)
    a.label(L_nc)
    stamp('atom')
    a.salu('s_cmp_ge_u32', None, sF, NF)
    a.branch('s_cbranch_scc1', 'L_endp')

    F2B = V(84, 32)
    FA = V(116, 56)
    F1B = V(172, 56)
    RB = V(24, 28)
    a.valu('v_bfe_u32', vT[4], vLane, 2, 2)
    a.valu('v_lshl_add_u32', vT[4], vG, 3, vT[4])
    a.valu('v_and_b32', vT[5], 3, vLane)
    a.valu('v_lshlrev_b32', vT[5], 3, vT[5])
    a.valu('v_mul_u32_u24', vT[6], 896, vT[4])
    a.valu('v_add_u32', vT[6], vT[6], vT[5])
    a.salu('s_min_u32', sT2, sW, 6)
    a.salu('s_lshl_b32', sT2, sT2, 7)
    a.salu('s_add_u32', sT2, sT2, L_W2)
    a.valu('v_add_u32', vT[6], sT2, vT[6])
    for tt in range(4):
        for ks in range(2):
            for qq in range(2):
                d = F2B[(tt * 2 + ks) * 4 + 2 * qq:(tt * 2 + ks) * 4 + 2 * qq + 2]
                a.ds('ds_read_b64_tr_b16', d, vT[6], offset=(32 * ks + 4 * qq) * 896 + tt * 32)
    L_ln = a.newlabel('ln')
    L_b5 = a.newlabel('b5')
    a.salu('s_cmp_ge_u32', None, sW, 4)
    a.branch('s_cbranch_scc1', L_ln)
    a.valu('v_lshlrev_b32', vT[6], 7, vT[4])
    a.valu('v_add_u32', vT[6], vT[6], vT[5])
    a.salu('s_lshl_b32', sT2, sW, 5)
    a.salu('s_add_u32', sT2, sT2, L_W1)
    a.valu('v_add_u32', vT[6], sT2, vT[6])
    for ks in range(14):
        for qq in range(2):
            a.ds('ds_read_b64_tr_b16', F1B[ks * 4 + 2 * qq:ks * 4 + 2 * qq + 2], vT[6], offset=(32 * ks + 4 * qq) * 128)
            if (ks * 2 + qq) % 8 == 7:
                a.wait_lgkm(4)
    a.label(L_ln)
    srd(rX, sXP, 4 * 896)
    a.valu('v_mul_u32_u24', vT[7], 896, vG)
    a.valu('v_lshl_add_u32', vT[7], vJ, 1, vT[7])
    a.salu('s_lshl_b32', sT1, sF, 5)
    a.vload('buffer_load_ushort', RB[24], vT[7], rX, sT1, 0)
    a.valu('v_mov_b32', vT[4], L_SAME)
    a.ds('ds_read_b32', RB[25], vT[4])
    a.salu('s_lshl_b32', sT4, sF, 14)
    a.salu('s_lshl_b32', sT3, sW, 11)
    a.salu('s_add_u32', sT4, sT4, sT3)
    a.salu('s_add_u32', sT4, sT4, WS_IN1)
    a.salu('s_lshl_b32', sT3, sW, 8)
    a.valu('v_and_b32', vT[5], 3, vJ)
    a.valu('v_lshlrev_b32', vT[5], 4, vT[5])
    a.valu('v_lshl_add_u32', vT[5], vG, 6, vT[5])
    a.valu('v_add_u32', vT[5], sT3, vT[5])
    RI = RB[0:8]

    def ldr():
        a.vload('buffer_load_dwordx4', RI[0:4], vL16, rWS, sT4, 0, LDF)
        a.vload('buffer_load_dwordx4', RI[4:8], vL16, rWS, sT4, 1024, LDF)

    def condr():
        a.valu('v_max3_u32', vT[0], RI[0], RI[1], RI[2])
        a.valu('v_max3_u32', vT[1], RI[3], RI[4], RI[5])
        a.valu('v_max3_u32', vT[0], vT[0], RI[6], RI[7])
        a.valu('v_max_u32', vT[0], vT[0], vT[1])
        a.valu('v_cmp_eq_u32', 'vcc', -1, vT[0])
        a.salu('s_cmp_eq_u64', None, 'vcc', 0)
        if rmask:
            a.salu('s_cselect_b64', 'exec', -1, 'vcc')

    spin_until(ldr, condr, first_check=False, sleep=psleep)
    a.salu('s_mov_b64', 'exec', -1)
    stamp('red')
    for r in range(4):
        a.valu('v_add_f32', RI[r], RI[r], RI[4 + r])
    for c in ('row_ror:4', 'row_ror:8'):
        for r in range(4):
            a.dpp('v_add_f32', RI[r], RI[r], RI[r], ctrl=c)
    a.ds('ds_write_b128', vT[5], RI[0:4], offset=L_OP)
    a.valu('v_lshlrev_b32', vT[4], 9, vG)
    a.valu('v_lshl_add_u32', vT[4], vJ, 2, vT[4])
    a.valu('v_and_b32', vT[5], 1, vJ)
    a.valu('v_lshl_add_u32', vT[7], vT[5], 24, vT[7])
    a.wait_lgkm(0)
    a.barrier()
    L_nw0 = a.newlabel('nw0')
    a.salu('s_cmp_lg_u32', None, sW, 0)
    a.branch('s_cbranch_scc1', L_nw0)
    for i in range(8):
        a.ds('ds_read_b32', RB[i], vT[4], offset=L_OP + 64 * i)
    a.valu('v_lshlrev_b32', RB[24], 16, RB[24])
    a.valu('v_readfirstlane_b32', sT3, RB[25])
    a.wait_lgkm(0)
    a.valu('v_add_f32', RB[0], RB[0], RB[1])
    a.valu('v_add_f32', RB[2], RB[2], RB[3])
    a.valu('v_add_f32', RB[4], RB[4], RB[5])
    a.valu('v_add_f32', RB[6], RB[6], RB[7])
    a.valu('v_add_f32', RB[0], RB[0], RB[2])
    a.valu('v_add_f32', RB[4], RB[4], RB[6])
    a.valu('v_add_f32', RB[0], RB[0], RB[4])
    rbf(RB[0], RB[0])
    a.valu('v_add_f32', RB[0], RB[0], RB[24])
    a.dpp('v_mov_b32', RB[1], RB[0], ctrl='quad_perm:[1,0,3,2]')
    a.valu('v_cvt_pk_bf16_f32', RB[0], RB[0], RB[1])
    a.valu('v_min_u32', RB[0], -2, RB[0])
    L_hs = a.newlabel('hs')
    a.salu('s_cmp_eq_u32', None, sT3, 0)
    a.branch('s_cbranch_scc1', L_hs)
    a.vstore('buffer_store_dword', RB[0], vT[7], rWS, sT1, WS_H, '')
    a.branch('s_branch', L_b5)
    a.label(L_hs)
    a.vstore('buffer_store_dword', RB[0], vT[7], rWS, sT1, WS_H, STF)
    a.branch('s_branch', L_b5)
    a.label(L_nw0)
    a.salu('s_cmp_lt_u32', None, sW, 4)
    a.branch('s_cbranch_scc1', L_b5)
    a.salu('s_sub_u32', sT3, sW, 4)
    a.salu('s_mul_i32', sT4, sT3, 896)
    a.valu('v_mov_b32', vT[5], BIGOFF)
    a.valu('v_cndmask_b32', vT[7], vT[5], vL16, m56)
    a.valu('v_add_u32', vT[6], sT4, vL16)
    hp = RB[4:8]
    xf = RB[16:24]

    def ldc():
        a.vload('buffer_load_dwordx4', hp, vT[7], rWS, sT4, WS_H, LDF)

    def condc():
        a.valu('v_max3_u32', vT[0], hp[0], hp[1], hp[2])
        a.valu('v_max_u32', vT[0], vT[0], hp[3])
        a.valu('v_cmp_eq_u32', 'vcc', -1, vT[0])
        a.salu('s_cmp_eq_u64', None, 'vcc', 0)

    spin_until(ldc, condc, first_check=False, sleep=0)
    stamp('poll')
    unpack8(xf, hp)
    a.salu('s_mov_b64', 'exec', m56)
    a.ds('ds_write_b128', vT[6], hp, offset=L_HB)
    a.salu('s_mov_b64', 'exec', -1)
    layernorm([(xf, vT[0:4], sX0, sX1)])
    for i in range(4):
        a.valu('v_cvt_pk_bf16_f32', RB[i], xf[2 * i], xf[2 * i + 1])
    a.salu('s_mov_b64', 'exec', m56)
    a.ds('ds_write_b128', vT[6], RB[0:4], offset=L_XN2)
    a.salu('s_mov_b64', 'exec', -1)
    if debug:
        for i in range(4):
            dump(hp[i], 33 + i)
            dump(RB[i], 37 + i)
    a.label(L_b5)
    a.wait_lgkm(0)
    a.barrier()
    stamp('B5')
    L_b6 = a.newlabel('b6')
    a.salu('s_cmp_ge_u32', None, sW, 4)
    a.branch('s_cbranch_scc1', L_b6)
    a.valu('v_and_b32', vT[6], 3, vLane)
    a.valu('v_mul_u32_u24', vT[6], 896, vT[6])
    a.valu('v_lshl_add_u32', vT[6], vG, 4, vT[6])
    for ks in range(14):
        a.ds('ds_read_b128', FA[4 * ks:4 * ks + 4], vT[6], offset=L_XN2 + 64 * ks)
    Z = RB[0:4]
    for ks in range(14):
        a.wait_lgkm(min(13 - ks, 15))
        a.mfma(Z, FA[4 * ks:4 * ks + 4], F1B[4 * ks:4 * ks + 4], 0 if ks == 0 else Z)
    a.salu('s_lshl_b32', sT2, sW, 5)
    a.valu('v_lshlrev_b32', vT[6], 1, vJ)
    a.valu('v_add_u32', vT[6], sT2, vT[6])
    a.salu('s_mov_b32', sT3, -LOG2E)
    for r in range(4):
        rbf(Z[r], Z[r])
    for r in range(4):
        a.valu('v_mul_f32', RB[4 + r], sT3, Z[r])
    for r in range(4):
        a.valu('v_exp_f32', RB[4 + r], RB[4 + r])
    for r in range(4):
        a.valu('v_add_f32', RB[4 + r], 1.0, RB[4 + r])
    for r in range(4):
        a.valu('v_rcp_f32', RB[4 + r], RB[4 + r])
    for r in range(4):
        a.valu('v_mul_f32', Z[r], Z[r], RB[4 + r])
    for r in range(4):
        a.valu('v_cvt_pk_bf16_f32', Z[r], Z[r], Z[r])
        a.ds('ds_write_b16', vT[6], Z[r], offset=L_GB + 128 * r)
    if debug:
        for r in range(4):
            dump(Z[r], 41 + r)
    a.label(L_b6)
    a.wait_lgkm(0)
    a.barrier()
    stamp('B6')
    L_fin = a.newlabel('fin')
    a.salu('s_cmp_ge_u32', None, sW, 7)
    a.branch('s_cbranch_scc1', L_fin)
    a.valu('v_and_b32', vT[6], 3, vLane)
    a.valu('v_lshlrev_b32', vT[6], 7, vT[6])
    a.valu('v_lshl_add_u32', vT[6], vG, 4, vT[6])
    a.ds('ds_read_b128', FA[0:4], vT[6], offset=L_GB)
    a.ds('ds_read_b128', FA[4:8], vT[6], offset=L_GB + 64)
    a.valu('v_mov_b32', vT[4], L_SAME)
    a.ds('ds_read_b32', vT[5], vT[4])
    a.salu('s_mul_i32', sT2, sW, 4 * 7168)
    a.salu('s_lshl_b32', sT3, sF, 8)
    a.salu('s_add_u32', sT2, sT2, sT3)
    a.salu('s_add_u32', sT2, sT2, WS_INBOX)
    a.wait_lgkm(0)
    O2 = [RB[4 * tt:4 * tt + 4] for tt in range(4)]
    for tt in range(4):
        a.mfma(O2[tt], FA[0:4], F2B[(tt * 2) * 4:(tt * 2) * 4 + 4], 0)
    for tt in range(4):
        a.mfma(O2[tt], FA[4:8], F2B[(tt * 2 + 1) * 4:(tt * 2 + 1) * 4 + 4], O2[tt])
    a.valu('v_readfirstlane_b32', sT3, vT[5])
    a.salu('s_mov_b64', 'exec', 0xffff)
    L_slow = a.newlabel('slow')
    L_sd = a.newlabel('sd')
    a.salu('s_cmp_eq_u32', None, sT3, 0)
    a.branch('s_cbranch_scc1', L_slow)
    for flags, lab in (('', None), (STF, L_slow)):
        if lab:
            a.label(lab)
        for tt in range(4):
            for r in range(4):
                a.valu('v_min_u32', O2[tt][r], -2, O2[tt][r])
            a.vstore('buffer_store_dwordx4', O2[tt], vL16, rWS, sT2, 0, flags)
            if tt < 3:
                a.salu('s_add_u32', sT2, sT2, 7168)
        if not lab:
            a.branch('s_branch', L_sd)
    a.label(L_sd)
    a.salu('s_or_b32', sT2, sF, sW)
    a.salu('s_cmp_lg_u32', None, sT2, 0)
    a.branch('s_cbranch_scc1', 'L_endp')
    a.salu('s_mov_b64', 'exec', 1)
    a.valu('v_mov_b32', vT[4], sEp)
    a.valu('v_mov_b32', vT[5], 0)
    a.salu('s_mov_b32', sT2, WS_EPOCH)
    a.vstore('buffer_store_dword', vT[4], vT[5], rWS, sT2, 0, STF)
    a.branch('s_branch', 'L_endp')
    a.label(L_fin)
    a.valu('v_mul_u32_u24', vT[6], 896, vG)
    a.valu('v_lshl_add_u32', vT[6], vJ, 1, vT[6])
    a.salu('s_lshl_b32', sT2, sF, 5)
    a.valu('v_add_u32', vT[6], sT2, vT[6])
    a.ds('ds_read_u16', vT[7], vT[6], offset=L_HB)
    a.salu('s_mul_i32', sT3, sF, 7168)
    a.salu('s_add_u32', sT3, sT3, WS_INBOX)
    a.salu('s_add_u32', sT4, sT3, 4096)
    IB = V(116, 28)

    def ldi():
        for i in range(7):
            a.vload('buffer_load_dwordx4', IB[4 * i:4 * i + 4], vL16, rWS, sT3 if i < 4 else sT4, (i % 4) * 1024, LDF)

    def condi():
        a.valu('v_max3_u32', vT[0], IB[0], IB[1], IB[2])
        for i in range(3, 27, 2):
            a.valu('v_max3_u32', vT[0], vT[0], IB[i], IB[i + 1])
        a.valu('v_max_u32', vT[0], vT[0], IB[27])
        a.valu('v_cmp_eq_u32_e64', S(100, 2), -1, vT[0])
        a.salu('s_cmp_eq_u64', None, S(100, 2), 0)

    spin_until(ldi, condi, first_check=False, sleep=0)
    stamp('inbox')
    for i in range(1, 7):
        for r in range(4):
            a.valu('v_add_f32', IB[r], IB[r], IB[4 * i + r])
    for r in range(4):
        a.valu('v_mov_b32', IB[4 + r], IB[r])
    for r in range(4):
        a.valu('v_permlane16_swap_b32', IB[r], IB[4 + r])
    for r in range(4):
        a.valu('v_add_f32', IB[r], IB[r], IB[4 + r])
    for r in range(4):
        a.valu('v_mov_b32', IB[4 + r], IB[r])
    for r in range(4):
        a.valu('v_permlane32_swap_b32', IB[r], IB[4 + r])
    for r in range(4):
        a.valu('v_add_f32', IB[r], IB[r], IB[4 + r])
    for r in range(1, 4):
        a.valu('v_cmp_eq_u32', 'vcc', r, vG)
        a.valu('v_cndmask_b32', IB[0], IB[0], IB[r], 'vcc')
    rbf(IB[0], IB[0])
    a.wait_lgkm(0)
    a.valu('v_lshlrev_b32', vT[7], 16, vT[7])
    a.valu('v_add_f32', IB[0], IB[0], vT[7])
    a.valu('v_cvt_pk_bf16_f32', IB[0], IB[0], IB[0])
    a.vstore('buffer_store_short', IB[0], vT[6], rOUT, 0, 0)
    a.label('L_endp')
    stamp('end')
    stamp_store()
    a.label('L_end')
    A('  s_endpgm')
    A('.section .rodata,"a"')
    A('.p2align 6')
    A(f'.amdhsa_kernel {KNAME}')
    A('  .amdhsa_next_free_vgpr 256')
    A('  .amdhsa_next_free_sgpr 102')
    A('  .amdhsa_accum_offset 256')
    A('  .amdhsa_group_segment_fixed_size 0')
    A('  .amdhsa_kernarg_size 88')
    A('  .amdhsa_user_sgpr_count 2')
    A('  .amdhsa_user_sgpr_kernarg_segment_ptr 1')
    A('  .amdhsa_system_sgpr_workgroup_id_x 1')
    A('  .amdhsa_float_denorm_mode_32 3')
    A('.end_amdhsa_kernel')
    if prof:
        A('; STAMPS ' + ' '.join(stamp_names))
    return a.text()


if __name__ == '__main__':
    out = [x for x in sys.argv[1:] if not x.startswith('--')]
    path = out[0] if out else os.path.join(os.path.dirname(os.path.abspath(__file__)), '..', 'cdna_kernels', NAME + '.s')
    kw = {}
    for x in sys.argv[1:]:
        if x.startswith('--') and '=' in x:
            k_, v_ = x[2:].split('=')
            kw[k_] = int(v_)
    open(path, 'w').write(build(debug='--debug' in sys.argv, prof='--prof' in sys.argv, **kw))
    print('wrote', path)
```

```python
import os
import sys

sys.path.insert(0, os.path.dirname(os.path.abspath(__file__)))
from asmlib import Asm, V, S

NAME = 'sequential_preLN__mha_block_cached__dense_activation_silu__decode'
KNAME = NAME + '_kernel'

NWG = 256
NF = 28
LOG2E = 1.4426950408889634
CS = LOG2E / 16.0

WS_H = 0
WS_EPOCH = 24576
WS_INBOX = 32768
WS_Q = 0x40000
WS_POOL = 0x60000
WS_MAIL = 0x80000
WS_IN1 = 0x100000
WS_SC = 0x200000
WS_BYTES = 4 << 20
WS_DBG = 4 << 20
DB_INITF = 40

L_XN2 = 0
L_HB = 4096
L_GB = 8192
L_QBF = 8704
L_ML = 9216
L_CNT = 9344
L_FLAG = 9348
L_SVC = 9352
L_ARR = 9356
L_SAME = 9360
L_OP = 9472
L_YP = 17920
L_WQS = L_YP
L_W1 = 34816
L_W2 = L_W1 + 57344
LDS_BYTES = L_W2 + 57344

SPIN_BOUND = 200000
BIGOFF = 0x1000000


def build(debug=False, prof=False, npriv=112, xmap=1, gsleep=0, ldf=0, stf=0, use_c=1, skipq=0, nocomp=0, nowo=0, notail=0, prio=2, smalllds=0, nodma=0, nowq=0, wnt=1, psleep=0, kpol=0, vpol=0, diag=0, fastx=1, rmask=1, nffn=80, rot=0, NPW=8, NPWF=12):
    assert NPW % 2 == 0 and NPWF % 2 == 0 and 4 <= NPW <= NPWF <= 16
    POL = ['nt', '', 'nt sc0', 'nt sc1', 'sc1']
    KP, VP = POL[kpol], POL[vpol]
    WF = 'nt' if wnt else ''
    LDF = ['sc1', 'sc0 sc1'][ldf]
    STF = ['sc1', 'sc0 sc1'][stf]
    a = Asm()
    A = a.raw
    hdr = open(os.path.join(os.path.dirname(os.path.abspath(__file__)), '..', 'cdna_kernels', NAME + '.s.ref')).read().split('\n')
    for ln in hdr:
        if ln.startswith(';') and '@launch' not in ln:
            A(ln)
        elif '@launch' in ln:
            A(f'; @launch grid=({NWG},1,1) block=(512,1,1) lds={LDS_BYTES if not smalllds else 16384}')
        else:
            break
    A('.amdgcn_target "amdgcn-amd-amdhsa--gfx950"')
    A('.text')
    A(f'.globl {KNAME}')
    A('.p2align 8')
    A(f'.type {KNAME},@function')
    A(f'{KNAME}:')

    sID = S(2)
    sF = S(0)
    sGrp = S(3)
    sW, sB, sH, sSP = S(4), S(5), S(6), S(7)
    sT0, sT1, sT2, sT3, sT4, sT5 = S(8), S(9), S(10), S(11), S(12), S(13)
    sNext = S(14)
    sIdx = S(15)
    P = lambda i: S(16 + 2 * i, 2)
    pOUT, pDBG, pWS = S(32, 2), S(34, 2), S(36, 2)
    sM = S(38)
    sMn = S(39)
    rK, rV, rWQ, rWO, rX, rW1, rW2, rOUT, rDBG, rWS = [S(40 + 4 * i, 4) for i in range(10)]
    sPool = S(80, 2)
    sExh = S(82)
    sCur, sN, sP0, sRef = S(28), S(29), S(30), S(31)
    sNPW, sScB, sVal0, sVal1, sWgB, sPub = S(16), S(17), S(18), S(19), S(20), S(21)
    sCS = S(83)
    mT = [S(84 + 2 * t, 2) for t in range(4)]
    mJ8 = S(92, 2)
    m56 = S(94, 2)
    mG2 = S(96, 2)
    sX0, sX1 = S(98), S(99)
    sXP = S(100, 2)
    sEp = S(32)
    rWSD = rWQ
    LNS = [S(16), S(17), S(18), S(19), S(20), S(21), S(0), S(1)]
    sCnt = S(33)

    vTid = V(0)
    vLane, vJ, vG = V(1), V(2), V(3)
    vKoff, vKoff2, vVoff, vVoff2 = V(4), V(5), V(6), V(7)
    vMask = V(8, 4)
    vWoOff, vWoRem = V(12), V(13)
    vL = V(14)
    vL16 = V(15)
    vT = V(16, 8)
    OD0, OD1 = V(24, 4), V(28, 4)
    KD = V(32, 4)
    PB = V(36, 16)
    QB = V(52, 32)
    KB, VB, KB2, VB2 = V(84, 32), V(116, 32), V(148, 32), V(180, 32)
    XT = V(212, 44)
    WO = V(148, 56)
    vIdx, vOne, vCntA, vChk = XT[0], XT[1], XT[2], XT[3]
    vOw, vOr, vMr, vYw, vAt = XT[4], XT[5], XT[6], XT[7], XT[8]
    vPubOff, vGatOff, vGatML = XT[9], XT[10], XT[11]

    def dump(reg, slot):
        if not debug:
            return
        a.salu('s_lshl_b32', sX0, sID, 3)
        a.salu('s_add_u32', sX0, sX0, sW)
        a.salu('s_lshl_b32', sX0, sX0, 14)
        a.salu('s_add_u32', sX0, sX0, WS_DBG + slot * 256)
        a.valu('v_lshlrev_b32', XT[43], 2, vLane)
        a.vstore('buffer_store_dword', reg, XT[43], rWSD, sX0)

    stamp_names = []
    early = []

    DIAG = {'v_issued': 2, 'q_got': 3, 's_issued': 4, 'v_B3': 5, 'v_gath': 6, 'atom': 7, 'poll': 8, 'B6': 9, 'end': 11, 's_q': 12}

    def diag_put(slot, sreg, invert=False):
        r_ = S(25) if invert else S(24)
        a.salu('s_not_b32' if invert else 's_mov_b32', r_, sreg)
        a.misc(f's_atomic_umax {r_}, {pDBG}, {slot * 4}')

    def stamp(name, late=True):
        if diag and name in DIAG:
            wv = 0 if name[:2] in ('v_', 'q_') else 4 if name[:2] == 's_' else 7
            L_d = a.newlabel('diag')
            a.salu('s_cmp_lg_u32', None, sW, wv)
            a.branch('s_cbranch_scc1', L_d)
            a.misc('s_memrealtime s[22:23]')
            a.wait_lgkm(0)
            diag_put(DIAG[name], S(22))
            if name == 'v_B3':
                diag_put(13, S(22), True)
            if name == 'v_issued':
                a.wait_lgkm(0)
                diag_put(0, S(26), True)
                diag_put(1, S(26))
            a.label(L_d)
            return
        if not prof:
            return
        k = len(stamp_names)
        stamp_names.append(name)
        a.misc('s_memrealtime s[22:23]')
        a.wait_lgkm(0)
        if late:
            a.valu('v_writelane_b32', V(0), S(22), k, rmw=True)
        else:
            a.salu('s_mov_b32', S(24 + len(early)), S(22))
            early.append(k)

    def stamp_val(name, sreg):
        if not prof:
            return
        k = len(stamp_names)
        stamp_names.append(name)
        a.valu('v_writelane_b32', V(0), sreg, k, rmw=True)

    def stamp_flush_early():
        if not prof:
            return
        for i, k in enumerate(early):
            a.valu('v_writelane_b32', V(0), S(24 + i), k, rmw=True)

    def stamp_store():
        if not prof:
            return
        a.salu('s_mov_b64', 'exec', -1)
        a.salu('s_lshl_b32', sX0, sID, 3)
        a.salu('s_add_u32', sX0, sX0, sW)
        a.salu('s_lshl_b32', sX0, sX0, 8)
        a.salu('s_add_u32', sX0, sX0, WS_DBG)
        a.valu('v_lshlrev_b32', V(23), 2, vLane)
        a.vstore('buffer_store_dword', V(0), V(23), rWSD, sX0)

    def srd(r, ptr, nbytes, off=None):
        if off is None:
            a.salu('s_mov_b32', r[0], ptr[0])
            a.salu('s_mov_b32', r[1], ptr[1])
        else:
            a.salu('s_add_u32', r[0], ptr[0], off)
            a.salu('s_addc_u32', r[1], ptr[1], 0)
        a.salu('s_mov_b32', r[2], nbytes)
        a.salu('s_mov_b32', r[3], 0x00020000)

    def wave_red_multi(op, vs, sdsts, quads_equal=False):
        ctrls = ['row_ror:4', 'row_ror:8'] if quads_equal else ['quad_perm:[1,0,3,2]', 'quad_perm:[2,3,0,1]', 'row_half_mirror', 'row_mirror']
        for c in ctrls:
            for v in vs:
                a.dpp(op, v, v, v, ctrl=c)
        for v in vs:
            a.dpp(op, v, v, v, ctrl='row_bcast:15', row_mask=0xa)
        for v in vs:
            a.dpp(op, v, v, v, ctrl='row_bcast:31', row_mask=0xc)
        for v, s_ in zip(vs, sdsts):
            a.valu('v_readlane_b32', s_, v, 63)

    def wave_red(op, v, sdst, quads_equal=False):
        wave_red_multi(op, [v], [sdst], quads_equal)

    def rbf(dst, src):
        a.valu('v_cvt_pk_bf16_f32', dst, src, src)
        a.valu('v_and_b32', dst, 0xffff0000, dst)

    def unpack8(xf, raw):
        for i in range(4):
            a.valu('v_lshlrev_b32', xf[2 * i], 16, raw[i])
            a.valu('v_and_b32', xf[2 * i + 1], 0xffff0000, raw[i])

    def layernorm(rows):
        def each(f):
            for r_ in rows:
                f(*r_)
        each(lambda xf, t, s0, s1: a.valu('v_add_f32', t[0], xf[0], xf[1]))
        each(lambda xf, t, s0, s1: a.valu('v_add_f32', t[1], xf[2], xf[3]))
        each(lambda xf, t, s0, s1: a.valu('v_add_f32', t[2], xf[4], xf[5]))
        each(lambda xf, t, s0, s1: a.valu('v_add_f32', t[3], xf[6], xf[7]))
        each(lambda xf, t, s0, s1: a.valu('v_add_f32', t[0], t[0], t[1]))
        each(lambda xf, t, s0, s1: a.valu('v_add_f32', t[2], t[2], t[3]))
        each(lambda xf, t, s0, s1: a.valu('v_add_f32', t[0], t[0], t[2]))
        wave_red_multi('v_add_f32', [r_[1][0] for r_ in rows], [r_[2] for r_ in rows])
        each(lambda xf, t, s0, s1: a.valu('v_mov_b32', t[0], s0))
        each(lambda xf, t, s0, s1: a.valu('v_mul_f32', t[0], 1.0 / 448.0, t[0]))
        each(lambda xf, t, s0, s1: a.valu('v_sub_f32', t[1], xf[0], t[0]))
        each(lambda xf, t, s0, s1: a.valu('v_mul_f32', t[2], t[1], t[1]))
        for i in range(1, 8):
            each(lambda xf, t, s0, s1: a.valu('v_sub_f32', t[1], xf[i], t[0]))
            each(lambda xf, t, s0, s1: a.valu('v_fmac_f32', t[2], t[1], t[1]))
        each(lambda xf, t, s0, s1: a.valu('v_cndmask_b32', t[2], 0, t[2], m56))
        wave_red_multi('v_add_f32', [r_[1][2] for r_ in rows], [r_[3] for r_ in rows])
        each(lambda xf, t, s0, s1: rbf(t[0], t[0]))
        each(lambda xf, t, s0, s1: a.valu('v_mov_b32', t[2], s1))
        each(lambda xf, t, s0, s1: a.valu('v_mul_f32', t[2], 1.0 / 448.0, t[2]))
        each(lambda xf, t, s0, s1: rbf(t[2], t[2]))
        each(lambda xf, t, s0, s1: a.valu('v_add_f32', t[2], 1e-5, t[2]))
        each(lambda xf, t, s0, s1: rbf(t[2], t[2]))
        each(lambda xf, t, s0, s1: a.valu('v_sqrt_f32', t[2], t[2]))
        each(lambda xf, t, s0, s1: rbf(t[2], t[2]))
        each(lambda xf, t, s0, s1: a.valu('v_rcp_f32', t[2], t[2]))
        for i in range(0, 8, 2):
            each(lambda xf, t, s0, s1: a.valu('v_sub_f32', xf[i], xf[i], t[0]))
            each(lambda xf, t, s0, s1: a.valu('v_sub_f32', xf[i + 1], xf[i + 1], t[0]))
            each(lambda xf, t, s0, s1: a.valu('v_cvt_pk_bf16_f32', t[1], xf[i], xf[i + 1]))
            each(lambda xf, t, s0, s1: a.valu('v_lshlrev_b32', xf[i], 16, t[1]))
            each(lambda xf, t, s0, s1: a.valu('v_and_b32', xf[i + 1], 0xffff0000, t[1]))
            each(lambda xf, t, s0, s1: a.valu('v_mul_f32', xf[i], xf[i], t[2]))
            each(lambda xf, t, s0, s1: a.valu('v_mul_f32', xf[i + 1], xf[i + 1], t[2]))

    def spin_until(load_fn, cond_fn, first_check=True, sleep=1):
        done = a.newlabel('done')
        loop = a.newlabel('spin')
        if first_check:
            cond_fn()
            a.branch('s_cbranch_scc1', done)
        a.salu('s_mov_b32', sT5, SPIN_BOUND)
        a.label(loop)
        load_fn()
        a.wait_vm0()
        cond_fn()
        a.branch('s_cbranch_scc1', done)
        if sleep:
            a.misc(f's_sleep {sleep}')
        a.salu('s_sub_u32', sT5, sT5, 1)
        a.salu('s_cmp_lg_u32', None, sT5, 0)
        a.branch('s_cbranch_scc1', loop)
        a.label(done)

    def issue_k(buf, soff):
        for i in range(8):
            o = (i // 2) * 2048 + (i % 2) * 256
            a.vload('buffer_load_dwordx4', buf[4 * i:4 * i + 4], vKoff if o < 4096 else vKoff2, rK, soff, o % 4096, KP)

    def issue_v(buf, soff):
        for i in range(8):
            o = (i // 2) * 2048 + (i % 2) * 256
            a.vload('buffer_load_dwordx4', buf[4 * i:4 * i + 4], vVoff if o < 4096 else vVoff2, rV, soff, o % 4096, VP)

    def koff(i):
        o = (i // 2) * 2048 + (i % 2) * 256
        return (vKoff if o < 4096 else vKoff2), o % 4096

    def voff(i):
        o = (i // 2) * 2048 + (i % 2) * 256
        return (vVoff if o < 4096 else vVoff2), o % 4096

    TS = 4 * 8192

    def issue_static_units():
        assert fastx and xmap == 1
        a.salu('s_lshl_b32', sCur, sSP, 7)
        a.salu('s_add_u32', sCur, sCur, sW)
        a.salu('s_sub_u32', sCur, sCur, 4)
        a.salu('s_lshl_b32', sCur, sCur, 13)
        a.salu('s_mov_b32', sT5, sCur)
        issue_k(KB2, sCur)
        a.salu('s_add_u32', sCur, sCur, TS)
        issue_k(VB2, sCur)
        a.salu('s_add_u32', sCur, sCur, TS)
        a.salu('s_mov_b32', sN, 2)
        L_cd = a.newlabel('cd')
        a.salu('s_cmp_lt_u32', None, sF, NF)
        a.branch('s_cbranch_scc1', L_cd)
        a.salu('s_mov_b32', sN, 4)
        a.salu('s_sub_u32', sT4, sW, 4)
        a.salu('s_lshl_b32', sT4, sT4, 14)
        a.salu('s_add_u32', sT4, sT4, L_W1)
        for i in range(16):
            vo, o = koff(i % 8)
            a.salu('s_add_u32', sT0, sT4, i * 1024 - o)
            a.salu('s_mov_b32', 'm0', sT0)
            a.vload_lds(vo, rK, sCur, o, KP)
            if i % 8 == 7:
                a.salu('s_add_u32', sCur, sCur, TS)
        a.label(L_cd)
        issue_k(KB, sCur)
        a.salu('s_add_u32', sT3, sCur, TS)
        issue_k(VB, sT3)

    a.salu('s_cmp_ge_u32', None, sID, NWG)
    a.branch('s_cbranch_scc1', 'L_end')
    if rot:
        a.salu('s_add_u32', sID, sID, rot)
        a.salu('s_and_b32', sID, sID, 255)
    if prof or diag:
        a.misc('s_memrealtime s[84:85]')
    a.misc('s_load_dwordx16 s[16:31], s[0:1], 0')
    a.misc('s_load_dwordx4 s[32:35], s[0:1], 64')
    a.misc('s_load_dwordx2 s[36:37], s[0:1], 80')
    a.valu('v_lshrrev_b32', vT[0], 6, vTid)
    a.valu('v_and_b32', vLane, 63, vTid)
    a.valu('v_readfirstlane_b32', sW, vT[0])
    a.valu('v_and_b32', vJ, 15, vTid)
    a.valu('v_lshrrev_b32', vG, 4, vLane)
    a.valu('v_bfe_u32', vT[1], vLane, 2, 2)
    a.valu('v_and_b32', vT[2], 3, vLane)
    a.valu('v_lshlrev_b32', vT[1], 9, vT[1])
    a.valu('v_lshlrev_b32', vT[2], 4, vT[2])
    a.valu('v_lshl_add_u32', vKoff, vG, 6, vT[1])
    a.valu('v_add_u32', vKoff, vKoff, vT[2])
    a.valu('v_add_u32', vKoff2, 4096, vKoff)
    a.valu('v_lshlrev_b32', vL16, 4, vLane)
    a.valu('v_lshlrev_b32', vVoff, 9, vG)
    a.valu('v_lshl_add_u32', vVoff, vJ, 4, vVoff)
    a.valu('v_add_u32', vVoff2, 4096, vVoff)
    if xmap == 1:
        a.salu('s_lshr_b32', sT0, sID, 3)
        a.salu('s_and_b32', sT2, sT0, 7)
        a.salu('s_mul_i32', sT1, sT2, 11)
        a.salu('s_lshr_b32', sT1, sT1, 5)
        a.salu('s_mul_i32', sT1, sT1, 3)
        a.salu('s_sub_u32', sT1, sT2, sT1)
        a.salu('s_add_u32', sT1, sT1, 1)
        a.salu('s_bfe_u32', sSP, sID, (2 << 16) | 1)
        a.salu('s_and_b32', sT3, sSP, sT1)
        a.salu('s_bcnt1_i32_b32', sT3, sT3)
        a.salu('s_xor_b32', sT3, sT3, sID)
        a.salu('s_and_b32', sT3, sT3, 1)
        a.salu('s_lshl_b32', sGrp, sT0, 1)
        a.salu('s_add_u32', sGrp, sGrp, sT3)
    else:
        a.salu('s_lshr_b32', sGrp, sID, 2)
        a.salu('s_and_b32', sSP, sID, 3)
    a.salu('s_lshr_b32', sB, sGrp, 4)
    a.salu('s_and_b32', sH, sGrp, 15)
    a.salu('s_lshl_b32', sT1, sGrp, 22)
    a.salu('s_lshr_b32', sT5, sID, 3)
    if fastx:
        a.salu('s_and_b32', sT4, sID, 7)
    else:
        a.salu('s_lshl_b32', sT4, sT5, 1)
        a.salu('s_xor_b32', sT4, sT4, sID)
        a.salu('s_and_b32', sT4, sT4, 7)
    a.salu('s_cmp_eq_u32', None, sT4, 0)
    a.salu('s_cselect_b32', sT5, sT5, 255)
    a.valu('v_mov_b32', vT[2], 0)
    a.valu('v_mov_b32', vT[3], 0)
    a.valu('v_mov_b32', vCntA, L_CNT)
    a.valu('v_mov_b32', vT[4], 0)
    a.valu('v_mov_b32', vT[5], 0)
    a.ds('ds_write_b128', vCntA, vT[2:6])
    a.wait_lgkm(0)
    a.salu('s_mov_b32', sF, sT5)
    if diag:
        a.salu('s_mov_b32', S(26), S(84))
    a.barrier()
    if prof:
        stamp_names.append('entry')
        a.valu('v_writelane_b32', V(0), S(84), 0, rmw=True)

    def xcc_word(dst, n):
        a.misc(f's_getreg_b32 {sX0}, hwreg(HW_REG_XCC_ID)')
        a.salu('s_and_b32', sX0, sX0, 15)
        a.salu('s_mul_i32', sX1, sX0, sX0)
        a.salu('s_lshl_b32', sX0, sX0, 8)
        a.salu('s_lshl_b32', sX1, sX1, 18)
        a.salu('s_or_b32', dst, sX0, sX1)
        a.salu('s_or_b32', dst, dst, 1)
        if n != 1:
            a.salu('s_mul_i32', dst, dst, n)

    def common_setup():
        srd(rWS, pWS, WS_BYTES)
        srd(rOUT, pOUT, 4 * 896)
        srd(rDBG, pDBG, 256)
        a.salu('s_mov_b32', sXP[0], P(0)[0])
        a.salu('s_mov_b32', sXP[1], P(0)[1])
        if prof:
            a.salu('s_mov_b32', sCnt, 0)
        a.valu('v_cmp_gt_u32_e64', mJ8, 8, vJ)
        a.valu('v_cmp_gt_u32_e64', m56, 56, vLane)
        a.valu('v_cmp_gt_u32_e64', mG2, 2, vG)
        a.valu('v_and_b32', vT[2], 1, vJ)
        a.valu('v_lshlrev_b32', vT[2], 4, vT[2])
        a.valu('v_mov_b32', vT[3], 0xffff)
        a.valu('v_lshlrev_b32', vT[3], vT[2], vT[3])
        a.valu('v_bfe_u32', vT[2], vJ, 1, 2)
        for r in range(4):
            a.valu('v_cmp_eq_u32', 'vcc', r, vT[2])
            a.valu('v_cndmask_b32', vMask[r], 0, vT[3], 'vcc')
        a.valu('v_mov_b32', vOne, 1)
        a.salu('s_mov_b32', sCS, CS)
        a.valu('v_lshrrev_b32', vAt, 5, vLane)
        a.valu('v_lshlrev_b32', vAt, 15, vAt)
        a.valu('v_bfe_u32', vT[6], vLane, 1, 1)
        a.valu('v_lshl_add_u32', vAt, vT[6], 14, vAt)
        a.valu('v_and_b32', vT[6], 1, vLane)
        a.valu('v_lshl_add_u32', vAt, vT[6], 5, vAt)
        a.valu('v_bfe_u32', vT[7], vLane, 2, 3)
        a.valu('v_lshl_add_u32', vAt, vT[7], 2, vAt)

    L_stream = 'L_stream'
    L_b3 = 'L_b3'
    a.salu('s_cmp_ge_u32', None, sW, 4)
    a.branch('s_cbranch_scc1', L_stream)

    L_svc = a.newlabel('svc')
    L_svc2 = a.newlabel('svc2')
    if notail == 1:
        a.branch('s_branch', 'L_end')
    a.misc('s_setprio 3')
    a.salu('s_mul_i32', sT2, sW, 896)
    srd(rX, P(0), 896, sT2)
    srd(rWQ, P(3), 448 * 8192 if not nowq else 0)
    XR = KB[0:4]
    vEp = XT[12]
    a.vload('buffer_load_dwordx4', XR, vL16, rX)
    a.valu('v_lshrrev_b32', vT[1], 1, vLane)
    a.valu('v_lshlrev_b32', vT[1], 13, vT[1])
    a.valu('v_and_b32', vT[2], 1, vLane)
    a.valu('v_lshl_add_u32', vT[1], vT[2], 4, vT[1])
    a.salu('s_lshl_b32', sT2, sSP, 2)
    a.salu('s_add_u32', sT2, sT2, sB)
    a.salu('s_lshl_b32', sT2, sT2, 5)
    a.salu('s_lshl_b32', sT3, sH, 9)
    a.salu('s_add_u32', sT2, sT2, sT3)
    a.salu('s_lshl_b32', sT3, sW, 18)
    a.salu('s_add_u32', sT2, sT2, sT3)
    a.salu('s_lshl_b32', sT3, sW, 10)
    a.salu('s_add_u32', sT3, sT3, L_WQS)
    for i in range(4):
        a.salu('s_mov_b32', 'm0', sT3)
        a.vload_lds(vT[1], rWQ, sT2, 0, WF)
        if i < 3:
            a.salu('s_add_u32', sT2, sT2, 4 * 32 * 8192)
            a.salu('s_add_u32', sT3, sT3, 4096)
    srd(rWS, pWS, WS_BYTES)
    a.salu('s_lshl_b32', sT2, sW, 24)
    a.valu('v_mov_b32', vT[2], sT2)
    a.salu('s_mov_b32', sT2, WS_EPOCH)
    a.vload('buffer_load_dword', vEp, vT[2], rWS, sT2, 0, LDF)
    MK = VB[0:4]
    ZR = VB[4:8]
    for i in range(4):
        a.valu('v_mov_b32', MK[i], -1)
        a.valu('v_mov_b32', ZR[i], 0)
    a.salu('s_lshl_b32', sT2, sGrp, 2)
    a.salu('s_add_u32', sT2, sT2, sSP)
    a.salu('s_lshl_b32', sT2, sT2, 2)
    a.salu('s_add_u32', sT2, sT2, sW)
    a.salu('s_lshl_b32', sT2, sT2, 9)
    a.salu('s_add_u32', sT2, sT2, WS_MAIL)
    a.valu('v_lshrrev_b32', vT[1], 5, vLane)
    a.valu('v_lshl_add_u32', vT[1], vT[1], 24, vL16)
    a.vstore('buffer_store_dwordx4', MK, vT[1], rWS, sT2, 0, STF)
    a.salu('s_lshl_b32', sT2, sGrp, 8)
    a.salu('s_add_u32', sT2, sT2, WS_POOL)
    a.salu('s_xor_b32', sT3, sW, 1)
    a.salu('s_add_u32', sT3, sT3, sSP)
    a.valu('v_add_u32', vT[1], sT3, vLane)
    a.valu('v_lshlrev_b32', vT[1], 24, vT[1])
    a.vstore('buffer_store_dword', ZR[0], vT[1], rWS, sT2, 0, STF)
    a.salu('s_lshl_b32', sT2, sGrp, 2)
    a.salu('s_add_u32', sT2, sT2, sSP)
    a.salu('s_lshl_b32', sT2, sT2, 13)
    a.salu('s_lshl_b32', sT3, sW, 10)
    a.salu('s_add_u32', sT2, sT2, sT3)
    a.salu('s_add_u32', sT2, sT2, WS_SC)
    a.vstore('buffer_store_dwordx4', MK, vL16, rWS, sT2, 0, STF)
    n_after_x = 8
    srd(rWO, P(4), 4096 * 896 if not nowo else 0)
    srd(rW1, P(6), 448 * 3584 if not nodma else 0)
    srd(rW2, P(7), 448 * 3584 if not nodma else 0)
    common_setup()
    stamp('v_issued')
    XF = KB2[0:8]
    a.misc(f's_waitcnt vmcnt({n_after_x})')
    stamp('v_x')
    unpack8(XF, XR)
    layernorm([(XF, vT[0:4], sX0, sX1)])
    for i in range(4):
        a.valu('v_cvt_pk_bf16_f32', XR[i], XF[2 * i], XF[2 * i + 1])
    a.salu('s_mul_i32', sT2, sW, 896)
    a.valu('v_add_u32', vT[0], sT2, vL16)
    a.salu('s_mov_b64', 'exec', m56)
    a.ds('ds_write_b128', vT[0], XR, offset=L_XN2)
    a.salu('s_mov_b64', 'exec', 1)
    a.misc('s_waitcnt vmcnt(0) lgkmcnt(0)')
    a.misc(f'ds_add_u32 {vCntA}, {vOne} offset:8')
    a.salu('s_mov_b64', 'exec', -1)
    stamp('v_ln')
    a.salu('s_cmp_lg_u32', None, sW, 0)
    a.branch('s_cbranch_scc1', L_svc)
    QA = V(148, 56)
    QF = V(84, 56)
    a.valu('v_and_b32', vT[6], 3, vLane)
    a.valu('v_mul_u32_u24', vT[6], 896, vT[6])
    a.valu('v_lshl_add_u32', vT[6], vG, 4, vT[6])
    a.valu('v_bfe_u32', vT[4], vLane, 2, 2)
    a.valu('v_lshl_add_u32', vT[4], vG, 3, vT[4])
    a.valu('v_lshlrev_b32', vT[4], 5, vT[4])
    a.valu('v_and_b32', vT[5], 3, vLane)
    a.valu('v_lshl_add_u32', vT[4], vT[5], 3, vT[4])
    L_sw = a.newlabel('sw')
    L_sok = a.newlabel('sok')
    a.salu('s_mov_b32', sT5, SPIN_BOUND * 8)
    a.label(L_sw)
    a.ds('ds_read_b32', vT[0], vCntA, offset=8)
    a.wait_lgkm(0)
    a.valu('v_readfirstlane_b32', sT2, vT[0])
    a.salu('s_cmp_ge_u32', None, sT2, 4)
    a.branch('s_cbranch_scc1', L_sok)
    a.salu('s_sub_u32', sT5, sT5, 1)
    a.salu('s_cmp_lg_u32', None, sT5, 0)
    a.branch('s_cbranch_scc1', L_sw)
    a.label(L_sok)
    stamp('q_wq')
    for ks in range(14):
        a.ds('ds_read_b128', QA[4 * ks:4 * ks + 4], vT[6], offset=L_XN2 + 64 * ks)
    for ks in range(14):
        for qq in range(2):
            a.ds('ds_read_b64_tr_b16', QF[ks * 4 + 2 * qq:ks * 4 + 2 * qq + 2], vT[4], offset=L_WQS + (32 * ks + 4 * qq) * 32)
    a.valu('v_add_u32', vEp, 1, vEp)
    for ks in range(14):
        a.wait_lgkm(min(2 * (13 - ks), 15))
        a.mfma(KD, QA[4 * ks:4 * ks + 4], QF[4 * ks:4 * ks + 4], 0 if ks == 0 else KD)
    a.valu('v_lshlrev_b32', vT[4], 10, vG)
    a.valu('v_lshl_add_u32', vT[4], vJ, 2, vT[4])
    a.valu('v_and_b32', vT[5], 1, vJ)
    a.valu('v_lshl_add_u32', vT[4], vT[5], 24, vT[4])
    a.salu('s_lshl_b32', sT2, sSP, 2)
    a.salu('s_add_u32', sT2, sT2, sB)
    a.salu('s_lshl_b32', sT2, sT2, 6)
    a.salu('s_lshl_b32', sT3, sH, 12)
    a.salu('s_add_u32', sT2, sT2, sT3)
    a.salu('s_add_u32', sT2, sT2, WS_Q)
    for r in range(1, 4):
        a.valu('v_cmp_eq_u32', 'vcc', r, vG)
        a.valu('v_cndmask_b32', KD[0], KD[0], KD[r], 'vcc')
    a.dpp('v_mov_b32', KD[1], KD[0], ctrl='quad_perm:[1,0,3,2]')
    a.valu('v_cvt_pk_bf16_f32', PB[0], KD[0], KD[1])
    a.valu('v_mov_b32', PB[1], vEp)
    a.vstore('buffer_store_dwordx2', PB[0:2], vT[4], rWS, sT2, 0, STF)
    a.salu('s_lshl_b32', sT4, sB, 10)
    a.salu('s_add_u32', sT4, sT4, sT3)
    a.salu('s_add_u32', sT4, sT4, WS_Q)
    a.valu('v_readfirstlane_b32', sEp, vEp)
    QG = PB[4:8]

    def ldq():
        a.vload('buffer_load_dwordx4', QG, vL16, rWS, sT4, 0, LDF)

    def condq():
        a.valu('v_cmp_ne_u32_e64', S(10, 2), sEp, QG[1])
        a.valu('v_cmp_ne_u32', 'vcc', sEp, QG[3])
        a.salu('s_or_b64', S(10, 2), S(10, 2), 'vcc')
        a.salu('s_cmp_eq_u64', None, S(10, 2), 0)

    spin_until(ldq, condq, first_check=False, sleep=0)
    a.valu('v_mov_b32', QG[1], QG[2])
    a.valu('v_lshlrev_b32', vT[4], 3, vLane)
    a.ds('ds_write_b64', vT[4], QG[0:2], offset=L_QBF)
    a.wait_lgkm(0)
    a.ds('ds_write_b32', vCntA, vOne, offset=4)
    stamp('q_got')
    a.branch('s_branch', L_svc2)
    a.label(L_svc)
    L_nodma = a.newlabel('nodma')
    a.salu('s_cmp_ge_u32', None, sF, NF)
    a.branch('s_cbranch_scc1', L_nodma)
    a.salu('s_sub_u32', sT2, sW, 1)
    L_ini = a.newlabel('ini')
    a.label(L_ini)
    a.salu('s_lshl_b32', sT3, sT2, 10)
    a.salu('s_lshl_b32', sT4, sF, 14)
    a.salu('s_add_u32', sT4, sT4, WS_IN1)
    a.salu('s_mul_i32', sT5, sF, 7168)
    a.salu('s_add_u32', sT5, sT5, WS_INBOX - 16384)
    a.salu('s_cmp_lt_u32', None, sT2, 16)
    a.salu('s_cselect_b32', sT4, sT4, sT5)
    a.salu('s_add_u32', sT4, sT4, sT3)
    a.vstore('buffer_store_dwordx4', MK, vL16, rWS, sT4, 0, STF)
    a.salu('s_add_u32', sT2, sT2, 3)
    a.salu('s_cmp_lt_u32', None, sT2, 23)
    a.branch('s_cbranch_scc1', L_ini)
    a.valu('v_mul_u32_u24', vT[1], 896, vG)
    a.valu('v_lshl_add_u32', vT[1], vJ, 2, vT[1])
    a.valu('v_lshrrev_b32', vT[2], 3, vJ)
    a.valu('v_lshl_add_u32', vT[1], vT[2], 24, vT[1])
    a.salu('s_lshl_b32', sT4, sF, 5)
    a.vstore('buffer_store_dword', MK[0], vT[1], rWS, sT4, WS_H, STF)
    a.salu('s_mov_b64', 'exec', 1)
    a.wait_vm0()
    a.misc(f'ds_add_rtn_u32 {vIdx}, {vCntA}, {vOne} offset:12')
    a.wait_lgkm(0)
    a.salu('s_mov_b64', 'exec', -1)
    a.valu('v_readfirstlane_b32', sT2, vIdx)
    L_nosig = a.newlabel('nosig')
    a.salu('s_cmp_lg_u32', None, sT2, 2)
    a.branch('s_cbranch_scc1', L_nosig)
    xcc_word(sT0, 1)
    a.misc(f's_atomic_add {sT0}, {pDBG}, {DB_INITF}')
    a.label(L_nosig)
    a.valu('v_lshrrev_b32', vT[6], 3, vLane)
    a.valu('v_mul_u32_u24', vT[6], 3584, vT[6])
    a.valu('v_and_b32', vT[7], 7, vLane)
    a.valu('v_lshl_add_u32', vT[6], vT[7], 4, vT[6])
    a.salu('s_sub_u32', sT2, sW, 1)
    L_dma = a.newlabel('dma')
    a.label(L_dma)
    a.salu('s_lshl_b32', sT3, sT2, 10)
    a.salu('s_mul_i32', sT4, sT2, 8 * 3584)
    a.salu('s_lshl_b32', sT5, sF, 7)
    a.salu('s_add_u32', sT4, sT4, sT5)
    a.salu('s_mul_i32', sT5, sF, 57344)
    a.salu('s_add_u32', sT5, sT5, sT3)
    a.salu('s_add_u32', sT0, sT3, L_W1)
    a.salu('s_mov_b32', 'm0', sT0)
    a.vload_lds(vT[6], rW1, sT4, 0, WF)
    a.salu('s_add_u32', sT0, sT3, L_W2)
    a.salu('s_mov_b32', 'm0', sT0)
    a.vload_lds(vL16, rW2, sT5, 0, WF)
    a.salu('s_add_u32', sT2, sT2, 3)
    a.salu('s_cmp_lt_u32', None, sT2, 56)
    a.branch('s_cbranch_scc1', L_dma)
    a.label(L_nodma)
    a.label(L_svc2)
    if debug or prof:
        srd(rWSD, pWS, (4 << 20) + (64 << 20))
    a.valu('v_mul_u32_u24', vWoOff, 896, vG)
    a.valu('v_lshl_add_u32', vWoOff, vJ, 4, vWoOff)
    a.valu('v_and_b32', vT[2], 7, vJ)
    a.valu('v_lshlrev_b32', vT[3], 4, vT[2])
    a.valu('v_lshrrev_b32', vT[4], 3, vJ)
    a.valu('v_mul_u32_u24', vT[5], 4 * 896, vT[4])
    a.valu('v_mul_u32_u24', vWoRem, 896, vG)
    a.valu('v_add3_u32', vWoRem, vWoRem, vT[3], vT[5])
    a.valu('v_add_u32', vWoRem, 768, vWoRem)
    a.salu('s_lshl_b32', sT2, sH, 8)
    a.salu('s_lshl_b32', sT3, sSP, 6)
    a.salu('s_add_u32', sT2, sT2, sT3)
    a.salu('s_lshl_b32', sT3, sW, 4)
    a.salu('s_add_u32', sT2, sT2, sT3)
    a.salu('s_mul_i32', sT2, sT2, 896)
    for Gp in range(4):
        for s_ in range(3):
            a.vload('buffer_load_dwordx4', WO[(Gp * 3 + s_) * 4:(Gp * 3 + s_) * 4 + 4], vWoOff, rWO, sT2, 256 * s_, WF)
        if Gp % 2 == 0:
            a.vload('buffer_load_dwordx4', WO[48 + 2 * Gp:52 + 2 * Gp], vWoRem, rWO, sT2, 0, WF)
        if Gp < 3:
            a.salu('s_add_u32', sT2, sT2, 4 * 896)
    a.valu('v_lshl_add_u32', vT[5], vT[4], 2, vG)
    a.valu('v_lshlrev_b32', vT[5], 7, vT[5])
    a.valu('v_lshl_add_u32', vYw, vT[2], 4, vT[5])
    a.salu('s_lshl_b32', sT2, sW, 11)
    a.valu('v_add_u32', vYw, sT2, vYw)
    a.valu('v_and_b32', vT[6], 3, vJ)
    a.valu('v_lshrrev_b32', vT[7], 2, vJ)
    a.valu('v_mul_u32_u24', vOr, 1040, vT[6])
    a.valu('v_lshl_add_u32', vOr, vG, 6, vOr)
    a.valu('v_lshl_add_u32', vOr, vT[7], 4, vOr)
    a.salu('s_lshl_b32', sT2, sW, 8)
    a.valu('v_add_u32', vOr, sT2, vOr)
    a.valu('v_lshlrev_b32', vMr, 3, vT[6])
    a.valu('v_lshrrev_b32', vT[2], 1, vG)
    a.valu('v_lshlrev_b32', vPubOff, 5, vT[2])
    a.valu('v_lshl_add_u32', vPubOff, vT[6], 3, vPubOff)
    a.valu('v_and_b32', vT[2], 1, vT[7])
    a.valu('v_lshl_add_u32', vPubOff, vT[2], 2, vPubOff)
    a.valu('v_and_b32', vT[2], 1, vG)
    a.valu('v_lshl_add_u32', vPubOff, vT[2], 1, vPubOff)
    a.valu('v_lshrrev_b32', vT[2], 1, vT[7])
    a.valu('v_add_u32', vPubOff, vPubOff, vT[2])
    a.valu('v_lshlrev_b32', vPubOff, 2, vPubOff)
    a.salu('s_lshl_b32', sT2, sSP, 9)
    a.valu('v_lshlrev_b32', vGatML, 11, vT[6])
    a.valu('v_add_u32', vGatML, sT2, vGatML)
    a.salu('s_lshl_b32', sT3, sW, 6)
    a.valu('v_lshl_add_u32', vT[2], vT[7], 2, vG)
    a.valu('v_lshl_add_u32', vGatOff, vT[2], 2, vGatML)
    a.valu('v_add_u32', vGatOff, sT3, vGatOff)
    a.valu('v_lshlrev_b32', vOw, 24, vLane)

    def ldfi():
        a.valu('v_mov_b32', vT[7], 0)
        a.vload('buffer_load_dword', vChk, vT[7], rDBG, 0, DB_INITF, LDF)

    def condf():
        a.valu('v_readfirstlane_b32', sT2, vChk)
        a.salu('s_and_b32', sT3, sT2, 255)
        a.salu('s_cmp_ge_u32', None, sT3, NF)

    L_nochk = a.newlabel('nochk')
    a.salu('s_cmp_lg_u32', None, sW, 1)
    a.branch('s_cbranch_scc1', L_nochk)
    L_mw = a.newlabel('mw')
    L_mok = a.newlabel('mok')
    a.salu('s_mov_b32', sT5, SPIN_BOUND)
    a.label(L_mw)
    a.ds('ds_read_b32', vT[0], vCntA)
    a.wait_lgkm(0)
    a.valu('v_readfirstlane_b32', sT2, vT[0])
    a.salu('s_cmp_ge_u32', None, sT2, 4)
    a.branch('s_cbranch_scc1', L_mok)
    a.misc('s_sleep 64')
    a.salu('s_sub_u32', sT5, sT5, 1)
    a.salu('s_cmp_lg_u32', None, sT5, 0)
    a.branch('s_cbranch_scc1', L_mw)
    a.label(L_mok)
    spin_until(ldfi, condf, first_check=False, sleep=64)
    xcc_word(sT3, NF)
    a.salu('s_cmp_eq_u32', None, sT2, sT3)
    a.salu('s_cselect_b32', sT2, fastx, 0)
    a.valu('v_mov_b32', vT[7], sT2)
    a.ds('ds_write_b32', vCntA, vT[7], offset=16)
    a.label(L_nochk)
    a.misc('s_waitcnt vmcnt(0) lgkmcnt(0)')
    a.salu('s_lshl_b32', sT4, sGrp, 13)
    a.salu('s_add_u32', sT4, sT4, WS_MAIL)
    a.salu('s_lshl_b32', sT2, sSP, 2)
    a.salu('s_add_u32', sT2, sT2, sW)
    a.salu('s_lshl_b32', sT2, sT2, 9)
    a.salu('s_add_u32', sT3, sT4, sT2)
    stamp('v_ready')
    if notail == 2:
        a.branch('s_branch', 'L_end')
    a.barrier()
    stamp('v_B3')
    ov = PB[0:4]
    ml = PB[4:6]
    a.ds('ds_read_b64', ml, vMr, offset=L_ML)
    a.ds('ds_read_b128', ov, vOr, offset=L_OP)
    a.valu('v_and_b32', vT[5], 3, vJ)
    a.wait_lgkm(1)
    red4 = ('quad_perm:[1,0,3,2]', 'quad_perm:[2,3,0,1]')
    a.valu('v_mov_b32', vT[0], ml[0])
    for c in red4:
        a.dpp('v_max_f32', vT[0], vT[0], vT[0], ctrl=c)
    a.valu('v_sub_f32', vT[2], ml[0], vT[0])
    a.valu('v_mul_f32', vT[2], sCS, vT[2])
    a.valu('v_exp_f32', vT[2], vT[2])
    a.wait_lgkm(0)
    a.valu('v_mul_f32', vT[1], ml[1], vT[2])
    for r in range(4):
        a.valu('v_mul_f32', ov[r], ov[r], vT[2])
    for c in red4:
        for r in range(4):
            a.dpp('v_add_f32', ov[r], ov[r], ov[r], ctrl=c)
        a.dpp('v_add_f32', vT[1], vT[1], vT[1], ctrl=c)
    for r in range(1, 4):
        a.valu('v_cmp_eq_u32', 'vcc', r, vT[5])
        a.valu('v_cndmask_b32', ov[0], ov[0], ov[r], 'vcc')
    a.valu('v_min_u32', ov[0], -2, ov[0])
    a.vstore('buffer_store_dword', ov[0], vPubOff, rWS, sT3, 0, STF)
    a.valu('v_min_u32', vT[0], -2, vT[0])
    a.valu('v_min_u32', vT[1], -2, vT[1])
    a.vstore('buffer_store_dwordx2', vT[0:2], vOw, rWS, sT3, 256, STF)
    stamp('v_pub')
    gv = PB[8]
    gml = PB[10:12]

    def ldg():
        a.vload('buffer_load_dword', gv, vGatOff, rWS, sT4, 0, LDF)
        a.vload('buffer_load_dwordx2', gml, vGatML, rWS, sT4, 256, LDF)

    def condg():
        a.valu('v_max3_u32', vT[2], gv, gml[0], gml[1])
        a.valu('v_cmp_eq_u32_e64', S(10, 2), -1, vT[2])
        a.salu('s_cmp_eq_u64', None, S(10, 2), 0)

    spin_until(ldg, condg, first_check=False, sleep=gsleep)
    stamp('v_gath')
    a.valu('v_mov_b32', vT[0], gml[0])
    for c in red4:
        a.dpp('v_max_f32', vT[0], vT[0], vT[0], ctrl=c)
    a.valu('v_sub_f32', vT[1], gml[0], vT[0])
    a.valu('v_mul_f32', vT[1], sCS, vT[1])
    a.valu('v_exp_f32', vT[1], vT[1])
    a.valu('v_mul_f32', gv, gv, vT[1])
    a.valu('v_mul_f32', gml[1], gml[1], vT[1])
    for c in red4:
        a.dpp('v_add_f32', gv, gv, gv, ctrl=c)
        a.dpp('v_add_f32', gml[1], gml[1], gml[1], ctrl=c)
    a.valu('v_rcp_f32', gml[1], gml[1])
    a.valu('v_mul_f32', gv, gv, gml[1])
    a.valu('v_cvt_pk_bf16_f32', gv, gv, gv)
    dump(gv, 18)
    Y = [KB[0:4], KB[4:8], KB[8:12], KB[12:16], KB[16:20]]
    BT = [QB[4 * Gp:4 * Gp + 4] for Gp in range(4)]
    for Gp in range(4):
        for r in range(4):
            a.dpp('v_and_b32', BT[Gp][r], gv, vMask[r], ctrl=f'row_newbcast:{4 * Gp}')
        for s_ in range(3):
            a.mfma(Y[s_], WO[(Gp * 3 + s_) * 4:(Gp * 3 + s_) * 4 + 4], BT[Gp], 0 if Gp == 0 else Y[s_])
        a.mfma(Y[3 + Gp % 2], WO[48 + 4 * (Gp // 2):52 + 4 * (Gp // 2)], BT[Gp], 0 if Gp < 2 else Y[3 + Gp % 2])
    for r in range(4):
        a.valu('v_cndmask_b32', Y[0][r], Y[1][r], Y[0][r], mJ8)
    a.ds('ds_write_b128', vYw, Y[0], offset=L_YP)
    for r in range(4):
        a.valu('v_cndmask_b32', Y[3][r], Y[4][r], Y[3][r], mG2)
        a.valu('v_cndmask_b32', Y[2][r], Y[3][r], Y[2][r], mJ8)
    a.ds('ds_write_b128', vYw, Y[2], offset=L_YP + 1024)
    a.branch('s_branch', 'L_b4')

    a.label(L_stream)
    a.misc(f's_setprio {prio}')
    srd(rK, P(1), 4 << 20, sT1)
    srd(rV, P(2), 4 << 20, sT1)
    issue_static_units()
    common_setup()
    if debug or prof:
        srd(rWSD, pWS, (4 << 20) + (64 << 20))
    a.salu('s_lshl_b32', sT2, sGrp, 8)
    a.salu('s_add_u32', sT2, sT2, WS_POOL)
    a.salu('s_add_u32', sPool[0], pWS[0], sT2)
    a.salu('s_addc_u32', sPool[1], pWS[1], 0)
    a.valu('v_lshrrev_b32', vT[2], 2, vJ)
    for t in range(4):
        a.valu('v_cmp_eq_u32_e64', mT[t], t, vT[2])
    for r in range(4):
        a.valu('v_mov_b32', OD0[r], 0)
        a.valu('v_mov_b32', OD1[r], 0)
    a.valu('v_mov_b32', vL, 0)
    a.salu('s_mov_b32', sM, -3.0e38)
    a.salu('s_mov_b32', sExh, 0)
    a.valu('v_lshrrev_b32', vT[4], 3, vJ)
    a.valu('v_lshl_add_u32', vT[5], vT[4], 2, vG)
    a.valu('v_lshlrev_b32', vT[5], 7, vT[5])
    a.valu('v_and_b32', vT[6], 3, vJ)
    a.valu('v_lshl_add_u32', vOw, vT[6], 5, vT[5])
    a.valu('v_bfe_u32', vT[7], vJ, 2, 1)
    a.valu('v_lshl_add_u32', vOw, vT[7], 4, vOw)
    a.salu('s_sub_u32', sT2, sW, 4)
    a.salu('s_mul_i32', sT3, sT2, 1040)
    a.valu('v_add_u32', vOw, sT3, vOw)
    a.salu('s_lshl_b32', sT2, sT2, 3)
    a.valu('v_mov_b32', vMr, sT2)
    a.valu('v_lshl_add_u32', vT[1], vG, 2, vT[6])
    a.valu('v_lshlrev_b32', vT[1], 4, vT[1])
    vScG, vScB, vScA, vMax = XT[13], XT[14], XT[15], XT[16]
    SR = [XT[17], XT[18]]
    a.salu('s_mov_b32', sWgB, sT5)
    a.valu('v_lshrrev_b32', vScG, 2, vLane)
    a.valu('v_lshlrev_b32', vScG, 2, vScG)
    a.salu('s_sub_u32', sT2, sW, 4)
    a.salu('s_lshl_b32', sT2, sT2, 11)
    a.salu('s_add_u32', sT2, sT2, L_YP)
    a.valu('v_add_u32', vScB, sT2, vScG)
    a.salu('s_lshl_b32', sT2, sN, 6)
    a.valu('v_add_u32', vScA, sT2, vScB)
    a.valu('v_mov_b32', vMax, -3.0e38)
    a.salu('s_lshl_b32', sScB, sGrp, 15)
    a.salu('s_add_u32', sScB, sScB, WS_SC)
    a.salu('s_cmp_lt_u32', None, sF, NF)
    a.salu('s_cselect_b32', sNPW, NPWF, NPW)
    a.salu('s_and_b32', sT2, sGrp, 1)
    a.salu('s_lshl_b32', sT2, sT2, 8)
    a.salu('s_add_u32', sT2, sT2, sGrp)
    a.salu('s_cmp_lt_u32', None, sT2, 2 * NF)
    a.salu('s_cselect_b32', sP0, 4 * NPWF, 4 * NPW)
    stamp('s_issued')
    L_qw = a.newlabel('qw')
    L_qok = a.newlabel('qok')
    a.salu('s_mov_b32', sT5, SPIN_BOUND * 8)
    a.label(L_qw)
    a.ds('ds_read_b32', vT[0], vCntA, offset=4)
    a.wait_lgkm(0)
    a.valu('v_readfirstlane_b32', sT2, vT[0])
    a.salu('s_cmp_lg_u32', None, sT2, 0 if not skipq else 77)
    a.branch('s_cbranch_scc1', L_qok)
    a.misc('s_sleep 2')
    a.salu('s_sub_u32', sT5, sT5, 1)
    a.salu('s_cmp_lg_u32', None, sT5, 0)
    a.branch('s_cbranch_scc1', L_qw)
    a.label(L_qok)
    stamp('s_q')
    a.ds('ds_read_b128', PB[0:4], vT[1], offset=L_QBF)
    a.ds('ds_read_b128', PB[4:8], vT[1], offset=L_QBF + 256)
    a.wait_lgkm(0)
    for t in range(4):
        for hf in range(2):
            for r in range(4):
                a.valu('v_cndmask_b32', QB[(t * 2 + hf) * 4 + r], 0, PB[hf * 4 + r], mT[t])

    def qk(kb):
        for i in range(8):
            a.mfma(KD, kb[4 * i:4 * i + 4], QB[4 * i:4 * i + 4], 0 if i == 0 else KD)

    def softmax_step():
        s_, t_ = vT[0], vT[1]
        a.dpp('v_mov_b32', s_, KD[0], ctrl='quad_perm:[0,0,0,0]')
        a.dpp('v_add_f32', s_, KD[1], s_, ctrl='quad_perm:[1,1,1,1]')
        a.dpp('v_add_f32', s_, KD[2], s_, ctrl='quad_perm:[2,2,2,2]')
        a.dpp('v_add_f32', s_, KD[3], s_, ctrl='quad_perm:[3,3,3,3]')
        rbf(s_, s_)
        softmax_core(s_)

    def softmax_core(s_):
        t_ = vT[1]
        a.valu('v_max_f32', t_, sM, s_)
        wave_red('v_max_f32', t_, sMn, quads_equal=True)
        a.valu('v_mov_b32', t_, sM)
        a.valu('v_subrev_f32', s_, sMn, s_)
        a.valu('v_subrev_f32', t_, sMn, t_)
        a.valu('v_mul_f32', s_, sCS, s_)
        a.valu('v_mul_f32', t_, sCS, t_)
        a.valu('v_exp_f32', s_, s_)
        a.valu('v_exp_f32', t_, t_)
        a.salu('s_mov_b32', sM, sMn)
        a.valu('v_fma_f32', vL, vL, t_, s_)
        a.valu('v_cvt_pk_bf16_f32', s_, s_, s_)
        for r in range(4):
            a.valu('v_mul_f32', OD0[r], OD0[r], t_)
            a.valu('v_mul_f32', OD1[r], OD1[r], t_)
        for T in range(4):
            for r in range(4):
                a.dpp('v_and_b32', PB[4 * T + r], s_, vMask[r], ctrl=f'row_newbcast:{4 * T}')

    def pv(vb):
        for T in range(4):
            a.mfma(OD0, vb[8 * T:8 * T + 4], PB[4 * T:4 * T + 4], OD0)
            a.mfma(OD1, vb[8 * T + 4:8 * T + 8], PB[4 * T:4 * T + 4], OD1)

    def fetch_issue():
        a.salu('s_mov_b32', sIdx, 1)
        a.misc(f's_atomic_add {sIdx}, {sPool}, 0 glc')

    def fetch_complete():
        a.wait_lgkm(0)
        a.salu('s_add_u32', sNext, sIdx, sPB)

    def refill(buf, i, kind, soff):
        vo, o = koff(i) if kind == 'k' else voff(i)
        a.vload('buffer_load_dwordx4', buf[4 * i:4 * i + 4], vo, rK if kind == 'k' else rV, soff, o, KP if kind == 'k' else VP)

    def k_step(buf, kind, soff):
        for i in range(8):
            a.misc('s_waitcnt vmcnt(15)')
            a.mfma(KD, buf[4 * i:4 * i + 4], QB[4 * i:4 * i + 4], 0 if i == 0 else KD)
            refill(buf, i, kind, soff)

    def v_step(buf, kind, soff):
        for i in range(8):
            od = OD0 if i % 2 == 0 else OD1
            a.misc('s_waitcnt vmcnt(15)')
            a.mfma(od, buf[4 * i:4 * i + 4], PB[4 * (i // 2):4 * (i // 2) + 4], od)
            refill(buf, i, kind, soff)

    def score(dst):
        a.dpp('v_mov_b32', dst, KD[0], ctrl='quad_perm:[0,0,0,0]')
        a.dpp('v_add_f32', dst, KD[1], dst, ctrl='quad_perm:[1,1,1,1]')
        a.dpp('v_add_f32', dst, KD[2], dst, ctrl='quad_perm:[2,2,2,2]')
        a.dpp('v_add_f32', dst, KD[3], dst, ctrl='quad_perm:[3,3,3,3]')
        rbf(dst, dst)

    BUF = [KB, VB]

    def record(soff_tile, n_static=None):
        score(vT[0])
        a.salu('s_lshr_b32', sPub, soff_tile, 7)
        a.salu('s_add_u32', sPub, sPub, sScB)
        if n_static is None:
            a.ds('ds_write_b32', vScA, vT[0])
            a.valu('v_add_u32', vScA, 64, vScA)
            a.salu('s_cmp_lt_u32', None, sN, sNPW)
            a.salu('s_cselect_b32', sPub, sPub, BIGOFF)
            a.salu('s_add_u32', sN, sN, 1)
        else:
            a.ds('ds_write_b32', vScB, vT[0], offset=64 * n_static)
        a.valu('v_max_f32', vMax, vMax, vT[0])
        a.vstore('buffer_store_dword', vT[0], vScG, rWS, sPub, 0, STF)

    def extras():
        L_x = a.newlabel('nox')
        a.salu('s_cmp_lg_u32', None, sExh, 0)
        a.branch('s_cbranch_scc1', L_x)
        a.salu('s_mov_b32', sExh, 1)
        qk(KB2)
        record(sWgB, 0)
        qk(VB2)
        a.salu('s_add_u32', sT3, sWgB, TS)
        record(sT3, 1)
        a.salu('s_cmp_lt_u32', None, sF, NF)
        a.branch('s_cbranch_scc1', L_x)
        a.salu('s_sub_u32', sT4, sW, 4)
        a.salu('s_lshl_b32', sT4, sT4, 14)
        a.salu('s_add_u32', sT4, sT4, L_W1)
        a.valu('v_add_u32', vT[2], sT4, vL16)
        for i in range(8):
            a.ds('ds_read_b128', KB2[4 * i:4 * i + 4], vT[2], offset=1024 * i)
        for i in range(8):
            a.ds('ds_read_b128', VB2[4 * i:4 * i + 4], vT[2], offset=8192 + 1024 * i)
        a.wait_lgkm(8)
        qk(KB2)
        a.salu('s_add_u32', sT3, sWgB, 2 * TS)
        record(sT3, 2)
        a.wait_lgkm(0)
        qk(VB2)
        a.salu('s_add_u32', sT3, sWgB, 3 * TS)
        record(sT3, 3)
        a.label(L_x)

    a.label('L_kloop')
    for b_ in range(2):
        a.salu('s_add_u32', sRef, sCur, 2 * TS)
        k_step(BUF[b_], 'k', sRef)
        record(sCur)
        a.salu('s_add_u32', sCur, sCur, TS)
    extras()
    a.salu('s_cmp_lt_u32', None, sN, 30)
    a.branch('s_cbranch_scc1', 'L_kloop')
    a.salu('s_lshl_b32', sT4, sNPW, 15)
    a.salu('s_add_u32', sT4, sT4, sWgB)
    for b_ in range(2):
        a.salu('s_add_u32', sRef, sT4, b_ * TS)
        k_step(BUF[b_], 'v', sRef)
        record(sCur)
        a.salu('s_add_u32', sCur, sCur, TS)
    a.salu('s_mov_b32', sCur, sT4)
    a.salu('s_mov_b32', sN, sNPW)
    a.salu('s_lshl_b32', sT2, sNPW, 6)
    a.valu('v_add_u32', vScA, sT2, vScB)
    a.salu('s_mov_b64', 'exec', 1)
    a.misc(f'ds_add_u32 {vCntA}, {vOne}')
    a.salu('s_mov_b64', 'exec', -1)
    a.ds('ds_read_b32', SR[0], vScA)
    a.ds('ds_read_b32', SR[1], vScA, offset=64)
    wave_red('v_max_f32', vMax, sM, quads_equal=True)
    stamp('s_Kend')

    def priv_p(b_):
        a.wait_lgkm(1)
        a.valu('v_subrev_f32', vT[0], sM, SR[b_])
        a.ds('ds_read_b32', SR[b_], vScA, offset=128 + 64 * b_)
        a.valu('v_mul_f32', vT[0], sCS, vT[0])
        a.valu('v_exp_f32', vT[0], vT[0])
        a.valu('v_add_f32', vL, vL, vT[0])
        a.valu('v_cvt_pk_bf16_f32', vT[0], vT[0], vT[0])
        for T in range(4):
            for r in range(4):
                a.dpp('v_and_b32', PB[4 * T + r], vT[0], vMask[r], ctrl=f'row_newbcast:{4 * T}')

    PN = 4 * NPW

    def pool_map(sval):
        a.wait_lgkm(0)
        a.salu('s_min_u32', sT2, sIdx, 4096)
        fetch_issue()
        a.salu('s_sub_u32', sT3, sT2, sP0)
        a.salu('s_mul_i32', sT4, sT3, -(-65536 // PN))
        a.salu('s_lshr_b32', sT4, sT4, 16)
        a.salu('s_mul_i32', sT0, sT4, 128 - PN)
        a.salu('s_add_u32', sT0, sT0, sT3)
        a.salu('s_add_u32', sT0, sT0, 128)
        a.salu('s_cmp_lt_u32', None, sT2, sP0)
        a.salu('s_cselect_b32', sT0, sT2, sT0)
        a.salu('s_add_u32', sT3, sP0, 3 * PN)
        a.salu('s_cmp_lt_u32', None, sT2, sT3)
        a.salu('s_cselect_b32', sval, 1, 0)
        a.salu('s_cselect_b32', sT0, sT0, 1024)
        a.salu('s_lshl_b32', sNext, sT0, 13)
        a.salu('s_lshl_b32', sPub, sT0, 6)
        a.salu('s_add_u32', sPub, sPub, sScB)
        a.salu('s_cmp_lg_u32', None, sval, 0)
        a.salu('s_cselect_b32', sPub, sPub, BIGOFF)

    a.label('L_vloop')
    for b_ in range(2):
        priv_p(b_)
        a.salu('s_add_u32', sRef, sCur, 2 * TS)
        v_step(BUF[b_], 'v', sRef)
        a.salu('s_add_u32', sCur, sCur, TS)
    a.valu('v_add_u32', vScA, 128, vScA)
    a.salu('s_add_u32', sN, sN, 2)
    a.salu('s_cmp_lt_u32', None, sN, 30)
    a.branch('s_cbranch_scc1', 'L_vloop')
    a.wait_lgkm(0)
    fetch_issue()
    sVal = [sVal0, sVal1]
    sSc = [S(26), S(27)]
    for b_ in range(2):
        a.valu('v_subrev_f32', vT[0], sM, SR[b_])
        a.valu('v_mul_f32', vT[0], sCS, vT[0])
        a.valu('v_exp_f32', vT[0], vT[0])
        a.valu('v_add_f32', vL, vL, vT[0])
        a.valu('v_cvt_pk_bf16_f32', vT[0], vT[0], vT[0])
        for T in range(4):
            for r in range(4):
                a.dpp('v_and_b32', PB[4 * T + r], vT[0], vMask[r], ctrl=f'row_newbcast:{4 * T}')
        pool_map(sVal[b_])
        a.salu('s_mov_b32', sSc[b_], sPub)
        a.vload('buffer_load_dword', SR[b_], vScG, rWS, sPub, 0, LDF)
        v_step(BUF[b_], 'v', sNext)

    L_fl = a.newlabel('flush')
    a.label('L_ploop')
    for b_ in range(2):
        a.salu('s_cmp_eq_u32', None, sVal[b_], 0)
        a.branch('s_cbranch_scc1', L_fl)
        if prof:
            a.salu('s_add_u32', sCnt, sCnt, 1)
        a.misc('s_waitcnt vmcnt(15)')

        def lds_():
            a.vload('buffer_load_dword', SR[b_], vScG, rWS, sSc[b_], 0, LDF)

        def conds_():
            a.valu('v_cmp_eq_u32', 'vcc', -1, SR[b_])
            a.salu('s_cmp_eq_u64', None, 'vcc', 0)

        spin_until(lds_, conds_, sleep=8)
        a.valu('v_mov_b32', vT[0], SR[b_])
        softmax_core(vT[0])
        pool_map(sVal[b_])
        a.salu('s_mov_b32', sSc[b_], sPub)
        a.vload('buffer_load_dword', SR[b_], vScG, rWS, sPub, 0, LDF)
        v_step(BUF[b_], 'v', sNext)
    a.branch('s_branch', 'L_ploop')
    a.label(L_fl)
    wave_red('v_add_f32', vL, sMn, quads_equal=True)
    a.valu('v_mov_b32', vT[2], sM)
    a.valu('v_mov_b32', vT[3], sMn)
    a.ds('ds_write_b64', vMr, vT[2:4], offset=L_ML)
    stamp('s_Vlast')
    if notail:
        a.branch('s_branch', 'L_end')
    for r in range(4):
        a.valu('v_cndmask_b32', PB[r], OD1[r], OD0[r], mJ8)
    a.ds('ds_write_b128', vOw, PB[0:4], offset=L_OP)
    a.wait_lgkm(0)
    a.barrier()
    a.wait_vm0()
    a.misc('s_setprio 0')
    stamp_val('s_units', sCnt)

    a.label('L_b4')
    a.salu('s_lshl_b32', sT2, sW, 8)
    a.valu('v_lshlrev_b32', vT[4], 2, vLane)
    a.valu('v_add_u32', vT[4], sT2, vT[4])
    a.salu('s_lshl_b32', sT1, sGrp, 2)
    a.salu('s_add_u32', sT1, sT1, sSP)
    a.salu('s_lshl_b32', sT1, sT1, 6)
    a.salu('s_lshl_b32', sT0, sW, 16)
    a.salu('s_add_u32', sT1, sT1, sT0)
    a.salu('s_add_u32', sT1, sT1, WS_IN1)
    a.wait_lgkm(0)
    a.barrier()
    stamp('B4')
    YS = VB[0:8]
    L_nc = a.newlabel('nc')
    L_y6 = a.newlabel('y6')
    a.salu('s_cmp_eq_u32', None, sW, 7)
    a.branch('s_cbranch_scc1', L_nc)
    for i in range(4):
        a.ds('ds_read_b32', YS[i], vT[4], offset=L_YP + 2048 * i)
    a.salu('s_cmp_lg_u32', None, sW, 6)
    a.branch('s_cbranch_scc1', L_y6)
    for i in range(4):
        a.ds('ds_read_b32', YS[4 + i], vT[4], offset=L_YP + 2048 * i + 256)
    a.wait_lgkm(0)
    for i in range(4):
        a.valu('v_add_f32', YS[i], YS[i], YS[4 + i])
    a.label(L_y6)
    a.wait_lgkm(0)
    a.valu('v_add_f32', YS[0], YS[0], YS[1])
    a.valu('v_add_f32', YS[2], YS[2], YS[3])
    a.valu('v_add_f32', YS[0], YS[0], YS[2])
    a.valu('v_min_u32', YS[0], -2, YS[0])
    a.vstore('buffer_store_dword', YS[0], vAt, rWS, sT1, 0, STF)
    a.label(L_nc)
    stamp('atom')
    a.salu('s_cmp_ge_u32', None, sF, NF)
    a.branch('s_cbranch_scc1', 'L_endp')

    F2B = V(84, 32)
    FA = V(116, 56)
    F1B = V(172, 56)
    RB = V(24, 28)
    a.valu('v_bfe_u32', vT[4], vLane, 2, 2)
    a.valu('v_lshl_add_u32', vT[4], vG, 3, vT[4])
    a.valu('v_and_b32', vT[5], 3, vLane)
    a.valu('v_lshlrev_b32', vT[5], 3, vT[5])
    a.valu('v_mul_u32_u24', vT[6], 896, vT[4])
    a.valu('v_add_u32', vT[6], vT[6], vT[5])
    a.salu('s_min_u32', sT2, sW, 6)
    a.salu('s_lshl_b32', sT2, sT2, 7)
    a.salu('s_add_u32', sT2, sT2, L_W2)
    a.valu('v_add_u32', vT[6], sT2, vT[6])
    for tt in range(4):
        for ks in range(2):
            for qq in range(2):
                d = F2B[(tt * 2 + ks) * 4 + 2 * qq:(tt * 2 + ks) * 4 + 2 * qq + 2]
                a.ds('ds_read_b64_tr_b16', d, vT[6], offset=(32 * ks + 4 * qq) * 896 + tt * 32)
    L_ln = a.newlabel('ln')
    L_b5 = a.newlabel('b5')
    a.salu('s_cmp_ge_u32', None, sW, 4)
    a.branch('s_cbranch_scc1', L_ln)
    a.valu('v_lshlrev_b32', vT[6], 7, vT[4])
    a.valu('v_add_u32', vT[6], vT[6], vT[5])
    a.salu('s_lshl_b32', sT2, sW, 5)
    a.salu('s_add_u32', sT2, sT2, L_W1)
    a.valu('v_add_u32', vT[6], sT2, vT[6])
    for ks in range(14):
        for qq in range(2):
            a.ds('ds_read_b64_tr_b16', F1B[ks * 4 + 2 * qq:ks * 4 + 2 * qq + 2], vT[6], offset=(32 * ks + 4 * qq) * 128)
            if (ks * 2 + qq) % 8 == 7:
                a.wait_lgkm(4)
    a.label(L_ln)
    srd(rX, sXP, 4 * 896)
    a.valu('v_mul_u32_u24', vT[7], 896, vG)
    a.valu('v_lshl_add_u32', vT[7], vJ, 1, vT[7])
    a.salu('s_lshl_b32', sT1, sF, 5)
    a.vload('buffer_load_ushort', RB[24], vT[7], rX, sT1, 0)
    a.valu('v_mov_b32', vT[4], L_SAME)
    a.ds('ds_read_b32', RB[25], vT[4])
    a.salu('s_lshl_b32', sT4, sF, 14)
    a.salu('s_lshl_b32', sT3, sW, 11)
    a.salu('s_add_u32', sT4, sT4, sT3)
    a.salu('s_add_u32', sT4, sT4, WS_IN1)
    a.salu('s_lshl_b32', sT3, sW, 8)
    a.valu('v_and_b32', vT[5], 3, vJ)
    a.valu('v_lshlrev_b32', vT[5], 4, vT[5])
    a.valu('v_lshl_add_u32', vT[5], vG, 6, vT[5])
    a.valu('v_add_u32', vT[5], sT3, vT[5])
    RI = RB[0:8]

    def ldr():
        a.vload('buffer_load_dwordx4', RI[0:4], vL16, rWS, sT4, 0, LDF)
        a.vload('buffer_load_dwordx4', RI[4:8], vL16, rWS, sT4, 1024, LDF)

    def condr():
        a.valu('v_max3_u32', vT[0], RI[0], RI[1], RI[2])
        a.valu('v_max3_u32', vT[1], RI[3], RI[4], RI[5])
        a.valu('v_max3_u32', vT[0], vT[0], RI[6], RI[7])
        a.valu('v_max_u32', vT[0], vT[0], vT[1])
        a.valu('v_cmp_eq_u32', 'vcc', -1, vT[0])
        a.salu('s_cmp_eq_u64', None, 'vcc', 0)
        if rmask:
            a.salu('s_cselect_b64', 'exec', -1, 'vcc')

    spin_until(ldr, condr, first_check=False, sleep=psleep)
    a.salu('s_mov_b64', 'exec', -1)
    stamp('red')
    for r in range(4):
        a.valu('v_add_f32', RI[r], RI[r], RI[4 + r])
    for c in ('row_ror:4', 'row_ror:8'):
        for r in range(4):
            a.dpp('v_add_f32', RI[r], RI[r], RI[r], ctrl=c)
    a.ds('ds_write_b128', vT[5], RI[0:4], offset=L_OP)
    a.valu('v_lshlrev_b32', vT[4], 9, vG)
    a.valu('v_lshl_add_u32', vT[4], vJ, 2, vT[4])
    a.valu('v_and_b32', vT[5], 1, vJ)
    a.valu('v_lshl_add_u32', vT[7], vT[5], 24, vT[7])
    a.wait_lgkm(0)
    a.barrier()
    L_nw0 = a.newlabel('nw0')
    a.salu('s_cmp_lg_u32', None, sW, 0)
    a.branch('s_cbranch_scc1', L_nw0)
    for i in range(8):
        a.ds('ds_read_b32', RB[i], vT[4], offset=L_OP + 64 * i)
    a.valu('v_lshlrev_b32', RB[24], 16, RB[24])
    a.valu('v_readfirstlane_b32', sT3, RB[25])
    a.wait_lgkm(0)
    a.valu('v_add_f32', RB[0], RB[0], RB[1])
    a.valu('v_add_f32', RB[2], RB[2], RB[3])
    a.valu('v_add_f32', RB[4], RB[4], RB[5])
    a.valu('v_add_f32', RB[6], RB[6], RB[7])
    a.valu('v_add_f32', RB[0], RB[0], RB[2])
    a.valu('v_add_f32', RB[4], RB[4], RB[6])
    a.valu('v_add_f32', RB[0], RB[0], RB[4])
    rbf(RB[0], RB[0])
    a.valu('v_add_f32', RB[0], RB[0], RB[24])
    a.dpp('v_mov_b32', RB[1], RB[0], ctrl='quad_perm:[1,0,3,2]')
    a.valu('v_cvt_pk_bf16_f32', RB[0], RB[0], RB[1])
    a.valu('v_min_u32', RB[0], -2, RB[0])
    L_hs = a.newlabel('hs')
    a.salu('s_cmp_eq_u32', None, sT3, 0)
    a.branch('s_cbranch_scc1', L_hs)
    a.vstore('buffer_store_dword', RB[0], vT[7], rWS, sT1, WS_H, '')
    a.branch('s_branch', L_b5)
    a.label(L_hs)
    a.vstore('buffer_store_dword', RB[0], vT[7], rWS, sT1, WS_H, STF)
    a.branch('s_branch', L_b5)
    a.label(L_nw0)
    a.salu('s_cmp_lt_u32', None, sW, 4)
    a.branch('s_cbranch_scc1', L_b5)
    a.salu('s_sub_u32', sT3, sW, 4)
    a.salu('s_mul_i32', sT4, sT3, 896)
    a.valu('v_mov_b32', vT[5], BIGOFF)
    a.valu('v_cndmask_b32', vT[7], vT[5], vL16, m56)
    a.valu('v_add_u32', vT[6], sT4, vL16)
    hp = RB[4:8]
    xf = RB[16:24]

    def ldc():
        a.vload('buffer_load_dwordx4', hp, vT[7], rWS, sT4, WS_H, LDF)

    def condc():
        a.valu('v_max3_u32', vT[0], hp[0], hp[1], hp[2])
        a.valu('v_max_u32', vT[0], vT[0], hp[3])
        a.valu('v_cmp_eq_u32', 'vcc', -1, vT[0])
        a.salu('s_cmp_eq_u64', None, 'vcc', 0)

    spin_until(ldc, condc, first_check=False, sleep=0)
    stamp('poll')
    unpack8(xf, hp)
    a.salu('s_mov_b64', 'exec', m56)
    a.ds('ds_write_b128', vT[6], hp, offset=L_HB)
    a.salu('s_mov_b64', 'exec', -1)
    layernorm([(xf, vT[0:4], sX0, sX1)])
    for i in range(4):
        a.valu('v_cvt_pk_bf16_f32', RB[i], xf[2 * i], xf[2 * i + 1])
    a.salu('s_mov_b64', 'exec', m56)
    a.ds('ds_write_b128', vT[6], RB[0:4], offset=L_XN2)
    a.salu('s_mov_b64', 'exec', -1)
    if debug:
        for i in range(4):
            dump(hp[i], 33 + i)
            dump(RB[i], 37 + i)
    a.label(L_b5)
    a.wait_lgkm(0)
    a.barrier()
    stamp('B5')
    L_b6 = a.newlabel('b6')
    a.salu('s_cmp_ge_u32', None, sW, 4)
    a.branch('s_cbranch_scc1', L_b6)
    a.valu('v_and_b32', vT[6], 3, vLane)
    a.valu('v_mul_u32_u24', vT[6], 896, vT[6])
    a.valu('v_lshl_add_u32', vT[6], vG, 4, vT[6])
    for ks in range(14):
        a.ds('ds_read_b128', FA[4 * ks:4 * ks + 4], vT[6], offset=L_XN2 + 64 * ks)
    Z = RB[0:4]
    for ks in range(14):
        a.wait_lgkm(min(13 - ks, 15))
        a.mfma(Z, FA[4 * ks:4 * ks + 4], F1B[4 * ks:4 * ks + 4], 0 if ks == 0 else Z)
    a.salu('s_lshl_b32', sT2, sW, 5)
    a.valu('v_lshlrev_b32', vT[6], 1, vJ)
    a.valu('v_add_u32', vT[6], sT2, vT[6])
    a.salu('s_mov_b32', sT3, -LOG2E)
    for r in range(4):
        rbf(Z[r], Z[r])
    for r in range(4):
        a.valu('v_mul_f32', RB[4 + r], sT3, Z[r])
    for r in range(4):
        a.valu('v_exp_f32', RB[4 + r], RB[4 + r])
    for r in range(4):
        a.valu('v_add_f32', RB[4 + r], 1.0, RB[4 + r])
    for r in range(4):
        a.valu('v_rcp_f32', RB[4 + r], RB[4 + r])
    for r in range(4):
        a.valu('v_mul_f32', Z[r], Z[r], RB[4 + r])
    for r in range(4):
        a.valu('v_cvt_pk_bf16_f32', Z[r], Z[r], Z[r])
        a.ds('ds_write_b16', vT[6], Z[r], offset=L_GB + 128 * r)
    if debug:
        for r in range(4):
            dump(Z[r], 41 + r)
    a.label(L_b6)
    a.wait_lgkm(0)
    a.barrier()
    stamp('B6')
    L_fin = a.newlabel('fin')
    a.salu('s_cmp_ge_u32', None, sW, 7)
    a.branch('s_cbranch_scc1', L_fin)
    a.valu('v_and_b32', vT[6], 3, vLane)
    a.valu('v_lshlrev_b32', vT[6], 7, vT[6])
    a.valu('v_lshl_add_u32', vT[6], vG, 4, vT[6])
    a.ds('ds_read_b128', FA[0:4], vT[6], offset=L_GB)
    a.ds('ds_read_b128', FA[4:8], vT[6], offset=L_GB + 64)
    a.valu('v_mov_b32', vT[4], L_SAME)
    a.ds('ds_read_b32', vT[5], vT[4])
    a.salu('s_mul_i32', sT2, sW, 4 * 7168)
    a.salu('s_lshl_b32', sT3, sF, 8)
    a.salu('s_add_u32', sT2, sT2, sT3)
    a.salu('s_add_u32', sT2, sT2, WS_INBOX)
    a.wait_lgkm(0)
    O2 = [RB[4 * tt:4 * tt + 4] for tt in range(4)]
    for tt in range(4):
        a.mfma(O2[tt], FA[0:4], F2B[(tt * 2) * 4:(tt * 2) * 4 + 4], 0)
    for tt in range(4):
        a.mfma(O2[tt], FA[4:8], F2B[(tt * 2 + 1) * 4:(tt * 2 + 1) * 4 + 4], O2[tt])
    a.valu('v_readfirstlane_b32', sT3, vT[5])
    a.salu('s_mov_b64', 'exec', 0xffff)
    L_slow = a.newlabel('slow')
    L_sd = a.newlabel('sd')
    a.salu('s_cmp_eq_u32', None, sT3, 0)
    a.branch('s_cbranch_scc1', L_slow)
    for flags, lab in (('', None), (STF, L_slow)):
        if lab:
            a.label(lab)
        for tt in range(4):
            for r in range(4):
                a.valu('v_min_u32', O2[tt][r], -2, O2[tt][r])
            a.vstore('buffer_store_dwordx4', O2[tt], vL16, rWS, sT2, 0, flags)
            if tt < 3:
                a.salu('s_add_u32', sT2, sT2, 7168)
        if not lab:
            a.branch('s_branch', L_sd)
    a.label(L_sd)
    a.salu('s_or_b32', sT2, sF, sW)
    a.salu('s_cmp_lg_u32', None, sT2, 0)
    a.branch('s_cbranch_scc1', 'L_endp')
    a.salu('s_mov_b64', 'exec', 1)
    a.valu('v_mov_b32', vT[4], sEp)
    a.valu('v_mov_b32', vT[5], 0)
    a.salu('s_mov_b32', sT2, WS_EPOCH)
    a.vstore('buffer_store_dword', vT[4], vT[5], rWS, sT2, 0, STF)
    a.branch('s_branch', 'L_endp')
    a.label(L_fin)
    a.valu('v_mul_u32_u24', vT[6], 896, vG)
    a.valu('v_lshl_add_u32', vT[6], vJ, 1, vT[6])
    a.salu('s_lshl_b32', sT2, sF, 5)
    a.valu('v_add_u32', vT[6], sT2, vT[6])
    a.ds('ds_read_u16', vT[7], vT[6], offset=L_HB)
    a.salu('s_mul_i32', sT3, sF, 7168)
    a.salu('s_add_u32', sT3, sT3, WS_INBOX)
    a.salu('s_add_u32', sT4, sT3, 4096)
    IB = V(116, 28)

    def ldi():
        for i in range(7):
            a.vload('buffer_load_dwordx4', IB[4 * i:4 * i + 4], vL16, rWS, sT3 if i < 4 else sT4, (i % 4) * 1024, LDF)

    def condi():
        a.valu('v_max3_u32', vT[0], IB[0], IB[1], IB[2])
        for i in range(3, 27, 2):
            a.valu('v_max3_u32', vT[0], vT[0], IB[i], IB[i + 1])
        a.valu('v_max_u32', vT[0], vT[0], IB[27])
        a.valu('v_cmp_eq_u32_e64', S(100, 2), -1, vT[0])
        a.salu('s_cmp_eq_u64', None, S(100, 2), 0)

    spin_until(ldi, condi, first_check=False, sleep=0)
    stamp('inbox')
    for i in range(1, 7):
        for r in range(4):
            a.valu('v_add_f32', IB[r], IB[r], IB[4 * i + r])
    for r in range(4):
        a.valu('v_mov_b32', IB[4 + r], IB[r])
    for r in range(4):
        a.valu('v_permlane16_swap_b32', IB[r], IB[4 + r])
    for r in range(4):
        a.valu('v_add_f32', IB[r], IB[r], IB[4 + r])
    for r in range(4):
        a.valu('v_mov_b32', IB[4 + r], IB[r])
    for r in range(4):
        a.valu('v_permlane32_swap_b32', IB[r], IB[4 + r])
    for r in range(4):
        a.valu('v_add_f32', IB[r], IB[r], IB[4 + r])
    for r in range(1, 4):
        a.valu('v_cmp_eq_u32', 'vcc', r, vG)
        a.valu('v_cndmask_b32', IB[0], IB[0], IB[r], 'vcc')
    rbf(IB[0], IB[0])
    a.wait_lgkm(0)
    a.valu('v_lshlrev_b32', vT[7], 16, vT[7])
    a.valu('v_add_f32', IB[0], IB[0], vT[7])
    a.valu('v_cvt_pk_bf16_f32', IB[0], IB[0], IB[0])
    a.vstore('buffer_store_short', IB[0], vT[6], rOUT, 0, 0)
    a.label('L_endp')
    stamp('end')
    stamp_store()
    a.label('L_end')
    A('  s_endpgm')
    A('.section .rodata,"a"')
    A('.p2align 6')
    A(f'.amdhsa_kernel {KNAME}')
    A('  .amdhsa_next_free_vgpr 256')
    A('  .amdhsa_next_free_sgpr 102')
    A('  .amdhsa_accum_offset 256')
    A('  .amdhsa_group_segment_fixed_size 0')
    A('  .amdhsa_kernarg_size 88')
    A('  .amdhsa_user_sgpr_count 2')
    A('  .amdhsa_user_sgpr_kernarg_segment_ptr 1')
    A('  .amdhsa_system_sgpr_workgroup_id_x 1')
    A('  .amdhsa_float_denorm_mode_32 3')
    A('.end_amdhsa_kernel')
    if prof:
        A('; STAMPS ' + ' '.join(stamp_names))
    return a.text()


if __name__ == '__main__':
    out = [x for x in sys.argv[1:] if not x.startswith('--')]
    path = out[0] if out else os.path.join(os.path.dirname(os.path.abspath(__file__)), '..', 'cdna_kernels', NAME + '.s')
    kw = {}
    for x in sys.argv[1:]:
        if x.startswith('--') and '=' in x:
            k_, v_ = x[2:].split('=')
            kw[k_] = int(v_)
    open(path, 'w').write(build(debug='--debug' in sys.argv, prof='--prof' in sys.argv, **kw))
    print('wrote', path)
```

```python
import os
import sys

sys.path.insert(0, os.path.dirname(os.path.abspath(__file__)))
from asmlib import Asm, V, S

NAME = 'sequential_preLN__mha_block_cached__dense_activation_silu__decode'
KNAME = NAME + '_kernel'

NWG = 256
NF = 28
LOG2E = 1.4426950408889634
CS = LOG2E / 16.0

WS_H = 0
WS_EPOCH = 24576
WS_INBOX = 32768
WS_Q = 0x40000
WS_POOL = 0x60000
WS_MAIL = 0x80000
WS_IN1 = 0x100000
WS_SC = 0x200000
WS_BYTES = 4 << 20
WS_DBG = 4 << 20
DB_INITF = 40

L_XN2 = 0
L_HB = 4096
L_GB = 8192
L_QBF = 8704
L_ML = 9216
L_CNT = 9344
L_FLAG = 9348
L_SVC = 9352
L_ARR = 9356
L_SAME = 9360
L_OP = 9472
L_YP = 17920
L_WQS = L_YP
L_W1 = 34816
L_W2 = L_W1 + 57344
LDS_BYTES = L_W2 + 57344

SPIN_BOUND = 200000
BIGOFF = 0x1000000


def build(debug=False, prof=False, npriv=112, xmap=1, gsleep=0, ldf=0, stf=0, use_c=1, skipq=0, nocomp=0, nowo=0, notail=0, prio=2, smalllds=0, nodma=0, nowq=0, wnt=1, psleep=0, kpol=0, vpol=0, diag=0, fastx=1, rmask=1, nffn=80, rot=0, NPW=8, NPWF=12):
    assert NPW % 2 == 0 and NPWF % 2 == 0 and 4 <= NPW <= NPWF <= 16
    POL = ['nt', '', 'nt sc0', 'nt sc1', 'sc1']
    KP, VP = POL[kpol], POL[vpol]
    WF = 'nt' if wnt else ''
    LDF = ['sc1', 'sc0 sc1'][ldf]
    STF = ['sc1', 'sc0 sc1'][stf]
    a = Asm()
    A = a.raw
    hdr = open(os.path.join(os.path.dirname(os.path.abspath(__file__)), '..', 'cdna_kernels', NAME + '.s.ref')).read().split('\n')
    for ln in hdr:
        if ln.startswith(';') and '@launch' not in ln:
            A(ln)
        elif '@launch' in ln:
            A(f'; @launch grid=({NWG},1,1) block=(512,1,1) lds={LDS_BYTES if not smalllds else 16384}')
        else:
            break
    A('.amdgcn_target "amdgcn-amd-amdhsa--gfx950"')
    A('.text')
    A(f'.globl {KNAME}')
    A('.p2align 8')
    A(f'.type {KNAME},@function')
    A(f'{KNAME}:')

    sID = S(2)
    sF = S(0)
    sGrp = S(3)
    sW, sB, sH, sSP = S(4), S(5), S(6), S(7)
    sT0, sT1, sT2, sT3, sT4, sT5 = S(8), S(9), S(10), S(11), S(12), S(13)
    sNext = S(14)
    sIdx = S(15)
    P = lambda i: S(16 + 2 * i, 2)
    pOUT, pDBG, pWS = S(32, 2), S(34, 2), S(36, 2)
    sM = S(38)
    sMn = S(39)
    rK, rV, rWQ, rWO, rX, rW1, rW2, rOUT, rDBG, rWS = [S(40 + 4 * i, 4) for i in range(10)]
    sPool = S(80, 2)
    sExh = S(82)
    sCur, sN, sP0, sRef = S(28), S(29), S(30), S(31)
    sNP, sScB, sTag0, sTag1, sWgB, sPub = S(16), S(17), S(18), S(19), S(20), S(21)
    sAux0, sAux1, sPh, sCT, sCA, sGotM = S(26), S(27), S(1), S(56), S(57), S(58)
    sCS = S(83)
    mT = [S(84 + 2 * t, 2) for t in range(4)]
    mJ8 = S(92, 2)
    m56 = S(94, 2)
    mG2 = S(96, 2)
    sX0, sX1 = S(98), S(99)
    sXP = S(100, 2)
    sEp = S(32)
    rWSD = rWQ
    LNS = [S(16), S(17), S(18), S(19), S(20), S(21), S(0), S(1)]
    sCnt = S(33)

    vTid = V(0)
    vLane, vJ, vG = V(1), V(2), V(3)
    vKoff, vKoff2, vVoff, vVoff2 = V(4), V(5), V(6), V(7)
    vMask = V(8, 4)
    vWoOff, vWoRem = V(12), V(13)
    vL = V(14)
    vL16 = V(15)
    vT = V(16, 8)
    OD0, OD1 = V(24, 4), V(28, 4)
    KD = V(32, 4)
    PB = V(36, 16)
    QB = V(52, 32)
    KB, VB, KB2, VB2 = V(84, 32), V(116, 32), V(148, 32), V(180, 32)
    XT = V(212, 44)
    WO = V(148, 56)
    vIdx, vOne, vCntA, vChk = XT[0], XT[1], XT[2], XT[3]
    vOw, vOr, vMr, vYw, vAt = XT[4], XT[5], XT[6], XT[7], XT[8]
    vPubOff, vGatOff, vGatML = XT[9], XT[10], XT[11]

    def dump(reg, slot):
        if not debug:
            return
        a.salu('s_lshl_b32', sX0, sID, 3)
        a.salu('s_add_u32', sX0, sX0, sW)
        a.salu('s_lshl_b32', sX0, sX0, 14)
        a.salu('s_add_u32', sX0, sX0, WS_DBG + slot * 256)
        a.valu('v_lshlrev_b32', XT[43], 2, vLane)
        a.vstore('buffer_store_dword', reg, XT[43], rWSD, sX0)

    stamp_names = []
    early = []

    DIAG = {'v_issued': 2, 'q_got': 3, 's_issued': 4, 'v_B3': 5, 'v_gath': 6, 'atom': 7, 'poll': 8, 'B6': 9, 'end': 11, 's_q': 12}

    def diag_put(slot, sreg, invert=False):
        r_ = S(25) if invert else S(24)
        a.salu('s_not_b32' if invert else 's_mov_b32', r_, sreg)
        a.misc(f's_atomic_umax {r_}, {pDBG}, {slot * 4}')

    def stamp(name, late=True):
        if diag and name in DIAG:
            wv = 0 if name[:2] in ('v_', 'q_') else 4 if name[:2] == 's_' else 7
            L_d = a.newlabel('diag')
            a.salu('s_cmp_lg_u32', None, sW, wv)
            a.branch('s_cbranch_scc1', L_d)
            a.misc('s_memrealtime s[22:23]')
            a.wait_lgkm(0)
            diag_put(DIAG[name], S(22))
            if name == 'v_B3':
                diag_put(13, S(22), True)
            if name == 'v_issued':
                a.wait_lgkm(0)
                diag_put(0, S(26), True)
                diag_put(1, S(26))
            a.label(L_d)
            return
        if not prof:
            return
        k = len(stamp_names)
        stamp_names.append(name)
        a.misc('s_memrealtime s[22:23]')
        a.wait_lgkm(0)
        if late:
            a.valu('v_writelane_b32', V(0), S(22), k, rmw=True)
        else:
            a.salu('s_mov_b32', S(24 + len(early)), S(22))
            early.append(k)

    def stamp_val(name, sreg):
        if not prof:
            return
        k = len(stamp_names)
        stamp_names.append(name)
        a.valu('v_writelane_b32', V(0), sreg, k, rmw=True)

    def stamp_flush_early():
        if not prof:
            return
        for i, k in enumerate(early):
            a.valu('v_writelane_b32', V(0), S(24 + i), k, rmw=True)

    def stamp_store():
        if not prof:
            return
        a.salu('s_mov_b64', 'exec', -1)
        a.salu('s_lshl_b32', sX0, sID, 3)
        a.salu('s_add_u32', sX0, sX0, sW)
        a.salu('s_lshl_b32', sX0, sX0, 8)
        a.salu('s_add_u32', sX0, sX0, WS_DBG)
        a.valu('v_lshlrev_b32', V(23), 2, vLane)
        a.vstore('buffer_store_dword', V(0), V(23), rWSD, sX0)

    def srd(r, ptr, nbytes, off=None):
        if off is None:
            a.salu('s_mov_b32', r[0], ptr[0])
            a.salu('s_mov_b32', r[1], ptr[1])
        else:
            a.salu('s_add_u32', r[0], ptr[0], off)
            a.salu('s_addc_u32', r[1], ptr[1], 0)
        a.salu('s_mov_b32', r[2], nbytes)
        a.salu('s_mov_b32', r[3], 0x00020000)

    def wave_red_multi(op, vs, sdsts, quads_equal=False):
        ctrls = ['row_ror:4', 'row_ror:8'] if quads_equal else ['quad_perm:[1,0,3,2]', 'quad_perm:[2,3,0,1]', 'row_half_mirror', 'row_mirror']
        for c in ctrls:
            for v in vs:
                a.dpp(op, v, v, v, ctrl=c)
        for v in vs:
            a.dpp(op, v, v, v, ctrl='row_bcast:15', row_mask=0xa)
        for v in vs:
            a.dpp(op, v, v, v, ctrl='row_bcast:31', row_mask=0xc)
        for v, s_ in zip(vs, sdsts):
            a.valu('v_readlane_b32', s_, v, 63)

    def wave_red(op, v, sdst, quads_equal=False):
        wave_red_multi(op, [v], [sdst], quads_equal)

    def rbf(dst, src):
        a.valu('v_cvt_pk_bf16_f32', dst, src, src)
        a.valu('v_and_b32', dst, 0xffff0000, dst)

    def unpack8(xf, raw):
        for i in range(4):
            a.valu('v_lshlrev_b32', xf[2 * i], 16, raw[i])
            a.valu('v_and_b32', xf[2 * i + 1], 0xffff0000, raw[i])

    def layernorm(rows):
        def each(f):
            for r_ in rows:
                f(*r_)
        each(lambda xf, t, s0, s1: a.valu('v_add_f32', t[0], xf[0], xf[1]))
        each(lambda xf, t, s0, s1: a.valu('v_add_f32', t[1], xf[2], xf[3]))
        each(lambda xf, t, s0, s1: a.valu('v_add_f32', t[2], xf[4], xf[5]))
        each(lambda xf, t, s0, s1: a.valu('v_add_f32', t[3], xf[6], xf[7]))
        each(lambda xf, t, s0, s1: a.valu('v_add_f32', t[0], t[0], t[1]))
        each(lambda xf, t, s0, s1: a.valu('v_add_f32', t[2], t[2], t[3]))
        each(lambda xf, t, s0, s1: a.valu('v_add_f32', t[0], t[0], t[2]))
        wave_red_multi('v_add_f32', [r_[1][0] for r_ in rows], [r_[2] for r_ in rows])
        each(lambda xf, t, s0, s1: a.valu('v_mov_b32', t[0], s0))
        each(lambda xf, t, s0, s1: a.valu('v_mul_f32', t[0], 1.0 / 448.0, t[0]))
        each(lambda xf, t, s0, s1: a.valu('v_sub_f32', t[1], xf[0], t[0]))
        each(lambda xf, t, s0, s1: a.valu('v_mul_f32', t[2], t[1], t[1]))
        for i in range(1, 8):
            each(lambda xf, t, s0, s1: a.valu('v_sub_f32', t[1], xf[i], t[0]))
            each(lambda xf, t, s0, s1: a.valu('v_fmac_f32', t[2], t[1], t[1]))
        each(lambda xf, t, s0, s1: a.valu('v_cndmask_b32', t[2], 0, t[2], m56))
        wave_red_multi('v_add_f32', [r_[1][2] for r_ in rows], [r_[3] for r_ in rows])
        each(lambda xf, t, s0, s1: rbf(t[0], t[0]))
        each(lambda xf, t, s0, s1: a.valu('v_mov_b32', t[2], s1))
        each(lambda xf, t, s0, s1: a.valu('v_mul_f32', t[2], 1.0 / 448.0, t[2]))
        each(lambda xf, t, s0, s1: rbf(t[2], t[2]))
        each(lambda xf, t, s0, s1: a.valu('v_add_f32', t[2], 1e-5, t[2]))
        each(lambda xf, t, s0, s1: rbf(t[2], t[2]))
        each(lambda xf, t, s0, s1: a.valu('v_sqrt_f32', t[2], t[2]))
        each(lambda xf, t, s0, s1: rbf(t[2], t[2]))
        each(lambda xf, t, s0, s1: a.valu('v_rcp_f32', t[2], t[2]))
        for i in range(0, 8, 2):
            each(lambda xf, t, s0, s1: a.valu('v_sub_f32', xf[i], xf[i], t[0]))
            each(lambda xf, t, s0, s1: a.valu('v_sub_f32', xf[i + 1], xf[i + 1], t[0]))
            each(lambda xf, t, s0, s1: a.valu('v_cvt_pk_bf16_f32', t[1], xf[i], xf[i + 1]))
            each(lambda xf, t, s0, s1: a.valu('v_lshlrev_b32', xf[i], 16, t[1]))
            each(lambda xf, t, s0, s1: a.valu('v_and_b32', xf[i + 1], 0xffff0000, t[1]))
            each(lambda xf, t, s0, s1: a.valu('v_mul_f32', xf[i], xf[i], t[2]))
            each(lambda xf, t, s0, s1: a.valu('v_mul_f32', xf[i + 1], xf[i + 1], t[2]))

    def spin_until(load_fn, cond_fn, first_check=True, sleep=1):
        done = a.newlabel('done')
        loop = a.newlabel('spin')
        if first_check:
            cond_fn()
            a.branch('s_cbranch_scc1', done)
        a.salu('s_mov_b32', sT5, SPIN_BOUND)
        a.label(loop)
        load_fn()
        a.wait_vm0()
        cond_fn()
        a.branch('s_cbranch_scc1', done)
        if sleep:
            a.misc(f's_sleep {sleep}')
        a.salu('s_sub_u32', sT5, sT5, 1)
        a.salu('s_cmp_lg_u32', None, sT5, 0)
        a.branch('s_cbranch_scc1', loop)
        a.label(done)

    def issue_k(buf, soff):
        for i in range(8):
            o = (i // 2) * 2048 + (i % 2) * 256
            a.vload('buffer_load_dwordx4', buf[4 * i:4 * i + 4], vKoff if o < 4096 else vKoff2, rK, soff, o % 4096, KP)

    def issue_v(buf, soff):
        for i in range(8):
            o = (i // 2) * 2048 + (i % 2) * 256
            a.vload('buffer_load_dwordx4', buf[4 * i:4 * i + 4], vVoff if o < 4096 else vVoff2, rV, soff, o % 4096, VP)

    def koff(i):
        o = (i // 2) * 2048 + (i % 2) * 256
        return (vKoff if o < 4096 else vKoff2), o % 4096

    def voff(i):
        o = (i // 2) * 2048 + (i % 2) * 256
        return (vVoff if o < 4096 else vVoff2), o % 4096

    TS = 4 * 8192

    def issue_static_units():
        assert fastx and xmap == 1
        a.salu('s_lshl_b32', sCur, sSP, 7)
        a.salu('s_add_u32', sCur, sCur, sW)
        a.salu('s_sub_u32', sCur, sCur, 4)
        a.salu('s_lshl_b32', sCur, sCur, 13)
        a.salu('s_mov_b32', sT5, sCur)
        issue_k(KB2, sCur)
        a.salu('s_add_u32', sCur, sCur, TS)
        issue_k(VB2, sCur)
        a.salu('s_add_u32', sCur, sCur, TS)
        a.salu('s_mov_b32', sN, 2)
        L_cd = a.newlabel('cd')
        a.salu('s_cmp_lt_u32', None, sF, NF)
        a.branch('s_cbranch_scc1', L_cd)
        a.salu('s_mov_b32', sN, 4)
        a.salu('s_sub_u32', sT4, sW, 4)
        a.salu('s_lshl_b32', sT4, sT4, 14)
        a.salu('s_add_u32', sT4, sT4, L_W1)
        for i in range(16):
            vo, o = koff(i % 8)
            a.salu('s_add_u32', sT0, sT4, i * 1024 - o)
            a.salu('s_mov_b32', 'm0', sT0)
            a.vload_lds(vo, rK, sCur, o, KP)
            if i % 8 == 7:
                a.salu('s_add_u32', sCur, sCur, TS)
        a.label(L_cd)
        issue_k(KB, sCur)
        a.salu('s_add_u32', sT3, sCur, TS)
        issue_k(VB, sT3)

    a.salu('s_cmp_ge_u32', None, sID, NWG)
    a.branch('s_cbranch_scc1', 'L_end')
    if rot:
        a.salu('s_add_u32', sID, sID, rot)
        a.salu('s_and_b32', sID, sID, 255)
    if prof or diag:
        a.misc('s_memrealtime s[84:85]')
    a.misc('s_load_dwordx16 s[16:31], s[0:1], 0')
    a.misc('s_load_dwordx4 s[32:35], s[0:1], 64')
    a.misc('s_load_dwordx2 s[36:37], s[0:1], 80')
    a.valu('v_lshrrev_b32', vT[0], 6, vTid)
    a.valu('v_and_b32', vLane, 63, vTid)
    a.valu('v_readfirstlane_b32', sW, vT[0])
    a.valu('v_and_b32', vJ, 15, vTid)
    a.valu('v_lshrrev_b32', vG, 4, vLane)
    a.valu('v_bfe_u32', vT[1], vLane, 2, 2)
    a.valu('v_and_b32', vT[2], 3, vLane)
    a.valu('v_lshlrev_b32', vT[1], 9, vT[1])
    a.valu('v_lshlrev_b32', vT[2], 4, vT[2])
    a.valu('v_lshl_add_u32', vKoff, vG, 6, vT[1])
    a.valu('v_add_u32', vKoff, vKoff, vT[2])
    a.valu('v_add_u32', vKoff2, 4096, vKoff)
    a.valu('v_lshlrev_b32', vL16, 4, vLane)
    a.valu('v_lshlrev_b32', vVoff, 9, vG)
    a.valu('v_lshl_add_u32', vVoff, vJ, 4, vVoff)
    a.valu('v_add_u32', vVoff2, 4096, vVoff)
    if xmap == 1:
        a.salu('s_lshr_b32', sT0, sID, 3)
        a.salu('s_and_b32', sT2, sT0, 7)
        a.salu('s_mul_i32', sT1, sT2, 11)
        a.salu('s_lshr_b32', sT1, sT1, 5)
        a.salu('s_mul_i32', sT1, sT1, 3)
        a.salu('s_sub_u32', sT1, sT2, sT1)
        a.salu('s_add_u32', sT1, sT1, 1)
        a.salu('s_bfe_u32', sSP, sID, (2 << 16) | 1)
        a.salu('s_and_b32', sT3, sSP, sT1)
        a.salu('s_bcnt1_i32_b32', sT3, sT3)
        a.salu('s_xor_b32', sT3, sT3, sID)
        a.salu('s_and_b32', sT3, sT3, 1)
        a.salu('s_lshl_b32', sGrp, sT0, 1)
        a.salu('s_add_u32', sGrp, sGrp, sT3)
    else:
        a.salu('s_lshr_b32', sGrp, sID, 2)
        a.salu('s_and_b32', sSP, sID, 3)
    a.salu('s_lshr_b32', sB, sGrp, 4)
    a.salu('s_and_b32', sH, sGrp, 15)
    a.salu('s_lshl_b32', sT1, sGrp, 22)
    a.salu('s_lshr_b32', sT5, sID, 3)
    if fastx:
        a.salu('s_and_b32', sT4, sID, 7)
    else:
        a.salu('s_lshl_b32', sT4, sT5, 1)
        a.salu('s_xor_b32', sT4, sT4, sID)
        a.salu('s_and_b32', sT4, sT4, 7)
    a.salu('s_cmp_eq_u32', None, sT4, 0)
    a.salu('s_cselect_b32', sT5, sT5, 255)
    a.valu('v_mov_b32', vT[2], 0)
    a.valu('v_mov_b32', vT[3], 0)
    a.valu('v_mov_b32', vCntA, L_CNT)
    a.valu('v_mov_b32', vT[4], 0)
    a.valu('v_mov_b32', vT[5], 0)
    a.ds('ds_write_b128', vCntA, vT[2:6])
    a.wait_lgkm(0)
    a.salu('s_mov_b32', sF, sT5)
    if diag:
        a.salu('s_mov_b32', S(26), S(84))
    a.barrier()
    if prof:
        stamp_names.append('entry')
        a.valu('v_writelane_b32', V(0), S(84), 0, rmw=True)

    def xcc_word(dst, n):
        a.misc(f's_getreg_b32 {sX0}, hwreg(HW_REG_XCC_ID)')
        a.salu('s_and_b32', sX0, sX0, 15)
        a.salu('s_mul_i32', sX1, sX0, sX0)
        a.salu('s_lshl_b32', sX0, sX0, 8)
        a.salu('s_lshl_b32', sX1, sX1, 18)
        a.salu('s_or_b32', dst, sX0, sX1)
        a.salu('s_or_b32', dst, dst, 1)
        if n != 1:
            a.salu('s_mul_i32', dst, dst, n)

    def common_setup():
        srd(rWS, pWS, WS_BYTES)
        srd(rOUT, pOUT, 4 * 896)
        srd(rDBG, pDBG, 256)
        a.salu('s_mov_b32', sXP[0], P(0)[0])
        a.salu('s_mov_b32', sXP[1], P(0)[1])
        if prof:
            a.salu('s_mov_b32', sCnt, 0)
        a.valu('v_cmp_gt_u32_e64', mJ8, 8, vJ)
        a.valu('v_cmp_gt_u32_e64', m56, 56, vLane)
        a.valu('v_cmp_gt_u32_e64', mG2, 2, vG)
        a.valu('v_and_b32', vT[2], 1, vJ)
        a.valu('v_lshlrev_b32', vT[2], 4, vT[2])
        a.valu('v_mov_b32', vT[3], 0xffff)
        a.valu('v_lshlrev_b32', vT[3], vT[2], vT[3])
        a.valu('v_bfe_u32', vT[2], vJ, 1, 2)
        for r in range(4):
            a.valu('v_cmp_eq_u32', 'vcc', r, vT[2])
            a.valu('v_cndmask_b32', vMask[r], 0, vT[3], 'vcc')
        a.valu('v_mov_b32', vOne, 1)
        a.salu('s_mov_b32', sCS, CS)
        a.valu('v_lshrrev_b32', vAt, 5, vLane)
        a.valu('v_lshlrev_b32', vAt, 15, vAt)
        a.valu('v_bfe_u32', vT[6], vLane, 1, 1)
        a.valu('v_lshl_add_u32', vAt, vT[6], 14, vAt)
        a.valu('v_and_b32', vT[6], 1, vLane)
        a.valu('v_lshl_add_u32', vAt, vT[6], 5, vAt)
        a.valu('v_bfe_u32', vT[7], vLane, 2, 3)
        a.valu('v_lshl_add_u32', vAt, vT[7], 2, vAt)

    L_stream = 'L_stream'
    L_b3 = 'L_b3'
    a.salu('s_cmp_ge_u32', None, sW, 4)
    a.branch('s_cbranch_scc1', L_stream)

    L_svc = a.newlabel('svc')
    L_svc2 = a.newlabel('svc2')
    if notail == 1:
        a.branch('s_branch', 'L_end')
    a.misc('s_setprio 3')
    a.salu('s_mul_i32', sT2, sW, 896)
    srd(rX, P(0), 896, sT2)
    srd(rWQ, P(3), 448 * 8192 if not nowq else 0)
    XR = KB[0:4]
    vEp = XT[12]
    a.vload('buffer_load_dwordx4', XR, vL16, rX)
    a.valu('v_lshrrev_b32', vT[1], 1, vLane)
    a.valu('v_lshlrev_b32', vT[1], 13, vT[1])
    a.valu('v_and_b32', vT[2], 1, vLane)
    a.valu('v_lshl_add_u32', vT[1], vT[2], 4, vT[1])
    a.salu('s_lshl_b32', sT2, sSP, 2)
    a.salu('s_add_u32', sT2, sT2, sB)
    a.salu('s_lshl_b32', sT2, sT2, 5)
    a.salu('s_lshl_b32', sT3, sH, 9)
    a.salu('s_add_u32', sT2, sT2, sT3)
    a.salu('s_lshl_b32', sT3, sW, 18)
    a.salu('s_add_u32', sT2, sT2, sT3)
    a.salu('s_lshl_b32', sT3, sW, 10)
    a.salu('s_add_u32', sT3, sT3, L_WQS)
    for i in range(4):
        a.salu('s_mov_b32', 'm0', sT3)
        a.vload_lds(vT[1], rWQ, sT2, 0, WF)
        if i < 3:
            a.salu('s_add_u32', sT2, sT2, 4 * 32 * 8192)
            a.salu('s_add_u32', sT3, sT3, 4096)
    srd(rWS, pWS, WS_BYTES)
    a.salu('s_lshl_b32', sT2, sW, 24)
    a.valu('v_mov_b32', vT[2], sT2)
    a.salu('s_mov_b32', sT2, WS_EPOCH)
    a.vload('buffer_load_dword', vEp, vT[2], rWS, sT2, 0, LDF)
    MK = VB[0:4]
    ZR = VB[4:8]
    for i in range(4):
        a.valu('v_mov_b32', MK[i], -1)
        a.valu('v_mov_b32', ZR[i], 0)
    a.salu('s_lshl_b32', sT2, sGrp, 2)
    a.salu('s_add_u32', sT2, sT2, sSP)
    a.salu('s_lshl_b32', sT2, sT2, 2)
    a.salu('s_add_u32', sT2, sT2, sW)
    a.salu('s_lshl_b32', sT2, sT2, 9)
    a.salu('s_add_u32', sT2, sT2, WS_MAIL)
    a.valu('v_lshrrev_b32', vT[1], 5, vLane)
    a.valu('v_lshl_add_u32', vT[1], vT[1], 24, vL16)
    a.vstore('buffer_store_dwordx4', MK, vT[1], rWS, sT2, 0, STF)
    a.salu('s_lshl_b32', sT2, sGrp, 8)
    a.salu('s_add_u32', sT2, sT2, WS_POOL)
    a.salu('s_xor_b32', sT3, sW, 1)
    a.salu('s_add_u32', sT3, sT3, sSP)
    a.valu('v_lshrrev_b32', vT[1], 1, vLane)
    a.valu('v_add_u32', vT[1], sT3, vT[1])
    a.valu('v_lshlrev_b32', vT[1], 24, vT[1])
    a.valu('v_lshl_add_u32', vT[1], vLane, 7, vT[1])
    a.vstore('buffer_store_dword', ZR[0], vT[1], rWS, sT2, 0, STF)
    a.salu('s_lshl_b32', sT2, sGrp, 2)
    a.salu('s_add_u32', sT2, sT2, sSP)
    a.salu('s_lshl_b32', sT2, sT2, 13)
    a.salu('s_lshl_b32', sT3, sW, 10)
    a.salu('s_add_u32', sT2, sT2, sT3)
    a.salu('s_add_u32', sT2, sT2, WS_SC + 4096)
    a.vstore('buffer_store_dwordx4', MK, vL16, rWS, sT2, 0, STF)
    n_after_x = 8
    srd(rWO, P(4), 4096 * 896 if not nowo else 0)
    srd(rW1, P(6), 448 * 3584 if not nodma else 0)
    srd(rW2, P(7), 448 * 3584 if not nodma else 0)
    common_setup()
    stamp('v_issued')
    XF = KB2[0:8]
    a.misc(f's_waitcnt vmcnt({n_after_x})')
    stamp('v_x')
    unpack8(XF, XR)
    layernorm([(XF, vT[0:4], sX0, sX1)])
    for i in range(4):
        a.valu('v_cvt_pk_bf16_f32', XR[i], XF[2 * i], XF[2 * i + 1])
    a.salu('s_mul_i32', sT2, sW, 896)
    a.valu('v_add_u32', vT[0], sT2, vL16)
    a.salu('s_mov_b64', 'exec', m56)
    a.ds('ds_write_b128', vT[0], XR, offset=L_XN2)
    a.salu('s_mov_b64', 'exec', 1)
    a.misc('s_waitcnt vmcnt(0) lgkmcnt(0)')
    a.misc(f'ds_add_u32 {vCntA}, {vOne} offset:8')
    a.salu('s_mov_b64', 'exec', -1)
    stamp('v_ln')
    a.salu('s_cmp_lg_u32', None, sW, 0)
    a.branch('s_cbranch_scc1', L_svc)
    QA = V(148, 56)
    QF = V(84, 56)
    a.valu('v_and_b32', vT[6], 3, vLane)
    a.valu('v_mul_u32_u24', vT[6], 896, vT[6])
    a.valu('v_lshl_add_u32', vT[6], vG, 4, vT[6])
    a.valu('v_bfe_u32', vT[4], vLane, 2, 2)
    a.valu('v_lshl_add_u32', vT[4], vG, 3, vT[4])
    a.valu('v_lshlrev_b32', vT[4], 5, vT[4])
    a.valu('v_and_b32', vT[5], 3, vLane)
    a.valu('v_lshl_add_u32', vT[4], vT[5], 3, vT[4])
    L_sw = a.newlabel('sw')
    L_sok = a.newlabel('sok')
    a.salu('s_mov_b32', sT5, SPIN_BOUND * 8)
    a.label(L_sw)
    a.ds('ds_read_b32', vT[0], vCntA, offset=8)
    a.wait_lgkm(0)
    a.valu('v_readfirstlane_b32', sT2, vT[0])
    a.salu('s_cmp_ge_u32', None, sT2, 4)
    a.branch('s_cbranch_scc1', L_sok)
    a.salu('s_sub_u32', sT5, sT5, 1)
    a.salu('s_cmp_lg_u32', None, sT5, 0)
    a.branch('s_cbranch_scc1', L_sw)
    a.label(L_sok)
    stamp('q_wq')
    for ks in range(14):
        a.ds('ds_read_b128', QA[4 * ks:4 * ks + 4], vT[6], offset=L_XN2 + 64 * ks)
    for ks in range(14):
        for qq in range(2):
            a.ds('ds_read_b64_tr_b16', QF[ks * 4 + 2 * qq:ks * 4 + 2 * qq + 2], vT[4], offset=L_WQS + (32 * ks + 4 * qq) * 32)
    a.valu('v_add_u32', vEp, 1, vEp)
    for ks in range(14):
        a.wait_lgkm(min(2 * (13 - ks), 15))
        a.mfma(KD, QA[4 * ks:4 * ks + 4], QF[4 * ks:4 * ks + 4], 0 if ks == 0 else KD)
    a.valu('v_lshlrev_b32', vT[4], 10, vG)
    a.valu('v_lshl_add_u32', vT[4], vJ, 2, vT[4])
    a.valu('v_and_b32', vT[5], 1, vJ)
    a.valu('v_lshl_add_u32', vT[4], vT[5], 24, vT[4])
    a.salu('s_lshl_b32', sT2, sSP, 2)
    a.salu('s_add_u32', sT2, sT2, sB)
    a.salu('s_lshl_b32', sT2, sT2, 6)
    a.salu('s_lshl_b32', sT3, sH, 12)
    a.salu('s_add_u32', sT2, sT2, sT3)
    a.salu('s_add_u32', sT2, sT2, WS_Q)
    for r in range(1, 4):
        a.valu('v_cmp_eq_u32', 'vcc', r, vG)
        a.valu('v_cndmask_b32', KD[0], KD[0], KD[r], 'vcc')
    a.dpp('v_mov_b32', KD[1], KD[0], ctrl='quad_perm:[1,0,3,2]')
    a.valu('v_cvt_pk_bf16_f32', PB[0], KD[0], KD[1])
    a.valu('v_mov_b32', PB[1], vEp)
    a.vstore('buffer_store_dwordx2', PB[0:2], vT[4], rWS, sT2, 0, STF)
    a.salu('s_lshl_b32', sT4, sB, 10)
    a.salu('s_add_u32', sT4, sT4, sT3)
    a.salu('s_add_u32', sT4, sT4, WS_Q)
    a.valu('v_readfirstlane_b32', sEp, vEp)
    QG = PB[4:8]

    def ldq():
        a.vload('buffer_load_dwordx4', QG, vL16, rWS, sT4, 0, LDF)

    def condq():
        a.valu('v_cmp_ne_u32_e64', S(10, 2), sEp, QG[1])
        a.valu('v_cmp_ne_u32', 'vcc', sEp, QG[3])
        a.salu('s_or_b64', S(10, 2), S(10, 2), 'vcc')
        a.salu('s_cmp_eq_u64', None, S(10, 2), 0)

    spin_until(ldq, condq, first_check=False, sleep=0)
    a.valu('v_mov_b32', QG[1], QG[2])
    a.valu('v_lshlrev_b32', vT[4], 3, vLane)
    a.ds('ds_write_b64', vT[4], QG[0:2], offset=L_QBF)
    a.wait_lgkm(0)
    a.ds('ds_write_b32', vCntA, vOne, offset=4)
    stamp('q_got')
    a.branch('s_branch', L_svc2)
    a.label(L_svc)
    L_nodma = a.newlabel('nodma')
    a.salu('s_cmp_ge_u32', None, sF, NF)
    a.branch('s_cbranch_scc1', L_nodma)
    a.salu('s_sub_u32', sT2, sW, 1)
    L_ini = a.newlabel('ini')
    a.label(L_ini)
    a.salu('s_lshl_b32', sT3, sT2, 10)
    a.salu('s_lshl_b32', sT4, sF, 14)
    a.salu('s_add_u32', sT4, sT4, WS_IN1)
    a.salu('s_mul_i32', sT5, sF, 7168)
    a.salu('s_add_u32', sT5, sT5, WS_INBOX - 16384)
    a.salu('s_cmp_lt_u32', None, sT2, 16)
    a.salu('s_cselect_b32', sT4, sT4, sT5)
    a.salu('s_add_u32', sT4, sT4, sT3)
    a.vstore('buffer_store_dwordx4', MK, vL16, rWS, sT4, 0, STF)
    a.salu('s_add_u32', sT2, sT2, 3)
    a.salu('s_cmp_lt_u32', None, sT2, 23)
    a.branch('s_cbranch_scc1', L_ini)
    a.valu('v_mul_u32_u24', vT[1], 896, vG)
    a.valu('v_lshl_add_u32', vT[1], vJ, 2, vT[1])
    a.valu('v_lshrrev_b32', vT[2], 3, vJ)
    a.valu('v_lshl_add_u32', vT[1], vT[2], 24, vT[1])
    a.salu('s_lshl_b32', sT4, sF, 5)
    a.vstore('buffer_store_dword', MK[0], vT[1], rWS, sT4, WS_H, STF)
    a.salu('s_mov_b64', 'exec', 1)
    a.wait_vm0()
    a.misc(f'ds_add_rtn_u32 {vIdx}, {vCntA}, {vOne} offset:12')
    a.wait_lgkm(0)
    a.salu('s_mov_b64', 'exec', -1)
    a.valu('v_readfirstlane_b32', sT2, vIdx)
    L_nosig = a.newlabel('nosig')
    a.salu('s_cmp_lg_u32', None, sT2, 2)
    a.branch('s_cbranch_scc1', L_nosig)
    xcc_word(sT0, 1)
    a.misc(f's_atomic_add {sT0}, {pDBG}, {DB_INITF}')
    a.label(L_nosig)
    a.valu('v_lshrrev_b32', vT[6], 3, vLane)
    a.valu('v_mul_u32_u24', vT[6], 3584, vT[6])
    a.valu('v_and_b32', vT[7], 7, vLane)
    a.valu('v_lshl_add_u32', vT[6], vT[7], 4, vT[6])
    a.salu('s_sub_u32', sT2, sW, 1)
    L_dma = a.newlabel('dma')
    a.label(L_dma)
    a.salu('s_lshl_b32', sT3, sT2, 10)
    a.salu('s_mul_i32', sT4, sT2, 8 * 3584)
    a.salu('s_lshl_b32', sT5, sF, 7)
    a.salu('s_add_u32', sT4, sT4, sT5)
    a.salu('s_mul_i32', sT5, sF, 57344)
    a.salu('s_add_u32', sT5, sT5, sT3)
    a.salu('s_add_u32', sT0, sT3, L_W1)
    a.salu('s_mov_b32', 'm0', sT0)
    a.vload_lds(vT[6], rW1, sT4, 0, WF)
    a.salu('s_add_u32', sT0, sT3, L_W2)
    a.salu('s_mov_b32', 'm0', sT0)
    a.vload_lds(vL16, rW2, sT5, 0, WF)
    a.salu('s_add_u32', sT2, sT2, 3)
    a.salu('s_cmp_lt_u32', None, sT2, 56)
    a.branch('s_cbranch_scc1', L_dma)
    a.label(L_nodma)
    a.label(L_svc2)
    if debug or prof:
        srd(rWSD, pWS, (4 << 20) + (64 << 20))
    a.valu('v_mul_u32_u24', vWoOff, 896, vG)
    a.valu('v_lshl_add_u32', vWoOff, vJ, 4, vWoOff)
    a.valu('v_and_b32', vT[2], 7, vJ)
    a.valu('v_lshlrev_b32', vT[3], 4, vT[2])
    a.valu('v_lshrrev_b32', vT[4], 3, vJ)
    a.valu('v_mul_u32_u24', vT[5], 4 * 896, vT[4])
    a.valu('v_mul_u32_u24', vWoRem, 896, vG)
    a.valu('v_add3_u32', vWoRem, vWoRem, vT[3], vT[5])
    a.valu('v_add_u32', vWoRem, 768, vWoRem)
    a.salu('s_lshl_b32', sT2, sH, 8)
    a.salu('s_lshl_b32', sT3, sSP, 6)
    a.salu('s_add_u32', sT2, sT2, sT3)
    a.salu('s_lshl_b32', sT3, sW, 4)
    a.salu('s_add_u32', sT2, sT2, sT3)
    a.salu('s_mul_i32', sT2, sT2, 896)
    for Gp in range(4):
        for s_ in range(3):
            a.vload('buffer_load_dwordx4', WO[(Gp * 3 + s_) * 4:(Gp * 3 + s_) * 4 + 4], vWoOff, rWO, sT2, 256 * s_, WF)
        if Gp % 2 == 0:
            a.vload('buffer_load_dwordx4', WO[48 + 2 * Gp:52 + 2 * Gp], vWoRem, rWO, sT2, 0, WF)
        if Gp < 3:
            a.salu('s_add_u32', sT2, sT2, 4 * 896)
    a.valu('v_lshl_add_u32', vT[5], vT[4], 2, vG)
    a.valu('v_lshlrev_b32', vT[5], 7, vT[5])
    a.valu('v_lshl_add_u32', vYw, vT[2], 4, vT[5])
    a.salu('s_lshl_b32', sT2, sW, 11)
    a.valu('v_add_u32', vYw, sT2, vYw)
    a.valu('v_and_b32', vT[6], 3, vJ)
    a.valu('v_lshrrev_b32', vT[7], 2, vJ)
    a.valu('v_mul_u32_u24', vOr, 1040, vT[6])
    a.valu('v_lshl_add_u32', vOr, vG, 6, vOr)
    a.valu('v_lshl_add_u32', vOr, vT[7], 4, vOr)
    a.salu('s_lshl_b32', sT2, sW, 8)
    a.valu('v_add_u32', vOr, sT2, vOr)
    a.valu('v_lshlrev_b32', vMr, 3, vT[6])
    a.valu('v_lshrrev_b32', vT[2], 1, vG)
    a.valu('v_lshlrev_b32', vPubOff, 5, vT[2])
    a.valu('v_lshl_add_u32', vPubOff, vT[6], 3, vPubOff)
    a.valu('v_and_b32', vT[2], 1, vT[7])
    a.valu('v_lshl_add_u32', vPubOff, vT[2], 2, vPubOff)
    a.valu('v_and_b32', vT[2], 1, vG)
    a.valu('v_lshl_add_u32', vPubOff, vT[2], 1, vPubOff)
    a.valu('v_lshrrev_b32', vT[2], 1, vT[7])
    a.valu('v_add_u32', vPubOff, vPubOff, vT[2])
    a.valu('v_lshlrev_b32', vPubOff, 2, vPubOff)
    a.salu('s_lshl_b32', sT2, sSP, 9)
    a.valu('v_lshlrev_b32', vGatML, 11, vT[6])
    a.valu('v_add_u32', vGatML, sT2, vGatML)
    a.salu('s_lshl_b32', sT3, sW, 6)
    a.valu('v_lshl_add_u32', vT[2], vT[7], 2, vG)
    a.valu('v_lshl_add_u32', vGatOff, vT[2], 2, vGatML)
    a.valu('v_add_u32', vGatOff, sT3, vGatOff)
    a.valu('v_lshlrev_b32', vOw, 24, vLane)

    def ldfi():
        a.valu('v_mov_b32', vT[7], 0)
        a.vload('buffer_load_dword', vChk, vT[7], rDBG, 0, DB_INITF, LDF)

    def condf():
        a.valu('v_readfirstlane_b32', sT2, vChk)
        a.salu('s_and_b32', sT3, sT2, 255)
        a.salu('s_cmp_ge_u32', None, sT3, NF)

    L_nochk = a.newlabel('nochk')
    a.salu('s_cmp_lg_u32', None, sW, 1)
    a.branch('s_cbranch_scc1', L_nochk)
    L_mw = a.newlabel('mw')
    L_mok = a.newlabel('mok')
    a.salu('s_mov_b32', sT5, SPIN_BOUND)
    a.label(L_mw)
    a.ds('ds_read_b32', vT[0], vCntA)
    a.wait_lgkm(0)
    a.valu('v_readfirstlane_b32', sT2, vT[0])
    a.salu('s_cmp_ge_u32', None, sT2, 4)
    a.branch('s_cbranch_scc1', L_mok)
    a.misc('s_sleep 64')
    a.salu('s_sub_u32', sT5, sT5, 1)
    a.salu('s_cmp_lg_u32', None, sT5, 0)
    a.branch('s_cbranch_scc1', L_mw)
    a.label(L_mok)
    spin_until(ldfi, condf, first_check=False, sleep=64)
    xcc_word(sT3, NF)
    a.salu('s_cmp_eq_u32', None, sT2, sT3)
    a.salu('s_cselect_b32', sT2, fastx, 0)
    a.valu('v_mov_b32', vT[7], sT2)
    a.ds('ds_write_b32', vCntA, vT[7], offset=16)
    a.label(L_nochk)
    a.misc('s_waitcnt vmcnt(0) lgkmcnt(0)')
    a.salu('s_lshl_b32', sT4, sGrp, 13)
    a.salu('s_add_u32', sT4, sT4, WS_MAIL)
    a.salu('s_lshl_b32', sT2, sSP, 2)
    a.salu('s_add_u32', sT2, sT2, sW)
    a.salu('s_lshl_b32', sT2, sT2, 9)
    a.salu('s_add_u32', sT3, sT4, sT2)
    stamp('v_ready')
    if notail == 2:
        a.branch('s_branch', 'L_end')
    a.barrier()
    stamp('v_B3')
    ov = PB[0:4]
    ml = PB[4:6]
    a.ds('ds_read_b64', ml, vMr, offset=L_ML)
    a.ds('ds_read_b128', ov, vOr, offset=L_OP)
    a.valu('v_and_b32', vT[5], 3, vJ)
    a.wait_lgkm(1)
    red4 = ('quad_perm:[1,0,3,2]', 'quad_perm:[2,3,0,1]')
    a.valu('v_mov_b32', vT[0], ml[0])
    for c in red4:
        a.dpp('v_max_f32', vT[0], vT[0], vT[0], ctrl=c)
    a.valu('v_sub_f32', vT[2], ml[0], vT[0])
    a.valu('v_mul_f32', vT[2], sCS, vT[2])
    a.valu('v_exp_f32', vT[2], vT[2])
    a.wait_lgkm(0)
    a.valu('v_mul_f32', vT[1], ml[1], vT[2])
    for r in range(4):
        a.valu('v_mul_f32', ov[r], ov[r], vT[2])
    for c in red4:
        for r in range(4):
            a.dpp('v_add_f32', ov[r], ov[r], ov[r], ctrl=c)
        a.dpp('v_add_f32', vT[1], vT[1], vT[1], ctrl=c)
    for r in range(1, 4):
        a.valu('v_cmp_eq_u32', 'vcc', r, vT[5])
        a.valu('v_cndmask_b32', ov[0], ov[0], ov[r], 'vcc')
    a.valu('v_min_u32', ov[0], -2, ov[0])
    a.vstore('buffer_store_dword', ov[0], vPubOff, rWS, sT3, 0, STF)
    a.valu('v_min_u32', vT[0], -2, vT[0])
    a.valu('v_min_u32', vT[1], -2, vT[1])
    a.vstore('buffer_store_dwordx2', vT[0:2], vOw, rWS, sT3, 256, STF)
    stamp('v_pub')
    gv = PB[8]
    gml = PB[10:12]

    def ldg():
        a.vload('buffer_load_dword', gv, vGatOff, rWS, sT4, 0, LDF)
        a.vload('buffer_load_dwordx2', gml, vGatML, rWS, sT4, 256, LDF)

    def condg():
        a.valu('v_max3_u32', vT[2], gv, gml[0], gml[1])
        a.valu('v_cmp_eq_u32_e64', S(10, 2), -1, vT[2])
        a.salu('s_cmp_eq_u64', None, S(10, 2), 0)

    spin_until(ldg, condg, first_check=False, sleep=gsleep)
    stamp('v_gath')
    a.valu('v_mov_b32', vT[0], gml[0])
    for c in red4:
        a.dpp('v_max_f32', vT[0], vT[0], vT[0], ctrl=c)
    a.valu('v_sub_f32', vT[1], gml[0], vT[0])
    a.valu('v_mul_f32', vT[1], sCS, vT[1])
    a.valu('v_exp_f32', vT[1], vT[1])
    a.valu('v_mul_f32', gv, gv, vT[1])
    a.valu('v_mul_f32', gml[1], gml[1], vT[1])
    for c in red4:
        a.dpp('v_add_f32', gv, gv, gv, ctrl=c)
        a.dpp('v_add_f32', gml[1], gml[1], gml[1], ctrl=c)
    a.valu('v_rcp_f32', gml[1], gml[1])
    a.valu('v_mul_f32', gv, gv, gml[1])
    a.valu('v_cvt_pk_bf16_f32', gv, gv, gv)
    dump(gv, 18)
    Y = [KB[0:4], KB[4:8], KB[8:12], KB[12:16], KB[16:20]]
    BT = [QB[4 * Gp:4 * Gp + 4] for Gp in range(4)]
    for Gp in range(4):
        for r in range(4):
            a.dpp('v_and_b32', BT[Gp][r], gv, vMask[r], ctrl=f'row_newbcast:{4 * Gp}')
        for s_ in range(3):
            a.mfma(Y[s_], WO[(Gp * 3 + s_) * 4:(Gp * 3 + s_) * 4 + 4], BT[Gp], 0 if Gp == 0 else Y[s_])
        a.mfma(Y[3 + Gp % 2], WO[48 + 4 * (Gp // 2):52 + 4 * (Gp // 2)], BT[Gp], 0 if Gp < 2 else Y[3 + Gp % 2])
    for r in range(4):
        a.valu('v_cndmask_b32', Y[0][r], Y[1][r], Y[0][r], mJ8)
    a.ds('ds_write_b128', vYw, Y[0], offset=L_YP)
    for r in range(4):
        a.valu('v_cndmask_b32', Y[3][r], Y[4][r], Y[3][r], mG2)
        a.valu('v_cndmask_b32', Y[2][r], Y[3][r], Y[2][r], mJ8)
    a.ds('ds_write_b128', vYw, Y[2], offset=L_YP + 1024)
    a.branch('s_branch', 'L_b4')

    a.label(L_stream)
    a.misc(f's_setprio {prio}')
    srd(rK, P(1), 4 << 20, sT1)
    srd(rV, P(2), 4 << 20, sT1)
    issue_static_units()
    common_setup()
    if debug or prof:
        srd(rWSD, pWS, (4 << 20) + (64 << 20))
    a.salu('s_lshl_b32', sT2, sGrp, 8)
    a.salu('s_add_u32', sT2, sT2, WS_POOL)
    a.salu('s_add_u32', sPool[0], pWS[0], sT2)
    a.salu('s_addc_u32', sPool[1], pWS[1], 0)
    a.valu('v_lshrrev_b32', vT[2], 2, vJ)
    for t in range(4):
        a.valu('v_cmp_eq_u32_e64', mT[t], t, vT[2])
    for r in range(4):
        a.valu('v_mov_b32', OD0[r], 0)
        a.valu('v_mov_b32', OD1[r], 0)
    a.valu('v_mov_b32', vL, 0)
    a.salu('s_mov_b32', sM, -3.0e38)
    a.salu('s_mov_b32', sExh, 0)
    a.valu('v_lshrrev_b32', vT[4], 3, vJ)
    a.valu('v_lshl_add_u32', vT[5], vT[4], 2, vG)
    a.valu('v_lshlrev_b32', vT[5], 7, vT[5])
    a.valu('v_and_b32', vT[6], 3, vJ)
    a.valu('v_lshl_add_u32', vOw, vT[6], 5, vT[5])
    a.valu('v_bfe_u32', vT[7], vJ, 2, 1)
    a.valu('v_lshl_add_u32', vOw, vT[7], 4, vOw)
    a.salu('s_sub_u32', sT2, sW, 4)
    a.salu('s_mul_i32', sT3, sT2, 1040)
    a.valu('v_add_u32', vOw, sT3, vOw)
    a.salu('s_lshl_b32', sT2, sT2, 3)
    a.valu('v_mov_b32', vMr, sT2)
    a.valu('v_lshl_add_u32', vT[1], vG, 2, vT[6])
    a.valu('v_lshlrev_b32', vT[1], 4, vT[1])
    vScG, vScB, vScA, vMax = XT[13], XT[14], XT[15], XT[16]
    SR = [XT[17], XT[18]]
    a.salu('s_mov_b32', sWgB, sT5)
    a.valu('v_lshrrev_b32', vScG, 2, vLane)
    a.valu('v_lshlrev_b32', vScG, 2, vScG)
    a.salu('s_sub_u32', sT2, sW, 4)
    a.salu('s_lshl_b32', sT2, sT2, 11)
    a.salu('s_add_u32', sT2, sT2, L_YP)
    a.valu('v_add_u32', vScB, sT2, vScG)
    a.valu('v_mov_b32', vMax, -3.0e38)
    a.salu('s_lshl_b32', sScB, sGrp, 15)
    a.salu('s_add_u32', sScB, sScB, WS_SC)
    a.salu('s_cmp_lt_u32', None, sF, NF)
    a.salu('s_cselect_b32', sNP, 32 - NPWF, 32 - NPW)
    a.salu('s_mov_b32', sTag0, 0)
    a.salu('s_mov_b32', sTag1, 0)
    a.salu('s_lshl_b32', sAux0, sN, 6)
    a.salu('s_add_u32', sAux1, sAux0, 64)
    a.salu('s_add_u32', sN, sN, 2)
    a.salu('s_mov_b32', sPh, 0)
    a.salu('s_mov_b32', sGotM, 0)
    a.salu('s_and_b32', sT2, sGrp, 1)
    a.salu('s_lshl_b32', sT2, sT2, 8)
    a.salu('s_add_u32', sT2, sT2, sGrp)
    a.salu('s_cmp_lt_u32', None, sT2, 2 * NF)
    a.salu('s_cselect_b32', sP0, 4 * NPWF, 4 * NPW)
    stamp('s_issued')
    L_qw = a.newlabel('qw')
    L_qok = a.newlabel('qok')
    a.salu('s_mov_b32', sT5, SPIN_BOUND * 8)
    a.label(L_qw)
    a.ds('ds_read_b32', vT[0], vCntA, offset=4)
    a.wait_lgkm(0)
    a.valu('v_readfirstlane_b32', sT2, vT[0])
    a.salu('s_cmp_lg_u32', None, sT2, 0 if not skipq else 77)
    a.branch('s_cbranch_scc1', L_qok)
    a.misc('s_sleep 2')
    a.salu('s_sub_u32', sT5, sT5, 1)
    a.salu('s_cmp_lg_u32', None, sT5, 0)
    a.branch('s_cbranch_scc1', L_qw)
    a.label(L_qok)
    stamp('s_q')
    a.ds('ds_read_b128', PB[0:4], vT[1], offset=L_QBF)
    a.ds('ds_read_b128', PB[4:8], vT[1], offset=L_QBF + 256)
    a.wait_lgkm(0)
    for t in range(4):
        for hf in range(2):
            for r in range(4):
                a.valu('v_cndmask_b32', QB[(t * 2 + hf) * 4 + r], 0, PB[hf * 4 + r], mT[t])

    def qk(kb):
        for i in range(8):
            a.mfma(KD, kb[4 * i:4 * i + 4], QB[4 * i:4 * i + 4], 0 if i == 0 else KD)

    def softmax_step():
        s_, t_ = vT[0], vT[1]
        a.dpp('v_mov_b32', s_, KD[0], ctrl='quad_perm:[0,0,0,0]')
        a.dpp('v_add_f32', s_, KD[1], s_, ctrl='quad_perm:[1,1,1,1]')
        a.dpp('v_add_f32', s_, KD[2], s_, ctrl='quad_perm:[2,2,2,2]')
        a.dpp('v_add_f32', s_, KD[3], s_, ctrl='quad_perm:[3,3,3,3]')
        rbf(s_, s_)
        softmax_core(s_)

    def softmax_core(s_):
        t_ = vT[1]
        a.valu('v_max_f32', t_, sM, s_)
        wave_red('v_max_f32', t_, sMn, quads_equal=True)
        a.valu('v_mov_b32', t_, sM)
        a.valu('v_subrev_f32', s_, sMn, s_)
        a.valu('v_subrev_f32', t_, sMn, t_)
        a.valu('v_mul_f32', s_, sCS, s_)
        a.valu('v_mul_f32', t_, sCS, t_)
        a.valu('v_exp_f32', s_, s_)
        a.valu('v_exp_f32', t_, t_)
        a.salu('s_mov_b32', sM, sMn)
        a.valu('v_fma_f32', vL, vL, t_, s_)
        a.valu('v_cvt_pk_bf16_f32', s_, s_, s_)
        for r in range(4):
            a.valu('v_mul_f32', OD0[r], OD0[r], t_)
            a.valu('v_mul_f32', OD1[r], OD1[r], t_)
        for T in range(4):
            for r in range(4):
                a.dpp('v_and_b32', PB[4 * T + r], s_, vMask[r], ctrl=f'row_newbcast:{4 * T}')

    def pv(vb):
        for T in range(4):
            a.mfma(OD0, vb[8 * T:8 * T + 4], PB[4 * T:4 * T + 4], OD0)
            a.mfma(OD1, vb[8 * T + 4:8 * T + 8], PB[4 * T:4 * T + 4], OD1)

    def fetch_issue(pool):
        a.salu('s_mov_b32', sIdx, 1)
        a.misc(f's_atomic_add {sIdx}, {sPool}, {128 * pool} glc')

    def fetch_complete():
        a.wait_lgkm(0)
        a.salu('s_add_u32', sNext, sIdx, sPB)

    def refill(buf, i, kind, soff):
        vo, o = koff(i) if kind == 'k' else voff(i)
        a.vload('buffer_load_dwordx4', buf[4 * i:4 * i + 4], vo, rK if kind == 'k' else rV, soff, o, KP if kind == 'k' else VP)

    def k_step(buf, kind, soff):
        for i in range(8):
            a.misc('s_waitcnt vmcnt(15)')
            a.mfma(KD, buf[4 * i:4 * i + 4], QB[4 * i:4 * i + 4], 0 if i == 0 else KD)
            refill(buf, i, kind, soff)

    def v_step(buf, kind, soff):
        for i in range(8):
            od = OD0 if i % 2 == 0 else OD1
            a.misc('s_waitcnt vmcnt(15)')
            a.mfma(od, buf[4 * i:4 * i + 4], PB[4 * (i // 2):4 * (i // 2) + 4], od)
            refill(buf, i, kind, soff)

    def score(dst):
        a.dpp('v_mov_b32', dst, KD[0], ctrl='quad_perm:[0,0,0,0]')
        a.dpp('v_add_f32', dst, KD[1], dst, ctrl='quad_perm:[1,1,1,1]')
        a.dpp('v_add_f32', dst, KD[2], dst, ctrl='quad_perm:[2,2,2,2]')
        a.dpp('v_add_f32', dst, KD[3], dst, ctrl='quad_perm:[3,3,3,3]')
        rbf(dst, dst)

    BUF = [KB, VB]
    sTag = [sTag0, sTag1]
    sAux = [sAux0, sAux1]
    PN = 4 * NPW

    def record_static(n):
        score(vT[0])
        a.ds('ds_write_b32', vScB, vT[0], offset=64 * n)
        a.valu('v_max_f32', vMax, vMax, vT[0])

    def extras():
        L_x = a.newlabel('nox')
        a.salu('s_cmp_lg_u32', None, sExh, 0)
        a.branch('s_cbranch_scc1', L_x)
        a.salu('s_mov_b32', sExh, 1)
        qk(KB2)
        record_static(0)
        qk(VB2)
        record_static(1)
        a.salu('s_cmp_lt_u32', None, sF, NF)
        a.branch('s_cbranch_scc1', L_x)
        a.salu('s_sub_u32', sT4, sW, 4)
        a.salu('s_lshl_b32', sT4, sT4, 14)
        a.salu('s_add_u32', sT4, sT4, L_W1)
        a.valu('v_add_u32', vT[2], sT4, vL16)
        for i in range(8):
            a.ds('ds_read_b128', KB2[4 * i:4 * i + 4], vT[2], offset=1024 * i)
        for i in range(8):
            a.ds('ds_read_b128', VB2[4 * i:4 * i + 4], vT[2], offset=8192 + 1024 * i)
        a.wait_lgkm(0)
        qk(KB2)
        record_static(2)
        qk(VB2)
        record_static(3)
        a.label(L_x)

    def sched(b_):
        L_done = a.newlabel('sd')
        L_pool = a.newlabel('sp')
        L_priv = a.newlabel('sv')
        a.salu('s_bitcmp1_b32', None, sPh, 0)
        a.branch('s_cbranch_scc1', L_pool)
        a.label(L_priv)
        L_np = a.newlabel('np')
        a.salu('s_cmp_ge_u32', None, sN, sNP)
        a.branch('s_cbranch_scc1', L_np)
        a.salu('s_mov_b32', sTag[b_], sPh)
        a.salu('s_lshl_b32', sAux[b_], sN, 6)
        a.salu('s_lshl_b32', sRef, sN, 15)
        a.salu('s_add_u32', sRef, sRef, sWgB)
        a.salu('s_add_u32', sN, sN, 1)
        a.salu('s_cmp_lg_u32', None, sN, sNP)
        a.branch('s_cbranch_scc1', L_done)
        a.salu('s_mov_b32', sIdx, 1)
        a.salu('s_lshl_b32', sT2, sPh, 6)
        a.misc(f's_atomic_add {sIdx}, {sPool}, {sT2} glc')
        a.branch('s_branch', L_done)
        a.label(L_np)
        a.salu('s_add_u32', sPh, sPh, 1)
        a.label(L_pool)
        a.wait_lgkm(0)
        a.salu('s_min_u32', sT2, sIdx, 4096)
        a.salu('s_add_u32', sT3, sP0, 3 * PN)
        L_ex = a.newlabel('ex')
        a.salu('s_cmp_ge_u32', None, sT2, sT3)
        a.branch('s_cbranch_scc1', L_ex)
        a.salu('s_mov_b32', sIdx, 1)
        a.salu('s_and_b32', sT3, sPh, 2)
        a.salu('s_lshl_b32', sT3, sT3, 6)
        a.misc(f's_atomic_add {sIdx}, {sPool}, {sT3} glc')
        a.salu('s_sub_u32', sT3, sT2, sP0)
        a.salu('s_mul_i32', sT4, sT3, -(-65536 // PN))
        a.salu('s_lshr_b32', sT4, sT4, 16)
        a.salu('s_mul_i32', sT0, sT4, 128 - PN)
        a.salu('s_add_u32', sT0, sT0, sT3)
        a.salu('s_add_u32', sT0, sT0, 256 - PN)
        a.salu('s_add_u32', sT3, sT3, 128)
        a.salu('s_cmp_lt_u32', None, sT2, sP0)
        a.salu('s_cselect_b32', sT0, sT3, sT0)
        a.salu('s_mov_b32', sTag[b_], sPh)
        a.salu('s_lshl_b32', sRef, sT0, 13)
        a.salu('s_lshl_b32', sAux[b_], sT0, 6)
        a.salu('s_add_u32', sAux[b_], sAux[b_], sScB)
        a.branch('s_branch', L_done)
        a.label(L_ex)
        L_end_ = a.newlabel('en')
        a.salu('s_cmp_eq_u32', None, sPh, 3)
        a.branch('s_cbranch_scc1', L_end_)
        a.salu('s_mov_b32', sPh, 2)
        a.salu('s_mov_b32', sN, 0)
        a.branch('s_branch', L_priv)
        a.label(L_end_)
        a.salu('s_mov_b32', sTag[b_], 4)
        a.salu('s_mov_b32', sRef, 0x800000)
        a.label(L_done)

    L_fl = a.newlabel('flush')
    for b_ in range(2):
        a.label(f'L_half{b_}')
        a.salu('s_cmp_eq_u32', None, sTag[b_], 4)
        a.branch('s_cbranch_scc1', L_fl)
        a.salu('s_mov_b32', sCT, sTag[b_])
        a.salu('s_mov_b32', sCA, sAux[b_])
        sched(b_)
        L_v = a.newlabel('vpath')
        L_kv = a.newlabel('kv')
        L_kr = a.newlabel('kr')
        L_nx = f'L_half{1 - b_}'
        a.salu('s_cmp_ge_u32', None, sCT, 2)
        a.branch('s_cbranch_scc1', L_v)
        a.salu('s_cmp_ge_u32', None, sTag[b_], 2)
        a.branch('s_cbranch_scc1', L_kv)
        k_step(BUF[b_], 'k', sRef)
        a.branch('s_branch', L_kr)
        a.label(L_kv)
        k_step(BUF[b_], 'v', sRef)
        a.label(L_kr)
        score(vT[0])
        a.salu('s_cmp_eq_u32', None, sCT, 0)
        a.salu('s_cselect_b32', sT2, sCA, 31 * 64)
        a.salu('s_cselect_b32', sPub, BIGOFF, sCA)
        a.valu('v_add_u32', vScA, sT2, vScB)
        a.ds('ds_write_b32', vScA, vT[0])
        a.valu('v_max_f32', vMax, vMax, vT[0])
        a.vstore('buffer_store_dword', vT[0], vScG, rWS, sPub, 0, STF)
        if b_ == 1:
            extras()
        a.branch('s_branch', L_nx)
        a.label(L_v)
        L_gm = a.newlabel('gm')
        a.salu('s_cmp_lg_u32', None, sGotM, 0)
        a.branch('s_cbranch_scc1', L_gm)
        a.salu('s_mov_b32', sGotM, 1)
        wave_red('v_max_f32', vMax, sM, quads_equal=True)
        a.salu('s_mov_b64', 'exec', 1)
        a.misc(f'ds_add_u32 {vCntA}, {vOne}')
        a.salu('s_mov_b64', 'exec', -1)
        if b_ == 0:
            kend_idx = len(stamp_names)
            stamp('s_Kend')
        elif prof:
            a.misc('s_memrealtime s[22:23]')
            a.wait_lgkm(0)
            a.valu('v_writelane_b32', V(0), S(22), kend_idx, rmw=True)
        a.label(L_gm)
        L_vp = a.newlabel('vp')
        L_vs = a.newlabel('vs')
        a.salu('s_cmp_eq_u32', None, sCT, 3)
        a.branch('s_cbranch_scc1', L_vp)
        a.valu('v_add_u32', vScA, sCA, vScB)
        a.ds('ds_read_b32', vT[0], vScA)
        a.wait_lgkm(0)
        a.valu('v_subrev_f32', vT[0], sM, vT[0])
        a.valu('v_mul_f32', vT[0], sCS, vT[0])
        a.valu('v_exp_f32', vT[0], vT[0])
        a.valu('v_add_f32', vL, vL, vT[0])
        a.valu('v_cvt_pk_bf16_f32', vT[0], vT[0], vT[0])
        for T in range(4):
            for r in range(4):
                a.dpp('v_and_b32', PB[4 * T + r], vT[0], vMask[r], ctrl=f'row_newbcast:{4 * T}')
        a.branch('s_branch', L_vs)
        a.label(L_vp)
        if prof:
            a.salu('s_add_u32', sCnt, sCnt, 1)
        a.misc('s_waitcnt vmcnt(15)')

        def lds_():
            a.vload('buffer_load_dword', SR[b_], vScG, rWS, sCA, 0, LDF)

        def conds_():
            a.valu('v_cmp_eq_u32', 'vcc', -1, SR[b_])
            a.salu('s_cmp_eq_u64', None, 'vcc', 0)

        spin_until(lds_, conds_, sleep=8)
        a.valu('v_mov_b32', vT[0], SR[b_])
        softmax_core(vT[0])
        a.label(L_vs)
        a.salu('s_cmp_eq_u32', None, sTag[b_], 3)
        a.salu('s_cselect_b32', sPub, sAux[b_], BIGOFF)
        a.vload('buffer_load_dword', SR[b_], vScG, rWS, sPub, 0, LDF)
        v_step(BUF[b_], 'v', sRef)
        if b_ == 1:
            a.branch('s_branch', L_nx)
    a.label(L_fl)
    wave_red('v_add_f32', vL, sMn, quads_equal=True)
    a.valu('v_mov_b32', vT[2], sM)
    a.valu('v_mov_b32', vT[3], sMn)
    a.ds('ds_write_b64', vMr, vT[2:4], offset=L_ML)
    stamp('s_Vlast')
    if notail:
        a.branch('s_branch', 'L_end')
    for r in range(4):
        a.valu('v_cndmask_b32', PB[r], OD1[r], OD0[r], mJ8)
    a.ds('ds_write_b128', vOw, PB[0:4], offset=L_OP)
    a.wait_lgkm(0)
    a.barrier()
    a.wait_vm0()
    a.misc('s_setprio 0')
    stamp_val('s_units', sCnt)

    a.label('L_b4')
    a.salu('s_lshl_b32', sT2, sW, 8)
    a.valu('v_lshlrev_b32', vT[4], 2, vLane)
    a.valu('v_add_u32', vT[4], sT2, vT[4])
    a.salu('s_lshl_b32', sT1, sGrp, 2)
    a.salu('s_add_u32', sT1, sT1, sSP)
    a.salu('s_lshl_b32', sT1, sT1, 6)
    a.salu('s_lshl_b32', sT0, sW, 16)
    a.salu('s_add_u32', sT1, sT1, sT0)
    a.salu('s_add_u32', sT1, sT1, WS_IN1)
    a.wait_lgkm(0)
    a.barrier()
    stamp('B4')
    YS = VB[0:8]
    L_nc = a.newlabel('nc')
    L_y6 = a.newlabel('y6')
    a.salu('s_cmp_eq_u32', None, sW, 7)
    a.branch('s_cbranch_scc1', L_nc)
    for i in range(4):
        a.ds('ds_read_b32', YS[i], vT[4], offset=L_YP + 2048 * i)
    a.salu('s_cmp_lg_u32', None, sW, 6)
    a.branch('s_cbranch_scc1', L_y6)
    for i in range(4):
        a.ds('ds_read_b32', YS[4 + i], vT[4], offset=L_YP + 2048 * i + 256)
    a.wait_lgkm(0)
    for i in range(4):
        a.valu('v_add_f32', YS[i], YS[i], YS[4 + i])
    a.label(L_y6)
    a.wait_lgkm(0)
    a.valu('v_add_f32', YS[0], YS[0], YS[1])
    a.valu('v_add_f32', YS[2], YS[2], YS[3])
    a.valu('v_add_f32', YS[0], YS[0], YS[2])
    a.valu('v_min_u32', YS[0], -2, YS[0])
    a.vstore('buffer_store_dword', YS[0], vAt, rWS, sT1, 0, STF)
    a.label(L_nc)
    stamp('atom')
    a.salu('s_cmp_ge_u32', None, sF, NF)
    a.branch('s_cbranch_scc1', 'L_endp')

    F2B = V(84, 32)
    FA = V(116, 56)
    F1B = V(172, 56)
    RB = V(24, 28)
    a.valu('v_bfe_u32', vT[4], vLane, 2, 2)
    a.valu('v_lshl_add_u32', vT[4], vG, 3, vT[4])
    a.valu('v_and_b32', vT[5], 3, vLane)
    a.valu('v_lshlrev_b32', vT[5], 3, vT[5])
    a.valu('v_mul_u32_u24', vT[6], 896, vT[4])
    a.valu('v_add_u32', vT[6], vT[6], vT[5])
    a.salu('s_min_u32', sT2, sW, 6)
    a.salu('s_lshl_b32', sT2, sT2, 7)
    a.salu('s_add_u32', sT2, sT2, L_W2)
    a.valu('v_add_u32', vT[6], sT2, vT[6])
    for tt in range(4):
        for ks in range(2):
            for qq in range(2):
                d = F2B[(tt * 2 + ks) * 4 + 2 * qq:(tt * 2 + ks) * 4 + 2 * qq + 2]
                a.ds('ds_read_b64_tr_b16', d, vT[6], offset=(32 * ks + 4 * qq) * 896 + tt * 32)
    L_ln = a.newlabel('ln')
    L_b5 = a.newlabel('b5')
    a.salu('s_cmp_ge_u32', None, sW, 4)
    a.branch('s_cbranch_scc1', L_ln)
    a.valu('v_lshlrev_b32', vT[6], 7, vT[4])
    a.valu('v_add_u32', vT[6], vT[6], vT[5])
    a.salu('s_lshl_b32', sT2, sW, 5)
    a.salu('s_add_u32', sT2, sT2, L_W1)
    a.valu('v_add_u32', vT[6], sT2, vT[6])
    for ks in range(14):
        for qq in range(2):
            a.ds('ds_read_b64_tr_b16', F1B[ks * 4 + 2 * qq:ks * 4 + 2 * qq + 2], vT[6], offset=(32 * ks + 4 * qq) * 128)
            if (ks * 2 + qq) % 8 == 7:
                a.wait_lgkm(4)
    a.label(L_ln)
    srd(rX, sXP, 4 * 896)
    a.valu('v_mul_u32_u24', vT[7], 896, vG)
    a.valu('v_lshl_add_u32', vT[7], vJ, 1, vT[7])
    a.salu('s_lshl_b32', sT1, sF, 5)
    a.vload('buffer_load_ushort', RB[24], vT[7], rX, sT1, 0)
    a.valu('v_mov_b32', vT[4], L_SAME)
    a.ds('ds_read_b32', RB[25], vT[4])
    a.salu('s_lshl_b32', sT4, sF, 14)
    a.salu('s_lshl_b32', sT3, sW, 11)
    a.salu('s_add_u32', sT4, sT4, sT3)
    a.salu('s_add_u32', sT4, sT4, WS_IN1)
    a.salu('s_lshl_b32', sT3, sW, 8)
    a.valu('v_and_b32', vT[5], 3, vJ)
    a.valu('v_lshlrev_b32', vT[5], 4, vT[5])
    a.valu('v_lshl_add_u32', vT[5], vG, 6, vT[5])
    a.valu('v_add_u32', vT[5], sT3, vT[5])
    RI = RB[0:8]

    def ldr():
        a.vload('buffer_load_dwordx4', RI[0:4], vL16, rWS, sT4, 0, LDF)
        a.vload('buffer_load_dwordx4', RI[4:8], vL16, rWS, sT4, 1024, LDF)

    def condr():
        a.valu('v_max3_u32', vT[0], RI[0], RI[1], RI[2])
        a.valu('v_max3_u32', vT[1], RI[3], RI[4], RI[5])
        a.valu('v_max3_u32', vT[0], vT[0], RI[6], RI[7])
        a.valu('v_max_u32', vT[0], vT[0], vT[1])
        a.valu('v_cmp_eq_u32', 'vcc', -1, vT[0])
        a.salu('s_cmp_eq_u64', None, 'vcc', 0)
        if rmask:
            a.salu('s_cselect_b64', 'exec', -1, 'vcc')

    spin_until(ldr, condr, first_check=False, sleep=psleep)
    a.salu('s_mov_b64', 'exec', -1)
    stamp('red')
    for r in range(4):
        a.valu('v_add_f32', RI[r], RI[r], RI[4 + r])
    for c in ('row_ror:4', 'row_ror:8'):
        for r in range(4):
            a.dpp('v_add_f32', RI[r], RI[r], RI[r], ctrl=c)
    a.ds('ds_write_b128', vT[5], RI[0:4], offset=L_OP)
    a.valu('v_lshlrev_b32', vT[4], 9, vG)
    a.valu('v_lshl_add_u32', vT[4], vJ, 2, vT[4])
    a.valu('v_and_b32', vT[5], 1, vJ)
    a.valu('v_lshl_add_u32', vT[7], vT[5], 24, vT[7])
    a.wait_lgkm(0)
    a.barrier()
    L_nw0 = a.newlabel('nw0')
    a.salu('s_cmp_lg_u32', None, sW, 0)
    a.branch('s_cbranch_scc1', L_nw0)
    for i in range(8):
        a.ds('ds_read_b32', RB[i], vT[4], offset=L_OP + 64 * i)
    a.valu('v_lshlrev_b32', RB[24], 16, RB[24])
    a.valu('v_readfirstlane_b32', sT3, RB[25])
    a.wait_lgkm(0)
    a.valu('v_add_f32', RB[0], RB[0], RB[1])
    a.valu('v_add_f32', RB[2], RB[2], RB[3])
    a.valu('v_add_f32', RB[4], RB[4], RB[5])
    a.valu('v_add_f32', RB[6], RB[6], RB[7])
    a.valu('v_add_f32', RB[0], RB[0], RB[2])
    a.valu('v_add_f32', RB[4], RB[4], RB[6])
    a.valu('v_add_f32', RB[0], RB[0], RB[4])
    rbf(RB[0], RB[0])
    a.valu('v_add_f32', RB[0], RB[0], RB[24])
    a.dpp('v_mov_b32', RB[1], RB[0], ctrl='quad_perm:[1,0,3,2]')
    a.valu('v_cvt_pk_bf16_f32', RB[0], RB[0], RB[1])
    a.valu('v_min_u32', RB[0], -2, RB[0])
    L_hs = a.newlabel('hs')
    a.salu('s_cmp_eq_u32', None, sT3, 0)
    a.branch('s_cbranch_scc1', L_hs)
    a.vstore('buffer_store_dword', RB[0], vT[7], rWS, sT1, WS_H, '')
    a.branch('s_branch', L_b5)
    a.label(L_hs)
    a.vstore('buffer_store_dword', RB[0], vT[7], rWS, sT1, WS_H, STF)
    a.branch('s_branch', L_b5)
    a.label(L_nw0)
    a.salu('s_cmp_lt_u32', None, sW, 4)
    a.branch('s_cbranch_scc1', L_b5)
    a.salu('s_sub_u32', sT3, sW, 4)
    a.salu('s_mul_i32', sT4, sT3, 896)
    a.valu('v_mov_b32', vT[5], BIGOFF)
    a.valu('v_cndmask_b32', vT[7], vT[5], vL16, m56)
    a.valu('v_add_u32', vT[6], sT4, vL16)
    hp = RB[4:8]
    xf = RB[16:24]

    def ldc():
        a.vload('buffer_load_dwordx4', hp, vT[7], rWS, sT4, WS_H, LDF)

    def condc():
        a.valu('v_max3_u32', vT[0], hp[0], hp[1], hp[2])
        a.valu('v_max_u32', vT[0], vT[0], hp[3])
        a.valu('v_cmp_eq_u32', 'vcc', -1, vT[0])
        a.salu('s_cmp_eq_u64', None, 'vcc', 0)

    spin_until(ldc, condc, first_check=False, sleep=0)
    stamp('poll')
    unpack8(xf, hp)
    a.salu('s_mov_b64', 'exec', m56)
    a.ds('ds_write_b128', vT[6], hp, offset=L_HB)
    a.salu('s_mov_b64', 'exec', -1)
    layernorm([(xf, vT[0:4], sX0, sX1)])
    for i in range(4):
        a.valu('v_cvt_pk_bf16_f32', RB[i], xf[2 * i], xf[2 * i + 1])
    a.salu('s_mov_b64', 'exec', m56)
    a.ds('ds_write_b128', vT[6], RB[0:4], offset=L_XN2)
    a.salu('s_mov_b64', 'exec', -1)
    if debug:
        for i in range(4):
            dump(hp[i], 33 + i)
            dump(RB[i], 37 + i)
    a.label(L_b5)
    a.wait_lgkm(0)
    a.barrier()
    stamp('B5')
    L_b6 = a.newlabel('b6')
    a.salu('s_cmp_ge_u32', None, sW, 4)
    a.branch('s_cbranch_scc1', L_b6)
    a.valu('v_and_b32', vT[6], 3, vLane)
    a.valu('v_mul_u32_u24', vT[6], 896, vT[6])
    a.valu('v_lshl_add_u32', vT[6], vG, 4, vT[6])
    for ks in range(14):
        a.ds('ds_read_b128', FA[4 * ks:4 * ks + 4], vT[6], offset=L_XN2 + 64 * ks)
    Z = RB[0:4]
    for ks in range(14):
        a.wait_lgkm(min(13 - ks, 15))
        a.mfma(Z, FA[4 * ks:4 * ks + 4], F1B[4 * ks:4 * ks + 4], 0 if ks == 0 else Z)
    a.salu('s_lshl_b32', sT2, sW, 5)
    a.valu('v_lshlrev_b32', vT[6], 1, vJ)
    a.valu('v_add_u32', vT[6], sT2, vT[6])
    a.salu('s_mov_b32', sT3, -LOG2E)
    for r in range(4):
        rbf(Z[r], Z[r])
    for r in range(4):
        a.valu('v_mul_f32', RB[4 + r], sT3, Z[r])
    for r in range(4):
        a.valu('v_exp_f32', RB[4 + r], RB[4 + r])
    for r in range(4):
        a.valu('v_add_f32', RB[4 + r], 1.0, RB[4 + r])
    for r in range(4):
        a.valu('v_rcp_f32', RB[4 + r], RB[4 + r])
    for r in range(4):
        a.valu('v_mul_f32', Z[r], Z[r], RB[4 + r])
    for r in range(4):
        a.valu('v_cvt_pk_bf16_f32', Z[r], Z[r], Z[r])
        a.ds('ds_write_b16', vT[6], Z[r], offset=L_GB + 128 * r)
    if debug:
        for r in range(4):
            dump(Z[r], 41 + r)
    a.label(L_b6)
    a.wait_lgkm(0)
    a.barrier()
    stamp('B6')
    L_fin = a.newlabel('fin')
    a.salu('s_cmp_ge_u32', None, sW, 7)
    a.branch('s_cbranch_scc1', L_fin)
    a.valu('v_and_b32', vT[6], 3, vLane)
    a.valu('v_lshlrev_b32', vT[6], 7, vT[6])
    a.valu('v_lshl_add_u32', vT[6], vG, 4, vT[6])
    a.ds('ds_read_b128', FA[0:4], vT[6], offset=L_GB)
    a.ds('ds_read_b128', FA[4:8], vT[6], offset=L_GB + 64)
    a.valu('v_mov_b32', vT[4], L_SAME)
    a.ds('ds_read_b32', vT[5], vT[4])
    a.salu('s_mul_i32', sT2, sW, 4 * 7168)
    a.salu('s_lshl_b32', sT3, sF, 8)
    a.salu('s_add_u32', sT2, sT2, sT3)
    a.salu('s_add_u32', sT2, sT2, WS_INBOX)
    a.wait_lgkm(0)
    O2 = [RB[4 * tt:4 * tt + 4] for tt in range(4)]
    for tt in range(4):
        a.mfma(O2[tt], FA[0:4], F2B[(tt * 2) * 4:(tt * 2) * 4 + 4], 0)
    for tt in range(4):
        a.mfma(O2[tt], FA[4:8], F2B[(tt * 2 + 1) * 4:(tt * 2 + 1) * 4 + 4], O2[tt])
    a.valu('v_readfirstlane_b32', sT3, vT[5])
    a.salu('s_mov_b64', 'exec', 0xffff)
    L_slow = a.newlabel('slow')
    L_sd = a.newlabel('sd')
    a.salu('s_cmp_eq_u32', None, sT3, 0)
    a.branch('s_cbranch_scc1', L_slow)
    for flags, lab in (('', None), (STF, L_slow)):
        if lab:
            a.label(lab)
        for tt in range(4):
            for r in range(4):
                a.valu('v_min_u32', O2[tt][r], -2, O2[tt][r])
            a.vstore('buffer_store_dwordx4', O2[tt], vL16, rWS, sT2, 0, flags)
            if tt < 3:
                a.salu('s_add_u32', sT2, sT2, 7168)
        if not lab:
            a.branch('s_branch', L_sd)
    a.label(L_sd)
    a.salu('s_or_b32', sT2, sF, sW)
    a.salu('s_cmp_lg_u32', None, sT2, 0)
    a.branch('s_cbranch_scc1', 'L_endp')
    a.salu('s_mov_b64', 'exec', 1)
    a.valu('v_mov_b32', vT[4], sEp)
    a.valu('v_mov_b32', vT[5], 0)
    a.salu('s_mov_b32', sT2, WS_EPOCH)
    a.vstore('buffer_store_dword', vT[4], vT[5], rWS, sT2, 0, STF)
    a.branch('s_branch', 'L_endp')
    a.label(L_fin)
    a.valu('v_mul_u32_u24', vT[6], 896, vG)
    a.valu('v_lshl_add_u32', vT[6], vJ, 1, vT[6])
    a.salu('s_lshl_b32', sT2, sF, 5)
    a.valu('v_add_u32', vT[6], sT2, vT[6])
    a.ds('ds_read_u16', vT[7], vT[6], offset=L_HB)
    a.salu('s_mul_i32', sT3, sF, 7168)
    a.salu('s_add_u32', sT3, sT3, WS_INBOX)
    a.salu('s_add_u32', sT4, sT3, 4096)
    IB = V(116, 28)

    def ldi():
        for i in range(7):
            a.vload('buffer_load_dwordx4', IB[4 * i:4 * i + 4], vL16, rWS, sT3 if i < 4 else sT4, (i % 4) * 1024, LDF)

    def condi():
        a.valu('v_max3_u32', vT[0], IB[0], IB[1], IB[2])
        for i in range(3, 27, 2):
            a.valu('v_max3_u32', vT[0], vT[0], IB[i], IB[i + 1])
        a.valu('v_max_u32', vT[0], vT[0], IB[27])
        a.valu('v_cmp_eq_u32_e64', S(100, 2), -1, vT[0])
        a.salu('s_cmp_eq_u64', None, S(100, 2), 0)

    spin_until(ldi, condi, first_check=False, sleep=0)
    stamp('inbox')
    for i in range(1, 7):
        for r in range(4):
            a.valu('v_add_f32', IB[r], IB[r], IB[4 * i + r])
    for r in range(4):
        a.valu('v_mov_b32', IB[4 + r], IB[r])
    for r in range(4):
        a.valu('v_permlane16_swap_b32', IB[r], IB[4 + r])
    for r in range(4):
        a.valu('v_add_f32', IB[r], IB[r], IB[4 + r])
    for r in range(4):
        a.valu('v_mov_b32', IB[4 + r], IB[r])
    for r in range(4):
        a.valu('v_permlane32_swap_b32', IB[r], IB[4 + r])
    for r in range(4):
        a.valu('v_add_f32', IB[r], IB[r], IB[4 + r])
    for r in range(1, 4):
        a.valu('v_cmp_eq_u32', 'vcc', r, vG)
        a.valu('v_cndmask_b32', IB[0], IB[0], IB[r], 'vcc')
    rbf(IB[0], IB[0])
    a.wait_lgkm(0)
    a.valu('v_lshlrev_b32', vT[7], 16, vT[7])
    a.valu('v_add_f32', IB[0], IB[0], vT[7])
    a.valu('v_cvt_pk_bf16_f32', IB[0], IB[0], IB[0])
    a.vstore('buffer_store_short', IB[0], vT[6], rOUT, 0, 0)
    a.label('L_endp')
    stamp('end')
    stamp_store()
    a.label('L_end')
    A('  s_endpgm')
    A('.section .rodata,"a"')
    A('.p2align 6')
    A(f'.amdhsa_kernel {KNAME}')
    A('  .amdhsa_next_free_vgpr 256')
    A('  .amdhsa_next_free_sgpr 102')
    A('  .amdhsa_accum_offset 256')
    A('  .amdhsa_group_segment_fixed_size 0')
    A('  .amdhsa_kernarg_size 88')
    A('  .amdhsa_user_sgpr_count 2')
    A('  .amdhsa_user_sgpr_kernarg_segment_ptr 1')
    A('  .amdhsa_system_sgpr_workgroup_id_x 1')
    A('  .amdhsa_float_denorm_mode_32 3')
    A('.end_amdhsa_kernel')
    if prof:
        A('; STAMPS ' + ' '.join(stamp_names))
    return a.text()


if __name__ == '__main__':
    out = [x for x in sys.argv[1:] if not x.startswith('--')]
    path = out[0] if out else os.path.join(os.path.dirname(os.path.abspath(__file__)), '..', 'cdna_kernels', NAME + '.s')
    kw = {}
    for x in sys.argv[1:]:
        if x.startswith('--') and '=' in x:
            k_, v_ = x[2:].split('=')
            kw[k_] = int(v_)
    open(path, 'w').write(build(debug='--debug' in sys.argv, prof='--prof' in sys.argv, **kw))
    print('wrote', path)
```

```python
import os
import sys

sys.path.insert(0, os.path.dirname(os.path.abspath(__file__)))
from asmlib import Asm, V, S

NAME = 'sequential_preLN__mha_block_cached__dense_activation_silu__decode'
KNAME = NAME + '_kernel'

NWG = 256
NF = 28
LOG2E = 1.4426950408889634
CS = LOG2E / 16.0

WS_H = 0
WS_EPOCH = 24576
WS_INBOX = 32768
WS_Q = 0x40000
WS_POOL = 0x60000
WS_MAIL = 0x80000
WS_IN1 = 0x100000
WS_SC = 0x200000
WS_BYTES = 4 << 20
WS_DBG = 4 << 20
DB_INITF = 40

L_XN2 = 0
L_HB = 4096
L_GB = 8192
L_QBF = 8704
L_ML = 9216
L_CNT = 9344
L_FLAG = 9348
L_SVC = 9352
L_ARR = 9356
L_SAME = 9360
L_OP = 9472
L_YP = 17920
L_WQS = L_YP
L_W1 = 34816
L_W2 = L_W1 + 57344
LDS_BYTES = L_W2 + 57344

SPIN_BOUND = 200000
BIGOFF = 0x1000000


def build(debug=False, prof=False, npriv=112, xmap=1, gsleep=0, ldf=0, stf=0, use_c=1, skipq=0, nocomp=0, nowo=0, notail=0, prio=2, smalllds=0, nodma=0, nowq=0, wnt=1, psleep=0, kpol=0, vpol=0, diag=0, fastx=1, rmask=1, nffn=80, rot=0, NPW=6, NPWF=10):
    assert NPW % 2 == 0 and NPWF % 2 == 0 and 4 <= NPW <= NPWF <= 16
    POL = ['nt', '', 'nt sc0', 'nt sc1', 'sc1']
    KP, VP = POL[kpol], POL[vpol]
    WF = 'nt' if wnt else ''
    LDF = ['sc1', 'sc0 sc1'][ldf]
    STF = ['sc1', 'sc0 sc1'][stf]
    a = Asm()
    A = a.raw
    hdr = open(os.path.join(os.path.dirname(os.path.abspath(__file__)), '..', 'cdna_kernels', NAME + '.s.ref')).read().split('\n')
    for ln in hdr:
        if ln.startswith(';') and '@launch' not in ln:
            A(ln)
        elif '@launch' in ln:
            A(f'; @launch grid=({NWG},1,1) block=(512,1,1) lds={LDS_BYTES if not smalllds else 16384}')
        else:
            break
    A('.amdgcn_target "amdgcn-amd-amdhsa--gfx950"')
    A('.text')
    A(f'.globl {KNAME}')
    A('.p2align 8')
    A(f'.type {KNAME},@function')
    A(f'{KNAME}:')

    sID = S(2)
    sF = S(0)
    sGrp = S(3)
    sW, sB, sH, sSP = S(4), S(5), S(6), S(7)
    sT0, sT1, sT2, sT3, sT4, sT5 = S(8), S(9), S(10), S(11), S(12), S(13)
    sNext = S(14)
    sIdx = S(15)
    P = lambda i: S(16 + 2 * i, 2)
    pOUT, pDBG, pWS = S(32, 2), S(34, 2), S(36, 2)
    sM = S(38)
    sMn = S(39)
    rK, rV, rWQ, rWO, rX, rW1, rW2, rOUT, rDBG, rWS = [S(40 + 4 * i, 4) for i in range(10)]
    sPool = S(80, 2)
    sExh = S(82)
    sCur, sN, sP0, sRef = S(28), S(29), S(30), S(31)
    sNP, sScB, sTag0, sTag1, sWgB, sPub = S(16), S(17), S(18), S(19), S(20), S(21)
    sAux0, sAux1, sPh, sCT, sCA, sGotM = S(26), S(27), S(1), S(56), S(57), S(58)
    sCS = S(83)
    mT = [S(84 + 2 * t, 2) for t in range(4)]
    mJ8 = S(92, 2)
    m56 = S(94, 2)
    mG2 = S(96, 2)
    sX0, sX1 = S(98), S(99)
    sXP = S(100, 2)
    sEp = S(32)
    rWSD = rWQ
    LNS = [S(16), S(17), S(18), S(19), S(20), S(21), S(0), S(1)]
    sCnt = S(33)

    vTid = V(0)
    vLane, vJ, vG = V(1), V(2), V(3)
    vKoff, vKoff2, vVoff, vVoff2 = V(4), V(5), V(6), V(7)
    vMask = V(8, 4)
    vWoOff, vWoRem = V(12), V(13)
    vL = V(14)
    vL16 = V(15)
    vT = V(16, 8)
    OD0, OD1 = V(24, 4), V(28, 4)
    KD = V(32, 4)
    PB = V(36, 16)
    QB = V(52, 32)
    KB, VB, KB2, VB2 = V(84, 32), V(116, 32), V(148, 32), V(180, 32)
    XT = V(212, 44)
    WO = V(148, 56)
    vIdx, vOne, vCntA, vChk = XT[0], XT[1], XT[2], XT[3]
    vOw, vOr, vMr, vYw, vAt = XT[4], XT[5], XT[6], XT[7], XT[8]
    vPubOff, vGatOff, vGatML = XT[9], XT[10], XT[11]

    def dump(reg, slot):
        if not debug:
            return
        a.salu('s_lshl_b32', sX0, sID, 3)
        a.salu('s_add_u32', sX0, sX0, sW)
        a.salu('s_lshl_b32', sX0, sX0, 14)
        a.salu('s_add_u32', sX0, sX0, WS_DBG + slot * 256)
        a.valu('v_lshlrev_b32', XT[43], 2, vLane)
        a.vstore('buffer_store_dword', reg, XT[43], rWSD, sX0)

    stamp_names = []
    early = []

    DIAG = {'v_issued': 2, 'q_got': 3, 's_issued': 4, 'v_B3': 5, 'v_gath': 6, 'atom': 7, 'poll': 8, 'B6': 9, 'end': 11, 's_q': 12}

    def diag_put(slot, sreg, invert=False):
        r_ = S(25) if invert else S(24)
        a.salu('s_not_b32' if invert else 's_mov_b32', r_, sreg)
        a.misc(f's_atomic_umax {r_}, {pDBG}, {slot * 4}')

    def stamp(name, late=True):
        if diag and name in DIAG:
            wv = 0 if name[:2] in ('v_', 'q_') else 4 if name[:2] == 's_' else 7
            L_d = a.newlabel('diag')
            a.salu('s_cmp_lg_u32', None, sW, wv)
            a.branch('s_cbranch_scc1', L_d)
            a.misc('s_memrealtime s[22:23]')
            a.wait_lgkm(0)
            diag_put(DIAG[name], S(22))
            if name == 'v_B3':
                diag_put(13, S(22), True)
            if name == 'v_issued':
                a.wait_lgkm(0)
                diag_put(0, S(26), True)
                diag_put(1, S(26))
            a.label(L_d)
            return
        if not prof:
            return
        k = len(stamp_names)
        stamp_names.append(name)
        a.misc('s_memrealtime s[22:23]')
        a.wait_lgkm(0)
        if late:
            a.valu('v_writelane_b32', V(0), S(22), k, rmw=True)
        else:
            a.salu('s_mov_b32', S(24 + len(early)), S(22))
            early.append(k)

    def stamp_val(name, sreg):
        if not prof:
            return
        k = len(stamp_names)
        stamp_names.append(name)
        a.valu('v_writelane_b32', V(0), sreg, k, rmw=True)

    def stamp_flush_early():
        if not prof:
            return
        for i, k in enumerate(early):
            a.valu('v_writelane_b32', V(0), S(24 + i), k, rmw=True)

    def stamp_store():
        if not prof:
            return
        a.salu('s_mov_b64', 'exec', -1)
        a.salu('s_lshl_b32', sX0, sID, 3)
        a.salu('s_add_u32', sX0, sX0, sW)
        a.salu('s_lshl_b32', sX0, sX0, 8)
        a.salu('s_add_u32', sX0, sX0, WS_DBG)
        a.valu('v_lshlrev_b32', V(23), 2, vLane)
        a.vstore('buffer_store_dword', V(0), V(23), rWSD, sX0)

    def srd(r, ptr, nbytes, off=None):
        if off is None:
            a.salu('s_mov_b32', r[0], ptr[0])
            a.salu('s_mov_b32', r[1], ptr[1])
        else:
            a.salu('s_add_u32', r[0], ptr[0], off)
            a.salu('s_addc_u32', r[1], ptr[1], 0)
        a.salu('s_mov_b32', r[2], nbytes)
        a.salu('s_mov_b32', r[3], 0x00020000)

    def wave_red_multi(op, vs, sdsts, quads_equal=False):
        ctrls = ['row_ror:4', 'row_ror:8'] if quads_equal else ['quad_perm:[1,0,3,2]', 'quad_perm:[2,3,0,1]', 'row_half_mirror', 'row_mirror']
        for c in ctrls:
            for v in vs:
                a.dpp(op, v, v, v, ctrl=c)
        for v in vs:
            a.dpp(op, v, v, v, ctrl='row_bcast:15', row_mask=0xa)
        for v in vs:
            a.dpp(op, v, v, v, ctrl='row_bcast:31', row_mask=0xc)
        for v, s_ in zip(vs, sdsts):
            a.valu('v_readlane_b32', s_, v, 63)

    def wave_red(op, v, sdst, quads_equal=False):
        wave_red_multi(op, [v], [sdst], quads_equal)

    def rbf(dst, src):
        a.valu('v_cvt_pk_bf16_f32', dst, src, src)
        a.valu('v_and_b32', dst, 0xffff0000, dst)

    def unpack8(xf, raw):
        for i in range(4):
            a.valu('v_lshlrev_b32', xf[2 * i], 16, raw[i])
            a.valu('v_and_b32', xf[2 * i + 1], 0xffff0000, raw[i])

    def layernorm(rows):
        def each(f):
            for r_ in rows:
                f(*r_)
        each(lambda xf, t, s0, s1: a.valu('v_add_f32', t[0], xf[0], xf[1]))
        each(lambda xf, t, s0, s1: a.valu('v_add_f32', t[1], xf[2], xf[3]))
        each(lambda xf, t, s0, s1: a.valu('v_add_f32', t[2], xf[4], xf[5]))
        each(lambda xf, t, s0, s1: a.valu('v_add_f32', t[3], xf[6], xf[7]))
        each(lambda xf, t, s0, s1: a.valu('v_add_f32', t[0], t[0], t[1]))
        each(lambda xf, t, s0, s1: a.valu('v_add_f32', t[2], t[2], t[3]))
        each(lambda xf, t, s0, s1: a.valu('v_add_f32', t[0], t[0], t[2]))
        wave_red_multi('v_add_f32', [r_[1][0] for r_ in rows], [r_[2] for r_ in rows])
        each(lambda xf, t, s0, s1: a.valu('v_mov_b32', t[0], s0))
        each(lambda xf, t, s0, s1: a.valu('v_mul_f32', t[0], 1.0 / 448.0, t[0]))
        each(lambda xf, t, s0, s1: a.valu('v_sub_f32', t[1], xf[0], t[0]))
        each(lambda xf, t, s0, s1: a.valu('v_mul_f32', t[2], t[1], t[1]))
        for i in range(1, 8):
            each(lambda xf, t, s0, s1: a.valu('v_sub_f32', t[1], xf[i], t[0]))
            each(lambda xf, t, s0, s1: a.valu('v_fmac_f32', t[2], t[1], t[1]))
        each(lambda xf, t, s0, s1: a.valu('v_cndmask_b32', t[2], 0, t[2], m56))
        wave_red_multi('v_add_f32', [r_[1][2] for r_ in rows], [r_[3] for r_ in rows])
        each(lambda xf, t, s0, s1: rbf(t[0], t[0]))
        each(lambda xf, t, s0, s1: a.valu('v_mov_b32', t[2], s1))
        each(lambda xf, t, s0, s1: a.valu('v_mul_f32', t[2], 1.0 / 448.0, t[2]))
        each(lambda xf, t, s0, s1: rbf(t[2], t[2]))
        each(lambda xf, t, s0, s1: a.valu('v_add_f32', t[2], 1e-5, t[2]))
        each(lambda xf, t, s0, s1: rbf(t[2], t[2]))
        each(lambda xf, t, s0, s1: a.valu('v_sqrt_f32', t[2], t[2]))
        each(lambda xf, t, s0, s1: rbf(t[2], t[2]))
        each(lambda xf, t, s0, s1: a.valu('v_rcp_f32', t[2], t[2]))
        for i in range(0, 8, 2):
            each(lambda xf, t, s0, s1: a.valu('v_sub_f32', xf[i], xf[i], t[0]))
            each(lambda xf, t, s0, s1: a.valu('v_sub_f32', xf[i + 1], xf[i + 1], t[0]))
            each(lambda xf, t, s0, s1: a.valu('v_cvt_pk_bf16_f32', t[1], xf[i], xf[i + 1]))
            each(lambda xf, t, s0, s1: a.valu('v_lshlrev_b32', xf[i], 16, t[1]))
            each(lambda xf, t, s0, s1: a.valu('v_and_b32', xf[i + 1], 0xffff0000, t[1]))
            each(lambda xf, t, s0, s1: a.valu('v_mul_f32', xf[i], xf[i], t[2]))
            each(lambda xf, t, s0, s1: a.valu('v_mul_f32', xf[i + 1], xf[i + 1], t[2]))

    def spin_until(load_fn, cond_fn, first_check=True, sleep=1):
        done = a.newlabel('done')
        loop = a.newlabel('spin')
        if first_check:
            cond_fn()
            a.branch('s_cbranch_scc1', done)
        a.salu('s_mov_b32', sT5, SPIN_BOUND)
        a.label(loop)
        load_fn()
        a.wait_vm0()
        cond_fn()
        a.branch('s_cbranch_scc1', done)
        if sleep:
            a.misc(f's_sleep {sleep}')
        a.salu('s_sub_u32', sT5, sT5, 1)
        a.salu('s_cmp_lg_u32', None, sT5, 0)
        a.branch('s_cbranch_scc1', loop)
        a.label(done)

    def issue_k(buf, soff):
        for i in range(8):
            o = i * 1024
            a.vload('buffer_load_dwordx4', buf[4 * i:4 * i + 4], vKoff if o < 4096 else vKoff2, rK, soff, o % 4096, KP)

    def issue_v(buf, soff):
        for i in range(8):
            o = i * 1024
            a.vload('buffer_load_dwordx4', buf[4 * i:4 * i + 4], vVoff if o < 4096 else vVoff2, rV, soff, o % 4096, VP)

    def koff(i):
        o = i * 1024
        return (vKoff if o < 4096 else vKoff2), o % 4096

    def voff(i):
        o = i * 1024
        return (vVoff if o < 4096 else vVoff2), o % 4096

    TS = 4 * 8192

    def issue_static_units():
        assert fastx and xmap == 1
        a.salu('s_lshl_b32', sCur, sSP, 7)
        a.salu('s_add_u32', sCur, sCur, sW)
        a.salu('s_sub_u32', sCur, sCur, 4)
        a.salu('s_lshl_b32', sCur, sCur, 13)
        a.salu('s_mov_b32', sT5, sCur)
        issue_k(KB2, sCur)
        a.salu('s_add_u32', sCur, sCur, TS)
        issue_k(VB2, sCur)
        a.salu('s_add_u32', sCur, sCur, TS)
        a.salu('s_mov_b32', sN, 2)
        L_cd = a.newlabel('cd')
        a.salu('s_cmp_lt_u32', None, sF, NF)
        a.branch('s_cbranch_scc1', L_cd)
        a.salu('s_mov_b32', sN, 4)
        a.salu('s_sub_u32', sT4, sW, 4)
        a.salu('s_lshl_b32', sT4, sT4, 14)
        a.salu('s_add_u32', sT4, sT4, L_W1)
        for i in range(16):
            vo, o = koff(i % 8)
            a.salu('s_add_u32', sT0, sT4, i * 1024 - o)
            a.salu('s_mov_b32', 'm0', sT0)
            a.vload_lds(vo, rK, sCur, o, KP)
            if i % 8 == 7:
                a.salu('s_add_u32', sCur, sCur, TS)
        a.label(L_cd)
        issue_k(KB, sCur)
        a.salu('s_add_u32', sT3, sCur, TS)
        issue_k(VB, sT3)

    a.salu('s_cmp_ge_u32', None, sID, NWG)
    a.branch('s_cbranch_scc1', 'L_end')
    if rot:
        a.salu('s_add_u32', sID, sID, rot)
        a.salu('s_and_b32', sID, sID, 255)
    if prof or diag:
        a.misc('s_memrealtime s[84:85]')
    a.misc('s_load_dwordx16 s[16:31], s[0:1], 0')
    a.misc('s_load_dwordx4 s[32:35], s[0:1], 64')
    a.misc('s_load_dwordx2 s[36:37], s[0:1], 80')
    a.valu('v_lshrrev_b32', vT[0], 6, vTid)
    a.valu('v_and_b32', vLane, 63, vTid)
    a.valu('v_readfirstlane_b32', sW, vT[0])
    a.valu('v_and_b32', vJ, 15, vTid)
    a.valu('v_lshrrev_b32', vG, 4, vLane)
    a.valu('v_bfe_u32', vT[1], vLane, 3, 1)
    a.valu('v_and_b32', vT[2], 7, vLane)
    a.valu('v_lshlrev_b32', vT[1], 9, vT[1])
    a.valu('v_lshlrev_b32', vT[2], 4, vT[2])
    a.valu('v_lshl_add_u32', vKoff, vG, 7, vT[1])
    a.valu('v_add_u32', vKoff, vKoff, vT[2])
    a.valu('v_add_u32', vKoff2, 4096, vKoff)
    a.valu('v_lshlrev_b32', vL16, 4, vLane)
    a.valu('v_lshlrev_b32', vVoff, 4, vLane)
    a.valu('v_add_u32', vVoff2, 4096, vVoff)
    if xmap == 1:
        a.salu('s_lshr_b32', sT0, sID, 3)
        a.salu('s_and_b32', sT2, sT0, 7)
        a.salu('s_mul_i32', sT1, sT2, 11)
        a.salu('s_lshr_b32', sT1, sT1, 5)
        a.salu('s_mul_i32', sT1, sT1, 3)
        a.salu('s_sub_u32', sT1, sT2, sT1)
        a.salu('s_add_u32', sT1, sT1, 1)
        a.salu('s_bfe_u32', sSP, sID, (2 << 16) | 1)
        a.salu('s_and_b32', sT3, sSP, sT1)
        a.salu('s_bcnt1_i32_b32', sT3, sT3)
        a.salu('s_xor_b32', sT3, sT3, sID)
        a.salu('s_and_b32', sT3, sT3, 1)
        a.salu('s_lshl_b32', sGrp, sT0, 1)
        a.salu('s_add_u32', sGrp, sGrp, sT3)
    else:
        a.salu('s_lshr_b32', sGrp, sID, 2)
        a.salu('s_and_b32', sSP, sID, 3)
    a.salu('s_lshr_b32', sB, sGrp, 4)
    a.salu('s_and_b32', sH, sGrp, 15)
    a.salu('s_lshl_b32', sT1, sGrp, 22)
    a.salu('s_lshr_b32', sT5, sID, 3)
    if fastx:
        a.salu('s_and_b32', sT4, sID, 7)
    else:
        a.salu('s_lshl_b32', sT4, sT5, 1)
        a.salu('s_xor_b32', sT4, sT4, sID)
        a.salu('s_and_b32', sT4, sT4, 7)
    a.salu('s_cmp_eq_u32', None, sT4, 0)
    a.salu('s_cselect_b32', sT5, sT5, 255)
    a.valu('v_mov_b32', vT[2], 0)
    a.valu('v_mov_b32', vT[3], 0)
    a.valu('v_mov_b32', vCntA, L_CNT)
    a.valu('v_mov_b32', vT[4], 0)
    a.valu('v_mov_b32', vT[5], 0)
    a.ds('ds_write_b128', vCntA, vT[2:6])
    a.wait_lgkm(0)
    a.salu('s_mov_b32', sF, sT5)
    if diag:
        a.salu('s_mov_b32', S(26), S(84))
    a.barrier()
    if prof:
        stamp_names.append('entry')
        a.valu('v_writelane_b32', V(0), S(84), 0, rmw=True)

    def xcc_word(dst, n):
        a.misc(f's_getreg_b32 {sX0}, hwreg(HW_REG_XCC_ID)')
        a.salu('s_and_b32', sX0, sX0, 15)
        a.salu('s_mul_i32', sX1, sX0, sX0)
        a.salu('s_lshl_b32', sX0, sX0, 8)
        a.salu('s_lshl_b32', sX1, sX1, 18)
        a.salu('s_or_b32', dst, sX0, sX1)
        a.salu('s_or_b32', dst, dst, 1)
        if n != 1:
            a.salu('s_mul_i32', dst, dst, n)

    def common_setup():
        srd(rWS, pWS, WS_BYTES)
        srd(rOUT, pOUT, 4 * 896)
        srd(rDBG, pDBG, 256)
        a.salu('s_mov_b32', sXP[0], P(0)[0])
        a.salu('s_mov_b32', sXP[1], P(0)[1])
        if prof:
            a.salu('s_mov_b32', sCnt, 0)
        a.valu('v_cmp_gt_u32_e64', mJ8, 8, vJ)
        a.valu('v_cmp_gt_u32_e64', m56, 56, vLane)
        a.valu('v_cmp_gt_u32_e64', mG2, 2, vG)
        a.valu('v_and_b32', vT[2], 1, vJ)
        a.valu('v_lshlrev_b32', vT[2], 4, vT[2])
        a.valu('v_mov_b32', vT[3], 0xffff)
        a.valu('v_lshlrev_b32', vT[3], vT[2], vT[3])
        a.valu('v_bfe_u32', vT[2], vJ, 1, 2)
        for r in range(4):
            a.valu('v_cmp_eq_u32', 'vcc', r, vT[2])
            a.valu('v_cndmask_b32', vMask[r], 0, vT[3], 'vcc')
        a.valu('v_mov_b32', vOne, 1)
        a.salu('s_mov_b32', sCS, CS)
        a.valu('v_lshrrev_b32', vAt, 5, vLane)
        a.valu('v_lshlrev_b32', vAt, 15, vAt)
        a.valu('v_bfe_u32', vT[6], vLane, 1, 1)
        a.valu('v_lshl_add_u32', vAt, vT[6], 14, vAt)
        a.valu('v_and_b32', vT[6], 1, vLane)
        a.valu('v_lshl_add_u32', vAt, vT[6], 5, vAt)
        a.valu('v_bfe_u32', vT[7], vLane, 2, 3)
        a.valu('v_lshl_add_u32', vAt, vT[7], 2, vAt)

    L_stream = 'L_stream'
    L_b3 = 'L_b3'
    a.salu('s_cmp_ge_u32', None, sW, 4)
    a.branch('s_cbranch_scc1', L_stream)

    L_svc = a.newlabel('svc')
    L_svc2 = a.newlabel('svc2')
    if notail == 1:
        a.branch('s_branch', 'L_end')
    a.misc('s_setprio 3')
    a.salu('s_mul_i32', sT2, sW, 896)
    srd(rX, P(0), 896, sT2)
    srd(rWQ, P(3), 448 * 8192 if not nowq else 0)
    XR = KB[0:4]
    vEp = XT[12]
    a.vload('buffer_load_dwordx4', XR, vL16, rX)
    a.valu('v_lshrrev_b32', vT[1], 1, vLane)
    a.valu('v_lshlrev_b32', vT[1], 13, vT[1])
    a.valu('v_and_b32', vT[2], 1, vLane)
    a.valu('v_lshl_add_u32', vT[1], vT[2], 4, vT[1])
    a.salu('s_lshl_b32', sT2, sSP, 2)
    a.salu('s_add_u32', sT2, sT2, sB)
    a.salu('s_lshl_b32', sT2, sT2, 5)
    a.salu('s_lshl_b32', sT3, sH, 9)
    a.salu('s_add_u32', sT2, sT2, sT3)
    a.salu('s_lshl_b32', sT3, sW, 18)
    a.salu('s_add_u32', sT2, sT2, sT3)
    a.salu('s_lshl_b32', sT3, sW, 10)
    a.salu('s_add_u32', sT3, sT3, L_WQS)
    for i in range(4):
        a.salu('s_mov_b32', 'm0', sT3)
        a.vload_lds(vT[1], rWQ, sT2, 0, WF)
        if i < 3:
            a.salu('s_add_u32', sT2, sT2, 4 * 32 * 8192)
            a.salu('s_add_u32', sT3, sT3, 4096)
    srd(rWS, pWS, WS_BYTES)
    a.salu('s_lshl_b32', sT2, sW, 24)
    a.valu('v_mov_b32', vT[2], sT2)
    a.salu('s_mov_b32', sT2, WS_EPOCH)
    a.vload('buffer_load_dword', vEp, vT[2], rWS, sT2, 0, LDF)
    MK = VB[0:4]
    ZR = VB[4:8]
    for i in range(4):
        a.valu('v_mov_b32', MK[i], -1)
        a.valu('v_mov_b32', ZR[i], 0)
    a.salu('s_lshl_b32', sT2, sGrp, 2)
    a.salu('s_add_u32', sT2, sT2, sSP)
    a.salu('s_lshl_b32', sT2, sT2, 2)
    a.salu('s_add_u32', sT2, sT2, sW)
    a.salu('s_lshl_b32', sT2, sT2, 9)
    a.salu('s_add_u32', sT2, sT2, WS_MAIL)
    a.valu('v_lshrrev_b32', vT[1], 5, vLane)
    a.valu('v_lshl_add_u32', vT[1], vT[1], 24, vL16)
    a.vstore('buffer_store_dwordx4', MK, vT[1], rWS, sT2, 0, STF)
    a.salu('s_lshl_b32', sT2, sGrp, 8)
    a.salu('s_add_u32', sT2, sT2, WS_POOL)
    a.salu('s_xor_b32', sT3, sW, 1)
    a.salu('s_add_u32', sT3, sT3, sSP)
    a.valu('v_lshrrev_b32', vT[1], 1, vLane)
    a.valu('v_add_u32', vT[1], sT3, vT[1])
    a.valu('v_lshlrev_b32', vT[1], 24, vT[1])
    a.valu('v_lshl_add_u32', vT[1], vLane, 7, vT[1])
    a.vstore('buffer_store_dword', ZR[0], vT[1], rWS, sT2, 0, STF)
    a.salu('s_lshl_b32', sT2, sGrp, 2)
    a.salu('s_add_u32', sT2, sT2, sSP)
    a.salu('s_lshl_b32', sT2, sT2, 13)
    a.salu('s_lshl_b32', sT3, sW, 10)
    a.salu('s_add_u32', sT2, sT2, sT3)
    a.salu('s_add_u32', sT2, sT2, WS_SC + 4096)
    a.vstore('buffer_store_dwordx4', MK, vL16, rWS, sT2, 0, STF)
    n_after_x = 8
    srd(rWO, P(4), 4096 * 896 if not nowo else 0)
    srd(rW1, P(6), 448 * 3584 if not nodma else 0)
    srd(rW2, P(7), 448 * 3584 if not nodma else 0)
    common_setup()
    stamp('v_issued')
    XF = KB2[0:8]
    a.misc(f's_waitcnt vmcnt({n_after_x})')
    stamp('v_x')
    unpack8(XF, XR)
    layernorm([(XF, vT[0:4], sX0, sX1)])
    for i in range(4):
        a.valu('v_cvt_pk_bf16_f32', XR[i], XF[2 * i], XF[2 * i + 1])
    a.salu('s_mul_i32', sT2, sW, 896)
    a.valu('v_add_u32', vT[0], sT2, vL16)
    a.salu('s_mov_b64', 'exec', m56)
    a.ds('ds_write_b128', vT[0], XR, offset=L_XN2)
    a.salu('s_mov_b64', 'exec', 1)
    a.misc('s_waitcnt vmcnt(0) lgkmcnt(0)')
    a.misc(f'ds_add_u32 {vCntA}, {vOne} offset:8')
    a.salu('s_mov_b64', 'exec', -1)
    stamp('v_ln')
    a.salu('s_cmp_lg_u32', None, sW, 0)
    a.branch('s_cbranch_scc1', L_svc)
    QA = V(148, 56)
    QF = V(84, 56)
    a.valu('v_and_b32', vT[6], 3, vLane)
    a.valu('v_mul_u32_u24', vT[6], 896, vT[6])
    a.valu('v_lshl_add_u32', vT[6], vG, 4, vT[6])
    a.valu('v_bfe_u32', vT[4], vLane, 2, 2)
    a.valu('v_lshl_add_u32', vT[4], vG, 3, vT[4])
    a.valu('v_lshlrev_b32', vT[4], 5, vT[4])
    a.valu('v_and_b32', vT[5], 3, vLane)
    a.valu('v_lshl_add_u32', vT[4], vT[5], 3, vT[4])
    L_sw = a.newlabel('sw')
    L_sok = a.newlabel('sok')
    a.salu('s_mov_b32', sT5, SPIN_BOUND * 8)
    a.label(L_sw)
    a.ds('ds_read_b32', vT[0], vCntA, offset=8)
    a.wait_lgkm(0)
    a.valu('v_readfirstlane_b32', sT2, vT[0])
    a.salu('s_cmp_ge_u32', None, sT2, 4)
    a.branch('s_cbranch_scc1', L_sok)
    a.salu('s_sub_u32', sT5, sT5, 1)
    a.salu('s_cmp_lg_u32', None, sT5, 0)
    a.branch('s_cbranch_scc1', L_sw)
    a.label(L_sok)
    stamp('q_wq')
    for ks in range(14):
        a.ds('ds_read_b128', QA[4 * ks:4 * ks + 4], vT[6], offset=L_XN2 + 64 * ks)
    for ks in range(14):
        for qq in range(2):
            a.ds('ds_read_b64_tr_b16', QF[ks * 4 + 2 * qq:ks * 4 + 2 * qq + 2], vT[4], offset=L_WQS + (32 * ks + 4 * qq) * 32)
    a.valu('v_add_u32', vEp, 1, vEp)
    for ks in range(14):
        a.wait_lgkm(min(2 * (13 - ks), 15))
        a.mfma(KD, QA[4 * ks:4 * ks + 4], QF[4 * ks:4 * ks + 4], 0 if ks == 0 else KD)
    a.valu('v_lshlrev_b32', vT[4], 10, vG)
    a.valu('v_lshl_add_u32', vT[4], vJ, 2, vT[4])
    a.valu('v_and_b32', vT[5], 1, vJ)
    a.valu('v_lshl_add_u32', vT[4], vT[5], 24, vT[4])
    a.salu('s_lshl_b32', sT2, sSP, 2)
    a.salu('s_add_u32', sT2, sT2, sB)
    a.salu('s_lshl_b32', sT2, sT2, 6)
    a.salu('s_lshl_b32', sT3, sH, 12)
    a.salu('s_add_u32', sT2, sT2, sT3)
    a.salu('s_add_u32', sT2, sT2, WS_Q)
    for r in range(1, 4):
        a.valu('v_cmp_eq_u32', 'vcc', r, vG)
        a.valu('v_cndmask_b32', KD[0], KD[0], KD[r], 'vcc')
    a.dpp('v_mov_b32', KD[1], KD[0], ctrl='quad_perm:[1,0,3,2]')
    a.valu('v_cvt_pk_bf16_f32', PB[0], KD[0], KD[1])
    a.valu('v_mov_b32', PB[1], vEp)
    a.vstore('buffer_store_dwordx2', PB[0:2], vT[4], rWS, sT2, 0, STF)
    a.salu('s_lshl_b32', sT4, sB, 10)
    a.salu('s_add_u32', sT4, sT4, sT3)
    a.salu('s_add_u32', sT4, sT4, WS_Q)
    a.valu('v_readfirstlane_b32', sEp, vEp)
    QG = PB[4:8]

    def ldq():
        a.vload('buffer_load_dwordx4', QG, vL16, rWS, sT4, 0, LDF)

    def condq():
        a.valu('v_cmp_ne_u32_e64', S(10, 2), sEp, QG[1])
        a.valu('v_cmp_ne_u32', 'vcc', sEp, QG[3])
        a.salu('s_or_b64', S(10, 2), S(10, 2), 'vcc')
        a.salu('s_cmp_eq_u64', None, S(10, 2), 0)

    spin_until(ldq, condq, first_check=False, sleep=0)
    a.valu('v_mov_b32', QG[1], QG[2])
    a.valu('v_lshlrev_b32', vT[4], 3, vLane)
    a.ds('ds_write_b64', vT[4], QG[0:2], offset=L_QBF)
    a.wait_lgkm(0)
    a.ds('ds_write_b32', vCntA, vOne, offset=4)
    stamp('q_got')
    a.branch('s_branch', L_svc2)
    a.label(L_svc)
    L_nodma = a.newlabel('nodma')
    a.salu('s_cmp_ge_u32', None, sF, NF)
    a.branch('s_cbranch_scc1', L_nodma)
    a.salu('s_sub_u32', sT2, sW, 1)
    L_ini = a.newlabel('ini')
    a.label(L_ini)
    a.salu('s_lshl_b32', sT3, sT2, 10)
    a.salu('s_lshl_b32', sT4, sF, 14)
    a.salu('s_add_u32', sT4, sT4, WS_IN1)
    a.salu('s_mul_i32', sT5, sF, 7168)
    a.salu('s_add_u32', sT5, sT5, WS_INBOX - 16384)
    a.salu('s_cmp_lt_u32', None, sT2, 16)
    a.salu('s_cselect_b32', sT4, sT4, sT5)
    a.salu('s_add_u32', sT4, sT4, sT3)
    a.vstore('buffer_store_dwordx4', MK, vL16, rWS, sT4, 0, STF)
    a.salu('s_add_u32', sT2, sT2, 3)
    a.salu('s_cmp_lt_u32', None, sT2, 23)
    a.branch('s_cbranch_scc1', L_ini)
    a.valu('v_mul_u32_u24', vT[1], 896, vG)
    a.valu('v_lshl_add_u32', vT[1], vJ, 2, vT[1])
    a.valu('v_lshrrev_b32', vT[2], 3, vJ)
    a.valu('v_lshl_add_u32', vT[1], vT[2], 24, vT[1])
    a.salu('s_lshl_b32', sT4, sF, 5)
    a.vstore('buffer_store_dword', MK[0], vT[1], rWS, sT4, WS_H, STF)
    a.salu('s_mov_b64', 'exec', 1)
    a.wait_vm0()
    a.misc(f'ds_add_rtn_u32 {vIdx}, {vCntA}, {vOne} offset:12')
    a.wait_lgkm(0)
    a.salu('s_mov_b64', 'exec', -1)
    a.valu('v_readfirstlane_b32', sT2, vIdx)
    L_nosig = a.newlabel('nosig')
    a.salu('s_cmp_lg_u32', None, sT2, 2)
    a.branch('s_cbranch_scc1', L_nosig)
    xcc_word(sT0, 1)
    a.misc(f's_atomic_add {sT0}, {pDBG}, {DB_INITF}')
    a.label(L_nosig)
    a.valu('v_lshrrev_b32', vT[6], 3, vLane)
    a.valu('v_mul_u32_u24', vT[6], 3584, vT[6])
    a.valu('v_and_b32', vT[7], 7, vLane)
    a.valu('v_lshl_add_u32', vT[6], vT[7], 4, vT[6])
    a.salu('s_sub_u32', sT2, sW, 1)
    L_dma = a.newlabel('dma')
    a.label(L_dma)
    a.salu('s_lshl_b32', sT3, sT2, 10)
    a.salu('s_mul_i32', sT4, sT2, 8 * 3584)
    a.salu('s_lshl_b32', sT5, sF, 7)
    a.salu('s_add_u32', sT4, sT4, sT5)
    a.salu('s_mul_i32', sT5, sF, 57344)
    a.salu('s_add_u32', sT5, sT5, sT3)
    a.salu('s_add_u32', sT0, sT3, L_W1)
    a.salu('s_mov_b32', 'm0', sT0)
    a.vload_lds(vT[6], rW1, sT4, 0, WF)
    a.salu('s_add_u32', sT0, sT3, L_W2)
    a.salu('s_mov_b32', 'm0', sT0)
    a.vload_lds(vL16, rW2, sT5, 0, WF)
    a.salu('s_add_u32', sT2, sT2, 3)
    a.salu('s_cmp_lt_u32', None, sT2, 56)
    a.branch('s_cbranch_scc1', L_dma)
    a.label(L_nodma)
    a.label(L_svc2)
    if debug or prof:
        srd(rWSD, pWS, (4 << 20) + (64 << 20))
    a.valu('v_mul_u32_u24', vWoOff, 896, vG)
    a.valu('v_lshl_add_u32', vWoOff, vJ, 4, vWoOff)
    a.valu('v_and_b32', vT[2], 7, vJ)
    a.valu('v_lshlrev_b32', vT[3], 4, vT[2])
    a.valu('v_lshrrev_b32', vT[4], 3, vJ)
    a.valu('v_mul_u32_u24', vT[5], 4 * 896, vT[4])
    a.valu('v_mul_u32_u24', vWoRem, 896, vG)
    a.valu('v_add3_u32', vWoRem, vWoRem, vT[3], vT[5])
    a.valu('v_add_u32', vWoRem, 768, vWoRem)
    a.salu('s_lshl_b32', sT2, sH, 8)
    a.salu('s_lshl_b32', sT3, sSP, 6)
    a.salu('s_add_u32', sT2, sT2, sT3)
    a.salu('s_lshl_b32', sT3, sW, 4)
    a.salu('s_add_u32', sT2, sT2, sT3)
    a.salu('s_mul_i32', sT2, sT2, 896)
    for Gp in range(4):
        for s_ in range(3):
            a.vload('buffer_load_dwordx4', WO[(Gp * 3 + s_) * 4:(Gp * 3 + s_) * 4 + 4], vWoOff, rWO, sT2, 256 * s_, WF)
        if Gp % 2 == 0:
            a.vload('buffer_load_dwordx4', WO[48 + 2 * Gp:52 + 2 * Gp], vWoRem, rWO, sT2, 0, WF)
        if Gp < 3:
            a.salu('s_add_u32', sT2, sT2, 4 * 896)
    a.valu('v_lshl_add_u32', vT[5], vT[4], 2, vG)
    a.valu('v_lshlrev_b32', vT[5], 7, vT[5])
    a.valu('v_lshl_add_u32', vYw, vT[2], 4, vT[5])
    a.salu('s_lshl_b32', sT2, sW, 11)
    a.valu('v_add_u32', vYw, sT2, vYw)
    a.valu('v_and_b32', vT[6], 3, vJ)
    a.valu('v_lshrrev_b32', vT[7], 2, vJ)
    a.valu('v_mul_u32_u24', vOr, 1040, vT[6])
    a.valu('v_lshl_add_u32', vOr, vG, 6, vOr)
    a.valu('v_lshl_add_u32', vOr, vT[7], 4, vOr)
    a.salu('s_lshl_b32', sT2, sW, 8)
    a.valu('v_add_u32', vOr, sT2, vOr)
    a.valu('v_lshlrev_b32', vMr, 3, vT[6])
    a.valu('v_lshrrev_b32', vT[2], 1, vG)
    a.valu('v_lshlrev_b32', vPubOff, 5, vT[2])
    a.valu('v_lshl_add_u32', vPubOff, vT[6], 3, vPubOff)
    a.valu('v_and_b32', vT[2], 1, vT[7])
    a.valu('v_lshl_add_u32', vPubOff, vT[2], 2, vPubOff)
    a.valu('v_and_b32', vT[2], 1, vG)
    a.valu('v_lshl_add_u32', vPubOff, vT[2], 1, vPubOff)
    a.valu('v_lshrrev_b32', vT[2], 1, vT[7])
    a.valu('v_add_u32', vPubOff, vPubOff, vT[2])
    a.valu('v_lshlrev_b32', vPubOff, 2, vPubOff)
    a.salu('s_lshl_b32', sT2, sSP, 9)
    a.valu('v_lshlrev_b32', vGatML, 11, vT[6])
    a.valu('v_add_u32', vGatML, sT2, vGatML)
    a.salu('s_lshl_b32', sT3, sW, 6)
    a.valu('v_lshl_add_u32', vT[2], vT[7], 2, vG)
    a.valu('v_lshl_add_u32', vGatOff, vT[2], 2, vGatML)
    a.valu('v_add_u32', vGatOff, sT3, vGatOff)
    a.valu('v_lshlrev_b32', vOw, 24, vLane)

    def ldfi():
        a.valu('v_mov_b32', vT[7], 0)
        a.vload('buffer_load_dword', vChk, vT[7], rDBG, 0, DB_INITF, LDF)

    def condf():
        a.valu('v_readfirstlane_b32', sT2, vChk)
        a.salu('s_and_b32', sT3, sT2, 255)
        a.salu('s_cmp_ge_u32', None, sT3, NF)

    L_nochk = a.newlabel('nochk')
    a.salu('s_cmp_lg_u32', None, sW, 1)
    a.branch('s_cbranch_scc1', L_nochk)
    L_mw = a.newlabel('mw')
    L_mok = a.newlabel('mok')
    a.salu('s_mov_b32', sT5, SPIN_BOUND)
    a.label(L_mw)
    a.ds('ds_read_b32', vT[0], vCntA)
    a.wait_lgkm(0)
    a.valu('v_readfirstlane_b32', sT2, vT[0])
    a.salu('s_cmp_ge_u32', None, sT2, 4)
    a.branch('s_cbranch_scc1', L_mok)
    a.misc('s_sleep 64')
    a.salu('s_sub_u32', sT5, sT5, 1)
    a.salu('s_cmp_lg_u32', None, sT5, 0)
    a.branch('s_cbranch_scc1', L_mw)
    a.label(L_mok)
    spin_until(ldfi, condf, first_check=False, sleep=64)
    xcc_word(sT3, NF)
    a.salu('s_cmp_eq_u32', None, sT2, sT3)
    a.salu('s_cselect_b32', sT2, fastx, 0)
    a.valu('v_mov_b32', vT[7], sT2)
    a.ds('ds_write_b32', vCntA, vT[7], offset=16)
    a.label(L_nochk)
    a.misc('s_waitcnt vmcnt(0) lgkmcnt(0)')
    a.salu('s_lshl_b32', sT4, sGrp, 13)
    a.salu('s_add_u32', sT4, sT4, WS_MAIL)
    a.salu('s_lshl_b32', sT2, sSP, 2)
    a.salu('s_add_u32', sT2, sT2, sW)
    a.salu('s_lshl_b32', sT2, sT2, 9)
    a.salu('s_add_u32', sT3, sT4, sT2)
    stamp('v_ready')
    if notail == 2:
        a.branch('s_branch', 'L_end')
    a.barrier()
    stamp('v_B3')
    ov = PB[0:4]
    ml = PB[4:6]
    a.ds('ds_read_b64', ml, vMr, offset=L_ML)
    a.ds('ds_read_b128', ov, vOr, offset=L_OP)
    a.valu('v_and_b32', vT[5], 3, vJ)
    a.wait_lgkm(1)
    red4 = ('quad_perm:[1,0,3,2]', 'quad_perm:[2,3,0,1]')
    a.valu('v_mov_b32', vT[0], ml[0])
    for c in red4:
        a.dpp('v_max_f32', vT[0], vT[0], vT[0], ctrl=c)
    a.valu('v_sub_f32', vT[2], ml[0], vT[0])
    a.valu('v_mul_f32', vT[2], sCS, vT[2])
    a.valu('v_exp_f32', vT[2], vT[2])
    a.wait_lgkm(0)
    a.valu('v_mul_f32', vT[1], ml[1], vT[2])
    for r in range(4):
        a.valu('v_mul_f32', ov[r], ov[r], vT[2])
    for c in red4:
        for r in range(4):
            a.dpp('v_add_f32', ov[r], ov[r], ov[r], ctrl=c)
        a.dpp('v_add_f32', vT[1], vT[1], vT[1], ctrl=c)
    for r in range(1, 4):
        a.valu('v_cmp_eq_u32', 'vcc', r, vT[5])
        a.valu('v_cndmask_b32', ov[0], ov[0], ov[r], 'vcc')
    a.valu('v_min_u32', ov[0], -2, ov[0])
    a.vstore('buffer_store_dword', ov[0], vPubOff, rWS, sT3, 0, STF)
    a.valu('v_min_u32', vT[0], -2, vT[0])
    a.valu('v_min_u32', vT[1], -2, vT[1])
    a.vstore('buffer_store_dwordx2', vT[0:2], vOw, rWS, sT3, 256, STF)
    stamp('v_pub')
    gv = PB[8]
    gml = PB[10:12]

    def ldg():
        a.vload('buffer_load_dword', gv, vGatOff, rWS, sT4, 0, LDF)
        a.vload('buffer_load_dwordx2', gml, vGatML, rWS, sT4, 256, LDF)

    def condg():
        a.valu('v_max3_u32', vT[2], gv, gml[0], gml[1])
        a.valu('v_cmp_eq_u32_e64', S(10, 2), -1, vT[2])
        a.salu('s_cmp_eq_u64', None, S(10, 2), 0)

    spin_until(ldg, condg, first_check=False, sleep=gsleep)
    stamp('v_gath')
    a.valu('v_mov_b32', vT[0], gml[0])
    for c in red4:
        a.dpp('v_max_f32', vT[0], vT[0], vT[0], ctrl=c)
    a.valu('v_sub_f32', vT[1], gml[0], vT[0])
    a.valu('v_mul_f32', vT[1], sCS, vT[1])
    a.valu('v_exp_f32', vT[1], vT[1])
    a.valu('v_mul_f32', gv, gv, vT[1])
    a.valu('v_mul_f32', gml[1], gml[1], vT[1])
    for c in red4:
        a.dpp('v_add_f32', gv, gv, gv, ctrl=c)
        a.dpp('v_add_f32', gml[1], gml[1], gml[1], ctrl=c)
    a.valu('v_rcp_f32', gml[1], gml[1])
    a.valu('v_mul_f32', gv, gv, gml[1])
    a.valu('v_cvt_pk_bf16_f32', gv, gv, gv)
    dump(gv, 18)
    Y = [KB[0:4], KB[4:8], KB[8:12], KB[12:16], KB[16:20]]
    BT = [QB[4 * Gp:4 * Gp + 4] for Gp in range(4)]
    for Gp in range(4):
        for r in range(4):
            a.dpp('v_and_b32', BT[Gp][r], gv, vMask[r], ctrl=f'row_newbcast:{4 * Gp}')
        for s_ in range(3):
            a.mfma(Y[s_], WO[(Gp * 3 + s_) * 4:(Gp * 3 + s_) * 4 + 4], BT[Gp], 0 if Gp == 0 else Y[s_])
        a.mfma(Y[3 + Gp % 2], WO[48 + 4 * (Gp // 2):52 + 4 * (Gp // 2)], BT[Gp], 0 if Gp < 2 else Y[3 + Gp % 2])
    for r in range(4):
        a.valu('v_cndmask_b32', Y[0][r], Y[1][r], Y[0][r], mJ8)
    a.ds('ds_write_b128', vYw, Y[0], offset=L_YP)
    for r in range(4):
        a.valu('v_cndmask_b32', Y[3][r], Y[4][r], Y[3][r], mG2)
        a.valu('v_cndmask_b32', Y[2][r], Y[3][r], Y[2][r], mJ8)
    a.ds('ds_write_b128', vYw, Y[2], offset=L_YP + 1024)
    a.branch('s_branch', 'L_b4')

    a.label(L_stream)
    a.misc(f's_setprio {prio}')
    srd(rK, P(1), 4 << 20, sT1)
    srd(rV, P(2), 4 << 20, sT1)
    issue_static_units()
    common_setup()
    if debug or prof:
        srd(rWSD, pWS, (4 << 20) + (64 << 20))
    a.salu('s_lshl_b32', sT2, sGrp, 8)
    a.salu('s_add_u32', sT2, sT2, WS_POOL)
    a.salu('s_add_u32', sPool[0], pWS[0], sT2)
    a.salu('s_addc_u32', sPool[1], pWS[1], 0)
    a.valu('v_lshrrev_b32', vT[2], 2, vJ)
    a.valu('v_xor_b32', vT[2], vT[2], vG)
    a.valu('v_and_b32', vT[2], 1, vT[2])
    a.valu('v_cmp_eq_u32_e64', mT[0], 0, vT[2])
    a.valu('v_lshrrev_b32', vT[2], 3, vJ)
    a.valu('v_xor_b32', vT[2], vT[2], vG)
    a.valu('v_and_b32', vT[2], 1, vT[2])
    a.valu('v_cmp_eq_u32_e64', mT[1], 0, vT[2])
    for r in range(4):
        a.valu('v_cndmask_b32', vMask[r], 0, vMask[r], mT[1])
    for r in range(4):
        a.valu('v_mov_b32', OD0[r], 0)
    a.valu('v_mov_b32', vL, 0)
    a.salu('s_mov_b32', sM, -3.0e38)
    a.salu('s_mov_b32', sExh, 0)
    a.valu('v_lshrrev_b32', vT[4], 3, vJ)
    a.valu('v_lshl_add_u32', vT[5], vT[4], 2, vG)
    a.valu('v_lshlrev_b32', vT[5], 7, vT[5])
    a.valu('v_and_b32', vT[6], 3, vJ)
    a.valu('v_lshl_add_u32', vOw, vT[6], 5, vT[5])
    a.valu('v_bfe_u32', vT[7], vJ, 2, 1)
    a.valu('v_lshl_add_u32', vOw, vT[7], 4, vOw)
    a.salu('s_sub_u32', sT2, sW, 4)
    a.salu('s_mul_i32', sT3, sT2, 1040)
    a.valu('v_add_u32', vOw, sT3, vOw)
    a.salu('s_lshl_b32', sT2, sT2, 3)
    a.valu('v_mov_b32', vMr, sT2)
    a.valu('v_and_b32', vT[1], 7, vJ)
    a.valu('v_lshl_add_u32', vT[1], vG, 3, vT[1])
    a.valu('v_lshlrev_b32', vT[1], 4, vT[1])
    vScG, vScB, vScA, vMax = XT[13], XT[14], XT[15], XT[16]
    SR = [XT[17], XT[18]]
    vScGr, vScBr, vP = XT[19], XT[20], XT[21]
    a.salu('s_mov_b32', sWgB, sT5)
    a.valu('v_and_b32', vScG, 1, vG)
    a.valu('v_lshlrev_b32', vScG, 3, vScG)
    a.valu('v_bfe_u32', vT[2], vJ, 2, 1)
    a.valu('v_lshl_add_u32', vScG, vT[2], 2, vScG)
    a.valu('v_lshrrev_b32', vT[2], 3, vJ)
    a.valu('v_lshl_add_u32', vScG, vT[2], 1, vScG)
    a.valu('v_lshrrev_b32', vT[2], 1, vG)
    a.valu('v_add_u32', vScG, vScG, vT[2])
    a.valu('v_lshlrev_b32', vScG, 2, vScG)
    a.valu('v_and_b32', vScGr, 14, vJ)
    a.valu('v_add_u32', vScGr, vScGr, vT[2])
    a.valu('v_lshlrev_b32', vScGr, 2, vScGr)
    a.salu('s_sub_u32', sT2, sW, 4)
    a.salu('s_lshl_b32', sT2, sT2, 11)
    a.salu('s_add_u32', sT2, sT2, L_YP)
    a.valu('v_add_u32', vScB, sT2, vScG)
    a.valu('v_add_u32', vScBr, sT2, vScGr)
    a.valu('v_mov_b32', vMax, -3.0e38)
    a.salu('s_lshl_b32', sScB, sGrp, 15)
    a.salu('s_add_u32', sScB, sScB, WS_SC)
    a.salu('s_cmp_lt_u32', None, sF, NF)
    a.salu('s_cselect_b32', sNP, 32 - NPWF, 32 - NPW)
    a.salu('s_mov_b32', sTag0, 0)
    a.salu('s_mov_b32', sTag1, 0)
    a.salu('s_lshl_b32', sAux0, sN, 6)
    a.salu('s_add_u32', sAux1, sAux0, 64)
    a.salu('s_add_u32', sN, sN, 2)
    a.salu('s_mov_b32', sPh, 0)
    a.salu('s_mov_b32', sGotM, 0)
    a.salu('s_and_b32', sT2, sGrp, 1)
    a.salu('s_lshl_b32', sT2, sT2, 8)
    a.salu('s_add_u32', sT2, sT2, sGrp)
    a.salu('s_cmp_lt_u32', None, sT2, 2 * NF)
    a.salu('s_cselect_b32', sP0, 4 * NPWF, 4 * NPW)
    stamp('s_issued')
    L_qw = a.newlabel('qw')
    L_qok = a.newlabel('qok')
    a.salu('s_mov_b32', sT5, SPIN_BOUND * 8)
    a.label(L_qw)
    a.ds('ds_read_b32', vT[0], vCntA, offset=4)
    a.wait_lgkm(0)
    a.valu('v_readfirstlane_b32', sT2, vT[0])
    a.salu('s_cmp_lg_u32', None, sT2, 0 if not skipq else 77)
    a.branch('s_cbranch_scc1', L_qok)
    a.misc('s_sleep 2')
    a.salu('s_sub_u32', sT5, sT5, 1)
    a.salu('s_cmp_lg_u32', None, sT5, 0)
    a.branch('s_cbranch_scc1', L_qw)
    a.label(L_qok)
    stamp('s_q')
    a.valu('v_xor_b32', vT[2], 64, vT[1])
    a.ds('ds_read_b128', PB[0:4], vT[1], offset=L_QBF)
    a.ds('ds_read_b128', PB[4:8], vT[2], offset=L_QBF)
    a.wait_lgkm(0)
    QO = QB[0:16]
    KA = QB[16:32]
    for v_ in range(2):
        for r in range(4):
            a.valu('v_cndmask_b32', QO[(2 * v_) * 4 + r], 0, PB[v_ * 4 + r], mJ8)
            a.valu('v_cndmask_b32', QO[(2 * v_ + 1) * 4 + r], PB[v_ * 4 + r], 0, mJ8)

    def qk1(kb, u):
        acc = KA[4 * (u // 2):4 * (u // 2) + 4]
        op = QO[(2 * ((u // 2) % 2) + u % 2) * 4:(2 * ((u // 2) % 2) + u % 2) * 4 + 4]
        a.mfma(acc, kb[4 * u:4 * u + 4], op, 0 if u % 2 == 0 else acc)

    def qk(kb):
        for u in range(8):
            qk1(kb, u)

    def score(dst):
        for a_ in range(4):
            a.dpp('v_mov_b32', KD[a_], KA[4 * a_], ctrl='quad_perm:[0,0,0,0]')
        for r in range(1, 4):
            for a_ in range(4):
                a.dpp('v_add_f32', KD[a_], KA[4 * a_ + r], KD[a_], ctrl=f'quad_perm:[{r},{r},{r},{r}]')
        a.valu('v_cndmask_b32', KD[0], KD[1], KD[0], mT[0])
        a.valu('v_cndmask_b32', KD[2], KD[3], KD[2], mT[0])
        a.valu('v_permlane16_swap_b32', KD[0], KD[2])
        a.dpp('v_add_f32', dst, KD[2], KD[0], ctrl='row_half_mirror')
        rbf(dst, dst)

    def softmax_core(s_):
        t_ = vT[1]
        a.valu('v_max_f32', t_, sM, s_)
        wave_red('v_max_f32', t_, sMn)
        a.valu('v_mov_b32', t_, sM)
        a.valu('v_subrev_f32', s_, sMn, s_)
        a.valu('v_subrev_f32', t_, sMn, t_)
        a.valu('v_mul_f32', s_, sCS, s_)
        a.valu('v_mul_f32', t_, sCS, t_)
        a.valu('v_exp_f32', s_, s_)
        a.valu('v_exp_f32', t_, t_)
        a.salu('s_mov_b32', sM, sMn)
        a.valu('v_fma_f32', vL, vL, t_, s_)
        a.valu('v_cvt_pk_bf16_f32', vP, s_, s_)
        for r in range(4):
            a.valu('v_mul_f32', OD0[r], OD0[r], t_)

    def fetch_issue(pool):
        a.salu('s_mov_b32', sIdx, 1)
        a.misc(f's_atomic_add {sIdx}, {sPool}, {128 * pool} glc')

    def fetch_complete():
        a.wait_lgkm(0)
        a.salu('s_add_u32', sNext, sIdx, sPB)

    def refill(buf, i, kind, soff):
        vo, o = koff(i) if kind == 'k' else voff(i)
        a.vload('buffer_load_dwordx4', buf[4 * i:4 * i + 4], vo, rK if kind == 'k' else rV, soff, o, KP if kind == 'k' else VP)

    def k_step(buf, kind, soff):
        for i in range(8):
            a.misc('s_waitcnt vmcnt(15)')
            qk1(buf, i)
            refill(buf, i, kind, soff)

    def pb_build(u):
        for r in range(4):
            a.dpp('v_and_b32', PB[4 * (u % 4) + r], vP, vMask[r], ctrl=f'row_newbcast:{2 * u}')

    def v_step(buf, kind, soff):
        for u in range(3):
            pb_build(u)
        for i in range(8):
            if i + 3 < 8:
                pb_build(i + 3)
            a.misc('s_waitcnt vmcnt(15)')
            a.mfma(OD0, buf[4 * i:4 * i + 4], PB[4 * (i % 4):4 * (i % 4) + 4], OD0)
            refill(buf, i, kind, soff)

    BUF = [KB, VB]
    sTag = [sTag0, sTag1]
    sAux = [sAux0, sAux1]
    PN = 4 * NPW

    def record_static(n):
        score(vT[0])
        a.ds('ds_write_b32', vScB, vT[0], offset=64 * n)
        a.valu('v_max_f32', vMax, vMax, vT[0])

    def extras():
        L_x = a.newlabel('nox')
        a.salu('s_cmp_lg_u32', None, sExh, 0)
        a.branch('s_cbranch_scc1', L_x)
        a.salu('s_mov_b32', sExh, 1)
        qk(KB2)
        record_static(0)
        qk(VB2)
        record_static(1)
        a.salu('s_cmp_lt_u32', None, sF, NF)
        a.branch('s_cbranch_scc1', L_x)
        a.salu('s_sub_u32', sT4, sW, 4)
        a.salu('s_lshl_b32', sT4, sT4, 14)
        a.salu('s_add_u32', sT4, sT4, L_W1)
        a.valu('v_add_u32', vT[2], sT4, vL16)
        for i in range(8):
            a.ds('ds_read_b128', KB2[4 * i:4 * i + 4], vT[2], offset=1024 * i)
        for i in range(8):
            a.ds('ds_read_b128', VB2[4 * i:4 * i + 4], vT[2], offset=8192 + 1024 * i)
        a.wait_lgkm(0)
        qk(KB2)
        record_static(2)
        qk(VB2)
        record_static(3)
        a.label(L_x)

    def sched(b_):
        L_done = a.newlabel('sd')
        L_pool = a.newlabel('sp')
        L_priv = a.newlabel('sv')
        a.salu('s_bitcmp1_b32', None, sPh, 0)
        a.branch('s_cbranch_scc1', L_pool)
        a.label(L_priv)
        L_np = a.newlabel('np')
        a.salu('s_cmp_ge_u32', None, sN, sNP)
        a.branch('s_cbranch_scc1', L_np)
        a.salu('s_mov_b32', sTag[b_], sPh)
        a.salu('s_lshl_b32', sAux[b_], sN, 6)
        a.salu('s_lshl_b32', sRef, sN, 15)
        a.salu('s_add_u32', sRef, sRef, sWgB)
        a.salu('s_add_u32', sN, sN, 1)
        a.salu('s_cmp_lg_u32', None, sN, sNP)
        a.branch('s_cbranch_scc1', L_done)
        a.salu('s_mov_b32', sIdx, 1)
        a.salu('s_lshl_b32', sT2, sPh, 6)
        a.misc(f's_atomic_add {sIdx}, {sPool}, {sT2} glc')
        a.branch('s_branch', L_done)
        a.label(L_np)
        a.salu('s_add_u32', sPh, sPh, 1)
        a.label(L_pool)
        a.wait_lgkm(0)
        a.salu('s_min_u32', sT2, sIdx, 4096)
        a.salu('s_add_u32', sT3, sP0, 3 * PN)
        L_ex = a.newlabel('ex')
        a.salu('s_cmp_ge_u32', None, sT2, sT3)
        a.branch('s_cbranch_scc1', L_ex)
        a.salu('s_mov_b32', sIdx, 1)
        a.salu('s_and_b32', sT3, sPh, 2)
        a.salu('s_lshl_b32', sT3, sT3, 6)
        a.misc(f's_atomic_add {sIdx}, {sPool}, {sT3} glc')
        a.salu('s_sub_u32', sT3, sT2, sP0)
        a.salu('s_mul_i32', sT4, sT3, -(-65536 // PN))
        a.salu('s_lshr_b32', sT4, sT4, 16)
        a.salu('s_mul_i32', sT0, sT4, 128 - PN)
        a.salu('s_add_u32', sT0, sT0, sT3)
        a.salu('s_add_u32', sT0, sT0, 256 - PN)
        a.salu('s_add_u32', sT3, sT3, 128)
        a.salu('s_cmp_lt_u32', None, sT2, sP0)
        a.salu('s_cselect_b32', sT0, sT3, sT0)
        a.salu('s_mov_b32', sTag[b_], sPh)
        a.salu('s_lshl_b32', sRef, sT0, 13)
        a.salu('s_lshl_b32', sAux[b_], sT0, 6)
        a.salu('s_add_u32', sAux[b_], sAux[b_], sScB)
        a.branch('s_branch', L_done)
        a.label(L_ex)
        L_end_ = a.newlabel('en')
        a.salu('s_cmp_eq_u32', None, sPh, 3)
        a.branch('s_cbranch_scc1', L_end_)
        a.salu('s_mov_b32', sPh, 2)
        a.salu('s_mov_b32', sN, 0)
        a.branch('s_branch', L_priv)
        a.label(L_end_)
        a.salu('s_mov_b32', sTag[b_], 4)
        a.salu('s_mov_b32', sRef, 0x800000)
        a.label(L_done)

    L_fl = a.newlabel('flush')
    for b_ in range(2):
        a.label(f'L_half{b_}')
        a.salu('s_cmp_eq_u32', None, sTag[b_], 4)
        a.branch('s_cbranch_scc1', L_fl)
        a.salu('s_mov_b32', sCT, sTag[b_])
        a.salu('s_mov_b32', sCA, sAux[b_])
        sched(b_)
        L_v = a.newlabel('vpath')
        L_kv = a.newlabel('kv')
        L_kr = a.newlabel('kr')
        L_nx = f'L_half{1 - b_}'
        a.salu('s_cmp_ge_u32', None, sCT, 2)
        a.branch('s_cbranch_scc1', L_v)
        a.salu('s_cmp_ge_u32', None, sTag[b_], 2)
        a.branch('s_cbranch_scc1', L_kv)
        k_step(BUF[b_], 'k', sRef)
        a.branch('s_branch', L_kr)
        a.label(L_kv)
        k_step(BUF[b_], 'v', sRef)
        a.label(L_kr)
        score(vT[0])
        L_kp = a.newlabel('kp')
        a.salu('s_cmp_lg_u32', None, sCT, 0)
        a.branch('s_cbranch_scc1', L_kp)
        a.valu('v_add_u32', vScA, sCA, vScB)
        a.ds('ds_write_b32', vScA, vT[0])
        a.valu('v_max_f32', vMax, vMax, vT[0])
        if b_ == 1:
            extras()
        a.branch('s_branch', L_nx)
        a.label(L_kp)
        a.vstore('buffer_store_dword', vT[0], vScG, rWS, sCA, 0, STF)
        a.branch('s_branch', L_nx)
        a.label(L_v)
        L_gm = a.newlabel('gm')
        a.salu('s_cmp_lg_u32', None, sGotM, 0)
        a.branch('s_cbranch_scc1', L_gm)
        a.salu('s_mov_b32', sGotM, 1)
        wave_red('v_max_f32', vMax, sM, quads_equal=True)
        a.salu('s_mov_b64', 'exec', 1)
        a.misc(f'ds_add_u32 {vCntA}, {vOne}')
        a.salu('s_mov_b64', 'exec', -1)
        if b_ == 0:
            kend_idx = len(stamp_names)
            stamp('s_Kend')
        elif prof:
            a.misc('s_memrealtime s[22:23]')
            a.wait_lgkm(0)
            a.valu('v_writelane_b32', V(0), S(22), kend_idx, rmw=True)
        a.label(L_gm)
        L_vp = a.newlabel('vp')
        L_vs = a.newlabel('vs')
        a.salu('s_cmp_eq_u32', None, sCT, 3)
        a.branch('s_cbranch_scc1', L_vp)
        a.valu('v_add_u32', vScA, sCA, vScBr)
        a.ds('ds_read_b32', vT[0], vScA)
        a.wait_lgkm(0)
        a.valu('v_subrev_f32', vT[0], sM, vT[0])
        a.valu('v_mul_f32', vT[0], sCS, vT[0])
        a.valu('v_exp_f32', vT[0], vT[0])
        a.valu('v_add_f32', vL, vL, vT[0])
        a.valu('v_cvt_pk_bf16_f32', vP, vT[0], vT[0])
        a.branch('s_branch', L_vs)
        a.label(L_vp)
        if prof:
            a.salu('s_add_u32', sCnt, sCnt, 1)
        a.misc('s_waitcnt vmcnt(15)')

        def lds_():
            a.vload('buffer_load_dword', SR[b_], vScGr, rWS, sCA, 0, LDF)

        def conds_():
            a.valu('v_cmp_eq_u32', 'vcc', -1, SR[b_])
            a.salu('s_cmp_eq_u64', None, 'vcc', 0)

        spin_until(lds_, conds_, sleep=8)
        a.valu('v_mov_b32', vT[0], SR[b_])
        softmax_core(vT[0])
        a.label(L_vs)
        L_ns = a.newlabel('ns')
        a.salu('s_cmp_lg_u32', None, sTag[b_], 3)
        a.branch('s_cbranch_scc1', L_ns)
        a.vload('buffer_load_dword', SR[b_], vScGr, rWS, sAux[b_], 0, LDF)
        a.label(L_ns)
        v_step(BUF[b_], 'v', sRef)
        if b_ == 1:
            a.branch('s_branch', L_nx)
    a.label(L_fl)
    a.ds('ds_write_b128', vOw, OD0, offset=L_OP)
    wave_red('v_add_f32', vL, sMn)
    a.valu('v_mov_b32', vT[2], sM)
    a.valu('v_mov_b32', vT[3], sMn)
    a.valu('v_mul_f32', vT[3], 0.25, vT[3])
    a.ds('ds_write_b64', vMr, vT[2:4], offset=L_ML)
    stamp('s_Vlast')
    if notail:
        a.branch('s_branch', 'L_end')
    a.wait_lgkm(0)
    a.barrier()
    a.wait_vm0()
    a.misc('s_setprio 0')
    stamp_val('s_units', sCnt)

    a.label('L_b4')
    a.salu('s_lshl_b32', sT2, sW, 8)
    a.valu('v_lshlrev_b32', vT[4], 2, vLane)
    a.valu('v_add_u32', vT[4], sT2, vT[4])
    a.salu('s_lshl_b32', sT1, sGrp, 2)
    a.salu('s_add_u32', sT1, sT1, sSP)
    a.salu('s_lshl_b32', sT1, sT1, 6)
    a.salu('s_lshl_b32', sT0, sW, 16)
    a.salu('s_add_u32', sT1, sT1, sT0)
    a.salu('s_add_u32', sT1, sT1, WS_IN1)
    a.wait_lgkm(0)
    a.barrier()
    stamp('B4')
    YS = VB[0:8]
    L_nc = a.newlabel('nc')
    L_y6 = a.newlabel('y6')
    a.salu('s_cmp_eq_u32', None, sW, 7)
    a.branch('s_cbranch_scc1', L_nc)
    for i in range(4):
        a.ds('ds_read_b32', YS[i], vT[4], offset=L_YP + 2048 * i)
    a.salu('s_cmp_lg_u32', None, sW, 6)
    a.branch('s_cbranch_scc1', L_y6)
    for i in range(4):
        a.ds('ds_read_b32', YS[4 + i], vT[4], offset=L_YP + 2048 * i + 256)
    a.wait_lgkm(0)
    for i in range(4):
        a.valu('v_add_f32', YS[i], YS[i], YS[4 + i])
    a.label(L_y6)
    a.wait_lgkm(0)
    a.valu('v_add_f32', YS[0], YS[0], YS[1])
    a.valu('v_add_f32', YS[2], YS[2], YS[3])
    a.valu('v_add_f32', YS[0], YS[0], YS[2])
    a.valu('v_min_u32', YS[0], -2, YS[0])
    a.vstore('buffer_store_dword', YS[0], vAt, rWS, sT1, 0, STF)
    a.label(L_nc)
    stamp('atom')
    a.salu('s_cmp_ge_u32', None, sF, NF)
    a.branch('s_cbranch_scc1', 'L_endp')

    F2B = V(84, 32)
    FA = V(116, 56)
    F1B = V(172, 56)
    RB = V(24, 28)
    a.valu('v_bfe_u32', vT[4], vLane, 2, 2)
    a.valu('v_lshl_add_u32', vT[4], vG, 3, vT[4])
    a.valu('v_and_b32', vT[5], 3, vLane)
    a.valu('v_lshlrev_b32', vT[5], 3, vT[5])
    a.valu('v_mul_u32_u24', vT[6], 896, vT[4])
    a.valu('v_add_u32', vT[6], vT[6], vT[5])
    a.salu('s_min_u32', sT2, sW, 6)
    a.salu('s_lshl_b32', sT2, sT2, 7)
    a.salu('s_add_u32', sT2, sT2, L_W2)
    a.valu('v_add_u32', vT[6], sT2, vT[6])
    for tt in range(4):
        for ks in range(2):
            for qq in range(2):
                d = F2B[(tt * 2 + ks) * 4 + 2 * qq:(tt * 2 + ks) * 4 + 2 * qq + 2]
                a.ds('ds_read_b64_tr_b16', d, vT[6], offset=(32 * ks + 4 * qq) * 896 + tt * 32)
    L_ln = a.newlabel('ln')
    L_b5 = a.newlabel('b5')
    a.salu('s_cmp_ge_u32', None, sW, 4)
    a.branch('s_cbranch_scc1', L_ln)
    a.valu('v_lshlrev_b32', vT[6], 7, vT[4])
    a.valu('v_add_u32', vT[6], vT[6], vT[5])
    a.salu('s_lshl_b32', sT2, sW, 5)
    a.salu('s_add_u32', sT2, sT2, L_W1)
    a.valu('v_add_u32', vT[6], sT2, vT[6])
    for ks in range(14):
        for qq in range(2):
            a.ds('ds_read_b64_tr_b16', F1B[ks * 4 + 2 * qq:ks * 4 + 2 * qq + 2], vT[6], offset=(32 * ks + 4 * qq) * 128)
            if (ks * 2 + qq) % 8 == 7:
                a.wait_lgkm(4)
    a.label(L_ln)
    srd(rX, sXP, 4 * 896)
    a.valu('v_mul_u32_u24', vT[7], 896, vG)
    a.valu('v_lshl_add_u32', vT[7], vJ, 1, vT[7])
    a.salu('s_lshl_b32', sT1, sF, 5)
    a.vload('buffer_load_ushort', RB[24], vT[7], rX, sT1, 0)
    a.valu('v_mov_b32', vT[4], L_SAME)
    a.ds('ds_read_b32', RB[25], vT[4])
    a.salu('s_lshl_b32', sT4, sF, 14)
    a.salu('s_lshl_b32', sT3, sW, 11)
    a.salu('s_add_u32', sT4, sT4, sT3)
    a.salu('s_add_u32', sT4, sT4, WS_IN1)
    a.salu('s_lshl_b32', sT3, sW, 8)
    a.valu('v_and_b32', vT[5], 3, vJ)
    a.valu('v_lshlrev_b32', vT[5], 4, vT[5])
    a.valu('v_lshl_add_u32', vT[5], vG, 6, vT[5])
    a.valu('v_add_u32', vT[5], sT3, vT[5])
    RI = RB[0:8]

    def ldr():
        a.vload('buffer_load_dwordx4', RI[0:4], vL16, rWS, sT4, 0, LDF)
        a.vload('buffer_load_dwordx4', RI[4:8], vL16, rWS, sT4, 1024, LDF)

    def condr():
        a.valu('v_max3_u32', vT[0], RI[0], RI[1], RI[2])
        a.valu('v_max3_u32', vT[1], RI[3], RI[4], RI[5])
        a.valu('v_max3_u32', vT[0], vT[0], RI[6], RI[7])
        a.valu('v_max_u32', vT[0], vT[0], vT[1])
        a.valu('v_cmp_eq_u32', 'vcc', -1, vT[0])
        a.salu('s_cmp_eq_u64', None, 'vcc', 0)
        if rmask:
            a.salu('s_cselect_b64', 'exec', -1, 'vcc')

    spin_until(ldr, condr, first_check=False, sleep=psleep)
    a.salu('s_mov_b64', 'exec', -1)
    stamp('red')
    for r in range(4):
        a.valu('v_add_f32', RI[r], RI[r], RI[4 + r])
    for c in ('row_ror:4', 'row_ror:8'):
        for r in range(4):
            a.dpp('v_add_f32', RI[r], RI[r], RI[r], ctrl=c)
    a.ds('ds_write_b128', vT[5], RI[0:4], offset=L_OP)
    a.valu('v_lshlrev_b32', vT[4], 9, vG)
    a.valu('v_lshl_add_u32', vT[4], vJ, 2, vT[4])
    a.valu('v_and_b32', vT[5], 1, vJ)
    a.valu('v_lshl_add_u32', vT[7], vT[5], 24, vT[7])
    a.wait_lgkm(0)
    a.barrier()
    L_nw0 = a.newlabel('nw0')
    a.salu('s_cmp_lg_u32', None, sW, 0)
    a.branch('s_cbranch_scc1', L_nw0)
    for i in range(8):
        a.ds('ds_read_b32', RB[i], vT[4], offset=L_OP + 64 * i)
    a.valu('v_lshlrev_b32', RB[24], 16, RB[24])
    a.valu('v_readfirstlane_b32', sT3, RB[25])
    a.wait_lgkm(0)
    a.valu('v_add_f32', RB[0], RB[0], RB[1])
    a.valu('v_add_f32', RB[2], RB[2], RB[3])
    a.valu('v_add_f32', RB[4], RB[4], RB[5])
    a.valu('v_add_f32', RB[6], RB[6], RB[7])
    a.valu('v_add_f32', RB[0], RB[0], RB[2])
    a.valu('v_add_f32', RB[4], RB[4], RB[6])
    a.valu('v_add_f32', RB[0], RB[0], RB[4])
    rbf(RB[0], RB[0])
    a.valu('v_add_f32', RB[0], RB[0], RB[24])
    a.dpp('v_mov_b32', RB[1], RB[0], ctrl='quad_perm:[1,0,3,2]')
    a.valu('v_cvt_pk_bf16_f32', RB[0], RB[0], RB[1])
    a.valu('v_min_u32', RB[0], -2, RB[0])
    L_hs = a.newlabel('hs')
    a.salu('s_cmp_eq_u32', None, sT3, 0)
    a.branch('s_cbranch_scc1', L_hs)
    a.vstore('buffer_store_dword', RB[0], vT[7], rWS, sT1, WS_H, '')
    a.branch('s_branch', L_b5)
    a.label(L_hs)
    a.vstore('buffer_store_dword', RB[0], vT[7], rWS, sT1, WS_H, STF)
    a.branch('s_branch', L_b5)
    a.label(L_nw0)
    a.salu('s_cmp_lt_u32', None, sW, 4)
    a.branch('s_cbranch_scc1', L_b5)
    a.salu('s_sub_u32', sT3, sW, 4)
    a.salu('s_mul_i32', sT4, sT3, 896)
    a.valu('v_mov_b32', vT[5], BIGOFF)
    a.valu('v_cndmask_b32', vT[7], vT[5], vL16, m56)
    a.valu('v_add_u32', vT[6], sT4, vL16)
    hp = RB[4:8]
    xf = RB[16:24]

    def ldc():
        a.vload('buffer_load_dwordx4', hp, vT[7], rWS, sT4, WS_H, LDF)

    def condc():
        a.valu('v_max3_u32', vT[0], hp[0], hp[1], hp[2])
        a.valu('v_max_u32', vT[0], vT[0], hp[3])
        a.valu('v_cmp_eq_u32', 'vcc', -1, vT[0])
        a.salu('s_cmp_eq_u64', None, 'vcc', 0)

    spin_until(ldc, condc, first_check=False, sleep=0)
    stamp('poll')
    unpack8(xf, hp)
    a.salu('s_mov_b64', 'exec', m56)
    a.ds('ds_write_b128', vT[6], hp, offset=L_HB)
    a.salu('s_mov_b64', 'exec', -1)
    layernorm([(xf, vT[0:4], sX0, sX1)])
    for i in range(4):
        a.valu('v_cvt_pk_bf16_f32', RB[i], xf[2 * i], xf[2 * i + 1])
    a.salu('s_mov_b64', 'exec', m56)
    a.ds('ds_write_b128', vT[6], RB[0:4], offset=L_XN2)
    a.salu('s_mov_b64', 'exec', -1)
    if debug:
        for i in range(4):
            dump(hp[i], 33 + i)
            dump(RB[i], 37 + i)
    a.label(L_b5)
    a.wait_lgkm(0)
    a.barrier()
    stamp('B5')
    L_b6 = a.newlabel('b6')
    a.salu('s_cmp_ge_u32', None, sW, 4)
    a.branch('s_cbranch_scc1', L_b6)
    a.valu('v_and_b32', vT[6], 3, vLane)
    a.valu('v_mul_u32_u24', vT[6], 896, vT[6])
    a.valu('v_lshl_add_u32', vT[6], vG, 4, vT[6])
    for ks in range(14):
        a.ds('ds_read_b128', FA[4 * ks:4 * ks + 4], vT[6], offset=L_XN2 + 64 * ks)
    Z = RB[0:4]
    for ks in range(14):
        a.wait_lgkm(min(13 - ks, 15))
        a.mfma(Z, FA[4 * ks:4 * ks + 4], F1B[4 * ks:4 * ks + 4], 0 if ks == 0 else Z)
    a.salu('s_lshl_b32', sT2, sW, 5)
    a.valu('v_lshlrev_b32', vT[6], 1, vJ)
    a.valu('v_add_u32', vT[6], sT2, vT[6])
    a.salu('s_mov_b32', sT3, -LOG2E)
    for r in range(4):
        rbf(Z[r], Z[r])
    for r in range(4):
        a.valu('v_mul_f32', RB[4 + r], sT3, Z[r])
    for r in range(4):
        a.valu('v_exp_f32', RB[4 + r], RB[4 + r])
    for r in range(4):
        a.valu('v_add_f32', RB[4 + r], 1.0, RB[4 + r])
    for r in range(4):
        a.valu('v_rcp_f32', RB[4 + r], RB[4 + r])
    for r in range(4):
        a.valu('v_mul_f32', Z[r], Z[r], RB[4 + r])
    for r in range(4):
        a.valu('v_cvt_pk_bf16_f32', Z[r], Z[r], Z[r])
        a.ds('ds_write_b16', vT[6], Z[r], offset=L_GB + 128 * r)
    if debug:
        for r in range(4):
            dump(Z[r], 41 + r)
    a.label(L_b6)
    a.wait_lgkm(0)
    a.barrier()
    stamp('B6')
    L_fin = a.newlabel('fin')
    a.salu('s_cmp_ge_u32', None, sW, 7)
    a.branch('s_cbranch_scc1', L_fin)
    a.valu('v_and_b32', vT[6], 3, vLane)
    a.valu('v_lshlrev_b32', vT[6], 7, vT[6])
    a.valu('v_lshl_add_u32', vT[6], vG, 4, vT[6])
    a.ds('ds_read_b128', FA[0:4], vT[6], offset=L_GB)
    a.ds('ds_read_b128', FA[4:8], vT[6], offset=L_GB + 64)
    a.valu('v_mov_b32', vT[4], L_SAME)
    a.ds('ds_read_b32', vT[5], vT[4])
    a.salu('s_mul_i32', sT2, sW, 4 * 7168)
    a.salu('s_lshl_b32', sT3, sF, 8)
    a.salu('s_add_u32', sT2, sT2, sT3)
    a.salu('s_add_u32', sT2, sT2, WS_INBOX)
    a.wait_lgkm(0)
    O2 = [RB[4 * tt:4 * tt + 4] for tt in range(4)]
    for tt in range(4):
        a.mfma(O2[tt], FA[0:4], F2B[(tt * 2) * 4:(tt * 2) * 4 + 4], 0)
    for tt in range(4):
        a.mfma(O2[tt], FA[4:8], F2B[(tt * 2 + 1) * 4:(tt * 2 + 1) * 4 + 4], O2[tt])
    a.valu('v_readfirstlane_b32', sT3, vT[5])
    a.salu('s_mov_b64', 'exec', 0xffff)
    L_slow = a.newlabel('slow')
    L_sd = a.newlabel('sd')
    a.salu('s_cmp_eq_u32', None, sT3, 0)
    a.branch('s_cbranch_scc1', L_slow)
    for flags, lab in (('', None), (STF, L_slow)):
        if lab:
            a.label(lab)
        for tt in range(4):
            for r in range(4):
                a.valu('v_min_u32', O2[tt][r], -2, O2[tt][r])
            a.vstore('buffer_store_dwordx4', O2[tt], vL16, rWS, sT2, 0, flags)
            if tt < 3:
                a.salu('s_add_u32', sT2, sT2, 7168)
        if not lab:
            a.branch('s_branch', L_sd)
    a.label(L_sd)
    a.salu('s_or_b32', sT2, sF, sW)
    a.salu('s_cmp_lg_u32', None, sT2, 0)
    a.branch('s_cbranch_scc1', 'L_endp')
    a.salu('s_mov_b64', 'exec', 1)
    a.valu('v_mov_b32', vT[4], sEp)
    a.valu('v_mov_b32', vT[5], 0)
    a.salu('s_mov_b32', sT2, WS_EPOCH)
    a.vstore('buffer_store_dword', vT[4], vT[5], rWS, sT2, 0, STF)
    a.branch('s_branch', 'L_endp')
    a.label(L_fin)
    a.valu('v_mul_u32_u24', vT[6], 896, vG)
    a.valu('v_lshl_add_u32', vT[6], vJ, 1, vT[6])
    a.salu('s_lshl_b32', sT2, sF, 5)
    a.valu('v_add_u32', vT[6], sT2, vT[6])
    a.ds('ds_read_u16', vT[7], vT[6], offset=L_HB)
    a.salu('s_mul_i32', sT3, sF, 7168)
    a.salu('s_add_u32', sT3, sT3, WS_INBOX)
    a.salu('s_add_u32', sT4, sT3, 4096)
    IB = V(116, 28)

    def ldi():
        for i in range(7):
            a.vload('buffer_load_dwordx4', IB[4 * i:4 * i + 4], vL16, rWS, sT3 if i < 4 else sT4, (i % 4) * 1024, LDF)

    def condi():
        a.valu('v_max3_u32', vT[0], IB[0], IB[1], IB[2])
        for i in range(3, 27, 2):
            a.valu('v_max3_u32', vT[0], vT[0], IB[i], IB[i + 1])
        a.valu('v_max_u32', vT[0], vT[0], IB[27])
        a.valu('v_cmp_eq_u32_e64', S(100, 2), -1, vT[0])
        a.salu('s_cmp_eq_u64', None, S(100, 2), 0)

    spin_until(ldi, condi, first_check=False, sleep=0)
    stamp('inbox')
    for i in range(1, 7):
        for r in range(4):
            a.valu('v_add_f32', IB[r], IB[r], IB[4 * i + r])
    for r in range(4):
        a.valu('v_mov_b32', IB[4 + r], IB[r])
    for r in range(4):
        a.valu('v_permlane16_swap_b32', IB[r], IB[4 + r])
    for r in range(4):
        a.valu('v_add_f32', IB[r], IB[r], IB[4 + r])
    for r in range(4):
        a.valu('v_mov_b32', IB[4 + r], IB[r])
    for r in range(4):
        a.valu('v_permlane32_swap_b32', IB[r], IB[4 + r])
    for r in range(4):
        a.valu('v_add_f32', IB[r], IB[r], IB[4 + r])
    for r in range(1, 4):
        a.valu('v_cmp_eq_u32', 'vcc', r, vG)
        a.valu('v_cndmask_b32', IB[0], IB[0], IB[r], 'vcc')
    rbf(IB[0], IB[0])
    a.wait_lgkm(0)
    a.valu('v_lshlrev_b32', vT[7], 16, vT[7])
    a.valu('v_add_f32', IB[0], IB[0], vT[7])
    a.valu('v_cvt_pk_bf16_f32', IB[0], IB[0], IB[0])
    a.vstore('buffer_store_short', IB[0], vT[6], rOUT, 0, 0)
    a.label('L_endp')
    stamp('end')
    stamp_store()
    a.label('L_end')
    A('  s_endpgm')
    A('.section .rodata,"a"')
    A('.p2align 6')
    A(f'.amdhsa_kernel {KNAME}')
    A('  .amdhsa_next_free_vgpr 256')
    A('  .amdhsa_next_free_sgpr 102')
    A('  .amdhsa_accum_offset 256')
    A('  .amdhsa_group_segment_fixed_size 0')
    A('  .amdhsa_kernarg_size 88')
    A('  .amdhsa_user_sgpr_count 2')
    A('  .amdhsa_user_sgpr_kernarg_segment_ptr 1')
    A('  .amdhsa_system_sgpr_workgroup_id_x 1')
    A('  .amdhsa_float_denorm_mode_32 3')
    A('.end_amdhsa_kernel')
    if prof:
        A('; STAMPS ' + ' '.join(stamp_names))
    return a.text()


if __name__ == '__main__':
    out = [x for x in sys.argv[1:] if not x.startswith('--')]
    path = out[0] if out else os.path.join(os.path.dirname(os.path.abspath(__file__)), '..', 'cdna_kernels', NAME + '.s')
    kw = {}
    for x in sys.argv[1:]:
        if x.startswith('--') and '=' in x:
            k_, v_ = x[2:].split('=')
            kw[k_] = int(v_)
    open(path, 'w').write(build(debug='--debug' in sys.argv, prof='--prof' in sys.argv, **kw))
    print('wrote', path)
```

```python
import os
import sys

sys.path.insert(0, os.path.dirname(os.path.abspath(__file__)))
from asmlib import Asm, V, S

NAME = 'sequential_preLN__mha_block_cached__dense_activation_silu__decode'
KNAME = NAME + '_kernel'

NWG = 256
NF = 28
LOG2E = 1.4426950408889634
CS = LOG2E / 16.0

WS_H = 0
WS_EPOCH = 24576
WS_INBOX = 32768
WS_Q = 0x40000
WS_POOL = 0x60000
WS_MAIL = 0x80000
WS_IN1 = 0x100000
WS_SC = 0x200000
WS_BYTES = 4 << 20
WS_DBG = 4 << 20
DB_INITF = 40

L_XN2 = 0
L_HB = 4096
L_GB = 8192
L_QBF = 8704
L_ML = 9216
L_CNT = 9344
L_FLAG = 9348
L_SVC = 9352
L_ARR = 9356
L_SAME = 9360
L_OP = 9472
L_YP = 17920
L_WQS = L_YP
L_W1 = 34816
L_W2 = L_W1 + 57344
LDS_BYTES = L_W2 + 57344

SPIN_BOUND = 200000
BIGOFF = 0x1000000


def build(debug=False, prof=False, npriv=112, xmap=1, gsleep=0, ldf=0, stf=0, use_c=1, skipq=0, nocomp=0, nowo=0, notail=0, prio=2, smalllds=0, nodma=0, nowq=0, wnt=1, psleep=0, kpol=0, vpol=0, diag=0, fastx=1, rmask=1, nffn=80, rot=0, NPW=6, NPWF=10, ig4=1):
    assert NPW % 2 == 0 and NPWF % 2 == 0 and 4 <= NPW <= NPWF <= 16
    POL = ['nt', '', 'nt sc0', 'nt sc1', 'sc1']
    KP, VP = POL[kpol], POL[vpol]
    WF = 'nt' if wnt else ''
    LDF = ['sc1', 'sc0 sc1'][ldf]
    STF = ['sc1', 'sc0 sc1'][stf]
    a = Asm()
    A = a.raw
    hdr = open(os.path.join(os.path.dirname(os.path.abspath(__file__)), '..', 'cdna_kernels', NAME + '.s.ref')).read().split('\n')
    for ln in hdr:
        if ln.startswith(';') and '@launch' not in ln:
            A(ln)
        elif '@launch' in ln:
            A(f'; @launch grid=({NWG},1,1) block=(512,1,1) lds={LDS_BYTES if not smalllds else 16384}')
        else:
            break
    A('.amdgcn_target "amdgcn-amd-amdhsa--gfx950"')
    A('.text')
    A(f'.globl {KNAME}')
    A('.p2align 8')
    A(f'.type {KNAME},@function')
    A(f'{KNAME}:')

    sID = S(2)
    sF = S(0)
    sGrp = S(3)
    sW, sB, sH, sSP = S(4), S(5), S(6), S(7)
    sT0, sT1, sT2, sT3, sT4, sT5 = S(8), S(9), S(10), S(11), S(12), S(13)
    sNext = S(14)
    sIdx = S(15)
    P = lambda i: S(16 + 2 * i, 2)
    pOUT, pDBG, pWS = S(32, 2), S(34, 2), S(36, 2)
    sM = S(38)
    sMn = S(39)
    rK, rV, rWQ, rWO, rX, rW1, rW2, rOUT, rDBG, rWS = [S(40 + 4 * i, 4) for i in range(10)]
    sPool = S(80, 2)
    sExh = S(82)
    sCur, sN, sP0, sRef = S(28), S(29), S(30), S(31)
    sNP, sScB, sTag0, sTag1, sWgB, sPub = S(16), S(17), S(18), S(19), S(20), S(21)
    sAux0, sAux1, sPh, sCT, sCA, sGotM = S(26), S(27), S(1), S(56), S(57), S(58)
    sCS = S(83)
    mT = [S(84 + 2 * t, 2) for t in range(4)]
    mJ8 = S(92, 2)
    m56 = S(94, 2)
    mG2 = S(96, 2)
    sX0, sX1 = S(98), S(99)
    sXP = S(100, 2)
    sEp = S(32)
    rWSD = rWQ
    LNS = [S(16), S(17), S(18), S(19), S(20), S(21), S(0), S(1)]
    sCnt = S(33)

    vTid = V(0)
    vLane, vJ, vG = V(1), V(2), V(3)
    vKoff, vKoff2, vVoff, vVoff2 = V(4), V(5), V(6), V(7)
    vMask = V(8, 4)
    vWoOff, vWoRem = V(12), V(13)
    vL = V(14)
    vL16 = V(15)
    vT = V(16, 8)
    OD0, OD1 = V(24, 4), V(28, 4)
    KD = V(32, 4)
    PB = V(36, 16)
    QB = V(52, 32)
    KB, VB, KB2, VB2 = V(84, 32), V(116, 32), V(148, 32), V(180, 32)
    XT = V(212, 44)
    WO = V(148, 56)
    vIdx, vOne, vCntA, vChk = XT[0], XT[1], XT[2], XT[3]
    vOw, vOr, vMr, vYw, vAt = XT[4], XT[5], XT[6], XT[7], XT[8]
    vPubOff, vGatOff, vGatML = XT[9], XT[10], XT[11]

    def dump(reg, slot):
        if not debug:
            return
        a.salu('s_lshl_b32', sX0, sID, 3)
        a.salu('s_add_u32', sX0, sX0, sW)
        a.salu('s_lshl_b32', sX0, sX0, 14)
        a.salu('s_add_u32', sX0, sX0, WS_DBG + slot * 256)
        a.valu('v_lshlrev_b32', XT[43], 2, vLane)
        a.vstore('buffer_store_dword', reg, XT[43], rWSD, sX0)

    stamp_names = []
    early = []

    DIAG = {'v_issued': 2, 'q_got': 3, 's_issued': 4, 'v_B3': 5, 'v_gath': 6, 'atom': 7, 'poll': 8, 'B6': 9, 'end': 11, 's_q': 12}

    def diag_put(slot, sreg, invert=False):
        r_ = S(25) if invert else S(24)
        a.salu('s_not_b32' if invert else 's_mov_b32', r_, sreg)
        a.misc(f's_atomic_umax {r_}, {pDBG}, {slot * 4}')

    def stamp(name, late=True):
        if diag and name in DIAG:
            wv = 0 if name[:2] in ('v_', 'q_') else 4 if name[:2] == 's_' else 7
            L_d = a.newlabel('diag')
            a.salu('s_cmp_lg_u32', None, sW, wv)
            a.branch('s_cbranch_scc1', L_d)
            a.misc('s_memrealtime s[22:23]')
            a.wait_lgkm(0)
            diag_put(DIAG[name], S(22))
            if name == 'v_B3':
                diag_put(13, S(22), True)
            if name == 'v_issued':
                a.wait_lgkm(0)
                diag_put(0, S(26), True)
                diag_put(1, S(26))
            a.label(L_d)
            return
        if not prof:
            return
        k = len(stamp_names)
        stamp_names.append(name)
        a.misc('s_memrealtime s[22:23]')
        a.wait_lgkm(0)
        if late:
            a.valu('v_writelane_b32', V(0), S(22), k, rmw=True)
        else:
            a.salu('s_mov_b32', S(24 + len(early)), S(22))
            early.append(k)

    def stamp_val(name, sreg):
        if not prof:
            return
        k = len(stamp_names)
        stamp_names.append(name)
        a.valu('v_writelane_b32', V(0), sreg, k, rmw=True)

    def stamp_flush_early():
        if not prof:
            return
        for i, k in enumerate(early):
            a.valu('v_writelane_b32', V(0), S(24 + i), k, rmw=True)

    def stamp_store():
        if not prof:
            return
        a.salu('s_mov_b64', 'exec', -1)
        a.salu('s_lshl_b32', sX0, sID, 3)
        a.salu('s_add_u32', sX0, sX0, sW)
        a.salu('s_lshl_b32', sX0, sX0, 8)
        a.salu('s_add_u32', sX0, sX0, WS_DBG)
        a.valu('v_lshlrev_b32', V(23), 2, vLane)
        a.vstore('buffer_store_dword', V(0), V(23), rWSD, sX0)

    def srd(r, ptr, nbytes, off=None):
        if off is None:
            a.salu('s_mov_b32', r[0], ptr[0])
            a.salu('s_mov_b32', r[1], ptr[1])
        else:
            a.salu('s_add_u32', r[0], ptr[0], off)
            a.salu('s_addc_u32', r[1], ptr[1], 0)
        a.salu('s_mov_b32', r[2], nbytes)
        a.salu('s_mov_b32', r[3], 0x00020000)

    def wave_red_multi(op, vs, sdsts, quads_equal=False):
        ctrls = ['row_ror:4', 'row_ror:8'] if quads_equal else ['quad_perm:[1,0,3,2]', 'quad_perm:[2,3,0,1]', 'row_half_mirror', 'row_mirror']
        for c in ctrls:
            for v in vs:
                a.dpp(op, v, v, v, ctrl=c)
        for v in vs:
            a.dpp(op, v, v, v, ctrl='row_bcast:15', row_mask=0xa)
        for v in vs:
            a.dpp(op, v, v, v, ctrl='row_bcast:31', row_mask=0xc)
        for v, s_ in zip(vs, sdsts):
            a.valu('v_readlane_b32', s_, v, 63)

    def wave_red(op, v, sdst, quads_equal=False):
        wave_red_multi(op, [v], [sdst], quads_equal)

    def rbf(dst, src):
        a.valu('v_cvt_pk_bf16_f32', dst, src, src)
        a.valu('v_and_b32', dst, 0xffff0000, dst)

    def unpack8(xf, raw):
        for i in range(4):
            a.valu('v_lshlrev_b32', xf[2 * i], 16, raw[i])
            a.valu('v_and_b32', xf[2 * i + 1], 0xffff0000, raw[i])

    def layernorm(rows):
        def each(f):
            for r_ in rows:
                f(*r_)
        each(lambda xf, t, s0, s1: a.valu('v_add_f32', t[0], xf[0], xf[1]))
        each(lambda xf, t, s0, s1: a.valu('v_add_f32', t[1], xf[2], xf[3]))
        each(lambda xf, t, s0, s1: a.valu('v_add_f32', t[2], xf[4], xf[5]))
        each(lambda xf, t, s0, s1: a.valu('v_add_f32', t[3], xf[6], xf[7]))
        each(lambda xf, t, s0, s1: a.valu('v_add_f32', t[0], t[0], t[1]))
        each(lambda xf, t, s0, s1: a.valu('v_add_f32', t[2], t[2], t[3]))
        each(lambda xf, t, s0, s1: a.valu('v_add_f32', t[0], t[0], t[2]))
        wave_red_multi('v_add_f32', [r_[1][0] for r_ in rows], [r_[2] for r_ in rows])
        each(lambda xf, t, s0, s1: a.valu('v_mov_b32', t[0], s0))
        each(lambda xf, t, s0, s1: a.valu('v_mul_f32', t[0], 1.0 / 448.0, t[0]))
        each(lambda xf, t, s0, s1: a.valu('v_sub_f32', t[1], xf[0], t[0]))
        each(lambda xf, t, s0, s1: a.valu('v_mul_f32', t[2], t[1], t[1]))
        for i in range(1, 8):
            each(lambda xf, t, s0, s1: a.valu('v_sub_f32', t[1], xf[i], t[0]))
            each(lambda xf, t, s0, s1: a.valu('v_fmac_f32', t[2], t[1], t[1]))
        each(lambda xf, t, s0, s1: a.valu('v_cndmask_b32', t[2], 0, t[2], m56))
        wave_red_multi('v_add_f32', [r_[1][2] for r_ in rows], [r_[3] for r_ in rows])
        each(lambda xf, t, s0, s1: rbf(t[0], t[0]))
        each(lambda xf, t, s0, s1: a.valu('v_mov_b32', t[2], s1))
        each(lambda xf, t, s0, s1: a.valu('v_mul_f32', t[2], 1.0 / 448.0, t[2]))
        each(lambda xf, t, s0, s1: rbf(t[2], t[2]))
        each(lambda xf, t, s0, s1: a.valu('v_add_f32', t[2], 1e-5, t[2]))
        each(lambda xf, t, s0, s1: rbf(t[2], t[2]))
        each(lambda xf, t, s0, s1: a.valu('v_sqrt_f32', t[2], t[2]))
        each(lambda xf, t, s0, s1: rbf(t[2], t[2]))
        each(lambda xf, t, s0, s1: a.valu('v_rcp_f32', t[2], t[2]))
        for i in range(0, 8, 2):
            each(lambda xf, t, s0, s1: a.valu('v_sub_f32', xf[i], xf[i], t[0]))
            each(lambda xf, t, s0, s1: a.valu('v_sub_f32', xf[i + 1], xf[i + 1], t[0]))
            each(lambda xf, t, s0, s1: a.valu('v_cvt_pk_bf16_f32', t[1], xf[i], xf[i + 1]))
            each(lambda xf, t, s0, s1: a.valu('v_lshlrev_b32', xf[i], 16, t[1]))
            each(lambda xf, t, s0, s1: a.valu('v_and_b32', xf[i + 1], 0xffff0000, t[1]))
            each(lambda xf, t, s0, s1: a.valu('v_mul_f32', xf[i], xf[i], t[2]))
            each(lambda xf, t, s0, s1: a.valu('v_mul_f32', xf[i + 1], xf[i + 1], t[2]))

    def spin_until(load_fn, cond_fn, first_check=True, sleep=1):
        done = a.newlabel('done')
        loop = a.newlabel('spin')
        if first_check:
            cond_fn()
            a.branch('s_cbranch_scc1', done)
        a.salu('s_mov_b32', sT5, SPIN_BOUND)
        a.label(loop)
        load_fn()
        a.wait_vm0()
        cond_fn()
        a.branch('s_cbranch_scc1', done)
        if sleep:
            a.misc(f's_sleep {sleep}')
        a.salu('s_sub_u32', sT5, sT5, 1)
        a.salu('s_cmp_lg_u32', None, sT5, 0)
        a.branch('s_cbranch_scc1', loop)
        a.label(done)

    def issue_k(buf, soff):
        for i in range(8):
            o = i * 1024
            a.vload('buffer_load_dwordx4', buf[4 * i:4 * i + 4], vKoff if o < 4096 else vKoff2, rK, soff, o % 4096, KP)

    def issue_v(buf, soff):
        for i in range(8):
            o = i * 1024
            a.vload('buffer_load_dwordx4', buf[4 * i:4 * i + 4], vVoff if o < 4096 else vVoff2, rV, soff, o % 4096, VP)

    def koff(i):
        o = i * 1024
        return (vKoff if o < 4096 else vKoff2), o % 4096

    def voff(i):
        o = i * 1024
        return (vVoff if o < 4096 else vVoff2), o % 4096

    TS = 4 * 8192

    def issue_static_units():
        assert fastx and xmap == 1
        a.salu('s_lshl_b32', sCur, sSP, 8 if ig4 else 7)
        a.salu('s_add_u32', sCur, sCur, sW)
        a.salu('s_sub_u32', sCur, sCur, 4)
        a.salu('s_lshl_b32', sCur, sCur, 12 if ig4 else 13)
        a.salu('s_mov_b32', sT5, sCur)
        issue_k(KB2, sCur)
        a.salu('s_add_u32', sCur, sCur, TS)
        issue_k(VB2, sCur)
        a.salu('s_add_u32', sCur, sCur, TS)
        a.salu('s_mov_b32', sN, 2)
        L_cd = a.newlabel('cd')
        a.salu('s_cmp_lt_u32', None, sF, NF)
        a.branch('s_cbranch_scc1', L_cd)
        a.salu('s_mov_b32', sN, 4)
        a.salu('s_sub_u32', sT4, sW, 4)
        a.salu('s_lshl_b32', sT4, sT4, 14)
        a.salu('s_add_u32', sT4, sT4, L_W1)
        for i in range(16):
            vo, o = koff(i % 8)
            a.salu('s_add_u32', sT0, sT4, i * 1024 - o)
            a.salu('s_mov_b32', 'm0', sT0)
            a.vload_lds(vo, rK, sCur, o, KP)
            if i % 8 == 7:
                a.salu('s_add_u32', sCur, sCur, TS)
        a.label(L_cd)
        issue_k(KB, sCur)
        a.salu('s_add_u32', sT3, sCur, TS)
        issue_k(VB, sT3)

    a.salu('s_cmp_ge_u32', None, sID, NWG)
    a.branch('s_cbranch_scc1', 'L_end')
    if rot:
        a.salu('s_add_u32', sID, sID, rot)
        a.salu('s_and_b32', sID, sID, 255)
    if prof or diag:
        a.misc('s_memrealtime s[84:85]')
    a.misc('s_load_dwordx16 s[16:31], s[0:1], 0')
    a.misc('s_load_dwordx4 s[32:35], s[0:1], 64')
    a.misc('s_load_dwordx2 s[36:37], s[0:1], 80')
    a.valu('v_lshrrev_b32', vT[0], 6, vTid)
    a.valu('v_and_b32', vLane, 63, vTid)
    a.valu('v_readfirstlane_b32', sW, vT[0])
    a.valu('v_and_b32', vJ, 15, vTid)
    a.valu('v_lshrrev_b32', vG, 4, vLane)
    a.valu('v_bfe_u32', vT[1], vLane, 3, 1)
    a.valu('v_and_b32', vT[2], 7, vLane)
    a.valu('v_lshlrev_b32', vT[1], 9, vT[1])
    a.valu('v_lshlrev_b32', vT[2], 4, vT[2])
    a.valu('v_lshl_add_u32', vKoff, vG, 7, vT[1])
    a.valu('v_add_u32', vKoff, vKoff, vT[2])
    a.valu('v_add_u32', vKoff2, 16384 if ig4 else 4096, vKoff)
    a.valu('v_lshlrev_b32', vL16, 4, vLane)
    a.valu('v_lshlrev_b32', vVoff, 4, vLane)
    a.valu('v_add_u32', vVoff2, 16384 if ig4 else 4096, vVoff)
    if xmap == 1:
        a.salu('s_lshr_b32', sT0, sID, 3)
        a.salu('s_and_b32', sT2, sT0, 7)
        a.salu('s_mul_i32', sT1, sT2, 11)
        a.salu('s_lshr_b32', sT1, sT1, 5)
        a.salu('s_mul_i32', sT1, sT1, 3)
        a.salu('s_sub_u32', sT1, sT2, sT1)
        a.salu('s_add_u32', sT1, sT1, 1)
        a.salu('s_bfe_u32', sSP, sID, (2 << 16) | 1)
        a.salu('s_and_b32', sT3, sSP, sT1)
        a.salu('s_bcnt1_i32_b32', sT3, sT3)
        a.salu('s_xor_b32', sT3, sT3, sID)
        a.salu('s_and_b32', sT3, sT3, 1)
        a.salu('s_lshl_b32', sGrp, sT0, 1)
        a.salu('s_add_u32', sGrp, sGrp, sT3)
    else:
        a.salu('s_lshr_b32', sGrp, sID, 2)
        a.salu('s_and_b32', sSP, sID, 3)
    a.salu('s_lshr_b32', sB, sGrp, 4)
    a.salu('s_and_b32', sH, sGrp, 15)
    a.salu('s_lshl_b32', sT1, sGrp, 22)
    a.salu('s_lshr_b32', sT5, sID, 3)
    if fastx:
        a.salu('s_and_b32', sT4, sID, 7)
    else:
        a.salu('s_lshl_b32', sT4, sT5, 1)
        a.salu('s_xor_b32', sT4, sT4, sID)
        a.salu('s_and_b32', sT4, sT4, 7)
    a.salu('s_cmp_eq_u32', None, sT4, 0)
    a.salu('s_cselect_b32', sT5, sT5, 255)
    a.valu('v_mov_b32', vT[2], 0)
    a.valu('v_mov_b32', vT[3], 0)
    a.valu('v_mov_b32', vCntA, L_CNT)
    a.valu('v_mov_b32', vT[4], 0)
    a.valu('v_mov_b32', vT[5], 0)
    a.ds('ds_write_b128', vCntA, vT[2:6])
    a.wait_lgkm(0)
    a.salu('s_mov_b32', sF, sT5)
    if diag:
        a.salu('s_mov_b32', S(26), S(84))
    a.barrier()
    if prof:
        stamp_names.append('entry')
        a.valu('v_writelane_b32', V(0), S(84), 0, rmw=True)

    def xcc_word(dst, n):
        a.misc(f's_getreg_b32 {sX0}, hwreg(HW_REG_XCC_ID)')
        a.salu('s_and_b32', sX0, sX0, 15)
        a.salu('s_mul_i32', sX1, sX0, sX0)
        a.salu('s_lshl_b32', sX0, sX0, 8)
        a.salu('s_lshl_b32', sX1, sX1, 18)
        a.salu('s_or_b32', dst, sX0, sX1)
        a.salu('s_or_b32', dst, dst, 1)
        if n != 1:
            a.salu('s_mul_i32', dst, dst, n)

    def common_setup():
        srd(rWS, pWS, WS_BYTES)
        srd(rOUT, pOUT, 4 * 896)
        srd(rDBG, pDBG, 256)
        a.salu('s_mov_b32', sXP[0], P(0)[0])
        a.salu('s_mov_b32', sXP[1], P(0)[1])
        if prof:
            a.salu('s_mov_b32', sCnt, 0)
        a.valu('v_cmp_gt_u32_e64', mJ8, 8, vJ)
        a.valu('v_cmp_gt_u32_e64', m56, 56, vLane)
        a.valu('v_cmp_gt_u32_e64', mG2, 2, vG)
        a.valu('v_and_b32', vT[2], 1, vJ)
        a.valu('v_lshlrev_b32', vT[2], 4, vT[2])
        a.valu('v_mov_b32', vT[3], 0xffff)
        a.valu('v_lshlrev_b32', vT[3], vT[2], vT[3])
        a.valu('v_bfe_u32', vT[2], vJ, 1, 2)
        for r in range(4):
            a.valu('v_cmp_eq_u32', 'vcc', r, vT[2])
            a.valu('v_cndmask_b32', vMask[r], 0, vT[3], 'vcc')
        a.valu('v_mov_b32', vOne, 1)
        a.salu('s_mov_b32', sCS, CS)
        a.valu('v_lshrrev_b32', vAt, 5, vLane)
        a.valu('v_lshlrev_b32', vAt, 15, vAt)
        a.valu('v_bfe_u32', vT[6], vLane, 1, 1)
        a.valu('v_lshl_add_u32', vAt, vT[6], 14, vAt)
        a.valu('v_and_b32', vT[6], 1, vLane)
        a.valu('v_lshl_add_u32', vAt, vT[6], 5, vAt)
        a.valu('v_bfe_u32', vT[7], vLane, 2, 3)
        a.valu('v_lshl_add_u32', vAt, vT[7], 2, vAt)

    L_stream = 'L_stream'
    L_b3 = 'L_b3'
    a.salu('s_cmp_ge_u32', None, sW, 4)
    a.branch('s_cbranch_scc1', L_stream)

    L_svc = a.newlabel('svc')
    L_svc2 = a.newlabel('svc2')
    if notail == 1:
        a.branch('s_branch', 'L_end')
    a.misc('s_setprio 3')
    a.salu('s_mul_i32', sT2, sW, 896)
    srd(rX, P(0), 896, sT2)
    srd(rWQ, P(3), 448 * 8192 if not nowq else 0)
    XR = KB[0:4]
    vEp = XT[12]
    a.vload('buffer_load_dwordx4', XR, vL16, rX)
    a.valu('v_lshrrev_b32', vT[1], 1, vLane)
    a.valu('v_lshlrev_b32', vT[1], 13, vT[1])
    a.valu('v_and_b32', vT[2], 1, vLane)
    a.valu('v_lshl_add_u32', vT[1], vT[2], 4, vT[1])
    a.salu('s_lshl_b32', sT2, sSP, 2)
    a.salu('s_add_u32', sT2, sT2, sB)
    a.salu('s_lshl_b32', sT2, sT2, 5)
    a.salu('s_lshl_b32', sT3, sH, 9)
    a.salu('s_add_u32', sT2, sT2, sT3)
    a.salu('s_lshl_b32', sT3, sW, 18)
    a.salu('s_add_u32', sT2, sT2, sT3)
    a.salu('s_lshl_b32', sT3, sW, 10)
    a.salu('s_add_u32', sT3, sT3, L_WQS)
    for i in range(4):
        a.salu('s_mov_b32', 'm0', sT3)
        a.vload_lds(vT[1], rWQ, sT2, 0, WF)
        if i < 3:
            a.salu('s_add_u32', sT2, sT2, 4 * 32 * 8192)
            a.salu('s_add_u32', sT3, sT3, 4096)
    srd(rWS, pWS, WS_BYTES)
    a.salu('s_lshl_b32', sT2, sW, 24)
    a.valu('v_mov_b32', vT[2], sT2)
    a.salu('s_mov_b32', sT2, WS_EPOCH)
    a.vload('buffer_load_dword', vEp, vT[2], rWS, sT2, 0, LDF)
    MK = VB[0:4]
    ZR = VB[4:8]
    for i in range(4):
        a.valu('v_mov_b32', MK[i], -1)
        a.valu('v_mov_b32', ZR[i], 0)
    a.salu('s_lshl_b32', sT2, sGrp, 2)
    a.salu('s_add_u32', sT2, sT2, sSP)
    a.salu('s_lshl_b32', sT2, sT2, 2)
    a.salu('s_add_u32', sT2, sT2, sW)
    a.salu('s_lshl_b32', sT2, sT2, 9)
    a.salu('s_add_u32', sT2, sT2, WS_MAIL)
    a.valu('v_lshrrev_b32', vT[1], 5, vLane)
    a.valu('v_lshl_add_u32', vT[1], vT[1], 24, vL16)
    a.vstore('buffer_store_dwordx4', MK, vT[1], rWS, sT2, 0, STF)
    a.salu('s_lshl_b32', sT2, sGrp, 8)
    a.salu('s_add_u32', sT2, sT2, WS_POOL)
    a.salu('s_xor_b32', sT3, sW, 1)
    a.salu('s_add_u32', sT3, sT3, sSP)
    a.valu('v_lshrrev_b32', vT[1], 1, vLane)
    a.valu('v_add_u32', vT[1], sT3, vT[1])
    a.valu('v_lshlrev_b32', vT[1], 24, vT[1])
    a.valu('v_lshl_add_u32', vT[1], vLane, 7, vT[1])
    a.vstore('buffer_store_dword', ZR[0], vT[1], rWS, sT2, 0, STF)
    a.salu('s_lshl_b32', sT2, sGrp, 2)
    a.salu('s_add_u32', sT2, sT2, sSP)
    a.salu('s_lshl_b32', sT2, sT2, 13)
    a.salu('s_lshl_b32', sT3, sW, 10)
    a.salu('s_add_u32', sT2, sT2, sT3)
    a.salu('s_add_u32', sT2, sT2, WS_SC + 4096)
    a.vstore('buffer_store_dwordx4', MK, vL16, rWS, sT2, 0, STF)
    n_after_x = 8
    srd(rWO, P(4), 4096 * 896 if not nowo else 0)
    srd(rW1, P(6), 448 * 3584 if not nodma else 0)
    srd(rW2, P(7), 448 * 3584 if not nodma else 0)
    common_setup()
    stamp('v_issued')
    XF = KB2[0:8]
    a.misc(f's_waitcnt vmcnt({n_after_x})')
    stamp('v_x')
    unpack8(XF, XR)
    layernorm([(XF, vT[0:4], sX0, sX1)])
    for i in range(4):
        a.valu('v_cvt_pk_bf16_f32', XR[i], XF[2 * i], XF[2 * i + 1])
    a.salu('s_mul_i32', sT2, sW, 896)
    a.valu('v_add_u32', vT[0], sT2, vL16)
    a.salu('s_mov_b64', 'exec', m56)
    a.ds('ds_write_b128', vT[0], XR, offset=L_XN2)
    a.salu('s_mov_b64', 'exec', 1)
    a.misc('s_waitcnt vmcnt(0) lgkmcnt(0)')
    a.misc(f'ds_add_u32 {vCntA}, {vOne} offset:8')
    a.salu('s_mov_b64', 'exec', -1)
    stamp('v_ln')
    a.salu('s_cmp_lg_u32', None, sW, 0)
    a.branch('s_cbranch_scc1', L_svc)
    QA = V(148, 56)
    QF = V(84, 56)
    a.valu('v_and_b32', vT[6], 3, vLane)
    a.valu('v_mul_u32_u24', vT[6], 896, vT[6])
    a.valu('v_lshl_add_u32', vT[6], vG, 4, vT[6])
    a.valu('v_bfe_u32', vT[4], vLane, 2, 2)
    a.valu('v_lshl_add_u32', vT[4], vG, 3, vT[4])
    a.valu('v_lshlrev_b32', vT[4], 5, vT[4])
    a.valu('v_and_b32', vT[5], 3, vLane)
    a.valu('v_lshl_add_u32', vT[4], vT[5], 3, vT[4])
    L_sw = a.newlabel('sw')
    L_sok = a.newlabel('sok')
    a.salu('s_mov_b32', sT5, SPIN_BOUND * 8)
    a.label(L_sw)
    a.ds('ds_read_b32', vT[0], vCntA, offset=8)
    a.wait_lgkm(0)
    a.valu('v_readfirstlane_b32', sT2, vT[0])
    a.salu('s_cmp_ge_u32', None, sT2, 4)
    a.branch('s_cbranch_scc1', L_sok)
    a.salu('s_sub_u32', sT5, sT5, 1)
    a.salu('s_cmp_lg_u32', None, sT5, 0)
    a.branch('s_cbranch_scc1', L_sw)
    a.label(L_sok)
    stamp('q_wq')
    for ks in range(14):
        a.ds('ds_read_b128', QA[4 * ks:4 * ks + 4], vT[6], offset=L_XN2 + 64 * ks)
    for ks in range(14):
        for qq in range(2):
            a.ds('ds_read_b64_tr_b16', QF[ks * 4 + 2 * qq:ks * 4 + 2 * qq + 2], vT[4], offset=L_WQS + (32 * ks + 4 * qq) * 32)
    a.valu('v_add_u32', vEp, 1, vEp)
    for ks in range(14):
        a.wait_lgkm(min(2 * (13 - ks), 15))
        a.mfma(KD, QA[4 * ks:4 * ks + 4], QF[4 * ks:4 * ks + 4], 0 if ks == 0 else KD)
    a.valu('v_lshlrev_b32', vT[4], 10, vG)
    a.valu('v_lshl_add_u32', vT[4], vJ, 2, vT[4])
    a.valu('v_and_b32', vT[5], 1, vJ)
    a.valu('v_lshl_add_u32', vT[4], vT[5], 24, vT[4])
    a.salu('s_lshl_b32', sT2, sSP, 2)
    a.salu('s_add_u32', sT2, sT2, sB)
    a.salu('s_lshl_b32', sT2, sT2, 6)
    a.salu('s_lshl_b32', sT3, sH, 12)
    a.salu('s_add_u32', sT2, sT2, sT3)
    a.salu('s_add_u32', sT2, sT2, WS_Q)
    for r in range(1, 4):
        a.valu('v_cmp_eq_u32', 'vcc', r, vG)
        a.valu('v_cndmask_b32', KD[0], KD[0], KD[r], 'vcc')
    a.dpp('v_mov_b32', KD[1], KD[0], ctrl='quad_perm:[1,0,3,2]')
    a.valu('v_cvt_pk_bf16_f32', PB[0], KD[0], KD[1])
    a.valu('v_mov_b32', PB[1], vEp)
    a.vstore('buffer_store_dwordx2', PB[0:2], vT[4], rWS, sT2, 0, STF)
    a.salu('s_lshl_b32', sT4, sB, 10)
    a.salu('s_add_u32', sT4, sT4, sT3)
    a.salu('s_add_u32', sT4, sT4, WS_Q)
    a.valu('v_readfirstlane_b32', sEp, vEp)
    QG = PB[4:8]

    def ldq():
        a.vload('buffer_load_dwordx4', QG, vL16, rWS, sT4, 0, LDF)

    def condq():
        a.valu('v_cmp_ne_u32_e64', S(10, 2), sEp, QG[1])
        a.valu('v_cmp_ne_u32', 'vcc', sEp, QG[3])
        a.salu('s_or_b64', S(10, 2), S(10, 2), 'vcc')
        a.salu('s_cmp_eq_u64', None, S(10, 2), 0)

    spin_until(ldq, condq, first_check=False, sleep=0)
    a.valu('v_mov_b32', QG[1], QG[2])
    a.valu('v_lshlrev_b32', vT[4], 3, vLane)
    a.ds('ds_write_b64', vT[4], QG[0:2], offset=L_QBF)
    a.wait_lgkm(0)
    a.ds('ds_write_b32', vCntA, vOne, offset=4)
    stamp('q_got')
    a.branch('s_branch', L_svc2)
    a.label(L_svc)
    L_nodma = a.newlabel('nodma')
    a.salu('s_cmp_ge_u32', None, sF, NF)
    a.branch('s_cbranch_scc1', L_nodma)
    a.salu('s_sub_u32', sT2, sW, 1)
    L_ini = a.newlabel('ini')
    a.label(L_ini)
    a.salu('s_lshl_b32', sT3, sT2, 10)
    a.salu('s_lshl_b32', sT4, sF, 14)
    a.salu('s_add_u32', sT4, sT4, WS_IN1)
    a.salu('s_mul_i32', sT5, sF, 7168)
    a.salu('s_add_u32', sT5, sT5, WS_INBOX - 16384)
    a.salu('s_cmp_lt_u32', None, sT2, 16)
    a.salu('s_cselect_b32', sT4, sT4, sT5)
    a.salu('s_add_u32', sT4, sT4, sT3)
    a.vstore('buffer_store_dwordx4', MK, vL16, rWS, sT4, 0, STF)
    a.salu('s_add_u32', sT2, sT2, 3)
    a.salu('s_cmp_lt_u32', None, sT2, 23)
    a.branch('s_cbranch_scc1', L_ini)
    a.valu('v_mul_u32_u24', vT[1], 896, vG)
    a.valu('v_lshl_add_u32', vT[1], vJ, 2, vT[1])
    a.valu('v_lshrrev_b32', vT[2], 3, vJ)
    a.valu('v_lshl_add_u32', vT[1], vT[2], 24, vT[1])
    a.salu('s_lshl_b32', sT4, sF, 5)
    a.vstore('buffer_store_dword', MK[0], vT[1], rWS, sT4, WS_H, STF)
    a.salu('s_mov_b64', 'exec', 1)
    a.wait_vm0()
    a.misc(f'ds_add_rtn_u32 {vIdx}, {vCntA}, {vOne} offset:12')
    a.wait_lgkm(0)
    a.salu('s_mov_b64', 'exec', -1)
    a.valu('v_readfirstlane_b32', sT2, vIdx)
    L_nosig = a.newlabel('nosig')
    a.salu('s_cmp_lg_u32', None, sT2, 2)
    a.branch('s_cbranch_scc1', L_nosig)
    xcc_word(sT0, 1)
    a.misc(f's_atomic_add {sT0}, {pDBG}, {DB_INITF}')
    a.label(L_nosig)
    a.valu('v_lshrrev_b32', vT[6], 3, vLane)
    a.valu('v_mul_u32_u24', vT[6], 3584, vT[6])
    a.valu('v_and_b32', vT[7], 7, vLane)
    a.valu('v_lshl_add_u32', vT[6], vT[7], 4, vT[6])
    a.salu('s_sub_u32', sT2, sW, 1)
    L_dma = a.newlabel('dma')
    a.label(L_dma)
    a.salu('s_lshl_b32', sT3, sT2, 10)
    a.salu('s_mul_i32', sT4, sT2, 8 * 3584)
    a.salu('s_lshl_b32', sT5, sF, 7)
    a.salu('s_add_u32', sT4, sT4, sT5)
    a.salu('s_mul_i32', sT5, sF, 57344)
    a.salu('s_add_u32', sT5, sT5, sT3)
    a.salu('s_add_u32', sT0, sT3, L_W1)
    a.salu('s_mov_b32', 'm0', sT0)
    a.vload_lds(vT[6], rW1, sT4, 0, WF)
    a.salu('s_add_u32', sT0, sT3, L_W2)
    a.salu('s_mov_b32', 'm0', sT0)
    a.vload_lds(vL16, rW2, sT5, 0, WF)
    a.salu('s_add_u32', sT2, sT2, 3)
    a.salu('s_cmp_lt_u32', None, sT2, 56)
    a.branch('s_cbranch_scc1', L_dma)
    a.label(L_nodma)
    a.label(L_svc2)
    if debug or prof:
        srd(rWSD, pWS, (4 << 20) + (64 << 20))
    a.valu('v_mul_u32_u24', vWoOff, 896, vG)
    a.valu('v_lshl_add_u32', vWoOff, vJ, 4, vWoOff)
    a.valu('v_and_b32', vT[2], 7, vJ)
    a.valu('v_lshlrev_b32', vT[3], 4, vT[2])
    a.valu('v_lshrrev_b32', vT[4], 3, vJ)
    a.valu('v_mul_u32_u24', vT[5], 4 * 896, vT[4])
    a.valu('v_mul_u32_u24', vWoRem, 896, vG)
    a.valu('v_add3_u32', vWoRem, vWoRem, vT[3], vT[5])
    a.valu('v_add_u32', vWoRem, 768, vWoRem)
    a.salu('s_lshl_b32', sT2, sH, 8)
    a.salu('s_lshl_b32', sT3, sSP, 6)
    a.salu('s_add_u32', sT2, sT2, sT3)
    a.salu('s_lshl_b32', sT3, sW, 4)
    a.salu('s_add_u32', sT2, sT2, sT3)
    a.salu('s_mul_i32', sT2, sT2, 896)
    for Gp in range(4):
        for s_ in range(3):
            a.vload('buffer_load_dwordx4', WO[(Gp * 3 + s_) * 4:(Gp * 3 + s_) * 4 + 4], vWoOff, rWO, sT2, 256 * s_, WF)
        if Gp % 2 == 0:
            a.vload('buffer_load_dwordx4', WO[48 + 2 * Gp:52 + 2 * Gp], vWoRem, rWO, sT2, 0, WF)
        if Gp < 3:
            a.salu('s_add_u32', sT2, sT2, 4 * 896)
    a.valu('v_lshl_add_u32', vT[5], vT[4], 2, vG)
    a.valu('v_lshlrev_b32', vT[5], 7, vT[5])
    a.valu('v_lshl_add_u32', vYw, vT[2], 4, vT[5])
    a.salu('s_lshl_b32', sT2, sW, 11)
    a.valu('v_add_u32', vYw, sT2, vYw)
    a.valu('v_and_b32', vT[6], 3, vJ)
    a.valu('v_lshrrev_b32', vT[7], 2, vJ)
    a.valu('v_mul_u32_u24', vOr, 1040, vT[6])
    a.valu('v_lshl_add_u32', vOr, vG, 6, vOr)
    a.valu('v_lshl_add_u32', vOr, vT[7], 4, vOr)
    a.salu('s_lshl_b32', sT2, sW, 8)
    a.valu('v_add_u32', vOr, sT2, vOr)
    a.valu('v_lshlrev_b32', vMr, 3, vT[6])
    a.valu('v_lshrrev_b32', vT[2], 1, vG)
    a.valu('v_lshlrev_b32', vPubOff, 5, vT[2])
    a.valu('v_lshl_add_u32', vPubOff, vT[6], 3, vPubOff)
    a.valu('v_and_b32', vT[2], 1, vT[7])
    a.valu('v_lshl_add_u32', vPubOff, vT[2], 2, vPubOff)
    a.valu('v_and_b32', vT[2], 1, vG)
    a.valu('v_lshl_add_u32', vPubOff, vT[2], 1, vPubOff)
    a.valu('v_lshrrev_b32', vT[2], 1, vT[7])
    a.valu('v_add_u32', vPubOff, vPubOff, vT[2])
    a.valu('v_lshlrev_b32', vPubOff, 2, vPubOff)
    a.salu('s_lshl_b32', sT2, sSP, 9)
    a.valu('v_lshlrev_b32', vGatML, 11, vT[6])
    a.valu('v_add_u32', vGatML, sT2, vGatML)
    a.salu('s_lshl_b32', sT3, sW, 6)
    a.valu('v_lshl_add_u32', vT[2], vT[7], 2, vG)
    a.valu('v_lshl_add_u32', vGatOff, vT[2], 2, vGatML)
    a.valu('v_add_u32', vGatOff, sT3, vGatOff)
    a.valu('v_lshlrev_b32', vOw, 24, vLane)

    def ldfi():
        a.valu('v_mov_b32', vT[7], 0)
        a.vload('buffer_load_dword', vChk, vT[7], rDBG, 0, DB_INITF, LDF)

    def condf():
        a.valu('v_readfirstlane_b32', sT2, vChk)
        a.salu('s_and_b32', sT3, sT2, 255)
        a.salu('s_cmp_ge_u32', None, sT3, NF)

    L_nochk = a.newlabel('nochk')
    a.salu('s_cmp_lg_u32', None, sW, 1)
    a.branch('s_cbranch_scc1', L_nochk)
    L_mw = a.newlabel('mw')
    L_mok = a.newlabel('mok')
    a.salu('s_mov_b32', sT5, SPIN_BOUND)
    a.label(L_mw)
    a.ds('ds_read_b32', vT[0], vCntA)
    a.wait_lgkm(0)
    a.valu('v_readfirstlane_b32', sT2, vT[0])
    a.salu('s_cmp_ge_u32', None, sT2, 4)
    a.branch('s_cbranch_scc1', L_mok)
    a.misc('s_sleep 64')
    a.salu('s_sub_u32', sT5, sT5, 1)
    a.salu('s_cmp_lg_u32', None, sT5, 0)
    a.branch('s_cbranch_scc1', L_mw)
    a.label(L_mok)
    spin_until(ldfi, condf, first_check=False, sleep=64)
    xcc_word(sT3, NF)
    a.salu('s_cmp_eq_u32', None, sT2, sT3)
    a.salu('s_cselect_b32', sT2, fastx, 0)
    a.valu('v_mov_b32', vT[7], sT2)
    a.ds('ds_write_b32', vCntA, vT[7], offset=16)
    a.label(L_nochk)
    a.misc('s_waitcnt vmcnt(0) lgkmcnt(0)')
    a.salu('s_lshl_b32', sT4, sGrp, 13)
    a.salu('s_add_u32', sT4, sT4, WS_MAIL)
    a.salu('s_lshl_b32', sT2, sSP, 2)
    a.salu('s_add_u32', sT2, sT2, sW)
    a.salu('s_lshl_b32', sT2, sT2, 9)
    a.salu('s_add_u32', sT3, sT4, sT2)
    stamp('v_ready')
    if notail == 2:
        a.branch('s_branch', 'L_end')
    a.barrier()
    stamp('v_B3')
    ov = PB[0:4]
    ml = PB[4:6]
    a.ds('ds_read_b64', ml, vMr, offset=L_ML)
    a.ds('ds_read_b128', ov, vOr, offset=L_OP)
    a.valu('v_and_b32', vT[5], 3, vJ)
    a.wait_lgkm(1)
    red4 = ('quad_perm:[1,0,3,2]', 'quad_perm:[2,3,0,1]')
    a.valu('v_mov_b32', vT[0], ml[0])
    for c in red4:
        a.dpp('v_max_f32', vT[0], vT[0], vT[0], ctrl=c)
    a.valu('v_sub_f32', vT[2], ml[0], vT[0])
    a.valu('v_mul_f32', vT[2], sCS, vT[2])
    a.valu('v_exp_f32', vT[2], vT[2])
    a.wait_lgkm(0)
    a.valu('v_mul_f32', vT[1], ml[1], vT[2])
    for r in range(4):
        a.valu('v_mul_f32', ov[r], ov[r], vT[2])
    for c in red4:
        for r in range(4):
            a.dpp('v_add_f32', ov[r], ov[r], ov[r], ctrl=c)
        a.dpp('v_add_f32', vT[1], vT[1], vT[1], ctrl=c)
    for r in range(1, 4):
        a.valu('v_cmp_eq_u32', 'vcc', r, vT[5])
        a.valu('v_cndmask_b32', ov[0], ov[0], ov[r], 'vcc')
    a.valu('v_min_u32', ov[0], -2, ov[0])
    a.vstore('buffer_store_dword', ov[0], vPubOff, rWS, sT3, 0, STF)
    a.valu('v_min_u32', vT[0], -2, vT[0])
    a.valu('v_min_u32', vT[1], -2, vT[1])
    a.vstore('buffer_store_dwordx2', vT[0:2], vOw, rWS, sT3, 256, STF)
    stamp('v_pub')
    gv = PB[8]
    gml = PB[10:12]

    def ldg():
        a.vload('buffer_load_dword', gv, vGatOff, rWS, sT4, 0, LDF)
        a.vload('buffer_load_dwordx2', gml, vGatML, rWS, sT4, 256, LDF)

    def condg():
        a.valu('v_max3_u32', vT[2], gv, gml[0], gml[1])
        a.valu('v_cmp_eq_u32_e64', S(10, 2), -1, vT[2])
        a.salu('s_cmp_eq_u64', None, S(10, 2), 0)

    spin_until(ldg, condg, first_check=False, sleep=gsleep)
    stamp('v_gath')
    a.valu('v_mov_b32', vT[0], gml[0])
    for c in red4:
        a.dpp('v_max_f32', vT[0], vT[0], vT[0], ctrl=c)
    a.valu('v_sub_f32', vT[1], gml[0], vT[0])
    a.valu('v_mul_f32', vT[1], sCS, vT[1])
    a.valu('v_exp_f32', vT[1], vT[1])
    a.valu('v_mul_f32', gv, gv, vT[1])
    a.valu('v_mul_f32', gml[1], gml[1], vT[1])
    for c in red4:
        a.dpp('v_add_f32', gv, gv, gv, ctrl=c)
        a.dpp('v_add_f32', gml[1], gml[1], gml[1], ctrl=c)
    a.valu('v_rcp_f32', gml[1], gml[1])
    a.valu('v_mul_f32', gv, gv, gml[1])
    a.valu('v_cvt_pk_bf16_f32', gv, gv, gv)
    dump(gv, 18)
    Y = [KB[0:4], KB[4:8], KB[8:12], KB[12:16], KB[16:20]]
    BT = [QB[4 * Gp:4 * Gp + 4] for Gp in range(4)]
    for Gp in range(4):
        for r in range(4):
            a.dpp('v_and_b32', BT[Gp][r], gv, vMask[r], ctrl=f'row_newbcast:{4 * Gp}')
        for s_ in range(3):
            a.mfma(Y[s_], WO[(Gp * 3 + s_) * 4:(Gp * 3 + s_) * 4 + 4], BT[Gp], 0 if Gp == 0 else Y[s_])
        a.mfma(Y[3 + Gp % 2], WO[48 + 4 * (Gp // 2):52 + 4 * (Gp // 2)], BT[Gp], 0 if Gp < 2 else Y[3 + Gp % 2])
    for r in range(4):
        a.valu('v_cndmask_b32', Y[0][r], Y[1][r], Y[0][r], mJ8)
    a.ds('ds_write_b128', vYw, Y[0], offset=L_YP)
    for r in range(4):
        a.valu('v_cndmask_b32', Y[3][r], Y[4][r], Y[3][r], mG2)
        a.valu('v_cndmask_b32', Y[2][r], Y[3][r], Y[2][r], mJ8)
    a.ds('ds_write_b128', vYw, Y[2], offset=L_YP + 1024)
    a.branch('s_branch', 'L_b4')

    a.label(L_stream)
    a.misc(f's_setprio {prio}')
    srd(rK, P(1), 4 << 20, sT1)
    srd(rV, P(2), 4 << 20, sT1)
    issue_static_units()
    common_setup()
    if debug or prof:
        srd(rWSD, pWS, (4 << 20) + (64 << 20))
    a.salu('s_lshl_b32', sT2, sGrp, 8)
    a.salu('s_add_u32', sT2, sT2, WS_POOL)
    a.salu('s_add_u32', sPool[0], pWS[0], sT2)
    a.salu('s_addc_u32', sPool[1], pWS[1], 0)
    a.valu('v_lshrrev_b32', vT[2], 2, vJ)
    a.valu('v_xor_b32', vT[2], vT[2], vG)
    a.valu('v_and_b32', vT[2], 1, vT[2])
    a.valu('v_cmp_eq_u32_e64', mT[0], 0, vT[2])
    a.valu('v_lshrrev_b32', vT[2], 3, vJ)
    a.valu('v_xor_b32', vT[2], vT[2], vG)
    a.valu('v_and_b32', vT[2], 1, vT[2])
    a.valu('v_cmp_eq_u32_e64', mT[1], 0, vT[2])
    for r in range(4):
        a.valu('v_cndmask_b32', vMask[r], 0, vMask[r], mT[1])
    for r in range(4):
        a.valu('v_mov_b32', OD0[r], 0)
    a.valu('v_mov_b32', vL, 0)
    a.salu('s_mov_b32', sM, -3.0e38)
    a.salu('s_mov_b32', sExh, 0)
    a.valu('v_lshrrev_b32', vT[4], 3, vJ)
    a.valu('v_lshl_add_u32', vT[5], vT[4], 2, vG)
    a.valu('v_lshlrev_b32', vT[5], 7, vT[5])
    a.valu('v_and_b32', vT[6], 3, vJ)
    a.valu('v_lshl_add_u32', vOw, vT[6], 5, vT[5])
    a.valu('v_bfe_u32', vT[7], vJ, 2, 1)
    a.valu('v_lshl_add_u32', vOw, vT[7], 4, vOw)
    a.salu('s_sub_u32', sT2, sW, 4)
    a.salu('s_mul_i32', sT3, sT2, 1040)
    a.valu('v_add_u32', vOw, sT3, vOw)
    a.salu('s_lshl_b32', sT2, sT2, 3)
    a.valu('v_mov_b32', vMr, sT2)
    a.valu('v_and_b32', vT[1], 7, vJ)
    a.valu('v_lshl_add_u32', vT[1], vG, 3, vT[1])
    a.valu('v_lshlrev_b32', vT[1], 4, vT[1])
    vScG, vScB, vScA, vMax = XT[13], XT[14], XT[15], XT[16]
    SR = [XT[17], XT[18]]
    vScGr, vScBr, vP = XT[19], XT[20], XT[21]
    a.salu('s_mov_b32', sWgB, sT5)
    a.valu('v_and_b32', vScG, 1, vG)
    a.valu('v_lshlrev_b32', vScG, 3, vScG)
    a.valu('v_bfe_u32', vT[2], vJ, 2, 1)
    a.valu('v_lshl_add_u32', vScG, vT[2], 2, vScG)
    a.valu('v_lshrrev_b32', vT[2], 3, vJ)
    a.valu('v_lshl_add_u32', vScG, vT[2], 1, vScG)
    a.valu('v_lshrrev_b32', vT[2], 1, vG)
    a.valu('v_add_u32', vScG, vScG, vT[2])
    a.valu('v_lshlrev_b32', vScG, 2, vScG)
    a.valu('v_and_b32', vScGr, 14, vJ)
    a.valu('v_add_u32', vScGr, vScGr, vT[2])
    a.valu('v_lshlrev_b32', vScGr, 2, vScGr)
    a.salu('s_sub_u32', sT2, sW, 4)
    a.salu('s_lshl_b32', sT2, sT2, 11)
    a.salu('s_add_u32', sT2, sT2, L_YP)
    a.valu('v_add_u32', vScB, sT2, vScG)
    a.valu('v_add_u32', vScBr, sT2, vScGr)
    a.valu('v_mov_b32', vMax, -3.0e38)
    a.salu('s_lshl_b32', sScB, sGrp, 15)
    a.salu('s_add_u32', sScB, sScB, WS_SC)
    a.salu('s_cmp_lt_u32', None, sF, NF)
    a.salu('s_cselect_b32', sNP, 32 - NPWF, 32 - NPW)
    a.salu('s_mov_b32', sTag0, 0)
    a.salu('s_mov_b32', sTag1, 0)
    a.salu('s_lshl_b32', sAux0, sN, 6)
    a.salu('s_add_u32', sAux1, sAux0, 64)
    a.salu('s_add_u32', sN, sN, 2)
    a.salu('s_mov_b32', sPh, 0)
    a.salu('s_mov_b32', sGotM, 0)
    a.salu('s_and_b32', sT2, sGrp, 1)
    a.salu('s_lshl_b32', sT2, sT2, 8)
    a.salu('s_add_u32', sT2, sT2, sGrp)
    a.salu('s_cmp_lt_u32', None, sT2, 2 * NF)
    a.salu('s_cselect_b32', sP0, 4 * NPWF, 4 * NPW)
    stamp('s_issued')
    L_qw = a.newlabel('qw')
    L_qok = a.newlabel('qok')
    a.salu('s_mov_b32', sT5, SPIN_BOUND * 8)
    a.label(L_qw)
    a.ds('ds_read_b32', vT[0], vCntA, offset=4)
    a.wait_lgkm(0)
    a.valu('v_readfirstlane_b32', sT2, vT[0])
    a.salu('s_cmp_lg_u32', None, sT2, 0 if not skipq else 77)
    a.branch('s_cbranch_scc1', L_qok)
    a.misc('s_sleep 2')
    a.salu('s_sub_u32', sT5, sT5, 1)
    a.salu('s_cmp_lg_u32', None, sT5, 0)
    a.branch('s_cbranch_scc1', L_qw)
    a.label(L_qok)
    stamp('s_q')
    a.valu('v_xor_b32', vT[2], 64, vT[1])
    a.ds('ds_read_b128', PB[0:4], vT[1], offset=L_QBF)
    a.ds('ds_read_b128', PB[4:8], vT[2], offset=L_QBF)
    a.wait_lgkm(0)
    QO = QB[0:16]
    KA = QB[16:32]
    for v_ in range(2):
        for r in range(4):
            a.valu('v_cndmask_b32', QO[(2 * v_) * 4 + r], 0, PB[v_ * 4 + r], mJ8)
            a.valu('v_cndmask_b32', QO[(2 * v_ + 1) * 4 + r], PB[v_ * 4 + r], 0, mJ8)

    def qk1(kb, u):
        acc = KA[4 * (u // 2):4 * (u // 2) + 4]
        op = QO[(2 * ((u // 2) % 2) + u % 2) * 4:(2 * ((u // 2) % 2) + u % 2) * 4 + 4]
        a.mfma(acc, kb[4 * u:4 * u + 4], op, 0 if u % 2 == 0 else acc)

    def qk(kb):
        for u in range(8):
            qk1(kb, u)

    def score(dst):
        for a_ in range(4):
            a.dpp('v_mov_b32', KD[a_], KA[4 * a_], ctrl='quad_perm:[0,0,0,0]')
        for r in range(1, 4):
            for a_ in range(4):
                a.dpp('v_add_f32', KD[a_], KA[4 * a_ + r], KD[a_], ctrl=f'quad_perm:[{r},{r},{r},{r}]')
        a.valu('v_cndmask_b32', KD[0], KD[1], KD[0], mT[0])
        a.valu('v_cndmask_b32', KD[2], KD[3], KD[2], mT[0])
        a.valu('v_permlane16_swap_b32', KD[0], KD[2])
        a.dpp('v_add_f32', dst, KD[2], KD[0], ctrl='row_half_mirror')
        rbf(dst, dst)

    def softmax_core(s_):
        t_ = vT[1]
        a.valu('v_max_f32', t_, sM, s_)
        wave_red('v_max_f32', t_, sMn)
        a.valu('v_mov_b32', t_, sM)
        a.valu('v_subrev_f32', s_, sMn, s_)
        a.valu('v_subrev_f32', t_, sMn, t_)
        a.valu('v_mul_f32', s_, sCS, s_)
        a.valu('v_mul_f32', t_, sCS, t_)
        a.valu('v_exp_f32', s_, s_)
        a.valu('v_exp_f32', t_, t_)
        a.salu('s_mov_b32', sM, sMn)
        a.valu('v_fma_f32', vL, vL, t_, s_)
        a.valu('v_cvt_pk_bf16_f32', vP, s_, s_)
        for r in range(4):
            a.valu('v_mul_f32', OD0[r], OD0[r], t_)

    def fetch_issue(pool):
        a.salu('s_mov_b32', sIdx, 1)
        a.misc(f's_atomic_add {sIdx}, {sPool}, {128 * pool} glc')

    def fetch_complete():
        a.wait_lgkm(0)
        a.salu('s_add_u32', sNext, sIdx, sPB)

    def refill(buf, i, kind, soff):
        vo, o = koff(i) if kind == 'k' else voff(i)
        a.vload('buffer_load_dwordx4', buf[4 * i:4 * i + 4], vo, rK if kind == 'k' else rV, soff, o, KP if kind == 'k' else VP)

    def k_step(buf, kind, soff):
        for i in range(8):
            a.misc('s_waitcnt vmcnt(15)')
            qk1(buf, i)
            refill(buf, i, kind, soff)

    def pb_build(u):
        for r in range(4):
            a.dpp('v_and_b32', PB[4 * (u % 4) + r], vP, vMask[r], ctrl=f'row_newbcast:{2 * u}')

    def v_step(buf, kind, soff):
        for u in range(3):
            pb_build(u)
        for i in range(8):
            if i + 3 < 8:
                pb_build(i + 3)
            a.misc('s_waitcnt vmcnt(15)')
            a.mfma(OD0, buf[4 * i:4 * i + 4], PB[4 * (i % 4):4 * (i % 4) + 4], OD0)
            refill(buf, i, kind, soff)

    BUF = [KB, VB]
    sTag = [sTag0, sTag1]
    sAux = [sAux0, sAux1]
    PN = 4 * NPW

    def record_static(n):
        score(vT[0])
        a.ds('ds_write_b32', vScB, vT[0], offset=64 * n)
        a.valu('v_max_f32', vMax, vMax, vT[0])

    def extras():
        L_x = a.newlabel('nox')
        a.salu('s_cmp_lg_u32', None, sExh, 0)
        a.branch('s_cbranch_scc1', L_x)
        a.salu('s_mov_b32', sExh, 1)
        qk(KB2)
        record_static(0)
        qk(VB2)
        record_static(1)
        a.salu('s_cmp_lt_u32', None, sF, NF)
        a.branch('s_cbranch_scc1', L_x)
        a.salu('s_sub_u32', sT4, sW, 4)
        a.salu('s_lshl_b32', sT4, sT4, 14)
        a.salu('s_add_u32', sT4, sT4, L_W1)
        a.valu('v_add_u32', vT[2], sT4, vL16)
        for i in range(8):
            a.ds('ds_read_b128', KB2[4 * i:4 * i + 4], vT[2], offset=1024 * i)
        for i in range(8):
            a.ds('ds_read_b128', VB2[4 * i:4 * i + 4], vT[2], offset=8192 + 1024 * i)
        a.wait_lgkm(0)
        qk(KB2)
        record_static(2)
        qk(VB2)
        record_static(3)
        a.label(L_x)

    def sched(b_):
        L_done = a.newlabel('sd')
        L_pool = a.newlabel('sp')
        L_priv = a.newlabel('sv')
        a.salu('s_bitcmp1_b32', None, sPh, 0)
        a.branch('s_cbranch_scc1', L_pool)
        a.label(L_priv)
        L_np = a.newlabel('np')
        a.salu('s_cmp_ge_u32', None, sN, sNP)
        a.branch('s_cbranch_scc1', L_np)
        a.salu('s_mov_b32', sTag[b_], sPh)
        a.salu('s_lshl_b32', sAux[b_], sN, 6)
        a.salu('s_lshl_b32', sRef, sN, 15)
        a.salu('s_add_u32', sRef, sRef, sWgB)
        a.salu('s_add_u32', sN, sN, 1)
        a.salu('s_cmp_lg_u32', None, sN, sNP)
        a.branch('s_cbranch_scc1', L_done)
        a.salu('s_mov_b32', sIdx, 1)
        a.salu('s_lshl_b32', sT2, sPh, 6)
        a.misc(f's_atomic_add {sIdx}, {sPool}, {sT2} glc')
        a.branch('s_branch', L_done)
        a.label(L_np)
        a.salu('s_add_u32', sPh, sPh, 1)
        a.label(L_pool)
        a.wait_lgkm(0)
        a.salu('s_min_u32', sT2, sIdx, 4096)
        a.salu('s_add_u32', sT3, sP0, 3 * PN)
        L_ex = a.newlabel('ex')
        a.salu('s_cmp_ge_u32', None, sT2, sT3)
        a.branch('s_cbranch_scc1', L_ex)
        a.salu('s_mov_b32', sIdx, 1)
        a.salu('s_and_b32', sT3, sPh, 2)
        a.salu('s_lshl_b32', sT3, sT3, 6)
        a.misc(f's_atomic_add {sIdx}, {sPool}, {sT3} glc')
        a.salu('s_sub_u32', sT3, sT2, sP0)
        a.salu('s_mul_i32', sT4, sT3, -(-65536 // PN))
        a.salu('s_lshr_b32', sT4, sT4, 16)
        a.salu('s_mul_i32', sT0, sT4, 128 - PN)
        a.salu('s_add_u32', sT0, sT0, sT3)
        a.salu('s_add_u32', sT0, sT0, 256 - PN)
        a.salu('s_add_u32', sT3, sT3, 128)
        a.salu('s_cmp_lt_u32', None, sT2, sP0)
        a.salu('s_cselect_b32', sT0, sT3, sT0)
        a.salu('s_mov_b32', sTag[b_], sPh)
        a.salu('s_lshl_b32', sRef, sT0, 13)
        if ig4:
            a.salu('s_and_b32', sT3, sT0, 3)
            a.salu('s_lshl_b32', sT3, sT3, 12)
            a.salu('s_sub_u32', sRef, sRef, sT3)
        a.salu('s_lshl_b32', sAux[b_], sT0, 6)
        a.salu('s_add_u32', sAux[b_], sAux[b_], sScB)
        a.branch('s_branch', L_done)
        a.label(L_ex)
        L_end_ = a.newlabel('en')
        a.salu('s_cmp_eq_u32', None, sPh, 3)
        a.branch('s_cbranch_scc1', L_end_)
        a.salu('s_mov_b32', sPh, 2)
        a.salu('s_mov_b32', sN, 0)
        a.branch('s_branch', L_priv)
        a.label(L_end_)
        a.salu('s_mov_b32', sTag[b_], 4)
        a.salu('s_mov_b32', sRef, 0x800000)
        a.label(L_done)

    L_fl = a.newlabel('flush')
    for b_ in range(2):
        a.label(f'L_half{b_}')
        a.salu('s_cmp_eq_u32', None, sTag[b_], 4)
        a.branch('s_cbranch_scc1', L_fl)
        a.salu('s_mov_b32', sCT, sTag[b_])
        a.salu('s_mov_b32', sCA, sAux[b_])
        sched(b_)
        L_v = a.newlabel('vpath')
        L_kv = a.newlabel('kv')
        L_kr = a.newlabel('kr')
        L_nx = f'L_half{1 - b_}'
        a.salu('s_cmp_ge_u32', None, sCT, 2)
        a.branch('s_cbranch_scc1', L_v)
        a.salu('s_cmp_ge_u32', None, sTag[b_], 2)
        a.branch('s_cbranch_scc1', L_kv)
        k_step(BUF[b_], 'k', sRef)
        a.branch('s_branch', L_kr)
        a.label(L_kv)
        k_step(BUF[b_], 'v', sRef)
        a.label(L_kr)
        score(vT[0])
        L_kp = a.newlabel('kp')
        a.salu('s_cmp_lg_u32', None, sCT, 0)
        a.branch('s_cbranch_scc1', L_kp)
        a.valu('v_add_u32', vScA, sCA, vScB)
        a.ds('ds_write_b32', vScA, vT[0])
        a.valu('v_max_f32', vMax, vMax, vT[0])
        if b_ == 1:
            extras()
        a.branch('s_branch', L_nx)
        a.label(L_kp)
        a.vstore('buffer_store_dword', vT[0], vScG, rWS, sCA, 0, STF)
        a.branch('s_branch', L_nx)
        a.label(L_v)
        L_gm = a.newlabel('gm')
        a.salu('s_cmp_lg_u32', None, sGotM, 0)
        a.branch('s_cbranch_scc1', L_gm)
        a.salu('s_mov_b32', sGotM, 1)
        wave_red('v_max_f32', vMax, sM, quads_equal=True)
        a.salu('s_mov_b64', 'exec', 1)
        a.misc(f'ds_add_u32 {vCntA}, {vOne}')
        a.salu('s_mov_b64', 'exec', -1)
        if b_ == 0:
            kend_idx = len(stamp_names)
            stamp('s_Kend')
        elif prof:
            a.misc('s_memrealtime s[22:23]')
            a.wait_lgkm(0)
            a.valu('v_writelane_b32', V(0), S(22), kend_idx, rmw=True)
        a.label(L_gm)
        L_vp = a.newlabel('vp')
        L_vs = a.newlabel('vs')
        a.salu('s_cmp_eq_u32', None, sCT, 3)
        a.branch('s_cbranch_scc1', L_vp)
        a.valu('v_add_u32', vScA, sCA, vScBr)
        a.ds('ds_read_b32', vT[0], vScA)
        a.wait_lgkm(0)
        a.valu('v_subrev_f32', vT[0], sM, vT[0])
        a.valu('v_mul_f32', vT[0], sCS, vT[0])
        a.valu('v_exp_f32', vT[0], vT[0])
        a.valu('v_add_f32', vL, vL, vT[0])
        a.valu('v_cvt_pk_bf16_f32', vP, vT[0], vT[0])
        a.branch('s_branch', L_vs)
        a.label(L_vp)
        if prof:
            a.salu('s_add_u32', sCnt, sCnt, 1)
        a.misc('s_waitcnt vmcnt(15)')

        def lds_():
            a.vload('buffer_load_dword', SR[b_], vScGr, rWS, sCA, 0, LDF)

        def conds_():
            a.valu('v_cmp_eq_u32', 'vcc', -1, SR[b_])
            a.salu('s_cmp_eq_u64', None, 'vcc', 0)

        spin_until(lds_, conds_, sleep=8)
        a.valu('v_mov_b32', vT[0], SR[b_])
        softmax_core(vT[0])
        a.label(L_vs)
        L_ns = a.newlabel('ns')
        a.salu('s_cmp_lg_u32', None, sTag[b_], 3)
        a.branch('s_cbranch_scc1', L_ns)
        a.vload('buffer_load_dword', SR[b_], vScGr, rWS, sAux[b_], 0, LDF)
        a.label(L_ns)
        v_step(BUF[b_], 'v', sRef)
        if b_ == 1:
            a.branch('s_branch', L_nx)
    a.label(L_fl)
    a.ds('ds_write_b128', vOw, OD0, offset=L_OP)
    wave_red('v_add_f32', vL, sMn)
    a.valu('v_mov_b32', vT[2], sM)
    a.valu('v_mov_b32', vT[3], sMn)
    a.valu('v_mul_f32', vT[3], 0.25, vT[3])
    a.ds('ds_write_b64', vMr, vT[2:4], offset=L_ML)
    stamp('s_Vlast')
    if notail:
        a.branch('s_branch', 'L_end')
    a.wait_lgkm(0)
    a.barrier()
    a.wait_vm0()
    a.misc('s_setprio 0')
    stamp_val('s_units', sCnt)

    a.label('L_b4')
    a.salu('s_lshl_b32', sT2, sW, 8)
    a.valu('v_lshlrev_b32', vT[4], 2, vLane)
    a.valu('v_add_u32', vT[4], sT2, vT[4])
    a.salu('s_lshl_b32', sT1, sGrp, 2)
    a.salu('s_add_u32', sT1, sT1, sSP)
    a.salu('s_lshl_b32', sT1, sT1, 6)
    a.salu('s_lshl_b32', sT0, sW, 16)
    a.salu('s_add_u32', sT1, sT1, sT0)
    a.salu('s_add_u32', sT1, sT1, WS_IN1)
    a.wait_lgkm(0)
    a.barrier()
    stamp('B4')
    YS = VB[0:8]
    L_nc = a.newlabel('nc')
    L_y6 = a.newlabel('y6')
    a.salu('s_cmp_eq_u32', None, sW, 7)
    a.branch('s_cbranch_scc1', L_nc)
    for i in range(4):
        a.ds('ds_read_b32', YS[i], vT[4], offset=L_YP + 2048 * i)
    a.salu('s_cmp_lg_u32', None, sW, 6)
    a.branch('s_cbranch_scc1', L_y6)
    for i in range(4):
        a.ds('ds_read_b32', YS[4 + i], vT[4], offset=L_YP + 2048 * i + 256)
    a.wait_lgkm(0)
    for i in range(4):
        a.valu('v_add_f32', YS[i], YS[i], YS[4 + i])
    a.label(L_y6)
    a.wait_lgkm(0)
    a.valu('v_add_f32', YS[0], YS[0], YS[1])
    a.valu('v_add_f32', YS[2], YS[2], YS[3])
    a.valu('v_add_f32', YS[0], YS[0], YS[2])
    a.valu('v_min_u32', YS[0], -2, YS[0])
    a.vstore('buffer_store_dword', YS[0], vAt, rWS, sT1, 0, STF)
    a.label(L_nc)
    stamp('atom')
    a.salu('s_cmp_ge_u32', None, sF, NF)
    a.branch('s_cbranch_scc1', 'L_endp')

    F2B = V(84, 32)
    FA = V(116, 56)
    F1B = V(172, 56)
    RB = V(24, 28)
    a.valu('v_bfe_u32', vT[4], vLane, 2, 2)
    a.valu('v_lshl_add_u32', vT[4], vG, 3, vT[4])
    a.valu('v_and_b32', vT[5], 3, vLane)
    a.valu('v_lshlrev_b32', vT[5], 3, vT[5])
    a.valu('v_mul_u32_u24', vT[6], 896, vT[4])
    a.valu('v_add_u32', vT[6], vT[6], vT[5])
    a.salu('s_min_u32', sT2, sW, 6)
    a.salu('s_lshl_b32', sT2, sT2, 7)
    a.salu('s_add_u32', sT2, sT2, L_W2)
    a.valu('v_add_u32', vT[6], sT2, vT[6])
    for tt in range(4):
        for ks in range(2):
            for qq in range(2):
                d = F2B[(tt * 2 + ks) * 4 + 2 * qq:(tt * 2 + ks) * 4 + 2 * qq + 2]
                a.ds('ds_read_b64_tr_b16', d, vT[6], offset=(32 * ks + 4 * qq) * 896 + tt * 32)
    L_ln = a.newlabel('ln')
    L_b5 = a.newlabel('b5')
    a.salu('s_cmp_ge_u32', None, sW, 4)
    a.branch('s_cbranch_scc1', L_ln)
    a.valu('v_lshlrev_b32', vT[6], 7, vT[4])
    a.valu('v_add_u32', vT[6], vT[6], vT[5])
    a.salu('s_lshl_b32', sT2, sW, 5)
    a.salu('s_add_u32', sT2, sT2, L_W1)
    a.valu('v_add_u32', vT[6], sT2, vT[6])
    for ks in range(14):
        for qq in range(2):
            a.ds('ds_read_b64_tr_b16', F1B[ks * 4 + 2 * qq:ks * 4 + 2 * qq + 2], vT[6], offset=(32 * ks + 4 * qq) * 128)
            if (ks * 2 + qq) % 8 == 7:
                a.wait_lgkm(4)
    a.label(L_ln)
    srd(rX, sXP, 4 * 896)
    a.valu('v_mul_u32_u24', vT[7], 896, vG)
    a.valu('v_lshl_add_u32', vT[7], vJ, 1, vT[7])
    a.salu('s_lshl_b32', sT1, sF, 5)
    a.vload('buffer_load_ushort', RB[24], vT[7], rX, sT1, 0)
    a.valu('v_mov_b32', vT[4], L_SAME)
    a.ds('ds_read_b32', RB[25], vT[4])
    a.salu('s_lshl_b32', sT4, sF, 14)
    a.salu('s_lshl_b32', sT3, sW, 11)
    a.salu('s_add_u32', sT4, sT4, sT3)
    a.salu('s_add_u32', sT4, sT4, WS_IN1)
    a.salu('s_lshl_b32', sT3, sW, 8)
    a.valu('v_and_b32', vT[5], 3, vJ)
    a.valu('v_lshlrev_b32', vT[5], 4, vT[5])
    a.valu('v_lshl_add_u32', vT[5], vG, 6, vT[5])
    a.valu('v_add_u32', vT[5], sT3, vT[5])
    RI = RB[0:8]

    def ldr():
        a.vload('buffer_load_dwordx4', RI[0:4], vL16, rWS, sT4, 0, LDF)
        a.vload('buffer_load_dwordx4', RI[4:8], vL16, rWS, sT4, 1024, LDF)

    def condr():
        a.valu('v_max3_u32', vT[0], RI[0], RI[1], RI[2])
        a.valu('v_max3_u32', vT[1], RI[3], RI[4], RI[5])
        a.valu('v_max3_u32', vT[0], vT[0], RI[6], RI[7])
        a.valu('v_max_u32', vT[0], vT[0], vT[1])
        a.valu('v_cmp_eq_u32', 'vcc', -1, vT[0])
        a.salu('s_cmp_eq_u64', None, 'vcc', 0)
        if rmask:
            a.salu('s_cselect_b64', 'exec', -1, 'vcc')

    spin_until(ldr, condr, first_check=False, sleep=psleep)
    a.salu('s_mov_b64', 'exec', -1)
    stamp('red')
    for r in range(4):
        a.valu('v_add_f32', RI[r], RI[r], RI[4 + r])
    for c in ('row_ror:4', 'row_ror:8'):
        for r in range(4):
            a.dpp('v_add_f32', RI[r], RI[r], RI[r], ctrl=c)
    a.ds('ds_write_b128', vT[5], RI[0:4], offset=L_OP)
    a.valu('v_lshlrev_b32', vT[4], 9, vG)
    a.valu('v_lshl_add_u32', vT[4], vJ, 2, vT[4])
    a.valu('v_and_b32', vT[5], 1, vJ)
    a.valu('v_lshl_add_u32', vT[7], vT[5], 24, vT[7])
    a.wait_lgkm(0)
    a.barrier()
    L_nw0 = a.newlabel('nw0')
    a.salu('s_cmp_lg_u32', None, sW, 0)
    a.branch('s_cbranch_scc1', L_nw0)
    for i in range(8):
        a.ds('ds_read_b32', RB[i], vT[4], offset=L_OP + 64 * i)
    a.valu('v_lshlrev_b32', RB[24], 16, RB[24])
    a.valu('v_readfirstlane_b32', sT3, RB[25])
    a.wait_lgkm(0)
    a.valu('v_add_f32', RB[0], RB[0], RB[1])
    a.valu('v_add_f32', RB[2], RB[2], RB[3])
    a.valu('v_add_f32', RB[4], RB[4], RB[5])
    a.valu('v_add_f32', RB[6], RB[6], RB[7])
    a.valu('v_add_f32', RB[0], RB[0], RB[2])
    a.valu('v_add_f32', RB[4], RB[4], RB[6])
    a.valu('v_add_f32', RB[0], RB[0], RB[4])
    rbf(RB[0], RB[0])
    a.valu('v_add_f32', RB[0], RB[0], RB[24])
    a.dpp('v_mov_b32', RB[1], RB[0], ctrl='quad_perm:[1,0,3,2]')
    a.valu('v_cvt_pk_bf16_f32', RB[0], RB[0], RB[1])
    a.valu('v_min_u32', RB[0], -2, RB[0])
    L_hs = a.newlabel('hs')
    a.salu('s_cmp_eq_u32', None, sT3, 0)
    a.branch('s_cbranch_scc1', L_hs)
    a.vstore('buffer_store_dword', RB[0], vT[7], rWS, sT1, WS_H, '')
    a.branch('s_branch', L_b5)
    a.label(L_hs)
    a.vstore('buffer_store_dword', RB[0], vT[7], rWS, sT1, WS_H, STF)
    a.branch('s_branch', L_b5)
    a.label(L_nw0)
    a.salu('s_cmp_lt_u32', None, sW, 4)
    a.branch('s_cbranch_scc1', L_b5)
    a.salu('s_sub_u32', sT3, sW, 4)
    a.salu('s_mul_i32', sT4, sT3, 896)
    a.valu('v_mov_b32', vT[5], BIGOFF)
    a.valu('v_cndmask_b32', vT[7], vT[5], vL16, m56)
    a.valu('v_add_u32', vT[6], sT4, vL16)
    hp = RB[4:8]
    xf = RB[16:24]

    def ldc():
        a.vload('buffer_load_dwordx4', hp, vT[7], rWS, sT4, WS_H, LDF)

    def condc():
        a.valu('v_max3_u32', vT[0], hp[0], hp[1], hp[2])
        a.valu('v_max_u32', vT[0], vT[0], hp[3])
        a.valu('v_cmp_eq_u32', 'vcc', -1, vT[0])
        a.salu('s_cmp_eq_u64', None, 'vcc', 0)

    spin_until(ldc, condc, first_check=False, sleep=0)
    stamp('poll')
    unpack8(xf, hp)
    a.salu('s_mov_b64', 'exec', m56)
    a.ds('ds_write_b128', vT[6], hp, offset=L_HB)
    a.salu('s_mov_b64', 'exec', -1)
    layernorm([(xf, vT[0:4], sX0, sX1)])
    for i in range(4):
        a.valu('v_cvt_pk_bf16_f32', RB[i], xf[2 * i], xf[2 * i + 1])
    a.salu('s_mov_b64', 'exec', m56)
    a.ds('ds_write_b128', vT[6], RB[0:4], offset=L_XN2)
    a.salu('s_mov_b64', 'exec', -1)
    if debug:
        for i in range(4):
            dump(hp[i], 33 + i)
            dump(RB[i], 37 + i)
    a.label(L_b5)
    a.wait_lgkm(0)
    a.barrier()
    stamp('B5')
    L_b6 = a.newlabel('b6')
    a.salu('s_cmp_ge_u32', None, sW, 4)
    a.branch('s_cbranch_scc1', L_b6)
    a.valu('v_and_b32', vT[6], 3, vLane)
    a.valu('v_mul_u32_u24', vT[6], 896, vT[6])
    a.valu('v_lshl_add_u32', vT[6], vG, 4, vT[6])
    for ks in range(14):
        a.ds('ds_read_b128', FA[4 * ks:4 * ks + 4], vT[6], offset=L_XN2 + 64 * ks)
    Z = RB[0:4]
    for ks in range(14):
        a.wait_lgkm(min(13 - ks, 15))
        a.mfma(Z, FA[4 * ks:4 * ks + 4], F1B[4 * ks:4 * ks + 4], 0 if ks == 0 else Z)
    a.salu('s_lshl_b32', sT2, sW, 5)
    a.valu('v_lshlrev_b32', vT[6], 1, vJ)
    a.valu('v_add_u32', vT[6], sT2, vT[6])
    a.salu('s_mov_b32', sT3, -LOG2E)
    for r in range(4):
        rbf(Z[r], Z[r])
    for r in range(4):
        a.valu('v_mul_f32', RB[4 + r], sT3, Z[r])
    for r in range(4):
        a.valu('v_exp_f32', RB[4 + r], RB[4 + r])
    for r in range(4):
        a.valu('v_add_f32', RB[4 + r], 1.0, RB[4 + r])
    for r in range(4):
        a.valu('v_rcp_f32', RB[4 + r], RB[4 + r])
    for r in range(4):
        a.valu('v_mul_f32', Z[r], Z[r], RB[4 + r])
    for r in range(4):
        a.valu('v_cvt_pk_bf16_f32', Z[r], Z[r], Z[r])
        a.ds('ds_write_b16', vT[6], Z[r], offset=L_GB + 128 * r)
    if debug:
        for r in range(4):
            dump(Z[r], 41 + r)
    a.label(L_b6)
    a.wait_lgkm(0)
    a.barrier()
    stamp('B6')
    L_fin = a.newlabel('fin')
    a.salu('s_cmp_ge_u32', None, sW, 7)
    a.branch('s_cbranch_scc1', L_fin)
    a.valu('v_and_b32', vT[6], 3, vLane)
    a.valu('v_lshlrev_b32', vT[6], 7, vT[6])
    a.valu('v_lshl_add_u32', vT[6], vG, 4, vT[6])
    a.ds('ds_read_b128', FA[0:4], vT[6], offset=L_GB)
    a.ds('ds_read_b128', FA[4:8], vT[6], offset=L_GB + 64)
    a.valu('v_mov_b32', vT[4], L_SAME)
    a.ds('ds_read_b32', vT[5], vT[4])
    a.salu('s_mul_i32', sT2, sW, 4 * 7168)
    a.salu('s_lshl_b32', sT3, sF, 8)
    a.salu('s_add_u32', sT2, sT2, sT3)
    a.salu('s_add_u32', sT2, sT2, WS_INBOX)
    a.wait_lgkm(0)
    O2 = [RB[4 * tt:4 * tt + 4] for tt in range(4)]
    for tt in range(4):
        a.mfma(O2[tt], FA[0:4], F2B[(tt * 2) * 4:(tt * 2) * 4 + 4], 0)
    for tt in range(4):
        a.mfma(O2[tt], FA[4:8], F2B[(tt * 2 + 1) * 4:(tt * 2 + 1) * 4 + 4], O2[tt])
    a.valu('v_readfirstlane_b32', sT3, vT[5])
    a.salu('s_mov_b64', 'exec', 0xffff)
    L_slow = a.newlabel('slow')
    L_sd = a.newlabel('sd')
    a.salu('s_cmp_eq_u32', None, sT3, 0)
    a.branch('s_cbranch_scc1', L_slow)
    for flags, lab in (('', None), (STF, L_slow)):
        if lab:
            a.label(lab)
        for tt in range(4):
            for r in range(4):
                a.valu('v_min_u32', O2[tt][r], -2, O2[tt][r])
            a.vstore('buffer_store_dwordx4', O2[tt], vL16, rWS, sT2, 0, flags)
            if tt < 3:
                a.salu('s_add_u32', sT2, sT2, 7168)
        if not lab:
            a.branch('s_branch', L_sd)
    a.label(L_sd)
    a.salu('s_or_b32', sT2, sF, sW)
    a.salu('s_cmp_lg_u32', None, sT2, 0)
    a.branch('s_cbranch_scc1', 'L_endp')
    a.salu('s_mov_b64', 'exec', 1)
    a.valu('v_mov_b32', vT[4], sEp)
    a.valu('v_mov_b32', vT[5], 0)
    a.salu('s_mov_b32', sT2, WS_EPOCH)
    a.vstore('buffer_store_dword', vT[4], vT[5], rWS, sT2, 0, STF)
    a.branch('s_branch', 'L_endp')
    a.label(L_fin)
    a.valu('v_mul_u32_u24', vT[6], 896, vG)
    a.valu('v_lshl_add_u32', vT[6], vJ, 1, vT[6])
    a.salu('s_lshl_b32', sT2, sF, 5)
    a.valu('v_add_u32', vT[6], sT2, vT[6])
    a.ds('ds_read_u16', vT[7], vT[6], offset=L_HB)
    a.salu('s_mul_i32', sT3, sF, 7168)
    a.salu('s_add_u32', sT3, sT3, WS_INBOX)
    a.salu('s_add_u32', sT4, sT3, 4096)
    IB = V(116, 28)

    def ldi():
        for i in range(7):
            a.vload('buffer_load_dwordx4', IB[4 * i:4 * i + 4], vL16, rWS, sT3 if i < 4 else sT4, (i % 4) * 1024, LDF)

    def condi():
        a.valu('v_max3_u32', vT[0], IB[0], IB[1], IB[2])
        for i in range(3, 27, 2):
            a.valu('v_max3_u32', vT[0], vT[0], IB[i], IB[i + 1])
        a.valu('v_max_u32', vT[0], vT[0], IB[27])
        a.valu('v_cmp_eq_u32_e64', S(100, 2), -1, vT[0])
        a.salu('s_cmp_eq_u64', None, S(100, 2), 0)

    spin_until(ldi, condi, first_check=False, sleep=0)
    stamp('inbox')
    for i in range(1, 7):
        for r in range(4):
            a.valu('v_add_f32', IB[r], IB[r], IB[4 * i + r])
    for r in range(4):
        a.valu('v_mov_b32', IB[4 + r], IB[r])
    for r in range(4):
        a.valu('v_permlane16_swap_b32', IB[r], IB[4 + r])
    for r in range(4):
        a.valu('v_add_f32', IB[r], IB[r], IB[4 + r])
    for r in range(4):
        a.valu('v_mov_b32', IB[4 + r], IB[r])
    for r in range(4):
        a.valu('v_permlane32_swap_b32', IB[r], IB[4 + r])
    for r in range(4):
        a.valu('v_add_f32', IB[r], IB[r], IB[4 + r])
    for r in range(1, 4):
        a.valu('v_cmp_eq_u32', 'vcc', r, vG)
        a.valu('v_cndmask_b32', IB[0], IB[0], IB[r], 'vcc')
    rbf(IB[0], IB[0])
    a.wait_lgkm(0)
    a.valu('v_lshlrev_b32', vT[7], 16, vT[7])
    a.valu('v_add_f32', IB[0], IB[0], vT[7])
    a.valu('v_cvt_pk_bf16_f32', IB[0], IB[0], IB[0])
    a.vstore('buffer_store_short', IB[0], vT[6], rOUT, 0, 0)
    a.label('L_endp')
    stamp('end')
    stamp_store()
    a.label('L_end')
    A('  s_endpgm')
    A('.section .rodata,"a"')
    A('.p2align 6')
    A(f'.amdhsa_kernel {KNAME}')
    A('  .amdhsa_next_free_vgpr 256')
    A('  .amdhsa_next_free_sgpr 102')
    A('  .amdhsa_accum_offset 256')
    A('  .amdhsa_group_segment_fixed_size 0')
    A('  .amdhsa_kernarg_size 88')
    A('  .amdhsa_user_sgpr_count 2')
    A('  .amdhsa_user_sgpr_kernarg_segment_ptr 1')
    A('  .amdhsa_system_sgpr_workgroup_id_x 1')
    A('  .amdhsa_float_denorm_mode_32 3')
    A('.end_amdhsa_kernel')
    if prof:
        A('; STAMPS ' + ' '.join(stamp_names))
    return a.text()


if __name__ == '__main__':
    out = [x for x in sys.argv[1:] if not x.startswith('--')]
    path = out[0] if out else os.path.join(os.path.dirname(os.path.abspath(__file__)), '..', 'cdna_kernels', NAME + '.s')
    kw = {}
    for x in sys.argv[1:]:
        if x.startswith('--') and '=' in x:
            k_, v_ = x[2:].split('=')
            kw[k_] = int(v_)
    open(path, 'w').write(build(debug='--debug' in sys.argv, prof='--prof' in sys.argv, **kw))
    print('wrote', path)
```

```python
import os
import sys

sys.path.insert(0, os.path.dirname(os.path.abspath(__file__)))
from asmlib import Asm, V, S

NAME = 'sequential_preLN__mha_block_cached__dense_activation_silu__decode'
KNAME = NAME + '_kernel'

NWG = 256
NF = 28
LOG2E = 1.4426950408889634
CS = LOG2E / 16.0

WS_H = 0
WS_EPOCH = 24576
WS_INBOX = 32768
WS_Q = 0x40000
WS_POOL = 0x60000
WS_MAIL = 0x80000
WS_IN1 = 0x100000
WS_SC = 0x200000
WS_BYTES = 4 << 20
WS_DBG = 4 << 20
DB_INITF = 40

L_XN2 = 0
L_HB = 4096
L_GB = 8192
L_QBF = 8704
L_ML = 9216
L_CNT = 9344
L_FLAG = 9348
L_SVC = 9352
L_ARR = 9356
L_SAME = 9360
L_OP = 9472
L_SC = L_OP
L_YP = 17920
L_OQ = L_YP + 8192
L_WQS = L_YP
L_W1 = 34816
L_W2 = L_W1 + 57344
LDS_BYTES = L_W2 + 57344

SPIN_BOUND = 200000
BIGOFF = 0x1000000


def build(debug=False, prof=False, npriv=112, xmap=1, gsleep=0, ldf=0, stf=0, use_c=1, skipq=0, nocomp=0, nowo=0, notail=0, prio=2, smalllds=0, nodma=0, nowq=0, wnt=1, psleep=0, kpol=0, vpol=0, diag=0, fastx=1, rmask=1, nffn=80, rot=0, NPW=6, NPWF=10, ig4=1, nosc=0, noinit=0, pp=1, ppg=1):
    assert NPW % 2 == 0 and NPWF % 2 == 0 and 4 <= NPW <= NPWF <= 16
    POL = ['nt', '', 'nt sc0', 'nt sc1', 'sc1']
    KP, VP = POL[kpol], POL[vpol]
    WF = 'nt' if wnt else ''
    LDF = ['sc1', 'sc0 sc1'][ldf]
    STF = ['sc1', 'sc0 sc1'][stf]
    a = Asm()
    A = a.raw
    hdr = open(os.path.join(os.path.dirname(os.path.abspath(__file__)), '..', 'cdna_kernels', NAME + '.s.ref')).read().split('\n')
    for ln in hdr:
        if ln.startswith(';') and '@launch' not in ln:
            A(ln)
        elif '@launch' in ln:
            A(f'; @launch grid=({NWG},1,1) block=(512,1,1) lds={LDS_BYTES if not smalllds else 16384}')
        else:
            break
    A('.amdgcn_target "amdgcn-amd-amdhsa--gfx950"')
    A('.text')
    A(f'.globl {KNAME}')
    A('.p2align 8')
    A(f'.type {KNAME},@function')
    A(f'{KNAME}:')

    sID = S(2)
    sF = S(0)
    sGrp = S(3)
    sW, sB, sH, sSP = S(4), S(5), S(6), S(7)
    sT0, sT1, sT2, sT3, sT4, sT5 = S(8), S(9), S(10), S(11), S(12), S(13)
    sNext = S(14)
    sIdx = S(15)
    P = lambda i: S(16 + 2 * i, 2)
    pOUT, pDBG, pWS = S(32, 2), S(34, 2), S(36, 2)
    sM = S(38)
    sMn = S(39)
    rK, rV, rWQ, rWO, rX, rW1, rW2, rOUT, rDBG, rWS = [S(40 + 4 * i, 4) for i in range(10)]
    sPool = S(80, 2)
    sExh = S(82)
    sCur, sN, sP0, sRef = S(28), S(29), S(30), S(31)
    sNP, sScB, sTag0, sTag1, sWgB, sPub = S(16), S(17), S(18), S(19), S(20), S(21)
    sAux0, sAux1, sPh, sCT, sCA, sGotM = S(26), S(27), S(1), S(56), S(57), S(58)
    sCS = S(83)
    mT = [S(84 + 2 * t, 2) for t in range(4)]
    mJ8 = S(92, 2)
    m56 = S(94, 2)
    mG2 = S(96, 2)
    sX0, sX1 = S(98), S(99)
    sXP = S(100, 2)
    sEp = S(32)
    rWSD = rWQ
    LNS = [S(16), S(17), S(18), S(19), S(20), S(21), S(0), S(1)]
    sCnt = S(33)

    vTid = V(0)
    vLane, vJ, vG = V(1), V(2), V(3)
    vKoff, vKoff2, vVoff, vVoff2 = V(4), V(5), V(6), V(7)
    vMask = V(8, 4)
    vWoOff, vWoRem = V(12), V(13)
    vL = V(14)
    vL16 = V(15)
    vT = V(16, 8)
    OD0, OD1 = V(24, 4), V(28, 4)
    KD = V(32, 4)
    PB = V(36, 16)
    QB = V(52, 32)
    KB, VB, KB2, VB2 = V(84, 32), V(116, 32), V(148, 32), V(180, 32)
    XT = V(212, 44)
    WO = V(148, 56)
    vIdx, vOne, vCntA, vChk = XT[0], XT[1], XT[2], XT[3]
    vOw, vOr, vMr, vYw, vAt = XT[4], XT[5], XT[6], XT[7], XT[8]
    vPubOff, vGatOff, vGatML = XT[9], XT[10], XT[11]

    def dump(reg, slot):
        if not debug:
            return
        a.salu('s_lshl_b32', sX0, sID, 3)
        a.salu('s_add_u32', sX0, sX0, sW)
        a.salu('s_lshl_b32', sX0, sX0, 14)
        a.salu('s_add_u32', sX0, sX0, WS_DBG + slot * 256)
        a.valu('v_lshlrev_b32', XT[43], 2, vLane)
        a.vstore('buffer_store_dword', reg, XT[43], rWSD, sX0)

    stamp_names = []
    early = []

    DIAG = {'v_issued': 2, 'q_got': 3, 's_issued': 4, 'v_B3': 5, 'v_gath': 6, 'atom': 7, 'poll': 8, 'B6': 9, 'end': 11, 's_q': 12}

    def diag_put(slot, sreg, invert=False):
        r_ = S(25) if invert else S(24)
        a.salu('s_not_b32' if invert else 's_mov_b32', r_, sreg)
        a.misc(f's_atomic_umax {r_}, {pDBG}, {slot * 4}')

    def stamp(name, late=True):
        if diag and name in DIAG:
            wv = 0 if name[:2] in ('v_', 'q_') else 4 if name[:2] == 's_' else 7
            L_d = a.newlabel('diag')
            a.salu('s_cmp_lg_u32', None, sW, wv)
            a.branch('s_cbranch_scc1', L_d)
            a.misc('s_memrealtime s[22:23]')
            a.wait_lgkm(0)
            diag_put(DIAG[name], S(22))
            if name == 'v_B3':
                diag_put(13, S(22), True)
            if name == 'v_issued':
                a.wait_lgkm(0)
                diag_put(0, S(26), True)
                diag_put(1, S(26))
            a.label(L_d)
            return
        if not prof:
            return
        k = len(stamp_names)
        stamp_names.append(name)
        a.misc('s_memrealtime s[22:23]')
        a.wait_lgkm(0)
        if late:
            a.valu('v_writelane_b32', V(0), S(22), k, rmw=True)
        else:
            a.salu('s_mov_b32', S(24 + len(early)), S(22))
            early.append(k)

    def stamp_val(name, sreg):
        if not prof:
            return
        k = len(stamp_names)
        stamp_names.append(name)
        a.valu('v_writelane_b32', V(0), sreg, k, rmw=True)

    def stamp_flush_early():
        if not prof:
            return
        for i, k in enumerate(early):
            a.valu('v_writelane_b32', V(0), S(24 + i), k, rmw=True)

    def stamp_store():
        if not prof:
            return
        a.salu('s_mov_b64', 'exec', -1)
        a.salu('s_lshl_b32', sX0, sID, 3)
        a.salu('s_add_u32', sX0, sX0, sW)
        a.salu('s_lshl_b32', sX0, sX0, 8)
        a.salu('s_add_u32', sX0, sX0, WS_DBG)
        a.valu('v_lshlrev_b32', V(23), 2, vLane)
        a.vstore('buffer_store_dword', V(0), V(23), rWSD, sX0)

    def srd(r, ptr, nbytes, off=None):
        if off is None:
            a.salu('s_mov_b32', r[0], ptr[0])
            a.salu('s_mov_b32', r[1], ptr[1])
        else:
            a.salu('s_add_u32', r[0], ptr[0], off)
            a.salu('s_addc_u32', r[1], ptr[1], 0)
        a.salu('s_mov_b32', r[2], nbytes)
        a.salu('s_mov_b32', r[3], 0x00020000)

    def wave_red_multi(op, vs, sdsts, quads_equal=False):
        ctrls = ['row_ror:4', 'row_ror:8'] if quads_equal else ['quad_perm:[1,0,3,2]', 'quad_perm:[2,3,0,1]', 'row_half_mirror', 'row_mirror']
        for c in ctrls:
            for v in vs:
                a.dpp(op, v, v, v, ctrl=c)
        for v in vs:
            a.dpp(op, v, v, v, ctrl='row_bcast:15', row_mask=0xa)
        for v in vs:
            a.dpp(op, v, v, v, ctrl='row_bcast:31', row_mask=0xc)
        for v, s_ in zip(vs, sdsts):
            a.valu('v_readlane_b32', s_, v, 63)

    def wave_red(op, v, sdst, quads_equal=False):
        wave_red_multi(op, [v], [sdst], quads_equal)

    def rbf(dst, src):
        a.valu('v_cvt_pk_bf16_f32', dst, src, src)
        a.valu('v_and_b32', dst, 0xffff0000, dst)

    def unpack8(xf, raw):
        for i in range(4):
            a.valu('v_lshlrev_b32', xf[2 * i], 16, raw[i])
            a.valu('v_and_b32', xf[2 * i + 1], 0xffff0000, raw[i])

    def layernorm(rows):
        def each(f):
            for r_ in rows:
                f(*r_)
        each(lambda xf, t, s0, s1: a.valu('v_add_f32', t[0], xf[0], xf[1]))
        each(lambda xf, t, s0, s1: a.valu('v_add_f32', t[1], xf[2], xf[3]))
        each(lambda xf, t, s0, s1: a.valu('v_add_f32', t[2], xf[4], xf[5]))
        each(lambda xf, t, s0, s1: a.valu('v_add_f32', t[3], xf[6], xf[7]))
        each(lambda xf, t, s0, s1: a.valu('v_add_f32', t[0], t[0], t[1]))
        each(lambda xf, t, s0, s1: a.valu('v_add_f32', t[2], t[2], t[3]))
        each(lambda xf, t, s0, s1: a.valu('v_add_f32', t[0], t[0], t[2]))
        wave_red_multi('v_add_f32', [r_[1][0] for r_ in rows], [r_[2] for r_ in rows])
        each(lambda xf, t, s0, s1: a.valu('v_mov_b32', t[0], s0))
        each(lambda xf, t, s0, s1: a.valu('v_mul_f32', t[0], 1.0 / 448.0, t[0]))
        each(lambda xf, t, s0, s1: a.valu('v_sub_f32', t[1], xf[0], t[0]))
        each(lambda xf, t, s0, s1: a.valu('v_mul_f32', t[2], t[1], t[1]))
        for i in range(1, 8):
            each(lambda xf, t, s0, s1: a.valu('v_sub_f32', t[1], xf[i], t[0]))
            each(lambda xf, t, s0, s1: a.valu('v_fmac_f32', t[2], t[1], t[1]))
        each(lambda xf, t, s0, s1: a.valu('v_cndmask_b32', t[2], 0, t[2], m56))
        wave_red_multi('v_add_f32', [r_[1][2] for r_ in rows], [r_[3] for r_ in rows])
        each(lambda xf, t, s0, s1: rbf(t[0], t[0]))
        each(lambda xf, t, s0, s1: a.valu('v_mov_b32', t[2], s1))
        each(lambda xf, t, s0, s1: a.valu('v_mul_f32', t[2], 1.0 / 448.0, t[2]))
        each(lambda xf, t, s0, s1: rbf(t[2], t[2]))
        each(lambda xf, t, s0, s1: a.valu('v_add_f32', t[2], 1e-5, t[2]))
        each(lambda xf, t, s0, s1: rbf(t[2], t[2]))
        each(lambda xf, t, s0, s1: a.valu('v_sqrt_f32', t[2], t[2]))
        each(lambda xf, t, s0, s1: rbf(t[2], t[2]))
        each(lambda xf, t, s0, s1: a.valu('v_rcp_f32', t[2], t[2]))
        for i in range(0, 8, 2):
            each(lambda xf, t, s0, s1: a.valu('v_sub_f32', xf[i], xf[i], t[0]))
            each(lambda xf, t, s0, s1: a.valu('v_sub_f32', xf[i + 1], xf[i + 1], t[0]))
            each(lambda xf, t, s0, s1: a.valu('v_cvt_pk_bf16_f32', t[1], xf[i], xf[i + 1]))
            each(lambda xf, t, s0, s1: a.valu('v_lshlrev_b32', xf[i], 16, t[1]))
            each(lambda xf, t, s0, s1: a.valu('v_and_b32', xf[i + 1], 0xffff0000, t[1]))
            each(lambda xf, t, s0, s1: a.valu('v_mul_f32', xf[i], xf[i], t[2]))
            each(lambda xf, t, s0, s1: a.valu('v_mul_f32', xf[i + 1], xf[i + 1], t[2]))

    def spin_until(load_fn, cond_fn, first_check=True, sleep=1):
        done = a.newlabel('done')
        loop = a.newlabel('spin')
        if first_check:
            cond_fn()
            a.branch('s_cbranch_scc1', done)
        a.salu('s_mov_b32', sT5, SPIN_BOUND)
        a.label(loop)
        load_fn()
        a.wait_vm0()
        cond_fn()
        a.branch('s_cbranch_scc1', done)
        if sleep:
            a.misc(f's_sleep {sleep}')
        a.salu('s_sub_u32', sT5, sT5, 1)
        a.salu('s_cmp_lg_u32', None, sT5, 0)
        a.branch('s_cbranch_scc1', loop)
        a.label(done)

    def spin_pipe(sets, RES, load_fn, nloads, stagger=2):
        n = len(sets)
        loop = a.newlabel('pspin')
        done = a.newlabel('pdone')
        hits = [a.newlabel('phit') for _ in sets]
        for k, st in enumerate(sets):
            load_fn(st)
            if k < n - 1 and stagger:
                a.misc(f's_sleep {stagger}')
        a.salu('s_mov_b32', sT5, SPIN_BOUND)
        a.label(loop)
        for k, st in enumerate(sets):
            a.misc(f's_waitcnt vmcnt({(n - 1) * nloads})')
            regs = [st[i] for i in range(st.n)]
            acc = None
            while regs:
                if acc is None and len(regs) >= 3:
                    a.valu('v_max3_u32', vT[0], regs[0], regs[1], regs[2]); regs = regs[3:]
                elif acc is None:
                    a.valu('v_max_u32', vT[0], regs[0], regs[-1]); regs = []
                elif len(regs) >= 2:
                    a.valu('v_max3_u32', vT[0], vT[0], regs[0], regs[1]); regs = regs[2:]
                else:
                    a.valu('v_max_u32', vT[0], vT[0], regs[0]); regs = []
                acc = True
            a.valu('v_cmp_eq_u32', 'vcc', -1, vT[0])
            a.salu('s_cmp_eq_u64', None, 'vcc', 0)
            a.branch('s_cbranch_scc1', hits[k])
            load_fn(st)
        a.salu('s_sub_u32', sT5, sT5, 1)
        a.salu('s_cmp_lg_u32', None, sT5, 0)
        a.branch('s_cbranch_scc1', loop)
        a.wait_vm0()
        for k in range(n - 1, -1, -1):
            a.label(hits[k])
            for i in range(sets[k].n):
                a.valu('v_mov_b32', RES[i], sets[k][i])
            if k:
                a.branch('s_branch', done)
        a.label(done)

    def issue_k(buf, soff):
        for i in range(8):
            o = i * 1024
            a.vload('buffer_load_dwordx4', buf[4 * i:4 * i + 4], vKoff if o < 4096 else vKoff2, rK, soff, o % 4096, KP)

    def issue_v(buf, soff):
        for i in range(8):
            o = i * 1024
            a.vload('buffer_load_dwordx4', buf[4 * i:4 * i + 4], vVoff if o < 4096 else vVoff2, rV, soff, o % 4096, VP)

    def koff(i):
        o = i * 1024
        return (vKoff if o < 4096 else vKoff2), o % 4096

    def voff(i):
        o = i * 1024
        return (vVoff if o < 4096 else vVoff2), o % 4096

    TS = 4 * 8192

    def issue_static_units():
        assert fastx and xmap == 1
        a.salu('s_lshl_b32', sCur, sSP, 8 if ig4 else 7)
        a.salu('s_add_u32', sCur, sCur, sW)
        a.salu('s_sub_u32', sCur, sCur, 4)
        a.salu('s_lshl_b32', sCur, sCur, 12 if ig4 else 13)
        a.salu('s_mov_b32', sT5, sCur)
        issue_k(KB2, sCur)
        a.salu('s_add_u32', sCur, sCur, TS)
        issue_k(VB2, sCur)
        a.salu('s_add_u32', sCur, sCur, TS)
        a.salu('s_mov_b32', sN, 2)
        L_cd = a.newlabel('cd')
        a.salu('s_cmp_lt_u32', None, sF, NF)
        a.branch('s_cbranch_scc1', L_cd)
        a.salu('s_mov_b32', sN, 4)
        a.salu('s_sub_u32', sT4, sW, 4)
        a.salu('s_lshl_b32', sT4, sT4, 14)
        a.salu('s_add_u32', sT4, sT4, L_W1)
        for i in range(16):
            vo, o = koff(i % 8)
            a.salu('s_add_u32', sT0, sT4, i * 1024 - o)
            a.salu('s_mov_b32', 'm0', sT0)
            a.vload_lds(vo, rK, sCur, o, KP)
            if i % 8 == 7:
                a.salu('s_add_u32', sCur, sCur, TS)
        a.label(L_cd)
        issue_k(KB, sCur)
        a.salu('s_add_u32', sT3, sCur, TS)
        issue_k(VB, sT3)

    a.salu('s_cmp_ge_u32', None, sID, NWG)
    a.branch('s_cbranch_scc1', 'L_end')
    if rot:
        a.salu('s_add_u32', sID, sID, rot)
        a.salu('s_and_b32', sID, sID, 255)
    if prof or diag:
        a.misc('s_memrealtime s[84:85]')
    a.misc('s_load_dwordx16 s[16:31], s[0:1], 0')
    a.misc('s_load_dwordx4 s[32:35], s[0:1], 64')
    a.misc('s_load_dwordx2 s[36:37], s[0:1], 80')
    a.valu('v_lshrrev_b32', vT[0], 6, vTid)
    a.valu('v_and_b32', vLane, 63, vTid)
    a.valu('v_readfirstlane_b32', sW, vT[0])
    a.valu('v_and_b32', vJ, 15, vTid)
    a.valu('v_lshrrev_b32', vG, 4, vLane)
    a.valu('v_bfe_u32', vT[1], vLane, 3, 1)
    a.valu('v_and_b32', vT[2], 7, vLane)
    a.valu('v_lshlrev_b32', vT[1], 9, vT[1])
    a.valu('v_lshlrev_b32', vT[2], 4, vT[2])
    a.valu('v_lshl_add_u32', vKoff, vG, 7, vT[1])
    a.valu('v_add_u32', vKoff, vKoff, vT[2])
    a.valu('v_add_u32', vKoff2, 16384 if ig4 else 4096, vKoff)
    a.valu('v_lshlrev_b32', vL16, 4, vLane)
    a.valu('v_lshlrev_b32', vVoff, 4, vLane)
    a.valu('v_add_u32', vVoff2, 16384 if ig4 else 4096, vVoff)
    if xmap == 1:
        a.salu('s_lshr_b32', sT0, sID, 3)
        a.salu('s_and_b32', sT2, sT0, 7)
        a.salu('s_mul_i32', sT1, sT2, 11)
        a.salu('s_lshr_b32', sT1, sT1, 5)
        a.salu('s_mul_i32', sT1, sT1, 3)
        a.salu('s_sub_u32', sT1, sT2, sT1)
        a.salu('s_add_u32', sT1, sT1, 1)
        a.salu('s_bfe_u32', sSP, sID, (2 << 16) | 1)
        a.salu('s_and_b32', sT3, sSP, sT1)
        a.salu('s_bcnt1_i32_b32', sT3, sT3)
        a.salu('s_xor_b32', sT3, sT3, sID)
        a.salu('s_and_b32', sT3, sT3, 1)
        a.salu('s_lshl_b32', sGrp, sT0, 1)
        a.salu('s_add_u32', sGrp, sGrp, sT3)
    else:
        a.salu('s_lshr_b32', sGrp, sID, 2)
        a.salu('s_and_b32', sSP, sID, 3)
    a.salu('s_lshr_b32', sB, sGrp, 4)
    a.salu('s_and_b32', sH, sGrp, 15)
    a.salu('s_lshl_b32', sT1, sGrp, 22)
    a.salu('s_lshr_b32', sT5, sID, 3)
    if fastx:
        a.salu('s_and_b32', sT4, sID, 7)
    else:
        a.salu('s_lshl_b32', sT4, sT5, 1)
        a.salu('s_xor_b32', sT4, sT4, sID)
        a.salu('s_and_b32', sT4, sT4, 7)
    a.salu('s_cmp_eq_u32', None, sT4, 0)
    a.salu('s_cselect_b32', sT5, sT5, 255)
    a.valu('v_mov_b32', vT[2], 0)
    a.valu('v_mov_b32', vT[3], 0)
    a.valu('v_mov_b32', vCntA, L_CNT)
    a.valu('v_mov_b32', vT[4], 0)
    a.valu('v_mov_b32', vT[5], 0)
    a.ds('ds_write_b128', vCntA, vT[2:6])
    a.salu('s_cmp_lt_u32', None, sT5, NF)
    a.salu('s_cselect_b32', sT2, 16, 24)
    a.valu('v_mov_b32', PB[0], 0)
    a.valu('v_mov_b32', PB[1], sT2)
    a.valu('v_mov_b32', PB[2], 0)
    a.valu('v_mov_b32', PB[3], 0)
    a.ds('ds_write_b128', vCntA, PB[0:4], offset=16)
    for i in range(4):
        a.valu('v_mov_b32', PB[4 + i], -1)
    a.valu('v_lshlrev_b32', vT[6], 4, vTid)
    a.ds('ds_write_b128', vT[6], PB[4:8], offset=L_SC)
    a.wait_lgkm(0)
    a.salu('s_mov_b32', sF, sT5)
    if diag:
        a.salu('s_mov_b32', S(26), S(84))
    a.barrier()
    if prof:
        stamp_names.append('entry')
        a.valu('v_writelane_b32', V(0), S(84), 0, rmw=True)

    def xcc_word(dst, n):
        a.misc(f's_getreg_b32 {sX0}, hwreg(HW_REG_XCC_ID)')
        a.salu('s_and_b32', sX0, sX0, 15)
        a.salu('s_mul_i32', sX1, sX0, sX0)
        a.salu('s_lshl_b32', sX0, sX0, 8)
        a.salu('s_lshl_b32', sX1, sX1, 18)
        a.salu('s_or_b32', dst, sX0, sX1)
        a.salu('s_or_b32', dst, dst, 1)
        if n != 1:
            a.salu('s_mul_i32', dst, dst, n)

    def common_setup():
        srd(rWS, pWS, WS_BYTES)
        srd(rOUT, pOUT, 4 * 896)
        srd(rDBG, pDBG, 256)
        a.salu('s_mov_b32', sXP[0], P(0)[0])
        a.salu('s_mov_b32', sXP[1], P(0)[1])
        if prof:
            a.salu('s_mov_b32', sCnt, 0)
        a.valu('v_cmp_gt_u32_e64', mJ8, 8, vJ)
        a.valu('v_cmp_gt_u32_e64', m56, 56, vLane)
        a.valu('v_cmp_gt_u32_e64', mG2, 2, vG)
        a.valu('v_and_b32', vT[2], 1, vJ)
        a.valu('v_lshlrev_b32', vT[2], 4, vT[2])
        a.valu('v_mov_b32', vT[3], 0xffff)
        a.valu('v_lshlrev_b32', vT[3], vT[2], vT[3])
        a.valu('v_bfe_u32', vT[2], vJ, 1, 2)
        for r in range(4):
            a.valu('v_cmp_eq_u32', 'vcc', r, vT[2])
            a.valu('v_cndmask_b32', vMask[r], 0, vT[3], 'vcc')
        a.valu('v_mov_b32', vOne, 1)
        a.salu('s_mov_b32', sCS, CS)
        a.valu('v_lshrrev_b32', vAt, 2, vLane)
        a.valu('v_lshlrev_b32', vAt, 14, vAt)
        a.valu('v_and_b32', vT[6], 3, vLane)
        a.valu('v_lshl_add_u32', vAt, vT[6], 4, vAt)

    def h_offset(dst, tmp):
        a.valu('v_and_b32', tmp, 3, vJ)
        a.valu('v_mul_u32_u24', dst, 896, vG)
        a.valu('v_lshl_add_u32', dst, tmp, 4, dst)
        a.valu('v_lshrrev_b32', tmp, 2, vJ)
        a.valu('v_lshl_add_u32', dst, tmp, 1, dst)

    def h_soffset(dst, tmp):
        a.salu('s_lshr_b32', dst, sF, 1)
        a.salu('s_lshl_b32', dst, dst, 6)
        a.salu('s_and_b32', tmp, sF, 1)
        a.salu('s_lshl_b32', tmp, tmp, 3)
        a.salu('s_add_u32', dst, dst, tmp)

    L_stream = 'L_stream'
    L_b3 = 'L_b3'
    a.salu('s_cmp_ge_u32', None, sW, 4)
    a.branch('s_cbranch_scc1', L_stream)

    L_svc = a.newlabel('svc')
    L_svc2 = a.newlabel('svc2')
    if notail == 1:
        a.branch('s_branch', 'L_end')
    a.misc('s_setprio 3')
    a.salu('s_mul_i32', sT2, sW, 896)
    srd(rX, P(0), 896, sT2)
    srd(rWQ, P(3), 448 * 8192 if not nowq else 0)
    XR = KB[0:4]
    vEp = XT[12]
    a.vload('buffer_load_dwordx4', XR, vL16, rX)
    a.valu('v_lshrrev_b32', vT[1], 1, vLane)
    a.valu('v_lshlrev_b32', vT[1], 13, vT[1])
    a.valu('v_and_b32', vT[2], 1, vLane)
    a.valu('v_lshl_add_u32', vT[1], vT[2], 4, vT[1])
    a.salu('s_lshl_b32', sT2, sSP, 2)
    a.salu('s_add_u32', sT2, sT2, sB)
    a.salu('s_lshl_b32', sT2, sT2, 5)
    a.salu('s_lshl_b32', sT3, sH, 9)
    a.salu('s_add_u32', sT2, sT2, sT3)
    a.salu('s_lshl_b32', sT3, sW, 18)
    a.salu('s_add_u32', sT2, sT2, sT3)
    a.salu('s_lshl_b32', sT3, sW, 10)
    a.salu('s_add_u32', sT3, sT3, L_WQS)
    for i in range(4):
        a.salu('s_mov_b32', 'm0', sT3)
        a.vload_lds(vT[1], rWQ, sT2, 0, WF)
        if i < 3:
            a.salu('s_add_u32', sT2, sT2, 4 * 32 * 8192)
            a.salu('s_add_u32', sT3, sT3, 4096)
    srd(rWS, pWS, WS_BYTES)
    a.salu('s_lshl_b32', sT2, sW, 24)
    a.valu('v_mov_b32', vT[2], sT2)
    a.salu('s_mov_b32', sT2, WS_EPOCH)
    a.vload('buffer_load_dword', vEp, vT[2], rWS, sT2, 0, LDF)
    MK = VB[0:4]
    sBig = S(39)
    if noinit:
        a.salu('s_mov_b32', sBig, BIGOFF)
    ZR = VB[4:8]
    for i in range(4):
        a.valu('v_mov_b32', MK[i], -1)
        a.valu('v_mov_b32', ZR[i], 0)
    a.salu('s_lshl_b32', sT2, sGrp, 2)
    a.salu('s_add_u32', sT2, sT2, sSP)
    a.salu('s_lshl_b32', sT2, sT2, 2)
    a.salu('s_add_u32', sT2, sT2, sW)
    a.salu('s_lshl_b32', sT2, sT2, 9)
    a.salu('s_add_u32', sT2, sT2, WS_MAIL)
    a.valu('v_lshrrev_b32', vT[1], 5, vLane)
    a.valu('v_lshl_add_u32', vT[1], vT[1], 24, vL16)
    a.vstore('buffer_store_dwordx4', MK, vT[1], rWS, sT2 if not noinit else sBig, 0, STF)
    a.salu('s_lshl_b32', sT2, sGrp, 8)
    a.salu('s_add_u32', sT2, sT2, WS_POOL)
    a.salu('s_xor_b32', sT3, sW, 1)
    a.salu('s_add_u32', sT3, sT3, sSP)
    a.valu('v_lshrrev_b32', vT[1], 1, vLane)
    a.valu('v_add_u32', vT[1], sT3, vT[1])
    a.valu('v_lshlrev_b32', vT[1], 24, vT[1])
    a.valu('v_lshl_add_u32', vT[1], vLane, 7, vT[1])
    a.vstore('buffer_store_dword', ZR[0], vT[1], rWS, sT2, 0, STF)
    a.salu('s_lshl_b32', sT2, sGrp, 2)
    a.salu('s_add_u32', sT2, sT2, sSP)
    a.salu('s_lshl_b32', sT2, sT2, 13)
    a.salu('s_lshl_b32', sT3, sW, 10)
    a.salu('s_add_u32', sT2, sT2, sT3)
    a.salu('s_add_u32', sT2, sT2, WS_SC + 4096)
    a.vstore('buffer_store_dwordx4', MK, vL16, rWS, sT2 if not noinit else sBig, 0, STF)
    n_after_x = 8
    srd(rWO, P(4), 4096 * 896 if not nowo else 0)
    srd(rW1, P(6), 448 * 3584 if not nodma else 0)
    srd(rW2, P(7), 448 * 3584 if not nodma else 0)
    common_setup()
    stamp('v_issued')
    XF = KB2[0:8]
    a.misc(f's_waitcnt vmcnt({n_after_x})')
    stamp('v_x')
    unpack8(XF, XR)
    layernorm([(XF, vT[0:4], sX0, sX1)])
    for i in range(4):
        a.valu('v_cvt_pk_bf16_f32', XR[i], XF[2 * i], XF[2 * i + 1])
    a.salu('s_mul_i32', sT2, sW, 896)
    a.valu('v_add_u32', vT[0], sT2, vL16)
    a.salu('s_mov_b64', 'exec', m56)
    a.ds('ds_write_b128', vT[0], XR, offset=L_XN2)
    a.salu('s_mov_b64', 'exec', 1)
    a.misc('s_waitcnt vmcnt(0) lgkmcnt(0)')
    a.misc(f'ds_add_u32 {vCntA}, {vOne} offset:8')
    a.salu('s_mov_b64', 'exec', -1)
    stamp('v_ln')
    a.salu('s_cmp_lg_u32', None, sW, 0)
    a.branch('s_cbranch_scc1', L_svc)
    QA = V(148, 56)
    QF = V(84, 56)
    a.valu('v_and_b32', vT[6], 3, vLane)
    a.valu('v_mul_u32_u24', vT[6], 896, vT[6])
    a.valu('v_lshl_add_u32', vT[6], vG, 4, vT[6])
    a.valu('v_bfe_u32', vT[4], vLane, 2, 2)
    a.valu('v_lshl_add_u32', vT[4], vG, 3, vT[4])
    a.valu('v_lshlrev_b32', vT[4], 5, vT[4])
    a.valu('v_and_b32', vT[5], 3, vLane)
    a.valu('v_lshl_add_u32', vT[4], vT[5], 3, vT[4])
    L_sw = a.newlabel('sw')
    L_sok = a.newlabel('sok')
    a.salu('s_mov_b32', sT5, SPIN_BOUND * 8)
    a.label(L_sw)
    a.ds('ds_read_b32', vT[0], vCntA, offset=8)
    a.wait_lgkm(0)
    a.valu('v_readfirstlane_b32', sT2, vT[0])
    a.salu('s_cmp_ge_u32', None, sT2, 4)
    a.branch('s_cbranch_scc1', L_sok)
    a.salu('s_sub_u32', sT5, sT5, 1)
    a.salu('s_cmp_lg_u32', None, sT5, 0)
    a.branch('s_cbranch_scc1', L_sw)
    a.label(L_sok)
    stamp('q_wq')
    for ks in range(14):
        a.ds('ds_read_b128', QA[4 * ks:4 * ks + 4], vT[6], offset=L_XN2 + 64 * ks)
    for ks in range(14):
        for qq in range(2):
            a.ds('ds_read_b64_tr_b16', QF[ks * 4 + 2 * qq:ks * 4 + 2 * qq + 2], vT[4], offset=L_WQS + (32 * ks + 4 * qq) * 32)
    a.valu('v_add_u32', vEp, 1, vEp)
    for ks in range(14):
        a.wait_lgkm(min(2 * (13 - ks), 15))
        a.mfma(KD, QA[4 * ks:4 * ks + 4], QF[4 * ks:4 * ks + 4], 0 if ks == 0 else KD)
    a.valu('v_lshlrev_b32', vT[4], 10, vG)
    a.valu('v_lshl_add_u32', vT[4], vJ, 2, vT[4])
    a.valu('v_and_b32', vT[5], 1, vJ)
    a.valu('v_lshl_add_u32', vT[4], vT[5], 24, vT[4])
    a.salu('s_lshl_b32', sT2, sSP, 2)
    a.salu('s_add_u32', sT2, sT2, sB)
    a.salu('s_lshl_b32', sT2, sT2, 6)
    a.salu('s_lshl_b32', sT3, sH, 12)
    a.salu('s_add_u32', sT2, sT2, sT3)
    a.salu('s_add_u32', sT2, sT2, WS_Q)
    for r in range(1, 4):
        a.valu('v_cmp_eq_u32', 'vcc', r, vG)
        a.valu('v_cndmask_b32', KD[0], KD[0], KD[r], 'vcc')
    a.dpp('v_mov_b32', KD[1], KD[0], ctrl='quad_perm:[1,0,3,2]')
    a.valu('v_cvt_pk_bf16_f32', PB[0], KD[0], KD[1])
    a.valu('v_mov_b32', PB[1], vEp)
    a.vstore('buffer_store_dwordx2', PB[0:2], vT[4], rWS, sT2, 0, STF)
    a.salu('s_lshl_b32', sT4, sB, 10)
    a.salu('s_add_u32', sT4, sT4, sT3)
    a.salu('s_add_u32', sT4, sT4, WS_Q)
    a.valu('v_readfirstlane_b32', sEp, vEp)
    QG = PB[4:8]

    def ldq():
        a.vload('buffer_load_dwordx4', QG, vL16, rWS, sT4, 0, LDF)

    def condq():
        a.valu('v_cmp_ne_u32_e64', S(10, 2), sEp, QG[1])
        a.valu('v_cmp_ne_u32', 'vcc', sEp, QG[3])
        a.salu('s_or_b64', S(10, 2), S(10, 2), 'vcc')
        a.salu('s_cmp_eq_u64', None, S(10, 2), 0)

    spin_until(ldq, condq, first_check=False, sleep=0)
    a.valu('v_mov_b32', QG[1], QG[2])
    a.valu('v_lshlrev_b32', vT[4], 3, vLane)
    a.ds('ds_write_b64', vT[4], QG[0:2], offset=L_QBF)
    a.wait_lgkm(0)
    a.ds('ds_write_b32', vCntA, vOne, offset=4)
    stamp('q_got')
    a.branch('s_branch', L_svc2)
    a.label(L_svc)
    L_nodma = a.newlabel('nodma')
    a.salu('s_cmp_ge_u32', None, sF, NF)
    a.branch('s_cbranch_scc1', L_nodma)
    a.salu('s_sub_u32', sT2, sW, 1)
    L_ini = a.newlabel('ini')
    a.label(L_ini)
    a.salu('s_lshl_b32', sT3, sT2, 10)
    a.salu('s_lshl_b32', sT4, sF, 14)
    a.salu('s_add_u32', sT4, sT4, WS_IN1)
    a.salu('s_mul_i32', sT5, sF, 7168)
    a.salu('s_add_u32', sT5, sT5, WS_INBOX - 16384)
    a.salu('s_cmp_lt_u32', None, sT2, 16)
    a.salu('s_cselect_b32', sT4, sT4, sT5)
    a.salu('s_add_u32', sT4, sT4, sT3)
    a.vstore('buffer_store_dwordx4', MK, vL16, rWS, sT4 if not noinit else sBig, 0, STF)
    a.salu('s_add_u32', sT2, sT2, 3)
    a.salu('s_cmp_lt_u32', None, sT2, 23)
    a.branch('s_cbranch_scc1', L_ini)
    h_offset(vT[1], vT[2])
    a.valu('v_bfe_u32', vT[2], vJ, 2, 1)
    a.valu('v_lshl_add_u32', vT[1], vT[2], 24, vT[1])
    h_soffset(sT4, sT3)
    a.vstore('buffer_store_dword', MK[0], vT[1], rWS, sT4, WS_H, STF)
    a.salu('s_mov_b64', 'exec', 1)
    a.wait_vm0()
    a.misc(f'ds_add_rtn_u32 {vIdx}, {vCntA}, {vOne} offset:12')
    a.wait_lgkm(0)
    a.salu('s_mov_b64', 'exec', -1)
    a.valu('v_readfirstlane_b32', sT2, vIdx)
    L_nosig = a.newlabel('nosig')
    a.salu('s_cmp_lg_u32', None, sT2, 2)
    a.branch('s_cbranch_scc1', L_nosig)
    xcc_word(sT0, 1)
    a.misc(f's_atomic_add {sT0}, {pDBG}, {DB_INITF}')
    a.label(L_nosig)
    a.valu('v_lshrrev_b32', vT[6], 3, vLane)
    a.valu('v_mul_u32_u24', vT[6], 3584, vT[6])
    a.valu('v_and_b32', vT[7], 7, vLane)
    a.valu('v_lshl_add_u32', vT[6], vT[7], 4, vT[6])
    a.salu('s_sub_u32', sT2, sW, 1)
    L_dma = a.newlabel('dma')
    a.label(L_dma)
    a.salu('s_lshl_b32', sT3, sT2, 10)
    a.salu('s_mul_i32', sT4, sT2, 8 * 3584)
    a.salu('s_lshl_b32', sT5, sF, 7)
    a.salu('s_add_u32', sT4, sT4, sT5)
    a.salu('s_mul_i32', sT5, sF, 57344)
    a.salu('s_add_u32', sT5, sT5, sT3)
    a.salu('s_add_u32', sT0, sT3, L_W1)
    a.salu('s_mov_b32', 'm0', sT0)
    a.vload_lds(vT[6], rW1, sT4, 0, WF)
    a.salu('s_add_u32', sT0, sT3, L_W2)
    a.salu('s_mov_b32', 'm0', sT0)
    a.vload_lds(vL16, rW2, sT5, 0, WF)
    a.salu('s_add_u32', sT2, sT2, 3)
    a.salu('s_cmp_lt_u32', None, sT2, 56)
    a.branch('s_cbranch_scc1', L_dma)
    a.label(L_nodma)
    a.label(L_svc2)
    if debug or prof:
        srd(rWSD, pWS, (4 << 20) + (64 << 20))
    a.valu('v_mul_u32_u24', vWoOff, 896, vG)
    a.valu('v_lshl_add_u32', vWoOff, vJ, 4, vWoOff)
    a.valu('v_and_b32', vT[2], 7, vJ)
    a.valu('v_lshlrev_b32', vT[3], 4, vT[2])
    a.valu('v_lshrrev_b32', vT[4], 3, vJ)
    a.valu('v_mul_u32_u24', vT[5], 4 * 896, vT[4])
    a.valu('v_mul_u32_u24', vWoRem, 896, vG)
    a.valu('v_add3_u32', vWoRem, vWoRem, vT[3], vT[5])
    a.valu('v_add_u32', vWoRem, 768, vWoRem)
    a.salu('s_lshl_b32', sT2, sH, 8)
    a.salu('s_lshl_b32', sT3, sSP, 6)
    a.salu('s_add_u32', sT2, sT2, sT3)
    a.salu('s_lshl_b32', sT3, sW, 4)
    a.salu('s_add_u32', sT2, sT2, sT3)
    a.salu('s_mul_i32', sT2, sT2, 896)
    for Gp in range(4):
        for s_ in range(3):
            a.vload('buffer_load_dwordx4', WO[(Gp * 3 + s_) * 4:(Gp * 3 + s_) * 4 + 4], vWoOff, rWO, sT2, 256 * s_, WF)
        if Gp % 2 == 0:
            a.vload('buffer_load_dwordx4', WO[48 + 2 * Gp:52 + 2 * Gp], vWoRem, rWO, sT2, 0, WF)
        if Gp < 3:
            a.salu('s_add_u32', sT2, sT2, 4 * 896)
    a.valu('v_lshl_add_u32', vT[5], vT[4], 2, vG)
    a.valu('v_lshlrev_b32', vT[5], 7, vT[5])
    a.valu('v_lshl_add_u32', vYw, vT[2], 4, vT[5])
    a.salu('s_lshl_b32', sT2, sW, 11)
    a.valu('v_add_u32', vYw, sT2, vYw)
    a.valu('v_and_b32', vT[6], 3, vJ)
    a.valu('v_lshrrev_b32', vT[7], 2, vJ)
    a.valu('v_mul_u32_u24', vOr, 1040, vT[6])
    a.valu('v_lshl_add_u32', vOr, vG, 6, vOr)
    a.valu('v_lshl_add_u32', vOr, vT[7], 4, vOr)
    a.salu('s_lshl_b32', sT2, sW, 8)
    a.valu('v_add_u32', vOr, sT2, vOr)
    a.valu('v_lshlrev_b32', vMr, 3, vT[6])
    a.valu('v_lshlrev_b32', vPubOff, 6, vG)
    a.valu('v_lshl_add_u32', vPubOff, vT[7], 4, vPubOff)
    a.valu('v_lshl_add_u32', vPubOff, vT[6], 24, vPubOff)
    a.valu('v_mov_b32', vT[2], 256)
    a.valu('v_cmp_eq_u32_e64', mT[0], 1, vLane)
    a.valu('v_cndmask_b32', vPubOff, vPubOff, vT[2], mT[0])
    a.salu('s_lshl_b32', sT2, sSP, 9)
    a.valu('v_lshlrev_b32', vGatML, 11, vT[6])
    a.valu('v_add_u32', vGatML, sT2, vGatML)
    a.salu('s_lshr_b32', sT3, sW, 1)
    a.salu('s_lshl_b32', sT3, sT3, 5)
    a.salu('s_and_b32', sT2, sW, 1)
    a.salu('s_lshl_b32', sT2, sT2, 1)
    a.salu('s_add_u32', sT3, sT3, sT2)
    a.valu('v_lshlrev_b32', vT[2], 3, vG)
    a.valu('v_and_b32', vT[3], 1, vT[7])
    a.valu('v_lshl_add_u32', vT[2], vT[3], 2, vT[2])
    a.valu('v_lshrrev_b32', vT[3], 1, vT[7])
    a.valu('v_add3_u32', vT[2], vT[2], vT[3], sT3)
    a.valu('v_lshl_add_u32', vGatOff, vT[2], 2, vGatML)

    def ldfi():
        a.valu('v_mov_b32', vT[7], 0)
        a.vload('buffer_load_dword', vChk, vT[7], rDBG, 0, DB_INITF, LDF)

    def condf():
        a.valu('v_readfirstlane_b32', sT2, vChk)
        a.salu('s_and_b32', sT3, sT2, 255)
        a.salu('s_cmp_ge_u32', None, sT3, NF)

    L_nochk = a.newlabel('nochk')
    a.salu('s_cmp_lg_u32', None, sW, 1)
    a.branch('s_cbranch_scc1', L_nochk)
    L_mw = a.newlabel('mw')
    L_mok = a.newlabel('mok')
    a.salu('s_mov_b32', sT5, SPIN_BOUND)
    a.label(L_mw)
    a.ds('ds_read_b32', vT[0], vCntA)
    a.wait_lgkm(0)
    a.valu('v_readfirstlane_b32', sT2, vT[0])
    a.salu('s_cmp_ge_u32', None, sT2, 4)
    a.branch('s_cbranch_scc1', L_mok)
    a.misc('s_sleep 64')
    a.salu('s_sub_u32', sT5, sT5, 1)
    a.salu('s_cmp_lg_u32', None, sT5, 0)
    a.branch('s_cbranch_scc1', L_mw)
    a.label(L_mok)
    spin_until(ldfi, condf, first_check=False, sleep=64)
    xcc_word(sT3, NF)
    a.salu('s_cmp_eq_u32', None, sT2, sT3)
    a.salu('s_cselect_b32', sT2, fastx, 0)
    a.valu('v_mov_b32', vT[7], sT2)
    a.ds('ds_write_b32', vCntA, vT[7], offset=16)
    a.label(L_nochk)
    a.misc('s_waitcnt vmcnt(0) lgkmcnt(0)')
    a.salu('s_lshl_b32', sT4, sGrp, 13)
    a.salu('s_add_u32', sT4, sT4, WS_MAIL)
    a.salu('s_lshl_b32', sT2, sSP, 2)
    a.salu('s_add_u32', sT2, sT2, sW)
    a.salu('s_lshl_b32', sT2, sT2, 9)
    a.salu('s_add_u32', sT3, sT4, sT2)
    stamp('v_ready')
    if notail == 2:
        a.branch('s_branch', 'L_end')
    a.barrier()
    stamp('v_B3')
    ov = PB[0:4]
    ml = PB[4:6]
    a.ds('ds_read_b64', ml, vMr, offset=L_ML)
    a.ds('ds_read_b128', ov, vOr, offset=L_OQ)
    a.valu('v_and_b32', vT[5], 3, vJ)
    a.wait_lgkm(1)
    red4 = ('quad_perm:[1,0,3,2]', 'quad_perm:[2,3,0,1]')
    a.valu('v_mov_b32', vT[0], ml[0])
    for c in red4:
        a.dpp('v_max_f32', vT[0], vT[0], vT[0], ctrl=c)
    a.valu('v_sub_f32', vT[2], ml[0], vT[0])
    a.valu('v_mul_f32', vT[2], sCS, vT[2])
    a.valu('v_exp_f32', vT[2], vT[2])
    a.wait_lgkm(0)
    a.valu('v_mul_f32', vT[1], ml[1], vT[2])
    for r in range(4):
        a.valu('v_mul_f32', ov[r], ov[r], vT[2])
    for c in red4:
        for r in range(4):
            a.dpp('v_add_f32', ov[r], ov[r], ov[r], ctrl=c)
        a.dpp('v_add_f32', vT[1], vT[1], vT[1], ctrl=c)
    a.valu('v_cndmask_b32', ov[0], ov[0], vT[0], mT[0])
    a.valu('v_cndmask_b32', ov[1], ov[1], vT[1], mT[0])
    for r in range(4):
        a.valu('v_min_u32', ov[r], -2, ov[r])
    a.vstore('buffer_store_dwordx4', ov, vPubOff, rWS, sT3, 0, STF)
    stamp('v_pub')
    gv = PB[8]
    gml = PB[10:12]

    def ldg():
        a.vload('buffer_load_dword', gv, vGatOff, rWS, sT4, 0, LDF)
        a.vload('buffer_load_dwordx2', gml, vGatML, rWS, sT4, 256, LDF)

    def condg():
        a.valu('v_max3_u32', vT[2], gv, gml[0], gml[1])
        a.valu('v_cmp_eq_u32_e64', S(10, 2), -1, vT[2])
        a.salu('s_cmp_eq_u64', None, S(10, 2), 0)

    if ppg > 1:
        gsets = [XT[24 + 4 * k:28 + 4 * k] for k in range(ppg)]
        for st in gsets:
            a.valu('v_mov_b32', st[1], 0)

        def ldg2(st):
            a.vload('buffer_load_dword', st[0], vGatOff, rWS, sT4, 0, LDF)
            a.vload('buffer_load_dwordx2', st[2:4], vGatML, rWS, sT4, 256, LDF)

        spin_pipe(gsets, PB[8:12], ldg2, 2, stagger=4)
    else:
        spin_until(ldg, condg, first_check=False, sleep=gsleep)
    stamp('v_gath')
    a.valu('v_mov_b32', vT[0], gml[0])
    for c in red4:
        a.dpp('v_max_f32', vT[0], vT[0], vT[0], ctrl=c)
    a.valu('v_sub_f32', vT[1], gml[0], vT[0])
    a.valu('v_mul_f32', vT[1], sCS, vT[1])
    a.valu('v_exp_f32', vT[1], vT[1])
    a.valu('v_mul_f32', gv, gv, vT[1])
    a.valu('v_mul_f32', gml[1], gml[1], vT[1])
    for c in red4:
        a.dpp('v_add_f32', gv, gv, gv, ctrl=c)
        a.dpp('v_add_f32', gml[1], gml[1], gml[1], ctrl=c)
    a.valu('v_rcp_f32', gml[1], gml[1])
    a.valu('v_mul_f32', gv, gv, gml[1])
    a.valu('v_cvt_pk_bf16_f32', gv, gv, gv)
    dump(gv, 18)
    Y = [KB[0:4], KB[4:8], KB[8:12], KB[12:16], KB[16:20]]
    BT = [QB[4 * Gp:4 * Gp + 4] for Gp in range(4)]
    for Gp in range(4):
        for r in range(4):
            a.dpp('v_and_b32', BT[Gp][r], gv, vMask[r], ctrl=f'row_newbcast:{4 * Gp}')
        for s_ in range(3):
            a.mfma(Y[s_], WO[(Gp * 3 + s_) * 4:(Gp * 3 + s_) * 4 + 4], BT[Gp], 0 if Gp == 0 else Y[s_])
        a.mfma(Y[3 + Gp % 2], WO[48 + 4 * (Gp // 2):52 + 4 * (Gp // 2)], BT[Gp], 0 if Gp < 2 else Y[3 + Gp % 2])
    for r in range(4):
        a.valu('v_cndmask_b32', Y[0][r], Y[1][r], Y[0][r], mJ8)
    a.ds('ds_write_b128', vYw, Y[0], offset=L_YP)
    for r in range(4):
        a.valu('v_cndmask_b32', Y[3][r], Y[4][r], Y[3][r], mG2)
        a.valu('v_cndmask_b32', Y[2][r], Y[3][r], Y[2][r], mJ8)
    a.ds('ds_write_b128', vYw, Y[2], offset=L_YP + 1024)
    a.branch('s_branch', 'L_b4')

    a.label(L_stream)
    a.misc(f's_setprio {prio}')
    srd(rK, P(1), 4 << 20, sT1)
    srd(rV, P(2), 4 << 20, sT1)
    issue_static_units()
    common_setup()
    if debug or prof:
        srd(rWSD, pWS, (4 << 20) + (64 << 20))
    a.salu('s_lshl_b32', sT2, sGrp, 8)
    a.salu('s_add_u32', sT2, sT2, WS_POOL)
    a.salu('s_add_u32', sPool[0], pWS[0], sT2)
    a.salu('s_addc_u32', sPool[1], pWS[1], 0)
    a.valu('v_lshrrev_b32', vT[2], 2, vJ)
    a.valu('v_xor_b32', vT[2], vT[2], vG)
    a.valu('v_and_b32', vT[2], 1, vT[2])
    a.valu('v_cmp_eq_u32_e64', mT[0], 0, vT[2])
    a.valu('v_lshrrev_b32', vT[2], 3, vJ)
    a.valu('v_xor_b32', vT[2], vT[2], vG)
    a.valu('v_and_b32', vT[2], 1, vT[2])
    a.valu('v_cmp_eq_u32_e64', mT[1], 0, vT[2])
    for r in range(4):
        a.valu('v_cndmask_b32', vMask[r], 0, vMask[r], mT[1])
    for r in range(4):
        a.valu('v_mov_b32', OD0[r], 0)
    a.valu('v_mov_b32', vL, 0)
    a.salu('s_mov_b32', sM, -3.0e38)
    a.salu('s_mov_b32', sExh, 0)
    a.valu('v_lshrrev_b32', vT[4], 3, vJ)
    a.valu('v_lshl_add_u32', vT[5], vT[4], 2, vG)
    a.valu('v_lshlrev_b32', vT[5], 7, vT[5])
    a.valu('v_and_b32', vT[6], 3, vJ)
    a.valu('v_lshl_add_u32', vOw, vT[6], 5, vT[5])
    a.valu('v_bfe_u32', vT[7], vJ, 2, 1)
    a.valu('v_lshl_add_u32', vOw, vT[7], 4, vOw)
    a.salu('s_sub_u32', sT2, sW, 4)
    a.salu('s_mul_i32', sT3, sT2, 1040)
    a.valu('v_add_u32', vOw, sT3, vOw)
    a.salu('s_lshl_b32', sT2, sT2, 3)
    a.valu('v_mov_b32', vMr, sT2)
    a.valu('v_and_b32', vT[1], 7, vJ)
    a.valu('v_lshl_add_u32', vT[1], vG, 3, vT[1])
    a.valu('v_lshlrev_b32', vT[1], 4, vT[1])
    vScG, vScB, vScA, vMax = XT[13], XT[14], XT[15], XT[16]
    SR = [XT[17], XT[18]]
    vScGr, vScBr, vP = XT[19], XT[20], XT[21]
    a.salu('s_mov_b32', sWgB, sT5)
    a.valu('v_and_b32', vScG, 1, vG)
    a.valu('v_lshlrev_b32', vScG, 3, vScG)
    a.valu('v_bfe_u32', vT[2], vJ, 2, 1)
    a.valu('v_lshl_add_u32', vScG, vT[2], 2, vScG)
    a.valu('v_lshrrev_b32', vT[2], 3, vJ)
    a.valu('v_lshl_add_u32', vScG, vT[2], 1, vScG)
    a.valu('v_lshrrev_b32', vT[2], 1, vG)
    a.valu('v_add_u32', vScG, vScG, vT[2])
    a.valu('v_lshlrev_b32', vScG, 2, vScG)
    a.valu('v_and_b32', vScGr, 14, vJ)
    a.valu('v_add_u32', vScGr, vScGr, vT[2])
    a.valu('v_lshlrev_b32', vScGr, 2, vScGr)
    a.valu('v_add_u32', vScB, L_SC, vScG)
    a.valu('v_add_u32', vScBr, L_SC, vScGr)
    a.valu('v_mov_b32', vMax, -3.0e38)
    a.salu('s_lshl_b32', sScB, sGrp, 15)
    a.salu('s_add_u32', sScB, sScB, WS_SC)
    a.salu('s_cmp_lt_u32', None, sF, NF)
    a.salu('s_cselect_b32', sNP, 4 * NPWF, 4 * NPW)
    a.salu('s_sub_u32', sNP, 128, sNP)
    a.salu('s_mov_b32', sTag0, 0)
    a.salu('s_mov_b32', sTag1, 0)
    a.salu('s_sub_u32', sT2, sW, 4)
    a.salu('s_lshl_b32', sN, sN, 2)
    a.salu('s_add_u32', sN, sN, sT2)
    a.salu('s_lshl_b32', sAux0, sN, 6)
    a.salu('s_add_u32', sAux1, sAux0, 256)
    a.salu('s_lshl_b32', sT2, sT2, 6)
    a.valu('v_add_u32', vIdx, sT2, vScB)
    a.valu('v_mov_b32', XT[22], vIdx)
    a.salu('s_mov_b32', sPh, 0)
    a.salu('s_mov_b32', sGotM, 0)
    a.salu('s_and_b32', sT2, sGrp, 1)
    a.salu('s_lshl_b32', sT2, sT2, 8)
    a.salu('s_add_u32', sT2, sT2, sGrp)
    a.salu('s_cmp_lt_u32', None, sT2, 2 * NF)
    a.salu('s_cselect_b32', sP0, 4 * NPWF, 4 * NPW)
    stamp('s_issued')
    L_qw = a.newlabel('qw')
    L_qok = a.newlabel('qok')
    a.salu('s_mov_b32', sT5, SPIN_BOUND * 8)
    a.label(L_qw)
    a.ds('ds_read_b32', vT[0], vCntA, offset=4)
    a.wait_lgkm(0)
    a.valu('v_readfirstlane_b32', sT2, vT[0])
    a.salu('s_cmp_lg_u32', None, sT2, 0 if not skipq else 77)
    a.branch('s_cbranch_scc1', L_qok)
    a.misc('s_sleep 2')
    a.salu('s_sub_u32', sT5, sT5, 1)
    a.salu('s_cmp_lg_u32', None, sT5, 0)
    a.branch('s_cbranch_scc1', L_qw)
    a.label(L_qok)
    stamp('s_q')
    a.valu('v_xor_b32', vT[2], 64, vT[1])
    a.ds('ds_read_b128', PB[0:4], vT[1], offset=L_QBF)
    a.ds('ds_read_b128', PB[4:8], vT[2], offset=L_QBF)
    a.wait_lgkm(0)
    QO = QB[0:16]
    KA = QB[16:32]
    for v_ in range(2):
        for r in range(4):
            a.valu('v_cndmask_b32', QO[(2 * v_) * 4 + r], 0, PB[v_ * 4 + r], mJ8)
            a.valu('v_cndmask_b32', QO[(2 * v_ + 1) * 4 + r], PB[v_ * 4 + r], 0, mJ8)

    def qk1(kb, u):
        acc = KA[4 * (u // 2):4 * (u // 2) + 4]
        op = QO[(2 * ((u // 2) % 2) + u % 2) * 4:(2 * ((u // 2) % 2) + u % 2) * 4 + 4]
        a.mfma(acc, kb[4 * u:4 * u + 4], op, 0 if u % 2 == 0 else acc)

    def qk(kb):
        for u in range(8):
            qk1(kb, u)

    def score(dst):
        if nocomp:
            a.valu('v_mov_b32', dst, 0)
            return
        for a_ in range(4):
            a.dpp('v_mov_b32', KD[a_], KA[4 * a_], ctrl='quad_perm:[0,0,0,0]')
        for r in range(1, 4):
            for a_ in range(4):
                a.dpp('v_add_f32', KD[a_], KA[4 * a_ + r], KD[a_], ctrl=f'quad_perm:[{r},{r},{r},{r}]')
        a.valu('v_cndmask_b32', KD[0], KD[1], KD[0], mT[0])
        a.valu('v_cndmask_b32', KD[2], KD[3], KD[2], mT[0])
        a.valu('v_permlane16_swap_b32', KD[0], KD[2])
        a.dpp('v_add_f32', dst, KD[2], KD[0], ctrl='row_half_mirror')
        rbf(dst, dst)

    def softmax_core(s_):
        t_ = vT[1]
        if nocomp:
            return
        a.valu('v_max_f32', t_, sM, s_)
        wave_red('v_max_f32', t_, sMn)
        a.valu('v_mov_b32', t_, sM)
        a.valu('v_subrev_f32', s_, sMn, s_)
        a.valu('v_subrev_f32', t_, sMn, t_)
        a.valu('v_mul_f32', s_, sCS, s_)
        a.valu('v_mul_f32', t_, sCS, t_)
        a.valu('v_exp_f32', s_, s_)
        a.valu('v_exp_f32', t_, t_)
        a.salu('s_mov_b32', sM, sMn)
        a.valu('v_fma_f32', vL, vL, t_, s_)
        a.valu('v_cvt_pk_bf16_f32', vP, s_, s_)
        for r in range(4):
            a.valu('v_mul_f32', OD0[r], OD0[r], t_)

    def fetch_issue(pool):
        a.salu('s_mov_b32', sIdx, 1)
        a.misc(f's_atomic_add {sIdx}, {sPool}, {128 * pool} glc')

    def fetch_complete():
        a.wait_lgkm(0)
        a.salu('s_add_u32', sNext, sIdx, sPB)

    def refill(buf, i, kind, soff):
        vo, o = koff(i) if kind == 'k' else voff(i)
        a.vload('buffer_load_dwordx4', buf[4 * i:4 * i + 4], vo, rK if kind == 'k' else rV, soff, o, KP if kind == 'k' else VP)

    def k_step(buf, kind, soff):
        for i in range(8):
            a.misc('s_waitcnt vmcnt(15)')
            if not nocomp:
                qk1(buf, i)
            refill(buf, i, kind, soff)

    def pb_build(u):
        if nocomp:
            return
        for r in range(4):
            a.dpp('v_and_b32', PB[4 * (u % 4) + r], vP, vMask[r], ctrl=f'row_newbcast:{2 * u}')

    def v_step(buf, kind, soff):
        for u in range(3):
            pb_build(u)
        for i in range(8):
            if i + 3 < 8:
                pb_build(i + 3)
            a.misc('s_waitcnt vmcnt(15)')
            if not nocomp:
                a.mfma(OD0, buf[4 * i:4 * i + 4], PB[4 * (i % 4):4 * (i % 4) + 4], OD0)
            refill(buf, i, kind, soff)

    BUF = [KB, VB]
    sTag = [sTag0, sTag1]
    sAux = [sAux0, sAux1]
    PN = 4 * NPW

    def record_static(n):
        score(vT[0])
        a.ds('ds_write_b32', XT[22], vT[0], offset=256 * n)
        a.valu('v_max_f32', vMax, vMax, vT[0])

    def extras():
        L_x = a.newlabel('nox')
        a.salu('s_cmp_lg_u32', None, sExh, 0)
        a.branch('s_cbranch_scc1', L_x)
        a.salu('s_mov_b32', sExh, 1)
        qk(KB2)
        record_static(0)
        qk(VB2)
        record_static(1)
        a.salu('s_cmp_lt_u32', None, sF, NF)
        a.branch('s_cbranch_scc1', L_x)
        a.salu('s_sub_u32', sT4, sW, 4)
        a.salu('s_lshl_b32', sT4, sT4, 14)
        a.salu('s_add_u32', sT4, sT4, L_W1)
        a.valu('v_add_u32', vT[2], sT4, vL16)
        for i in range(8):
            a.ds('ds_read_b128', KB2[4 * i:4 * i + 4], vT[2], offset=1024 * i)
        for i in range(8):
            a.ds('ds_read_b128', VB2[4 * i:4 * i + 4], vT[2], offset=8192 + 1024 * i)
        a.wait_lgkm(0)
        qk(KB2)
        record_static(2)
        qk(VB2)
        record_static(3)
        a.label(L_x)

    def lds_fetch():
        a.salu('s_mov_b64', 'exec', 1)
        a.misc(f'ds_add_rtn_u32 {vIdx}, {XT[23]}, {vOne}')
        a.salu('s_mov_b64', 'exec', -1)

    a.valu('v_mov_b32', XT[23], L_CNT + 20)
    lds_fetch()

    def sched(b_):
        L_done = a.newlabel('sd')
        L_pool = a.newlabel('sp')
        L_priv = a.newlabel('sv')
        a.salu('s_bitcmp1_b32', None, sPh, 0)
        a.branch('s_cbranch_scc1', L_pool)
        a.label(L_priv)
        L_np = a.newlabel('np')
        L_tile = a.newlabel('tile')
        a.wait_lgkm(0)
        a.valu('v_readfirstlane_b32', sT2, vIdx)
        a.salu('s_cmp_ge_u32', None, sT2, sNP)
        a.branch('s_cbranch_scc1', L_np)
        lds_fetch()
        a.salu('s_lshl_b32', sAux[b_], sT2, 6)
        a.salu('s_lshl_b32', sT0, sSP, 7)
        a.salu('s_add_u32', sT0, sT0, sT2)
        a.branch('s_branch', L_tile)
        a.label(L_np)
        a.salu('s_mov_b32', sIdx, 1)
        a.salu('s_lshl_b32', sT2, sPh, 6)
        a.misc(f's_atomic_add {sIdx}, {sPool}, {sT2} glc')
        a.salu('s_add_u32', sPh, sPh, 1)
        a.label(L_pool)
        a.wait_lgkm(0)
        a.salu('s_min_u32', sT2, sIdx, 4096)
        a.salu('s_add_u32', sT3, sP0, 3 * PN)
        L_ex = a.newlabel('ex')
        a.salu('s_cmp_ge_u32', None, sT2, sT3)
        a.branch('s_cbranch_scc1', L_ex)
        a.salu('s_mov_b32', sIdx, 1)
        a.salu('s_and_b32', sT3, sPh, 2)
        a.salu('s_lshl_b32', sT3, sT3, 6)
        a.misc(f's_atomic_add {sIdx}, {sPool}, {sT3} glc')
        a.salu('s_sub_u32', sT3, sT2, sP0)
        a.salu('s_mul_i32', sT4, sT3, -(-65536 // PN))
        a.salu('s_lshr_b32', sT4, sT4, 16)
        a.salu('s_mul_i32', sT0, sT4, 128 - PN)
        a.salu('s_add_u32', sT0, sT0, sT3)
        a.salu('s_add_u32', sT0, sT0, 256 - PN)
        a.salu('s_add_u32', sT3, sT3, 128)
        a.salu('s_cmp_lt_u32', None, sT2, sP0)
        a.salu('s_cselect_b32', sT0, sT3, sT0)
        a.salu('s_lshl_b32', sAux[b_], sT0, 6)
        a.salu('s_add_u32', sAux[b_], sAux[b_], sScB)
        a.label(L_tile)
        a.salu('s_mov_b32', sTag[b_], sPh)
        a.salu('s_lshl_b32', sRef, sT0, 13)
        if ig4:
            a.salu('s_and_b32', sT3, sT0, 3)
            a.salu('s_lshl_b32', sT3, sT3, 12)
            a.salu('s_sub_u32', sRef, sRef, sT3)
        a.branch('s_branch', L_done)
        a.label(L_ex)
        L_end_ = a.newlabel('en')
        a.salu('s_cmp_eq_u32', None, sPh, 3)
        a.branch('s_cbranch_scc1', L_end_)
        a.salu('s_mov_b32', sPh, 2)
        a.valu('v_add_u32', XT[23], 4, XT[23])
        lds_fetch()
        a.branch('s_branch', L_priv)
        a.label(L_end_)
        a.salu('s_mov_b32', sTag[b_], 4)
        a.salu('s_mov_b32', sRef, 0x800000)
        a.label(L_done)

    L_fl = a.newlabel('flush')
    for b_ in range(2):
        a.label(f'L_half{b_}')
        a.salu('s_cmp_eq_u32', None, sTag[b_], 4)
        a.branch('s_cbranch_scc1', L_fl)
        a.salu('s_mov_b32', sCT, sTag[b_])
        a.salu('s_mov_b32', sCA, sAux[b_])
        sched(b_)
        L_v = a.newlabel('vpath')
        L_kv = a.newlabel('kv')
        L_kr = a.newlabel('kr')
        L_nx = f'L_half{1 - b_}'
        a.salu('s_cmp_ge_u32', None, sCT, 2)
        a.branch('s_cbranch_scc1', L_v)
        a.salu('s_cmp_ge_u32', None, sTag[b_], 2)
        a.branch('s_cbranch_scc1', L_kv)
        k_step(BUF[b_], 'k', sRef)
        a.branch('s_branch', L_kr)
        a.label(L_kv)
        k_step(BUF[b_], 'v', sRef)
        a.label(L_kr)
        score(vT[0])
        L_kp = a.newlabel('kp')
        a.salu('s_cmp_lg_u32', None, sCT, 0)
        a.branch('s_cbranch_scc1', L_kp)
        a.valu('v_add_u32', vScA, sCA, vScB)
        a.ds('ds_write_b32', vScA, vT[0])
        a.valu('v_max_f32', vMax, vMax, vT[0])
        if b_ == 1:
            extras()
        a.branch('s_branch', L_nx)
        a.label(L_kp)
        if not nosc:
            a.vstore('buffer_store_dword', vT[0], vScG, rWS, sCA, 0, STF)
        a.branch('s_branch', L_nx)
        a.label(L_v)
        L_gm = a.newlabel('gm')
        a.salu('s_cmp_lg_u32', None, sGotM, 0)
        a.branch('s_cbranch_scc1', L_gm)
        a.salu('s_mov_b32', sGotM, 1)
        wave_red('v_max_f32', vMax, sM, quads_equal=True)
        a.salu('s_mov_b64', 'exec', 1)
        a.misc(f'ds_add_u32 {vCntA}, {vOne}')
        a.salu('s_mov_b64', 'exec', -1)
        if b_ == 0:
            kend_idx = len(stamp_names)
            stamp('s_Kend')
        elif prof:
            a.misc('s_memrealtime s[22:23]')
            a.wait_lgkm(0)
            a.valu('v_writelane_b32', V(0), S(22), kend_idx, rmw=True)
        a.label(L_gm)
        L_vp = a.newlabel('vp')
        L_vs = a.newlabel('vs')
        a.salu('s_cmp_eq_u32', None, sCT, 3)
        a.branch('s_cbranch_scc1', L_vp)
        a.valu('v_add_u32', vScA, sCA, vScBr)
        L_ls = a.newlabel('ls')
        L_sm = a.newlabel('sm')
        a.salu('s_mov_b32', sT5, SPIN_BOUND * 8)
        a.label(L_ls)
        a.ds('ds_read_b32', vT[0], vScA)
        a.wait_lgkm(0)
        a.valu('v_cmp_eq_u32', 'vcc', -1, vT[0])
        a.salu('s_cmp_eq_u64', None, 'vcc', 0)
        a.branch('s_cbranch_scc1', L_sm)
        a.salu('s_sub_u32', sT5, sT5, 1)
        a.salu('s_cmp_lg_u32', None, sT5, 0)
        a.branch('s_cbranch_scc1', L_ls)
        a.branch('s_branch', L_sm)
        a.label(L_vp)
        if prof:
            a.salu('s_add_u32', sCnt, sCnt, 1)
        a.misc('s_waitcnt vmcnt(15)')

        def lds_():
            a.vload('buffer_load_dword', SR[b_], vScGr, rWS, sCA, 0, LDF)

        def conds_():
            a.valu('v_cmp_eq_u32', 'vcc', -1, SR[b_])
            a.salu('s_cmp_eq_u64', None, 'vcc', 0)

        if not nosc:
            spin_until(lds_, conds_, sleep=8)
        a.valu('v_mov_b32', vT[0], SR[b_])
        a.label(L_sm)
        softmax_core(vT[0])
        L_ns = a.newlabel('ns')
        a.salu('s_cmp_lg_u32', None, sTag[b_], 3)
        a.branch('s_cbranch_scc1', L_ns)
        if not nosc:
            a.vload('buffer_load_dword', SR[b_], vScGr, rWS, sAux[b_], 0, LDF)
        a.label(L_ns)
        v_step(BUF[b_], 'v', sRef)
        if b_ == 1:
            a.branch('s_branch', L_nx)
    a.label(L_fl)
    a.ds('ds_write_b128', vOw, OD0, offset=L_OQ)
    wave_red('v_add_f32', vL, sMn)
    a.valu('v_mov_b32', vT[2], sM)
    a.valu('v_mov_b32', vT[3], sMn)
    a.valu('v_mul_f32', vT[3], 0.25, vT[3])
    a.ds('ds_write_b64', vMr, vT[2:4], offset=L_ML)
    stamp('s_Vlast')
    if notail:
        a.branch('s_branch', 'L_end')
    a.wait_lgkm(0)
    a.barrier()
    a.wait_vm0()
    a.misc('s_setprio 0')
    stamp_val('s_units', sCnt)

    a.label('L_b4')
    a.salu('s_lshl_b32', sT2, sW, 10)
    a.valu('v_add_u32', vT[4], sT2, vL16)
    a.salu('s_lshl_b32', sT1, sGrp, 2)
    a.salu('s_add_u32', sT1, sT1, sSP)
    a.salu('s_lshl_b32', sT1, sT1, 6)
    a.salu('s_lshl_b32', sT0, sW, 18)
    a.salu('s_add_u32', sT1, sT1, sT0)
    a.salu('s_add_u32', sT1, sT1, WS_IN1)
    a.wait_lgkm(0)
    a.barrier()
    stamp('B4')
    YS = VB[0:32]
    L_nc = a.newlabel('nc')
    L_y6 = a.newlabel('y6')
    a.salu('s_cmp_ge_u32', None, sW, 2)
    a.branch('s_cbranch_scc1', L_nc)
    for i in range(4):
        a.ds('ds_read_b128', YS[4 * i:4 * i + 4], vT[4], offset=L_YP + 2048 * i)
    a.salu('s_cmp_lg_u32', None, sW, 1)
    a.branch('s_cbranch_scc1', L_y6)
    a.salu('s_mov_b32', 'exec_lo', 0)
    a.salu('s_mov_b32', 'exec_hi', 0xffff)
    for i in range(4):
        a.ds('ds_read_b128', YS[16 + 4 * i:20 + 4 * i], vT[4], offset=L_YP + 2048 * i + 256)
    a.wait_lgkm(0)
    for i in range(16):
        a.valu('v_add_f32', YS[i], YS[i], YS[16 + i])
    a.salu('s_mov_b32', 'exec_lo', -1)
    a.label(L_y6)
    a.wait_lgkm(0)
    for r in range(4):
        a.valu('v_add_f32', YS[r], YS[r], YS[4 + r])
        a.valu('v_add_f32', YS[8 + r], YS[8 + r], YS[12 + r])
    for r in range(4):
        a.valu('v_add_f32', YS[r], YS[r], YS[8 + r])
    for r in range(4):
        a.valu('v_min_u32', YS[r], -2, YS[r])
    a.vstore('buffer_store_dwordx4', YS[0:4], vAt, rWS, sT1, 0, STF)
    a.salu('s_mov_b64', 'exec', -1)
    a.label(L_nc)
    stamp('atom')
    a.salu('s_cmp_ge_u32', None, sF, NF)
    a.branch('s_cbranch_scc1', 'L_endp')

    F2B = V(84, 32)
    FA = V(116, 56)
    F1B = V(172, 56)
    RB = V(24, 28)
    a.valu('v_bfe_u32', vT[4], vLane, 2, 2)
    a.valu('v_lshl_add_u32', vT[4], vG, 3, vT[4])
    a.valu('v_and_b32', vT[5], 3, vLane)
    a.valu('v_lshlrev_b32', vT[5], 3, vT[5])
    a.valu('v_mul_u32_u24', vT[6], 896, vT[4])
    a.valu('v_add_u32', vT[6], vT[6], vT[5])
    a.salu('s_min_u32', sT2, sW, 6)
    a.salu('s_lshl_b32', sT2, sT2, 7)
    a.salu('s_add_u32', sT2, sT2, L_W2)
    a.valu('v_add_u32', vT[6], sT2, vT[6])
    for tt in range(4):
        for ks in range(2):
            for qq in range(2):
                d = F2B[(tt * 2 + ks) * 4 + 2 * qq:(tt * 2 + ks) * 4 + 2 * qq + 2]
                a.ds('ds_read_b64_tr_b16', d, vT[6], offset=(32 * ks + 4 * qq) * 896 + tt * 32)
    L_ln = a.newlabel('ln')
    L_b5 = a.newlabel('b5')
    a.salu('s_cmp_ge_u32', None, sW, 4)
    a.branch('s_cbranch_scc1', L_ln)
    a.valu('v_lshlrev_b32', vT[6], 7, vT[4])
    a.valu('v_add_u32', vT[6], vT[6], vT[5])
    a.salu('s_lshl_b32', sT2, sW, 5)
    a.salu('s_add_u32', sT2, sT2, L_W1)
    a.valu('v_add_u32', vT[6], sT2, vT[6])
    for ks in range(14):
        for qq in range(2):
            a.ds('ds_read_b64_tr_b16', F1B[ks * 4 + 2 * qq:ks * 4 + 2 * qq + 2], vT[6], offset=(32 * ks + 4 * qq) * 128)
            if (ks * 2 + qq) % 8 == 7:
                a.wait_lgkm(4)
    a.label(L_ln)
    srd(rX, sXP, 4 * 896)
    h_offset(vT[7], vT[4])
    h_soffset(sT1, sT3)
    a.vload('buffer_load_ushort', RB[24], vT[7], rX, sT1, 0)
    a.valu('v_mov_b32', vT[4], L_SAME)
    a.ds('ds_read_b32', RB[25], vT[4])
    a.salu('s_lshl_b32', sT4, sF, 14)
    a.salu('s_lshl_b32', sT3, sW, 11)
    a.salu('s_add_u32', sT4, sT4, sT3)
    a.salu('s_add_u32', sT4, sT4, WS_IN1)
    a.salu('s_lshl_b32', sT3, sW, 8)
    a.valu('v_and_b32', vT[5], 3, vJ)
    a.valu('v_lshlrev_b32', vT[5], 4, vT[5])
    a.valu('v_lshl_add_u32', vT[5], vG, 6, vT[5])
    a.valu('v_add_u32', vT[5], sT3, vT[5])
    RI = RB[0:8]

    def ldr():
        a.vload('buffer_load_dwordx4', RI[0:4], vL16, rWS, sT4, 0, LDF)
        a.vload('buffer_load_dwordx4', RI[4:8], vL16, rWS, sT4, 1024, LDF)

    def condr():
        a.valu('v_max3_u32', vT[0], RI[0], RI[1], RI[2])
        a.valu('v_max3_u32', vT[1], RI[3], RI[4], RI[5])
        a.valu('v_max3_u32', vT[0], vT[0], RI[6], RI[7])
        a.valu('v_max_u32', vT[0], vT[0], vT[1])
        a.valu('v_cmp_eq_u32', 'vcc', -1, vT[0])
        a.salu('s_cmp_eq_u64', None, 'vcc', 0)
        if rmask:
            a.salu('s_cselect_b64', 'exec', -1, 'vcc')

    if pp > 1:
        def ldr2(st):
            a.vload('buffer_load_dwordx4', st[0:4], vL16, rWS, sT4, 0, LDF)
            a.vload('buffer_load_dwordx4', st[4:8], vL16, rWS, sT4, 1024, LDF)

        spin_pipe([V(52 + 8 * k, 8) for k in range(pp)], RI, ldr2, 2, stagger=3)
    else:
        spin_until(ldr, condr, first_check=False, sleep=psleep)
    a.salu('s_mov_b64', 'exec', -1)
    stamp('red')
    for r in range(4):
        a.valu('v_add_f32', RI[r], RI[r], RI[4 + r])
    for c in ('row_ror:4', 'row_ror:8'):
        for r in range(4):
            a.dpp('v_add_f32', RI[r], RI[r], RI[r], ctrl=c)
    a.ds('ds_write_b128', vT[5], RI[0:4], offset=L_OP)
    a.valu('v_lshlrev_b32', vT[4], 9, vG)
    a.valu('v_lshl_add_u32', vT[4], vJ, 2, vT[4])
    a.valu('v_bfe_u32', vT[5], vJ, 2, 1)
    a.valu('v_lshl_add_u32', vT[7], vT[5], 24, vT[7])
    a.wait_lgkm(0)
    a.barrier()
    L_nw0 = a.newlabel('nw0')
    a.salu('s_cmp_lg_u32', None, sW, 0)
    a.branch('s_cbranch_scc1', L_nw0)
    for i in range(8):
        a.ds('ds_read_b32', RB[i], vT[4], offset=L_OP + 64 * i)
    a.valu('v_lshlrev_b32', RB[24], 16, RB[24])
    a.valu('v_readfirstlane_b32', sT3, RB[25])
    a.wait_lgkm(0)
    a.valu('v_add_f32', RB[0], RB[0], RB[1])
    a.valu('v_add_f32', RB[2], RB[2], RB[3])
    a.valu('v_add_f32', RB[4], RB[4], RB[5])
    a.valu('v_add_f32', RB[6], RB[6], RB[7])
    a.valu('v_add_f32', RB[0], RB[0], RB[2])
    a.valu('v_add_f32', RB[4], RB[4], RB[6])
    a.valu('v_add_f32', RB[0], RB[0], RB[4])
    rbf(RB[0], RB[0])
    a.valu('v_add_f32', RB[0], RB[0], RB[24])
    a.dpp('v_mov_b32', RB[1], RB[0], ctrl='row_ror:12')
    a.valu('v_cvt_pk_bf16_f32', RB[0], RB[0], RB[1])
    a.valu('v_min_u32', RB[0], -2, RB[0])
    L_hs = a.newlabel('hs')
    a.salu('s_cmp_eq_u32', None, sT3, 0)
    a.branch('s_cbranch_scc1', L_hs)
    a.vstore('buffer_store_dword', RB[0], vT[7], rWS, sT1, WS_H, '')
    a.branch('s_branch', L_b5)
    a.label(L_hs)
    a.vstore('buffer_store_dword', RB[0], vT[7], rWS, sT1, WS_H, STF)
    a.branch('s_branch', L_b5)
    a.label(L_nw0)
    a.salu('s_cmp_lt_u32', None, sW, 4)
    a.branch('s_cbranch_scc1', L_b5)
    a.salu('s_sub_u32', sT3, sW, 4)
    a.salu('s_mul_i32', sT4, sT3, 896)
    a.valu('v_mov_b32', vT[5], BIGOFF)
    a.valu('v_cndmask_b32', vT[7], vT[5], vL16, m56)
    a.valu('v_add_u32', vT[6], sT4, vL16)
    hp = RB[4:8]
    xf = RB[16:24]

    def ldc():
        a.vload('buffer_load_dwordx4', hp, vT[7], rWS, sT4, WS_H, LDF)

    def condc():
        a.valu('v_max3_u32', vT[0], hp[0], hp[1], hp[2])
        a.valu('v_max_u32', vT[0], vT[0], hp[3])
        a.valu('v_cmp_eq_u32', 'vcc', -1, vT[0])
        a.salu('s_cmp_eq_u64', None, 'vcc', 0)

    if pp > 1:
        spin_pipe([V(228 + 4 * k, 4) for k in range(pp)], hp, lambda st: a.vload('buffer_load_dwordx4', st, vT[7], rWS, sT4, WS_H, LDF), 1, stagger=1)
    else:
        spin_until(ldc, condc, first_check=False, sleep=0)
    stamp('poll')
    unpack8(xf, hp)
    a.salu('s_mov_b64', 'exec', m56)
    a.ds('ds_write_b128', vT[6], hp, offset=L_HB)
    a.salu('s_mov_b64', 'exec', -1)
    layernorm([(xf, vT[0:4], sX0, sX1)])
    for i in range(4):
        a.valu('v_cvt_pk_bf16_f32', RB[i], xf[2 * i], xf[2 * i + 1])
    a.salu('s_mov_b64', 'exec', m56)
    a.ds('ds_write_b128', vT[6], RB[0:4], offset=L_XN2)
    a.salu('s_mov_b64', 'exec', -1)
    if debug:
        for i in range(4):
            dump(hp[i], 33 + i)
            dump(RB[i], 37 + i)
    a.label(L_b5)
    a.wait_lgkm(0)
    a.barrier()
    stamp('B5')
    L_b6 = a.newlabel('b6')
    a.salu('s_cmp_ge_u32', None, sW, 4)
    a.branch('s_cbranch_scc1', L_b6)
    a.valu('v_and_b32', vT[6], 3, vLane)
    a.valu('v_mul_u32_u24', vT[6], 896, vT[6])
    a.valu('v_lshl_add_u32', vT[6], vG, 4, vT[6])
    for ks in range(14):
        a.ds('ds_read_b128', FA[4 * ks:4 * ks + 4], vT[6], offset=L_XN2 + 64 * ks)
    Z = RB[0:4]
    for ks in range(14):
        a.wait_lgkm(min(13 - ks, 15))
        a.mfma(Z, FA[4 * ks:4 * ks + 4], F1B[4 * ks:4 * ks + 4], 0 if ks == 0 else Z)
    a.salu('s_lshl_b32', sT2, sW, 5)
    a.valu('v_lshlrev_b32', vT[6], 1, vJ)
    a.valu('v_add_u32', vT[6], sT2, vT[6])
    a.salu('s_mov_b32', sT3, -LOG2E)
    for r in range(4):
        rbf(Z[r], Z[r])
    for r in range(4):
        a.valu('v_mul_f32', RB[4 + r], sT3, Z[r])
    for r in range(4):
        a.valu('v_exp_f32', RB[4 + r], RB[4 + r])
    for r in range(4):
        a.valu('v_add_f32', RB[4 + r], 1.0, RB[4 + r])
    for r in range(4):
        a.valu('v_rcp_f32', RB[4 + r], RB[4 + r])
    for r in range(4):
        a.valu('v_mul_f32', Z[r], Z[r], RB[4 + r])
    for r in range(4):
        a.valu('v_cvt_pk_bf16_f32', Z[r], Z[r], Z[r])
        a.ds('ds_write_b16', vT[6], Z[r], offset=L_GB + 128 * r)
    if debug:
        for r in range(4):
            dump(Z[r], 41 + r)
    a.label(L_b6)
    a.wait_lgkm(0)
    a.barrier()
    stamp('B6')
    L_fin = a.newlabel('fin')
    a.salu('s_cmp_ge_u32', None, sW, 7)
    a.branch('s_cbranch_scc1', L_fin)
    a.valu('v_and_b32', vT[6], 3, vLane)
    a.valu('v_lshlrev_b32', vT[6], 7, vT[6])
    a.valu('v_lshl_add_u32', vT[6], vG, 4, vT[6])
    a.ds('ds_read_b128', FA[0:4], vT[6], offset=L_GB)
    a.ds('ds_read_b128', FA[4:8], vT[6], offset=L_GB + 64)
    a.valu('v_mov_b32', vT[4], L_SAME)
    a.ds('ds_read_b32', vT[5], vT[4])
    a.salu('s_mul_i32', sT2, sW, 4 * 7168)
    a.salu('s_lshl_b32', sT3, sF, 8)
    a.salu('s_add_u32', sT2, sT2, sT3)
    a.salu('s_add_u32', sT2, sT2, WS_INBOX)
    a.wait_lgkm(0)
    O2 = [RB[4 * tt:4 * tt + 4] for tt in range(4)]
    for tt in range(4):
        a.mfma(O2[tt], FA[0:4], F2B[(tt * 2) * 4:(tt * 2) * 4 + 4], 0)
    for tt in range(4):
        a.mfma(O2[tt], FA[4:8], F2B[(tt * 2 + 1) * 4:(tt * 2 + 1) * 4 + 4], O2[tt])
    a.valu('v_readfirstlane_b32', sT3, vT[5])
    a.salu('s_mov_b64', 'exec', 0xffff)
    L_slow = a.newlabel('slow')
    L_sd = a.newlabel('sd')
    a.salu('s_cmp_eq_u32', None, sT3, 0)
    a.branch('s_cbranch_scc1', L_slow)
    for flags, lab in (('', None), (STF, L_slow)):
        if lab:
            a.label(lab)
        for tt in range(4):
            for r in range(4):
                a.valu('v_min_u32', O2[tt][r], -2, O2[tt][r])
            a.vstore('buffer_store_dwordx4', O2[tt], vL16, rWS, sT2, 0, flags)
            if tt < 3:
                a.salu('s_add_u32', sT2, sT2, 7168)
        if not lab:
            a.branch('s_branch', L_sd)
    a.label(L_sd)
    a.salu('s_or_b32', sT2, sF, sW)
    a.salu('s_cmp_lg_u32', None, sT2, 0)
    a.branch('s_cbranch_scc1', 'L_endp')
    a.salu('s_mov_b64', 'exec', 1)
    a.valu('v_mov_b32', vT[4], sEp)
    a.valu('v_mov_b32', vT[5], 0)
    a.salu('s_mov_b32', sT2, WS_EPOCH)
    a.vstore('buffer_store_dword', vT[4], vT[5], rWS, sT2, 0, STF)
    a.branch('s_branch', 'L_endp')
    a.label(L_fin)
    a.valu('v_mul_u32_u24', vT[6], 896, vG)
    a.valu('v_lshl_add_u32', vT[6], vJ, 1, vT[6])
    a.salu('s_lshl_b32', sT2, sF, 5)
    a.valu('v_add_u32', vT[6], sT2, vT[6])
    a.ds('ds_read_u16', vT[7], vT[6], offset=L_HB)
    a.salu('s_mul_i32', sT3, sF, 7168)
    a.salu('s_add_u32', sT3, sT3, WS_INBOX)
    a.salu('s_add_u32', sT4, sT3, 4096)
    IB = V(116, 28) if pp <= 1 else V(172, 28)

    def ldi():
        for i in range(7):
            a.vload('buffer_load_dwordx4', IB[4 * i:4 * i + 4], vL16, rWS, sT3 if i < 4 else sT4, (i % 4) * 1024, LDF)

    def condi():
        a.valu('v_max3_u32', vT[0], IB[0], IB[1], IB[2])
        for i in range(3, 27, 2):
            a.valu('v_max3_u32', vT[0], vT[0], IB[i], IB[i + 1])
        a.valu('v_max_u32', vT[0], vT[0], IB[27])
        a.valu('v_cmp_eq_u32_e64', S(100, 2), -1, vT[0])
        a.salu('s_cmp_eq_u64', None, S(100, 2), 0)

    if pp > 1:
        def ldi2(st):
            for i in range(7):
                a.vload('buffer_load_dwordx4', st[4 * i:4 * i + 4], vL16, rWS, sT3 if i < 4 else sT4, (i % 4) * 1024, LDF)

        spin_pipe([V(116, 28), V(144, 28)], IB, ldi2, 7, stagger=2)
    else:
        spin_until(ldi, condi, first_check=False, sleep=0)
    stamp('inbox')
    for i in range(1, 7):
        for r in range(4):
            a.valu('v_add_f32', IB[r], IB[r], IB[4 * i + r])
    for r in range(4):
        a.valu('v_mov_b32', IB[4 + r], IB[r])
    for r in range(4):
        a.valu('v_permlane16_swap_b32', IB[r], IB[4 + r])
    for r in range(4):
        a.valu('v_add_f32', IB[r], IB[r], IB[4 + r])
    for r in range(4):
        a.valu('v_mov_b32', IB[4 + r], IB[r])
    for r in range(4):
        a.valu('v_permlane32_swap_b32', IB[r], IB[4 + r])
    for r in range(4):
        a.valu('v_add_f32', IB[r], IB[r], IB[4 + r])
    for r in range(1, 4):
        a.valu('v_cmp_eq_u32', 'vcc', r, vG)
        a.valu('v_cndmask_b32', IB[0], IB[0], IB[r], 'vcc')
    rbf(IB[0], IB[0])
    a.wait_lgkm(0)
    a.valu('v_lshlrev_b32', vT[7], 16, vT[7])
    a.valu('v_add_f32', IB[0], IB[0], vT[7])
    a.valu('v_cvt_pk_bf16_f32', IB[0], IB[0], IB[0])
    a.vstore('buffer_store_short', IB[0], vT[6], rOUT, 0, 0)
    a.label('L_endp')
    stamp('end')
    stamp_store()
    a.label('L_end')
    A('  s_endpgm')
    A('.section .rodata,"a"')
    A('.p2align 6')
    A(f'.amdhsa_kernel {KNAME}')
    A('  .amdhsa_next_free_vgpr 256')
    A('  .amdhsa_next_free_sgpr 102')
    A('  .amdhsa_accum_offset 256')
    A('  .amdhsa_group_segment_fixed_size 0')
    A('  .amdhsa_kernarg_size 88')
    A('  .amdhsa_user_sgpr_count 2')
    A('  .amdhsa_user_sgpr_kernarg_segment_ptr 1')
    A('  .amdhsa_system_sgpr_workgroup_id_x 1')
    A('  .amdhsa_float_denorm_mode_32 3')
    A('.end_amdhsa_kernel')
    if prof:
        A('; STAMPS ' + ' '.join(stamp_names))
    return a.text()


if __name__ == '__main__':
    out = [x for x in sys.argv[1:] if not x.startswith('--')]
    path = out[0] if out else os.path.join(os.path.dirname(os.path.abspath(__file__)), '..', 'cdna_kernels', NAME + '.s')
    kw = {}
    for x in sys.argv[1:]:
        if x.startswith('--') and '=' in x:
            k_, v_ = x[2:].split('=')
            kw[k_] = int(v_)
    open(path, 'w').write(build(debug='--debug' in sys.argv, prof='--prof' in sys.argv, **kw))
    print('wrote', path)
```
